```python
import torch

def _softmax(x, axis=-1):
    return torch.softmax(x, dim=axis)
def _gelu(x):
    return torch.nn.functional.gelu(x, approximate="tanh")
def _silu(x):
    return torch.nn.functional.silu(x)
def _sigmoid(x):
    return torch.sigmoid(x)
def _layernorm(x, axis=-1, eps=1e-5):
    m = x.mean(dim=axis, keepdim=True)
    v = x.var(dim=axis, keepdim=True, unbiased=False)
    return (x - m) / torch.sqrt(v + eps)
def _scatter_add(tgt, idx, src, axis=0):
    return tgt.clone().index_add_(axis, idx, src)
def _segment_sum(src, seg, n):
    out = torch.zeros((n,) + src.shape[1:], dtype=src.dtype)
    return out.index_add_(0, seg, src)
def _pad(x, pw):
    flat = tuple(v for pair in reversed(pw) for v in pair)
    return torch.nn.functional.pad(x, flat)

kernel_name = 'interleave_layers__mha_block__glu_gated_swiglu__prompt'

def setup_inputs():

    _w = (lambda a: (lambda t: t.to(torch.bfloat16) if t.is_floating_point() else t)(torch.as_tensor(a)))
    def _A_setup():
        B, S, D, H = 1, 2048, 512, 32
        return {
            "x": _w((lambda *s: torch.randn(*s, dtype=torch.bfloat16) * 0.05)(B, S, D)),
            "wqkv": _w((lambda *s: torch.randn(*s, dtype=torch.bfloat16) * 0.05)(D, 3 * D)),
            "wo": _w((lambda *s: torch.randn(*s, dtype=torch.bfloat16) * 0.05)(D, D)),
        }
    _A_in = _A_setup()

    def _B_setup():
        B, S, D, F = 1, 2048, 512, 1792
        return {
            "x": _w((lambda *s: torch.randn(*s, dtype=torch.bfloat16) * 0.05)(B, S, D)),
            "w1": _w((lambda *s: torch.randn(*s, dtype=torch.bfloat16) * 0.4)(D, F) * (2.0 / D) ** 0.5),
            "w3": _w((lambda *s: torch.randn(*s, dtype=torch.bfloat16) * 0.4)(D, F) * (2.0 / D) ** 0.5),
            "w2": _w((lambda *s: torch.randn(*s, dtype=torch.bfloat16) * 0.4)(F, D) * (2.0 / F) ** 0.5),
        }
    _B_in = _B_setup()

    return {
        "A_x": _A_in["x"],
        "A_wqkv": _A_in["wqkv"],
        "A_wo": _A_in["wo"],
        "B_x": _B_in["x"],
        "B_w1": _B_in["w1"],
        "B_w3": _B_in["w3"],
        "B_w2": _B_in["w2"],
    }

def reference(A_x, A_wqkv, A_wo, B_x, B_w1, B_w3, B_w2):
    def _A_ref(x, wqkv, wo):
        B, S, D = x.shape
        H = 32
        Dh = D // H
        qkv = (lambda x, *d: x.permute(*d))((x @ wqkv).reshape(B, S, 3, H, Dh), 2, 0, 3, 1, 4)
        q, k, v = qkv[0], qkv[1], qkv[2]
        scores = torch.einsum("bhqd,bhkd->bhqk", q, k) * (Dh ** -0.5)
        p = _softmax(scores, axis=-1)
        o = torch.einsum("bhqk,bhkd->bhqd", p, v)
        return (lambda x, *d: x.permute(*d))(o, 0, 2, 1, 3).reshape(B, S, D) @ wo

    def _B_ref(x, w1, w3, w2):
        gate = torch.einsum("bsd,df->bsf", x, w1)
        up = torch.einsum("bsd,df->bsf", x, w3)
        h = _silu(gate) * up
        out = torch.einsum("bsf,fd->bsd", h, w2)
        return out

    x = A_x
    x = x + _A_ref(_layernorm(x, axis=-1), A_wqkv, A_wo)
    x = x + _B_ref(_layernorm(x, axis=-1), B_w1, B_w3, B_w2)
    x = x + _A_ref(_layernorm(x, axis=-1), A_wqkv, A_wo)
    x = x + _B_ref(_layernorm(x, axis=-1), B_w1, B_w3, B_w2)
    return x
```

```python
import re

TRANS = ("v_exp_f32", "v_log_f32", "v_rcp_f32", "v_rsq_f32", "v_sqrt_f32", "v_sin_f32", "v_cos_f32")


def vr(a, n=1):
    return f"v{a}" if n == 1 else f"v[{a}:{a + n - 1}]"


def ar(a, n=1):
    return f"a{a}" if n == 1 else f"a[{a}:{a + n - 1}]"


def sr(a, n=1):
    return f"s{a}" if n == 1 else f"s[{a}:{a + n - 1}]"


class R:
    def __init__(self, kind, base):
        self.k, self.b = kind, base

    def __call__(self, off=0, n=1):
        return (vr if self.k == "v" else ar)(self.b + off, n)


class Asm:
    def __init__(self):
        self.lines = []
        self.vmq = []
        self.lq = []
        self.tail = []
        self.uid = 0

    def e(self, s):
        for x in s.split("\n"):
            x = x.strip()
            if x:
                self.lines.append(x)

    def label(self, base):
        self.uid += 1
        return f"L_{base}_{self.uid}"

    def vm(self, text, tag=None):
        self.e(text)
        self.vmq.append(tag)

    def vwait(self, tag):
        idx = [i for i, t in enumerate(self.vmq) if t == tag]
        if not idx:
            return False
        i = idx[-1]
        n = len(self.vmq) - 1 - i
        if n > 63:
            n = 63
            i = len(self.vmq) - 1 - n
        self.e(f"s_waitcnt vmcnt({n})")
        self.vmq = self.vmq[i + 1:]
        return True

    def vwait0(self):
        self.e("s_waitcnt vmcnt(0)")
        self.vmq = []

    def ds(self, text, tag=None):
        self.e(text)
        self.lq.append(tag)

    def lwait(self, tag):
        idx = [i for i, t in enumerate(self.lq) if t == tag]
        if not idx:
            return False
        i = idx[-1]
        n = len(self.lq) - 1 - i
        if n > 15:
            n = 15
            i = len(self.lq) - 1 - n
        self.e(f"s_waitcnt lgkmcnt({n})")
        self.lq = self.lq[i + 1:]
        return True

    def lwait0(self):
        self.e("s_waitcnt lgkmcnt(0)")
        self.lq = []


_REG = re.compile(r"^(-?)(?:abs\()?([vas])(?:(\d+)|\[(\d+):(\d+)\])\)?$")


def regs_of(op):
    op = op.strip()
    if op in ("vcc", "vcc_lo", "vcc_hi"):
        return {("s", 106), ("s", 107)}
    if op in ("exec", "exec_lo", "exec_hi"):
        return {("s", 126), ("s", 127)}
    if op == "m0":
        return {("s", 124)}
    m = _REG.match(op)
    if not m:
        return set()
    k = m.group(2)
    if m.group(3) is not None:
        return {(k, int(m.group(3)))}
    return {(k, i) for i in range(int(m.group(4)), int(m.group(5)) + 1)}


class Ins:
    def __init__(self, text):
        self.text = text
        t = text.split(";")[0].strip()
        self.is_label = t.endswith(":") or t.startswith(".")
        self.op = "" if self.is_label else t.split()[0]
        rest = t[len(self.op):].strip() if not self.is_label else ""
        ops, depth, cur = [], 0, ""
        for ch in rest:
            if ch == "[" or ch == "(":
                depth += 1
            if ch == "]" or ch == ")":
                depth -= 1
            if ch == "," and depth == 0:
                ops.append(cur.strip())
                cur = ""
            else:
                cur += ch
        if cur.strip():
            ops.append(cur.strip())
        self.mods = ""
        if ops:
            last = ops[-1].split(None, 1)
            ops[-1] = last[0]
            self.mods = last[1] if len(last) > 1 else ""
        self.ops = ops
        op = self.op
        self.w, self.r = set(), set()
        self.srcc = set()
        self.ab = set()
        self.data = set()
        self.cls = "other"
        rg = [regs_of(o) for o in ops]
        if op.startswith("v_mfma"):
            self.cls = "mfma"
            self.w = rg[0]
            self.ab = rg[1] | rg[2]
            self.srcc = rg[3]
            self.r = self.ab | self.srcc
        elif op.startswith("v_smfmac"):
            self.cls = "mfma"
            self.w = rg[0]
            self.ab = rg[1] | rg[2] | rg[3]
            self.srcc = rg[0]
            self.r = self.ab | self.srcc
        elif op.startswith("v_"):
            self.cls = "valu"
            if op.startswith("v_permlane"):
                self.w = rg[0] | rg[1]
                self.r = rg[0] | rg[1]
            elif op.startswith("v_nop"):
                pass
            else:
                self.w = set(rg[0])
                self.r = set().union(*rg[1:]) if len(rg) > 1 else set()
                if op.startswith(("v_fmac", "v_dot2c", "v_writelane")):
                    self.r |= rg[0]
                if op.startswith("v_cndmask") and len(ops) == 3:
                    self.r |= regs_of("vcc")
        elif op.startswith("buffer_") or op.startswith("global_"):
            self.cls = "vmem"
            if op in ("buffer_wbl2", "buffer_inv"):
                pass
            elif "lds" in self.mods.split():
                self.r = set().union(*rg) | regs_of("m0")
                self.cls = "vmem"
                self.dma = True
            elif "load" in op:
                self.w = rg[0]
                self.r = set().union(*rg[1:])
            elif op.startswith("buffer_store"):
                self.r = set().union(*rg)
                self.data = rg[0]
            else:
                self.r = set().union(*rg)
        elif op.startswith("ds_"):
            self.cls = "ds"
            if "read" in op:
                self.w = rg[0]
                self.r = set().union(*rg[1:]) if len(rg) > 1 else set()
            else:
                self.r = set().union(*rg)
        elif op.startswith("s_"):
            self.cls = "salu"
            if op.startswith(("s_cmp", "s_cbranch", "s_branch", "s_waitcnt", "s_nop", "s_barrier", "s_sleep", "s_endpgm", "s_setprio")):
                self.r = set().union(*rg) if rg else set()
            else:
                self.w = rg[0] if rg else set()
                self.r = set().union(*rg[1:]) if len(rg) > 1 else set()
        self.trans = op.startswith(TRANS)
        self.dot = op.startswith("v_dot")
        self.passes = 0
        if self.cls == "mfma":
            self.passes = 8 if "32x32" in op else 4

    def states(self):
        if self.is_label:
            return 0
        if self.op == "s_nop":
            return int(self.ops[0]) + 1
        return 1


def need(p, c):
    n = 0
    pv = {x for x in p.w if x[0] in "va"}
    ps = {x for x in p.w if x[0] == "s"}
    if p.cls == "valu":
        if c.cls == "mfma" and pv & c.r:
            n = max(n, 2)
        if c.cls == "valu":
            if c.op.startswith("v_permlane") and pv & c.r:
                n = max(n, 2)
            if c.op.startswith(("v_readlane", "v_readfirstlane")) and pv & c.r:
                n = max(n, 1)
            if "dpp" in c.op and pv & c.r:
                n = max(n, 2)
            if p.trans and not c.trans and pv & c.r:
                n = max(n, 1)
            if ps & c.r:
                n = max(n, 4 if c.op.startswith(("v_readlane", "v_writelane")) else 2)
            if "sdwa" in p.op and pv & (c.r | c.w):
                n = max(n, 1)
            if p.dot:
                if c.op == p.op:
                    csrc = set().union(*[regs_of(o) for o in c.ops[1:3]])
                    if pv & csrc:
                        n = max(n, 3)
                elif pv & (c.r | c.w):
                    n = max(n, 3)
        if p.dot and c.cls in ("vmem", "ds", "mfma") and pv & c.r:
            n = max(n, 3)
        if c.cls == "vmem" and ps & c.r:
            n = max(n, 5)
        if c.cls == "salu" and ps & c.r:
            n = max(n, 1)
        if c.op.startswith("s_cbranch_vcc") and ps & regs_of("vcc"):
            n = max(n, 1)
    if p.cls == "mfma":
        big = {4: 8, 8: 12}[p.passes]
        if c.cls == "valu" and pv & (c.r | c.w):
            n = max(n, big)
        if c.cls in ("vmem", "ds") and pv & (c.r | c.w):
            n = max(n, big)
        if c.cls == "mfma":
            if pv & c.ab:
                n = max(n, big)
            if pv & c.srcc and not (pv == c.srcc and c.passes == p.passes):
                n = max(n, big - 2)
            if pv & c.w and not (pv == c.srcc and c.passes == p.passes):
                n = max(n, big - 2)
        if c.cls == "valu" and p.srcc & c.w:
            n = max(n, {4: 3, 8: 7}[p.passes])
    if p.cls == "vmem" and len(p.data) >= 3 and p.data & c.w:
        n = max(n, 2 if c.cls == "valu" else 1)
    if p.cls == "salu" and regs_of("m0") & p.w and c.cls == "vmem" and regs_of("m0") & c.r:
        n = max(n, 1)
    return n


def fix_hazards(lines, verbose=False):
    out = []
    ins = []
    report = []
    for ln in lines:
        c = Ins(ln)
        if not c.is_label:
            dist = 0
            worst = 0
            why = None
            for p in reversed(ins):
                if dist >= 20:
                    break
                if not p.is_label:
                    k = need(p, c) - dist
                    if k > worst:
                        worst, why = k, p
                dist += p.states()
            if worst > 0:
                nop = f"s_nop {worst - 1}"
                out.append(nop)
                ins.append(Ins(nop))
                report.append((worst, why.text, ln))
        out.append(ln)
        ins.append(c)
    return out, report
```

```python
import os
import sys
from collections import deque

sys.path.insert(0, os.path.dirname(os.path.abspath(__file__)))
from asmlib import Asm, R, ar, fix_hazards, sr, vr

NAME = "interleave_layers__mha_block__glu_gated_swiglu__prompt"

FA_L, FB, FC, FD, FE, FR, FA_G = 0x0000, 0x4000, 0x8000, 0xC000, 0x10000, 0x14000, 0x20000
TS = 0x80000
ST = 0x100000
WQ, WO, W13, W2 = 0x200000, 0x380000, 0x400000, 0x780000
LB0, LBS = 0xA00000, 0x1400000
oQ, oKV, oO, oX1, oX2, oH = 0x0, 0x200000, 0x600000, 0x800000, 0xA00000, 0xC00000
WS_BYTES = 0x10000000

sWS, sXIN, sOUT, sDBG, sWQ, sRA, sRB = 8, 12, 16, 20, 24, 28, 32
sX, sC, sW, sT, sHP, sTA, sTB, sNA, sCB, sMode, sTO, sMask = range(36, 48)
t0, t1, t2, t3, t4, t5, t6, t7, t8, t9, t10, t11 = range(48, 60)
sVM = 60
sQS, sNL = 62, 63
pX, pWQ, pWO, pBX, pW1, pW3, pW2, pOUT, pDBG, pWS = range(64, 84, 2)
sTS = 84
vL16, vL4, vIdx, vFl = 0, 1, 2, 3
vt0, vt1, vt2, vt3 = 4, 5, 6, 7
vRes = 8
WB = 224

LOG2E = 1.4426950408889634
TIMEOUT = 0x80000


def f2u(x):
    import struct
    return struct.unpack("<I", struct.pack("<f", x))[0]


class Cfg:
    passes = [(0, 4), (4, 6), (6, 7)]
    stop = None
    ts = False
    ts_skip = ('C1st', 'D1st', 'E1st', 'A1st')
    force_slow = False
    force_fallback = False
    ew_in_b = 28


class Gen(Asm):
    def __init__(self, cfg):
        super().__init__()
        self.cfg = cfg
        self.nts = 0
        self.tsnames = []

    def srd(self, s, ptr, size):
        self.e(f"s_mov_b32 s{s}, s{ptr}\ns_mov_b32 s{s + 1}, s{ptr + 1}\ns_mov_b32 s{s + 2}, {size}\ns_mov_b32 s{s + 3}, 0x20000")

    def ld(self, dst, voff, srd, soff, imm=0, mods="sc1", tag=None, w=4):
        op = {1: "dword", 2: "dwordx2", 4: "dwordx4"}[w]
        so = f"s{soff}" if soff is not None else "0"
        o = f" offset:{imm}" if imm else ""
        self.vm(f"buffer_load_{op} {dst}, v{voff}, {sr(srd, 4)}, {so} offen{o} {mods}".rstrip(), tag)

    def st_text(self, src, voff, srd, soff, imm=0, mods="", w=4):
        op = {1: "dword", 2: "dwordx2", 4: "dwordx4"}[w]
        so = f"s{soff}" if soff is not None else "0"
        o = f" offset:{imm}" if imm else ""
        return f"buffer_store_{op} {src}, v{voff}, {sr(srd, 4)}, {so} offen{o} {mods}".rstrip()

    def st(self, src, voff, srd, soff, imm=0, mods="", tag=None, w=4):
        self.vm(self.st_text(src, voff, srd, soff, imm, mods, w), tag)

    def dma(self, voff, srd, soff, imm=0, mods="sc1", tag=None):
        so = f"s{soff}" if soff is not None else "0"
        o = f" offset:{imm}" if imm else ""
        m = (mods + " lds").strip()
        self.vm(f"buffer_load_dwordx4 v{voff}, {sr(srd, 4)}, {so} offen{o} {m}", tag)

    def stamp(self, name):
        if not self.cfg.ts:
            return
        if name in self.cfg.ts_skip:
            return
        if self.nts >= 18:
            return
        self.e(f"s_memrealtime s[4:5]\ns_waitcnt lgkmcnt(0)\ns_mov_b32 s{sTS + self.nts}, s4")
        self.lq = []
        self.tsnames.append(name)
        self.nts += 1

    def dual(self, fast, slow, nvm):
        ls, lj = self.label("slow"), self.label("join")
        self.e(f"s_cmp_lg_u32 s{sMode}, 0\ns_cbranch_scc1 {ls}")
        self.e(fast)
        self.e(f"{lj}:")
        self.tail.append(f"{ls}:\n{slow}\ns_branch {lj}")
        self.vmq += [None] * nvm

    def signal(self, ftype, val, local):
        self.e(f"v_mov_b32 v{vt1}, {val}")
        st = f"s_mov_b64 exec, {1 << ftype}\nbuffer_store_dword v{vt1}, v{vFl}, {sr(sWS, 4)}, 0 offen%s\ns_mov_b64 exec, -1"
        if local:
            self.dual(st % "", "buffer_wbl2 sc1\ns_waitcnt vmcnt(0)\n" + st % " sc1", 1)
        else:
            self.e(st % " sc1")
            self.vmq.append(None)

    def poll(self, voff, soff, val, local, sleep=0):
        L = self.label("poll")
        self.e(f"s_mov_b32 s{sTO}, {TIMEOUT}\n{L}:")
        self.e(f"buffer_load_dword v{vt1}, v{voff}, {sr(sWS, 4)}, s{soff} offen sc1")
        self.e(f"s_sub_u32 s{sTO}, s{sTO}, 1\ns_cbranch_scc1 L_exit")
        if sleep:
            self.e(f"s_sleep {sleep}")
        self.vwait0()
        self.e(f"v_cmp_gt_u32 vcc, {val}, v{vt1}\ns_nop 0\ns_cbranch_vccnz {L}")
        if local:
            self.dual("", "buffer_inv sc1\ns_waitcnt vmcnt(0)", 0)

    def salu(self, text):
        self.e(text)

    def prologue(self):
        g = self
        g.e("s_cmp_ge_u32 s2, 256\ns_cbranch_scc1 L_exit")
        g.e("s_load_dwordx16 s[64:79], s[0:1], 0\ns_load_dwordx4 s[80:83], s[0:1], 64")
        g.e(f"v_lshrrev_b32 v{vt0}, 6, v0\nv_and_b32 v{vt1}, 63, v0")
        g.e(f"v_readfirstlane_b32 s{sW}, v{vt0}")
        g.e(f"v_lshlrev_b32 v{vL4}, 2, v{vt1}\nv_lshlrev_b32 v{vL16}, 4, v{vt1}")
        g.e(f"v_mov_b32 v{vIdx}, 0xdddddddd")
        g.e(f"""
        s_and_b32 s{sX}, s2, 7
        s_lshr_b32 s{sC}, s2, 3
        s_and_b32 s{sHP}, s{sC}, 15
        s_and_b32 s{sCB}, s{sC}, 7
        s_lshr_b32 s{t0}, s{sC}, 4
        s_lshl_b32 s{t0}, s{t0}, 2
        s_add_u32 s{t0}, s{t0}, s{sW}
        s_lshl_b32 s{t1}, s{sX}, 3
        s_add_u32 s{sT}, s{t1}, s{t0}
        s_lshr_b32 s{t2}, s{sC}, 3
        s_lshl_b32 s{t2}, s{t2}, 1
        s_add_u32 s{t2}, s{t2}, s{t1}
        s_lshr_b32 s{t3}, s{sW}, 1
        s_add_u32 s{sTA}, s{t2}, s{t3}
        s_xor_b32 s{sTB}, s{sTA}, 1
        s_and_b32 s{sNA}, s{sW}, 1
        s_mov_b32 s{sMask}, 0xffff0000
        s_mov_b32 s{sVM}, 0x0000ffff
        s_mov_b32 s{sVM + 1}, 0x0000ffff
        s_mov_b32 s{sQS}, {f2u(0.25 * LOG2E):#x}
        s_mov_b32 s{sNL}, {f2u(-LOG2E):#x}
        s_mov_b32 s{sMode}, 1
        """)
        g.e(f"v_mov_b32 v{vFl}, 0")
        g.e(f"""
        s_lshl_b32 s{t4}, s{sX}, 4
        s_add_u32 s{t4}, s{t4}, s{sHP}
        s_lshl_b32 s{t4}, s{t4}, 7
        s_lshl_b32 s{t5}, s{t0}, 2
        s_add_u32 s{t4}, s{t4}, s{t5}
        s_add_u32 s{t4}, s{t4}, {FA_L}
        v_writelane_b32 v{vFl}, s{t4}, 0
        s_lshl_b32 s{t4}, s{sHP}, 6
        s_add_u32 s{t4}, s{t4}, s{sT}
        s_lshl_b32 s{t4}, s{t4}, 7
        s_add_u32 s{t4}, s{t4}, {FA_G}
        v_writelane_b32 v{vFl}, s{t4}, 1
        s_lshl_b32 s{t4}, s{sX}, 2
        s_add_u32 s{t4}, s{t4}, s{sW}
        s_lshl_b32 s{t4}, s{t4}, 2
        s_lshr_b32 s{t5}, s{sC}, 3
        s_add_u32 s{t4}, s{t4}, s{t5}
        s_lshl_b32 s{t4}, s{t4}, 7
        s_lshl_b32 s{t5}, s{sCB}, 2
        s_add_u32 s{t4}, s{t4}, s{t5}
        s_add_u32 s{t4}, s{t4}, {FB}
        v_writelane_b32 v{vFl}, s{t4}, 2
        s_lshl_b32 s{t4}, s{sTA}, 7
        s_lshl_b32 s{t5}, s{sCB}, 1
        s_add_u32 s{t5}, s{t5}, s{sNA}
        s_lshl_b32 s{t5}, s{t5}, 2
        s_add_u32 s{t4}, s{t4}, s{t5}
        s_add_u32 s{t5}, s{t4}, {FC}
        v_writelane_b32 v{vFl}, s{t5}, 3
        s_add_u32 s{t5}, s{t4}, {FE}
        v_writelane_b32 v{vFl}, s{t5}, 5
        s_lshr_b32 s{t4}, s{sT}, 1
        s_lshl_b32 s{t4}, s{t4}, 2
        s_lshr_b32 s{t5}, s{sHP}, 2
        s_add_u32 s{t4}, s{t4}, s{t5}
        s_lshl_b32 s{t4}, s{t4}, 7
        s_and_b32 s{t5}, s{sT}, 1
        s_lshl_b32 s{t5}, s{t5}, 2
        s_and_b32 s{t6}, s{sHP}, 3
        s_add_u32 s{t5}, s{t5}, s{t6}
        s_lshl_b32 s{t5}, s{t5}, 2
        s_add_u32 s{t4}, s{t4}, s{t5}
        s_add_u32 s{t4}, s{t4}, {FD}
        v_writelane_b32 v{vFl}, s{t4}, 4
        s_lshl_b32 s{t4}, s2, 2
        s_add_u32 s{t4}, s{t4}, {FR}
        v_writelane_b32 v{vFl}, s{t4}, 6
        """)
        g.e("s_waitcnt lgkmcnt(0)")
        g.srd(sWS, pWS, WS_BYTES)
        g.srd(sXIN, pX, 2048 * 1024)
        g.srd(sWQ, pWQ, 512 * 3072)
        g.srd(sOUT, pOUT, 2048 * 1024)
        g.srd(sDBG, pDBG, 256)
        g.srd(sRA, pWO, 512 * 1024)
        g.srd(sRB, pWO, 512 * 1024)
        g.stamp("start")
        g.e(f"v_mov_b32 v{vt1}, 0\ns_mov_b64 exec, 0x7f")
        g.st(vr(vt1), vFl, sWS, None, mods="sc1", tag="zero", w=1)
        g.e("s_mov_b64 exec, -1")

    def handshake_send(self):
        g = self
        g.vwait("zero")
        g.e("s_barrier")
        L = g.label("hs")
        g.e(f"s_getreg_b32 s{t0}, hwreg(HW_REG_XCC_ID, 0, 4)\ns_or_b32 s{t0}, s{t0}, 0x80")
        g.e(f"v_mov_b32 v{vt1}, s{t0}\nv_mov_b32 v{vt2}, s2")
        g.e(f"s_cmp_eq_u32 s{sW}, 0\ns_cbranch_scc0 {L}\ns_mov_b64 exec, 1")
        g.e(f"buffer_store_byte v{vt1}, v{vt2}, {sr(sDBG, 4)}, 0 offen sc1\ns_mov_b64 exec, -1\n{L}:")

    def handshake_check(self):
        g = self
        L = g.label("hc")
        g.e(f"s_mov_b32 s{sTO}, {TIMEOUT}\n{L}:")
        g.e(f"buffer_load_dword v{vt1}, v{vL4}, {sr(sDBG, 4)}, 0 offen sc1")
        g.e(f"s_sub_u32 s{sTO}, s{sTO}, 1\ns_cbranch_scc1 L_exit")
        g.e(f"s_mov_b32 s{t0}, 0x80808080")
        g.vwait0()
        g.e(f"v_and_b32 v{vt2}, s{t0}, v{vt1}\nv_cmp_ne_u32 vcc, s{t0}, v{vt2}\ns_nop 0\ns_cbranch_vccnz {L}")
        g.e(f"""
        v_readlane_b32 s{t0}, v{vt1}, 0
        v_readlane_b32 s{t1}, v{vt1}, 1
        s_mov_b32 s{t2}, 0xaaaaaaaa
        s_mov_b32 s{t3}, 0xaaaaaaaa
        v_mov_b32 v{vt2}, s{t0}
        v_mov_b32 v{vt3}, s{t1}
        v_cndmask_b32 v{vt2}, v{vt2}, v{vt3}, s[{t2}:{t3}]
        v_cmp_ne_u32 vcc, v{vt2}, v{vt1}
        s_nop 1
        s_cmp_lg_u64 vcc, 0
        s_cselect_b32 s{sMode}, 1, 0
        """)
        if g.cfg.force_slow:
            g.e(f"s_mov_b32 s{sMode}, 1")

    def norm_ops(self, X, ks, rs, bi, tmp):
        ops = []
        for d in range(4):
            r = X + 4 * ks + d
            a, b = tmp, tmp + 1
            ops += [
                f"v_lshlrev_b32 v{a}, 16, v{r}",
                f"v_and_b32 v{b}, s{sMask}, v{r}",
                f"v_fma_f32 v{a}, v{a}, v{rs}, v{bi}",
                f"v_fma_f32 v{b}, v{b}, v{rs}, v{bi}",
                f"v_cvt_pk_bf16_f32 v{r}, v{a}, v{b}",
            ]
        return ops

    def finish_stats(self, s, rs, bi, tmp):
        g = self
        g.e(f"""
        v_mov_b32 v{tmp}, v{s}
        s_nop 1
        v_permlane32_swap_b32 v{s}, v{tmp}
        v_mul_f32 v{s}, {f2u(1 / 512):#x}, v{s}
        v_mul_f32 v{tmp}, {f2u(1 / 512):#x}, v{tmp}
        v_fma_f32 v{tmp}, -v{s}, v{s}, v{tmp}
        v_max_f32 v{tmp}, 0, v{tmp}
        v_add_f32 v{tmp}, {f2u(1e-5):#x}, v{tmp}
        v_rsq_f32 v{rs}, v{tmp}
        s_nop 0
        v_mul_f32 v{bi}, v{s}, v{rs}
        v_sub_f32 v{bi}, 0, v{bi}
        """)

    def load_x_stats(self, layer, which, xoff, X, SB):
        g = self
        g.e(f"s_lshl_b32 s{t0}, s{sT}, 12\ns_add_u32 s{t0}, s{t0}, {ST + (2 * layer + which) * 0x40000}")
        for q in range(4):
            g.ld(vr(SB + 4 * q, 4), vL16, sWS, t0, q * 1024, tag="stat")
        g.e(f"s_lshl_b32 s{t1}, s{sT}, 15\ns_add_u32 s{t1}, s{t1}, {xoff}")
        for ks in range(32):
            if ks and ks % 4 == 0:
                g.e(f"s_add_u32 s{t1}, s{t1}, 4096")
            g.ld(vr(X + 4 * ks, 4), vL16, sWS, t1, (ks % 4) * 1024, tag=("x", ks))

    def sum_stats(self, SB, rs, bi, tmp):
        g = self
        g.vwait("stat")
        n = 16
        while n > 2:
            n //= 2
            for i in range(0, n, 2):
                g.e(f"v_pk_add_f32 {vr(SB + i, 2)}, {vr(SB + i, 2)}, {vr(SB + n + i, 2)}")
        g.e(f"v_add_f32 v{SB}, v{SB}, v{SB + 1}")
        g.finish_stats(SB, rs, bi, tmp)

    def dma_ops(self, first, count, gsoff_expr, lds_base, tag, ts):
        g = self
        a, b = ts
        ops = []

        def setup():
            g.e(f"s_mul_i32 s{a}, s{sW}, {count * 1024}")
            g.e(f"s_add_u32 s{b}, s{a}, s{gsoff_expr}")
        ops.append(setup)

        def setup2():
            g.e(f"s_add_u32 s{b}, s{b}, {first * 1024}\ns_add_u32 s{a}, s{a}, {lds_base}")
        ops.append(setup2)
        for i in range(count):
            def op(i=i):
                if i % 4 == 0:
                    if i:
                        g.e(f"s_add_u32 s{a}, s{a}, 4096\ns_add_u32 s{b}, s{b}, 4096")
                    g.e(f"s_mov_b32 m0, s{a}\ns_nop 0")
                g.dma(vL16, sWS, b, (i % 4) * 1024, tag=tag)
            ops.append(op)
        return ops

    def phaseA(self, layer):
        g = self
        raw = layer == 0
        LB = LB0 + layer * LBS
        X, AQ, AK, AV = 16, 144, 160, 176
        rs, bi, tmp = 192, 193, 194
        vA0, vA1 = 196, 197
        SB = 200
        LW = 65536
        if raw:
            g.e(f"""
            v_lshrrev_b32 v{vt0}, 4, v{vL16}
            v_and_b32 v{vt2}, 31, v{vt0}
            v_lshrrev_b32 v{vt3}, 5, v{vt0}
            v_lshlrev_b32 v{SB}, 10, v{vt2}
            v_lshl_add_u32 v{SB}, v{vt3}, 4, v{SB}
            s_lshl_b32 s{t0}, s{sT}, 15
            s_lshr_b32 s{t1}, s{sHP}, 1
            """)
            for gq in range(8):
                g.e(f"s_add_u32 s{t2}, s{t1}, {gq}\ns_and_b32 s{t2}, s{t2}, 7\ns_lshl_b32 s{t2}, s{t2}, 7\ns_add_u32 s{t2}, s{t2}, s{t0}")
                for i in range(4):
                    g.ld(vr(X + 4 * (4 * gq + i), 4), SB, sXIN, t2, i * 32, mods="", tag=("x", 4 * gq + i))
            for i in range(3):
                r = SB + 1 + i
                g.e(f"""
                v_add_u32 v{vt2}, {64 * i}, v{vt0}
                v_mul_u32_u24 v{vt3}, 0x1556, v{vt2}
                v_lshrrev_b32 v{vt3}, 16, v{vt3}
                v_mul_u32_u24 v{r}, 12, v{vt3}
                v_sub_u32 v{vt2}, v{vt2}, v{r}
                v_mul_u32_u24 v{r}, 3072, v{vt3}
                v_lshrrev_b32 v{vt3}, 2, v{vt2}
                v_lshl_add_u32 v{r}, v{vt3}, 10, v{r}
                v_and_b32 v{vt2}, 3, v{vt2}
                v_lshl_add_u32 v{r}, v{vt2}, 4, v{r}
                """)
            g.e(f"s_lshl_b32 s{t3}, s{sHP}, 6\ns_mul_i32 s{t4}, s{sW}, 3072\ns_add_u32 s{t4}, s{t4}, {LW}")
            for gq in range(8):
                g.e(f"""
                s_add_u32 s{t2}, s{t1}, {gq}
                s_and_b32 s{t2}, s{t2}, 7
                s_lshl_b32 s{t2}, s{t2}, 2
                s_add_u32 s{t2}, s{t2}, s{sW}
                s_mul_i32 s{t2}, s{t2}, 49152
                s_add_u32 s{t2}, s{t2}, s{t3}
                """)
                for i in range(3):
                    g.e(f"s_add_u32 s{t5}, s{t4}, {gq * 4 * 3072 + i * 1024}\ns_mov_b32 m0, s{t5}\ns_nop 0")
                    g.dma(SB + 1 + i, sWQ, t2, 0, mods="", tag=("w", gq))
            g.e(f"""
            s_lshl_b32 s{t0}, s{sTA}, 15
            s_lshl_b32 s{t2}, s{sCB}, 1
            s_add_u32 s{t2}, s{t2}, s{sNA}
            s_lshl_b32 s{t2}, s{t2}, 6
            s_add_u32 s{t0}, s{t0}, s{t2}
            """)
            g.ld(vr(vRes, 4), SB, sXIN, t0, 0, mods="", tag="res")
            g.ld(vr(vRes + 4, 4), SB, sXIN, t0, 32, mods="", tag="res")
            g.handshake_send()
            g.e(f"""
            v_lshrrev_b32 v{vt2}, 5, v{vt0}
            v_lshlrev_b32 v{vt2}, 3, v{vt2}
            v_bfe_u32 v{vt3}, v{vt0}, 2, 2
            v_add_u32 v{vt2}, v{vt2}, v{vt3}
            v_mul_u32_u24 v{vA0}, 192, v{vt2}
            v_bfe_u32 v{vt3}, v{vt0}, 4, 1
            v_lshl_add_u32 v{vA0}, v{vt3}, 5, v{vA0}
            v_and_b32 v{vt3}, 1, v{vt0}
            v_lshl_add_u32 v{vA0}, v{vt3}, 4, v{vA0}
            v_bfe_u32 v{vt3}, v{vt0}, 1, 1
            v_lshl_add_u32 v{vA0}, v{vt3}, 3, v{vA0}
            v_add_u32 v{vA0}, {LW}, v{vA0}
            v_add_u32 v{vA1}, 49152, v{vA0}
            """)
            acc = [SB + 4 + i for i in range(4)]
            one = SB + 8
            g.e(f"v_mov_b32 v{one}, 0x3f803f80")
            for a in acc:
                g.e(f"v_mov_b32 v{a}, 0")
            for ks in range(32):
                g.vwait(("x", ks))
                for d in range(4):
                    r = X + 4 * ks + d
                    g.e(f"v_dot2c_f32_bf16 v{acc[d % 2]}, v{r}, v{one}")
                    g.e(f"v_dot2c_f32_bf16 v{acc[2 + d % 2]}, v{r}, v{r}")
            g.e(f"s_nop 2\nv_add_f32 v{acc[0]}, v{acc[0]}, v{acc[1]}\nv_add_f32 v{acc[2]}, v{acc[2]}, v{acc[3]}\ns_nop 1")
            g.e(f"v_permlane32_swap_b32 v{acc[0]}, v{acc[2]}\nv_add_f32 v{acc[0]}, v{acc[0]}, v{acc[2]}")
            g.finish_stats(acc[0], rs, bi, tmp)
        else:
            g.e(f"v_and_b32 v{vt0}, 60, v{vL4}\ns_lshl_b32 s{t2}, s{sT}, 7\ns_add_u32 s{t2}, s{t2}, {FE}")
            g.e(f"v_add_u32 v{vA0}, {LW}, v{vL16}\nv_add_u32 v{vA1}, {LW + 49152}, v{vL16}")
            g.poll(vt0, t2, layer, True)
            g.stamp(f"A{layer}go")
            g.load_x_stats(layer - 1, 1, LB - LBS + oX2, X, SB)
            g.sum_stats(SB, rs, bi, tmp)

        def wread(f):
            ks, n = divmod(f, 3)
            base = vA0 if ks < 16 else vA1
            b = WB + 4 * (f % 8)
            if raw:
                off = (ks % 16) * 3072 + n * 64
                g.ds(f"ds_read_b64_tr_b16 {ar(b, 2)}, v{base} offset:{off}", ("w", f))
                g.ds(f"ds_read_b64_tr_b16 {ar(b + 2, 2)}, v{base} offset:{off + 768}", ("w", f))
            else:
                off = ((ks % 16) * 3 + n) * 1024
                g.ds(f"ds_read_b128 {ar(b, 4)}, v{base} offset:{off}", ("w", f))

        def wready(gq):
            g.vwait(("w", gq))
            g.e("s_barrier")

        side = deque()
        for ks in range(32):
            side.append(("x", ks))
            side.extend(g.norm_ops(X, ks, rs, bi, tmp))

        def take(n):
            while n > 0 and side:
                o = side.popleft()
                if isinstance(o, tuple):
                    g.vwait(o)
                else:
                    g.e(o)
                    n -= 1

        LEAD = 5
        if raw:
            wready(1)
        for f in range(LEAD):
            wread(f)
        take(22)
        accs = [AQ, AK, AV]
        for ks in range(32):
            g.lwait(("w", 3 * ks + 2))
            for n in range(3):
                f = 3 * ks + n
                wb = ar(WB + 4 * (f % 8), 4)
                xb = vr(X + 4 * ks, 4)
                c = vr(accs[n], 16) if ks else "0"
                a_, b_ = (wb, xb) if n < 2 else (xb, wb)
                g.e(f"v_mfma_f32_32x32x16_bf16 {vr(accs[n], 16)}, {a_}, {b_}, {c}")
                fn = f + LEAD
                if fn < 96:
                    if raw and fn % 24 == 0:
                        wready(fn // 12 + 1)
                    wread(fn)
                take((7, 7, 6)[n])
        g.e("s_barrier")
        if raw:
            g.handshake_check()
        g.e(f"""
        v_lshrrev_b32 v{vt0}, 4, v{vL16}
        v_and_b32 v{vt2}, 0x33, v{vt0}
        v_bfe_u32 v{vt3}, v{vt0}, 2, 1
        v_lshl_add_u32 v{vt2}, v{vt3}, 3, v{vt2}
        v_bfe_u32 v{vt3}, v{vt0}, 3, 1
        v_lshl_add_u32 v{vt2}, v{vt3}, 2, v{vt2}
        v_lshlrev_b32 v{SB}, 4, v{vt2}
        v_bfe_u32 v{vt2}, v{vt0}, 4, 1
        v_lshlrev_b32 v{SB + 1}, 17, v{vt2}
        v_lshrrev_b32 v{vt2}, 5, v{vt0}
        v_lshl_add_u32 v{SB + 1}, v{vt2}, 8, v{SB + 1}
        v_and_b32 v{vt2}, 15, v{vt0}
        v_lshl_add_u32 v{SB + 1}, v{vt2}, 4, v{SB + 1}
        s_lshl_b32 s{t0}, s{sHP}, 7
        s_add_u32 s{t0}, s{t0}, s{sT}
        s_lshl_b32 s{t1}, s{t0}, 11
        s_add_u32 s{t1}, s{t1}, {LB + oKV}
        s_add_u32 s{t2}, s{t1}, 0x20000
        s_lshl_b32 s{t3}, s{t0}, 10
        s_add_u32 s{t3}, s{t3}, {LB + oQ}
        s_add_u32 s{t4}, s{t3}, 0x10000
        """)
        P = 208
        for i in range(8):
            g.e(f"v_cvt_pk_bf16_f32 v{P + i}, v{AK + 2 * i}, v{AK + 2 * i + 1}")
        g.st(vr(P, 4), SB, sWS, t1, 0, "sc1")
        g.st(vr(P + 4, 4), SB, sWS, t2, 0, "sc1")
        for i in range(8):
            g.e(f"v_cvt_pk_bf16_f32 v{P + 8 + i}, v{AV + 2 * i}, v{AV + 2 * i + 1}")
        g.st(vr(P + 8, 4), SB + 1, sWS, t1, 1024, "sc1")
        g.st(vr(P + 12, 4), SB + 1, sWS, t1, 1536, "sc1")
        for i in range(16):
            g.e(f"v_mul_f32 v{AQ + i}, s{sQS}, v{AQ + i}")
        for i in range(8):
            g.e(f"v_cvt_pk_bf16_f32 v{P + 16 + i}, v{AQ + 2 * i}, v{AQ + 2 * i + 1}")
        g.st(vr(P + 16, 4), vL16, sWS, t3, 0)
        g.st(vr(P + 20, 4), vL16, sWS, t4, 0)
        g.stamp(f"A{layer}st")

    def relayout_ops(self, ui):
        g = self
        passes = g.cfg.passes
        u, typ = t4, t5
        sRS, sSO, sDO, sDS, sLD = t6, t7, t8, t9, t10
        vS = vt2
        D = 244
        ops = []
        L = [g.label("rl") for _ in range(5)]

        def setup():
            g.e(f"""
            s_add_u32 s{u}, s2, {256 * ui}
            s_sub_u32 s{t11}, s{u}, 256
            s_cmp_ge_u32 s{u}, 464
            s_cselect_b32 s{u}, s{t11}, s{u}
            s_cmp_ge_u32 s{u}, 224
            s_cbranch_scc1 {L[0]}
            """)
            g.srd(sRA, pW1, 512 * 3584)
            g.srd(sRB, pW3, 512 * 3584)
            g.e(f"""
            s_mov_b32 s{sRS}, 3584
            s_lshr_b32 s{t0}, s{u}, 3
            s_lshl_b32 s{t0}, s{t0}, 2
            s_add_u32 s{t0}, s{t0}, s{sW}
            s_and_b32 s{t1}, s{u}, 7
            s_mul_i32 s{sSO}, s{t1}, {64 * 3584}
            s_lshl_b32 s{t2}, s{t0}, 5
            s_add_u32 s{sSO}, s{sSO}, s{t2}
            s_mul_i32 s{t2}, s{t0}, 9363
            s_lshr_b32 s{t2}, s{t2}, 16
            s_mul_i32 s{t3}, s{t2}, 7
            s_sub_u32 s{t3}, s{t0}, s{t3}
            s_mul_i32 s{sDO}, s{t2}, 229376
            s_add_u32 s{sDO}, s{sDO}, {W13}
            s_mov_b32 s{t2}, {passes[0][0]}
            s_mov_b32 s{sDS}, {(passes[0][1] - passes[0][0]) * 1024}
            """)
            for a, b in passes[1:]:
                g.e(f"s_cmp_ge_u32 s{t3}, {a}\ns_cselect_b32 s{t2}, {a}, s{t2}\ns_cselect_b32 s{sDS}, {(b - a) * 1024}, s{sDS}")
            g.e(f"""
            s_mul_i32 s{t0}, s{t2}, 31
            s_add_u32 s{t0}, s{t0}, s{t3}
            s_lshl_b32 s{t0}, s{t0}, 10
            s_add_u32 s{sDO}, s{sDO}, s{t0}
            s_mov_b32 s{typ}, 0
            s_branch {L[4]}
            {L[0]}:
            s_cmp_ge_u32 s{u}, 336
            s_cbranch_scc1 {L[1]}
            """)
            g.srd(sRA, pW2, 1792 * 1024)
            g.srd(sRB, pW2, 1792 * 1024)
            g.e(f"""
            s_sub_u32 s{t0}, s{u}, 224
            s_lshr_b32 s{t1}, s{t0}, 2
            s_and_b32 s{t0}, s{t0}, 3
            s_mov_b32 s{t2}, {112 * 2048}
            s_mov_b32 s{t3}, {W2}
            s_branch {L[3]}
            {L[1]}:
            s_cmp_ge_u32 s{u}, 432
            s_cbranch_scc1 {L[2]}
            """)
            g.srd(sRA, pWQ, 512 * 3072)
            g.srd(sRB, pWQ, 512 * 3072)
            g.e(f"""
            s_mov_b32 s{sRS}, 3072
            s_sub_u32 s{t0}, s{u}, 336
            s_and_b32 s{t1}, s{t0}, 7
            s_lshr_b32 s{t0}, s{t0}, 3
            s_lshl_b32 s{t0}, s{t0}, 2
            s_add_u32 s{t0}, s{t0}, s{sW}
            s_mul_i32 s{sSO}, s{t1}, {64 * 3072}
            s_lshl_b32 s{t2}, s{t0}, 6
            s_add_u32 s{sSO}, s{sSO}, s{t2}
            s_and_b32 s{t2}, s{t0}, 15
            s_mul_i32 s{sDO}, s{t2}, {32 * 3072}
            s_lshr_b32 s{t2}, s{t0}, 4
            s_lshl_b32 s{t2}, s{t2}, 10
            s_add_u32 s{sDO}, s{sDO}, s{t2}
            s_add_u32 s{sDO}, s{sDO}, {WQ}
            s_mov_b32 s{sDS}, 3072
            s_mov_b32 s{typ}, 32
            s_branch {L[4]}
            {L[2]}:
            """)
            g.srd(sRA, pWO, 512 * 1024)
            g.srd(sRB, pWO, 512 * 1024)
            g.e(f"""
            s_sub_u32 s{t0}, s{u}, 432
            s_lshr_b32 s{t1}, s{t0}, 2
            s_and_b32 s{t0}, s{t0}, 3
            s_mov_b32 s{t2}, {32 * 2048}
            s_mov_b32 s{t3}, {WO}
            {L[3]}:
            s_mov_b32 s{sRS}, 1024
            s_lshl_b32 s{t0}, s{t0}, 2
            s_add_u32 s{t0}, s{t0}, s{sW}
            s_lshl_b32 s{sSO}, s{t1}, 16
            s_lshl_b32 s{t11}, s{t0}, 6
            s_add_u32 s{sSO}, s{sSO}, s{t11}
            s_lshr_b32 s{t11}, s{t0}, 1
            s_mul_i32 s{sDO}, s{t11}, s{t2}
            s_and_b32 s{t11}, s{t0}, 1
            s_lshl_b32 s{t11}, s{t11}, 10
            s_add_u32 s{sDO}, s{sDO}, s{t11}
            s_add_u32 s{sDO}, s{sDO}, s{t3}
            s_mov_b32 s{sDS}, 2048
            s_mov_b32 s{typ}, 32
            {L[4]}:
            s_lshl_b32 s{t0}, s{sDS}, 2
            s_mul_i32 s{t0}, s{t0}, s{t1}
            s_add_u32 s{sDO}, s{sDO}, s{t0}
            s_lshl_b32 s{sLD}, s{sW}, 13
            s_add_u32 s{sLD}, s{sLD}, {104 * 1024 + ui * 4096}
            v_lshrrev_b32 v{vS}, 5, v{vL16}
            v_mul_lo_u32 v{vS}, v{vS}, s{sRS}
            v_and_b32 v{vt3}, 16, v{vL16}
            v_add_u32 v{vS}, v{vS}, v{vt3}
            s_lshl_b32 s{t0}, s{sRS}, 5
            s_add_u32 s{t0}, s{t0}, s{sSO}
            s_add_u32 s{t1}, s{sSO}, s{typ}
            s_add_u32 s{t2}, s{t0}, s{typ}
            """)
            for i, (srd, so) in enumerate(((sRA, sSO), (sRA, t0), (sRB, t1), (sRB, t2))):
                g.e(f"s_add_u32 s{t3}, s{sLD}, {i * 1024}\ns_mov_b32 m0, s{t3}\ns_nop 0")
                g.dma(vS, srd, so, 0, mods="", tag=("rl", ui))
        ops.append(setup)

        def addr():
            g.vwait(("rl", ui))
            g.e(f"""
            v_lshrrev_b32 v{vt3}, 4, v{vL16}
            v_lshrrev_b32 v{vS}, 5, v{vt3}
            v_lshlrev_b32 v{vS}, 8, v{vS}
            v_bfe_u32 v{vt1}, v{vt3}, 2, 2
            v_lshl_add_u32 v{vS}, v{vt1}, 5, v{vS}
            v_bfe_u32 v{vt1}, v{vt3}, 4, 1
            v_lshl_add_u32 v{vS}, v{vt1}, 11, v{vS}
            v_and_b32 v{vt1}, 1, v{vt3}
            v_lshl_add_u32 v{vS}, v{vt1}, 4, v{vS}
            v_bfe_u32 v{vt1}, v{vt3}, 1, 1
            v_lshl_add_u32 v{vS}, v{vt1}, 3, v{vS}
            v_add_u32 v{vS}, s{sLD}, v{vS}
            """)
        ops2 = [addr]
        for i in range(4):
            d = D + 4 * (i % 2)

            def rd(i=i, d=d):
                g.ds(f"ds_read_b64_tr_b16 {vr(d, 2)}, v{vS} offset:{i * 512}", ("rl", i))
                g.ds(f"ds_read_b64_tr_b16 {vr(d + 2, 2)}, v{vS} offset:{i * 512 + 128}", ("rl", i))

            def wr(i=i, d=d):
                g.lwait(("rl", i))
                g.st(vr(d, 4), vL16, sWS, sDO, 0, "sc1", tag="rlst")
                g.e(f"s_add_u32 s{sDO}, s{sDO}, s{sDS}")
            ops2 += [rd, wr]
        return ops, ops2

    def ew_ops(self, lo, hi, ts):
        g = self
        a, b = ts
        ops = []

        def setup():
            g.e(f"s_mul_i32 s{a}, s{sCB}, {112 * 2048}\ns_mul_i32 s{b}, s{sW}, {28 * 2048}")
        def setup2():
            g.e(f"s_add_u32 s{a}, s{a}, s{b}\ns_add_u32 s{a}, s{a}, {W2 + (lo // 4) * 4096}")
        def setup3():
            g.e(f"s_lshl_b32 s{b}, s{sNA}, 10\ns_add_u32 s{a}, s{a}, s{b}")
        def setup4():
            g.e(f"s_xor_b32 s{b}, s{a}, 1024")
        ops += [setup, setup2, setup3, setup4]
        assert lo % 4 == 0
        for idx in range(lo, hi):
            def op(idx=idx):
                i, n = divmod(idx, 2)
                if idx > lo and idx % 4 == 0:
                    g.e(f"s_add_u32 s{a}, s{a}, 4096\ns_add_u32 s{b}, s{b}, 4096")
                g.ld(ar(4 * idx, 4), vL16, sWS, (a, b)[n], (i % 2) * 2048, tag="ew")
            ops.append(op)
        return ops

    def phaseB(self, layer):
        g = self
        cfg = g.cfg
        LB = LB0 + layer * LBS
        O, Q, S, KV = 16, 144, 176, 208
        vV = 252
        CW = [R("a", 224 + 4 * i) for i in range(8)] + [R("v", 220 + 4 * i) for i in range(8)]
        SBo, SBl = 104 * 1024, 152 * 1024
        sKV, sG = 6, 7
        for j in range(8):
            for r in range(9):
                g.e(f"v_mov_b32 v{O + 16 * j + r}, 0")
        g.vwait0()
        g.signal(0, layer + 1, True)
        g.signal(1, layer + 1, False)
        for e in range(3):
            for r in range(4, 12):
                g.e(f"v_mov_b32 v{KV + 12 * e + r}, 0x3f803f80")
        g.e(f"""
        v_lshrrev_b32 v{vt0}, 9, v{vL16}
        v_lshlrev_b32 v{vV}, 8, v{vt0}
        v_and_b32 v{vt0}, 0xf0, v{vL16}
        v_add_u32 v{vV}, v{vV}, v{vt0}
        v_and_b32 v{vt0}, 28, v{vL4}
        s_lshl_b32 s{t0}, s{sX}, 4
        s_lshr_b32 s{t1}, s{sC}, 1
        s_add_u32 s{t0}, s{t0}, s{t1}
        s_lshl_b32 s{t0}, s{t0}, 7
        s_add_u32 s{t0}, s{t0}, {FA_L}
        s_lshl_b32 s{sG}, s{t1}, 6
        s_lshl_b32 s{t2}, s{sW}, 1
        s_add_u32 s{sG}, s{sG}, s{t2}
        s_lshl_b32 s{sG}, s{sG}, 7
        s_add_u32 s{sG}, s{sG}, {FA_G}
        s_lshl_b32 s{sKV}, s{sC}, 6
        s_add_u32 s{sKV}, s{sKV}, s{t2}
        s_lshl_b32 s{sKV}, s{sKV}, 11
        s_add_u32 s{sKV}, s{sKV}, {LB + oKV}
        s_lshl_b32 s{t3}, s{sC}, 6
        s_lshl_b32 s{t4}, s{sX}, 3
        s_add_u32 s{t3}, s{t3}, s{t4}
        s_lshl_b32 s{t3}, s{t3}, 10
        s_add_u32 s{t3}, s{t3}, {LB + oQ}
        """)
        g.poll(vt0, t0, layer + 1, True)
        g.stamp(f"B{layer}go")

        def kv_addr(kt):
            g.e(f"s_add_u32 s3, s{sX}, {kt // 2}\ns_and_b32 s3, s3, 7")
            g.e(f"s_lshl_b32 s3, s3, 14\ns_add_u32 s3, s3, s{sKV}")

        def ldK(kt):
            g.ld(vr(KV + 12 * (kt % 3), 4), vL16, sWS, 3, (kt % 2) * 2048, tag=("K", kt))

        def ldV(kt):
            e = KV + 12 * (kt % 3)
            g.e(f"s_mov_b64 exec, s[{sVM}:{sVM + 1}]")
            g.ld(vr(e + 4, 4), vV, sWS, 3, (kt % 2) * 2048 + 1024, tag=("V", kt))
            g.ld(vr(e + 8, 4), vV, sWS, 3, (kt % 2) * 2048 + 1536, tag=("V", kt))
            g.e("s_mov_b64 exec, -1")

        def ldQ(j):
            g.e(f"s_add_u32 s{t4}, s{t2}, {2 + j}\ns_and_b32 s{t4}, s{t4}, 7\ns_lshl_b32 s{t4}, s{t4}, 10\ns_add_u32 s{t4}, s{t4}, s{t3}")
            g.ld(vr(Q + 4 * j, 4), vL16, sWS, t4, 0, tag=("Q", j))
        kv_addr(0)
        ldK(0)
        ldQ(0)
        ldQ(1)
        ldV(0)
        for j in range(2, 8):
            ldQ(j)
        ldK(1)
        ldV(1)

        gaps = {}

        def at(n, gap, fn):
            gaps.setdefault((n, gap), []).append(fn)

        def spread(ops, n0, per_tile=3, gapset="ABC"):
            n, k = n0, 0
            for op in ops:
                at(n, gapset[k], op)
                k += 1
                if k == min(per_tile, len(gapset)):
                    n, k = n + 1, 0
            return n + 1

        for j in range(1, 8):
            at(j - 1, "A", lambda j=j: g.vwait(("Q", j)))
        at(0, "B", lambda: g.vwait(("V", 0)))
        for kt in range(1, 16):
            at(8 * kt - 1, "A", lambda kt=kt: g.vwait(("V", kt)))

        def gpoll_issue():
            g.e(f"v_and_b32 v{vt0}, 14, v{vt3}\nv_lshlrev_b32 v{vt0}, 9, v{vt0}")
        def gpoll_pre():
            g.e(f"v_lshrrev_b32 v{vt3}, 4, v{vL16}")
        def gpoll_issue2():
            g.e(f"v_and_b32 v{vt3}, 1, v{vt3}\nv_lshl_add_u32 v{vt0}, v{vt3}, 7, v{vt0}")
        def gpoll_ld():
            g.ld(vr(vt1), vt0, sWS, sG, 0, tag="gf", w=1)

        def gpoll_check():
            g.vwait("gf")
            ls, lj, lp = g.label("gslow"), g.label("gjoin"), g.label("gp")
            g.e(f"v_cmp_gt_u32 vcc, {layer + 1}, v{vt1}\ns_nop 0\ns_cbranch_vccnz {ls}\n{lj}:")
            g.tail.append(f"""{ls}:
            s_mov_b32 s{sTO}, {TIMEOUT}
            {lp}:
            s_sleep 2
            buffer_load_dword v{vt1}, v{vt0}, {sr(sWS, 4)}, s{sG} offen sc1
            s_sub_u32 s{sTO}, s{sTO}, 1
            s_cbranch_scc1 L_exit
            s_waitcnt vmcnt(0)
            v_cmp_gt_u32 vcc, {layer + 1}, v{vt1}
            s_nop 0
            s_cbranch_vccnz {lp}
            s_branch {lj}""")
        at(1, "B", gpoll_pre)
        at(1, "C", gpoll_issue)
        at(2, "B", gpoll_issue2)
        at(4, "C", gpoll_ld)
        at(7, "B", gpoll_check)
        at(7, "B", lambda: kv_addr(2))
        at(7, "B", lambda: ldK(2))
        at(7, "C", lambda: ldV(2))
        for kt in range(3, 16):
            n = 8 * (kt - 2)
            if kt % 2 == 0:
                at(n, "A", lambda kt=kt: kv_addr(kt))
            at(n, "B", lambda kt=kt: ldK(kt))
            at(n, "C", lambda kt=kt: ldV(kt))

        def w13base():
            g.e(f"s_mul_i32 s{t11}, s{sHP}, 229376\ns_add_u32 s{t11}, s{t11}, {W13}")
        if layer == 0:
            o1a, o1b = g.relayout_ops(0)
            o2a, o2b = g.relayout_ops(1)
            at(9, "A", o1a[0])
            n = spread(o1b, 25, 2, "AC")
            at(n, "A", o2a[0])
            n = spread(o2b, n + 12, 2, "AC")

            def rl_sig():
                g.vwait("rlst")
                g.e("s_barrier")
                L = g.label("rls")
                g.e(f"v_mov_b32 v{vt1}, 1\ns_cmp_eq_u32 s{sW}, 0\ns_cbranch_scc0 {L}\ns_mov_b64 exec, 64")
                g.e(f"buffer_store_dword v{vt1}, v{vFl}, {sr(sWS, 4)}, 0 offen sc1\ns_mov_b64 exec, -1\n{L}:")
            n += 8
            at(n, "A", rl_sig)

            def rl_ld():
                g.e(f"s_mov_b32 s{t10}, {FR}")
                g.ld(vr(244, 4), vL16, sWS, t10, 0, tag="rf")

            def rl_check():
                g.vwait("rf")
                ls, lj, lp = g.label("rslow"), g.label("rjoin"), g.label("rp")
                chk = "v_min_u32 v244, v244, v245\nv_min3_u32 v244, v244, v246, v247\nv_cmp_gt_u32 vcc, 1, v244\ns_nop 0\n"
                g.e(chk + f"s_cbranch_vccnz {ls}\n{lj}:")
                g.tail.append(f"""{ls}:
                s_mov_b32 s{sTO}, {TIMEOUT}
                {lp}:
                s_sleep 4
                buffer_load_dwordx4 v[244:247], v{vL16}, {sr(sWS, 4)}, s{t10} offen sc1
                s_sub_u32 s{sTO}, s{sTO}, 1
                s_cbranch_scc1 L_exit
                s_waitcnt vmcnt(0)
                {chk}s_cbranch_vccnz {lp}
                s_branch {lj}""")
            n += 12
            at(n, "A", rl_ld)
            n += 5
            at(n, "A", rl_check)
            n0 = n + 1
        else:
            n0 = 18
        at(n0, "A", w13base)
        n = spread(g.dma_ops(0, 26, t11, 0, "w13a", (t8, t9)), n0 + 1, 2, "AC")
        if layer == 0 and cfg.ew_in_b:
            n = spread(g.ew_ops(0, cfg.ew_in_b, (t8, t9)), n, 2, "AC")
        assert n <= 113, n

        def cw_setup():
            g.e(f"s_lshl_b32 s{t8}, s{sCB}, 16\ns_lshl_b32 s{t9}, s{sW}, 14")
        def cw_setup2():
            g.e(f"s_add_u32 s{t8}, s{t8}, s{t9}\ns_lshl_b32 s{t9}, s{sNA}, 10")
        def cw_setup3():
            g.e(f"s_add_u32 s{t8}, s{t8}, s{t9}\ns_add_u32 s{t8}, s{t8}, {WO}")
        def cw_setup4():
            g.e(f"s_xor_b32 s{t9}, s{t8}, 1024")
        cw = []
        for idx in range(16):
            def op(idx=idx):
                i, n_ = divmod(idx, 2)
                if idx and idx % 4 == 0:
                    g.e(f"s_add_u32 s{t8}, s{t8}, 4096\ns_add_u32 s{t9}, s{t9}, 4096")
                g.ld(CW[idx](0, 4), vL16, sWS, (t8, t9)[n_], (i % 2) * 2048, tag="cw")
            cw.append(op)
        spread([cw_setup, cw_setup2, cw_setup3, cw_setup4] + cw[:11], 113, 2, "AC")
        spread(cw[11:], 121, 1, "B")

        def red_addr(d):
            g.e(f"s_add_u32 s{t0}, s{sW}, {1 + d}\ns_and_b32 s{t0}, s{t0}, 3")
        def red_addr2(d):
            g.e(f"s_mul_i32 s{t0}, s{t0}, 6\ns_add_u32 s{t0}, s{t0}, {2 * d}")
        def red_addr3(d):
            g.e(f"s_lshl_b32 s{t1}, s{t0}, 11\ns_add_u32 s{t1}, s{t1}, {SBo}\nv_add_u32 v{vt0}, s{t1}, v{vL16}")
            g.e(f"s_lshl_b32 s{t1}, s{t0}, 8\ns_add_u32 s{t1}, s{t1}, {SBl}\nv_add_u32 v{vt2}, s{t1}, v{vL4}")

        def red_wr(j, part):
            b = O + 16 * j
            s_ = j % 2
            if part == 0:
                g.ds(f"ds_write_b128 v{vt0}, {vr(b, 4)} offset:{s_ * 2048}")
            elif part == 1:
                g.ds(f"ds_write_b128 v{vt0}, {vr(b + 4, 4)} offset:{s_ * 2048 + 1024}")
            else:
                g.ds(f"ds_write_b32 v{vt2}, v{b + 8} offset:{s_ * 256}")
        for j in range(6):
            n = 120 + j + 2
            if j % 2 == 0:
                at(n - 1, "A", lambda d=j // 2: red_addr(d))
                at(n - 1, "B", lambda d=j // 2: red_addr2(d))
                at(n - 1, "D", lambda d=j // 2: red_addr3(d))
            at(n, "A", lambda j=j: red_wr(j, 0))
            at(n, "B", lambda j=j: red_wr(j, 1))
            at(n, "C", lambda j=j: red_wr(j, 2))

        def run(n, gap):
            for fn in gaps.pop((n, gap), []):
                fn()

        def qk(n):
            kt, j = divmod(n, 8)
            g.e(f"v_mfma_f32_32x32x16_bf16 {vr(S + 16 * (n % 2), 16)}, {vr(KV + 12 * (kt % 3), 4)}, {vr(Q + 4 * j, 4)}, 0")

        def pv(n, half):
            kt, j = divmod(n, 8)
            g.e(f"v_smfmac_f32_32x32x32_bf16 {vr(O + 16 * j, 16)}, {vr(KV + 12 * (kt % 3) + 4 + 4 * half, 4)}, {vr(S + 16 * (n % 2) + 8 * half, 8)}, v{vIdx}")

        g.vwait(("Q", 0))
        qk(0)
        for n in range(128):
            sb = S + 16 * (n % 2)
            ex = [f"v_exp_f32 v{sb + i}, v{sb + i}" for i in range(16)]
            g.e("\n".join(ex[0:2]))
            if n:
                pv(n - 1, 1)
            run(n, "A")
            g.e("\n".join(ex[2:5]))
            if n < 127:
                qk(n + 1)
            run(n, "B")
            g.e("\n".join(ex[5:10]))
            pv(n, 0)
            run(n, "C")
            g.e("\n".join(ex[10:16]))
            run(n, "D")
        assert not gaps, gaps.keys()
        g.vwait("w13a")
        g.lwait0()
        pv(127, 1)
        g.e("s_barrier")
        g.e(f"""
        s_mul_i32 s{t0}, s{sW}, 6
        s_lshl_b32 s{t1}, s{t0}, 11
        s_add_u32 s{t1}, s{t1}, {SBo}
        v_add_u32 v{vt0}, s{t1}, v{vL16}
        s_lshl_b32 s{t1}, s{t0}, 8
        s_add_u32 s{t1}, s{t1}, {SBl}
        v_add_u32 v{vt2}, s{t1}, v{vL4}
        """)
        PB = 16
        for s_ in range(2):
            for d in range(3):
                b = PB + 10 * (3 * s_ + d)
                g.ds(f"ds_read_b128 {vr(b, 4)}, v{vt0} offset:{(2 * d + s_) * 2048}", ("p", s_))
                g.ds(f"ds_read_b128 {vr(b + 4, 4)}, v{vt0} offset:{(2 * d + s_) * 2048 + 1024}", ("p", s_))
                g.ds(f"ds_read_b32 v{b + 8}, v{vt2} offset:{(2 * d + s_) * 256}", ("p", s_))
            if s_ == 0:
                g.e(f"""
                s_lshl_b32 s{t0}, s{sX}, 3
                s_lshl_b32 s{t1}, s{sW}, 1
                s_add_u32 s{t0}, s{t0}, s{t1}
                s_lshl_b32 s{t0}, s{t0}, 5
                s_add_u32 s{t0}, s{t0}, s{sC}
                s_lshl_b32 s{t0}, s{t0}, 10
                s_add_u32 s{t0}, s{t0}, {LB + oO}
                s_add_u32 s{t1}, s{t0}, 32768
                """)
        for s_ in range(2):
            ob = O + 16 * (6 + s_)
            g.lwait(("p", s_))
            for d in range(3):
                b = PB + 10 * (3 * s_ + d)
                g.e(f"v_add_f32 v{ob + 8}, v{ob + 8}, v{b + 8}")
                for i in range(0, 8, 2):
                    g.e(f"v_pk_add_f32 {vr(ob + i, 2)}, {vr(ob + i, 2)}, {vr(b + i, 2)}")
        g.softmax_guard(layer, O + 96, O + 112)
        for s_ in range(2):
            ob = O + 16 * (6 + s_)
            g.e(f"v_rcp_f32 v{ob + 10}, v{ob + 8}\ns_nop 0")
            for i in range(0, 8, 2):
                g.e(f"v_pk_mul_f32 {vr(ob + i, 2)}, {vr(ob + i, 2)}, {vr(ob + 10, 2)} op_sel_hi:[1,0]")
            for i in range(4):
                g.e(f"v_cvt_pk_bf16_f32 v{ob + 12 + i}, v{ob + 2 * i}, v{ob + 2 * i + 1}")
            g.st(vr(ob + 12, 4), vL16, sWS, (t0, t1)[s_], 0, tag="ost")
        g.stamp(f"B{layer}st")
        self.CW = CW

    def softmax_guard(self, layer, o0, o1):
        pass

    def reduce_write(self, acc, d, base):
        g = self
        ops = []

        def addr():
            g.e(f"s_xor_b32 s{t6}, s{sW}, {d}\ns_mul_i32 s{t6}, s{t6}, 12288")
        def addr2():
            g.e(f"s_add_u32 s{t6}, s{t6}, {base + (d - 1) * 4096}\nv_add_u32 v{vt0}, s{t6}, v{vL16}")
        ops += [addr, addr2]
        for q in range(4):
            ops.append(lambda q=q: g.ds(f"ds_write_b128 v{vt0}, {vr(acc + 4 * q, 4)} offset:{q * 1024}"))
        return ops

    def reduce_finish(self, layer, which, acc, PB, base, final):
        g = self
        LB = LB0 + layer * LBS
        g.e(f"s_mul_i32 s{t6}, s{sW}, 12288\ns_add_u32 s{t6}, s{t6}, {base}\nv_add_u32 v{vt2}, s{t6}, v{vL16}")
        g.lwait0()
        g.e("s_barrier")
        for d in range(3):
            for q in range(4):
                g.ds(f"ds_read_b128 {vr(PB + 16 * d + 4 * q, 4)}, v{vt2} offset:{d * 4096 + q * 1024}", ("p", d))
        U = PB + 48
        g.vwait("res")
        for i in range(8):
            g.e(f"v_lshlrev_b32 v{U + 2 * i}, 16, v{vRes + i}\nv_and_b32 v{U + 2 * i + 1}, s{sMask}, v{vRes + i}")
        g.e(f"s_lshl_b32 s{t0}, s{sCB}, 1\ns_add_u32 s{t0}, s{t0}, s{sNA}")
        if final:
            g.e(f"""
            v_lshrrev_b32 v{vt0}, 4, v{vL16}
            v_and_b32 v{vt3}, 31, v{vt0}
            v_lshrrev_b32 v{vt0}, 5, v{vt0}
            v_lshlrev_b32 v{vt3}, 10, v{vt3}
            v_lshl_add_u32 v{vt3}, v{vt0}, 4, v{vt3}
            s_lshl_b32 s{t1}, s{sTA}, 15
            s_lshl_b32 s{t2}, s{t0}, 6
            s_add_u32 s{t1}, s{t1}, s{t2}
            """)
        else:
            g.e(f"""
            s_lshl_b32 s{t1}, s{sTA}, 15
            s_lshl_b32 s{t2}, s{t0}, 11
            s_add_u32 s{t1}, s{t1}, s{t2}
            s_add_u32 s{t1}, s{t1}, {LB + (oX1, oX2)[which]}
            s_lshl_b32 s{t2}, s{sTA}, 12
            s_lshr_b32 s{t3}, s{t0}, 2
            s_lshl_b32 s{t3}, s{t3}, 10
            s_add_u32 s{t2}, s{t2}, s{t3}
            s_and_b32 s{t3}, s{t0}, 3
            s_lshl_b32 s{t3}, s{t3}, 2
            s_add_u32 s{t2}, s{t2}, s{t3}
            s_add_u32 s{t2}, s{t2}, {ST + (2 * layer + which) * 0x40000}
            """)
        for i in range(0, 16, 2):
            g.e(f"v_pk_add_f32 {vr(acc + i, 2)}, {vr(acc + i, 2)}, {vr(U + i, 2)}")
        for d in range(3):
            g.lwait(("p", d))
            for i in range(0, 16, 2):
                g.e(f"v_pk_add_f32 {vr(acc + i, 2)}, {vr(acc + i, 2)}, {vr(PB + 16 * d + i, 2)}")
        for i in range(8):
            g.e(f"v_cvt_pk_bf16_f32 v{vRes + i}, v{acc + 2 * i}, v{acc + 2 * i + 1}")
        if final:
            g.st(vr(vRes, 4), vt3, sOUT, t1, 0)
            g.st(vr(vRes + 4, 4), vt3, sOUT, t1, 32)
            return
        g.st(vr(vRes, 4), vL16, sWS, t1, 0)
        g.st(vr(vRes + 4, 4), vL16, sWS, t1, 1024)
        g.e(f"v_pk_mul_f32 {vr(U, 2)}, {vr(acc, 2)}, {vr(acc, 2)}")
        for i in range(2, 16, 2):
            g.e(f"v_pk_fma_f32 {vr(U, 2)}, {vr(acc + i, 2)}, {vr(acc + i, 2)}, {vr(U, 2)}")
            g.e(f"v_pk_add_f32 {vr(acc, 2)}, {vr(acc, 2)}, {vr(acc + i, 2)}")
        g.e(f"v_add_f32 v{acc}, v{acc}, v{acc + 1}\nv_add_f32 v{U}, v{U}, v{U + 1}\ns_nop 1")
        g.e(f"v_permlane32_swap_b32 v{acc}, v{U}\nv_add_f32 v{acc}, v{acc}, v{U}")
        g.dual(g.st_text(vr(acc), vL16, sWS, t2, 0, "", 1), g.st_text(vr(acc), vL16, sWS, t2, 0, "sc1", 1), 1)

    def phaseC(self, layer):
        g = self
        LB = LB0 + layer * LBS
        CW = g.CW
        OF = 144
        AC = [16, 32, 48, 64]
        SC = 104 * 1024
        g.e(f"""
        v_and_b32 v{vt0}, 28, v{vL4}
        s_lshl_b32 s{t2}, s{sX}, 2
        s_lshr_b32 s{t3}, s{sC}, 3
        s_add_u32 s{t2}, s{t2}, s{t3}
        s_lshl_b32 s{t2}, s{t2}, 2
        s_add_u32 s{t2}, s{t2}, s{sW}
        s_lshl_b32 s{t2}, s{t2}, 7
        s_add_u32 s{t2}, s{t2}, {FB}
        s_lshl_b32 s{t3}, s{sTB}, 15
        s_lshl_b32 s{t4}, s{sW}, 13
        s_add_u32 s{t3}, s{t3}, s{t4}
        s_add_u32 s{t3}, s{t3}, {LB + oO}
        s_xor_b32 s{t4}, s{t3}, 32768
        """)
        g.vwait("ost")
        g.signal(2, layer + 1, True)
        g.e("s_barrier")
        g.poll(vt0, t2, layer + 1, True)
        g.stamp(f"C{layer}go")
        for tk, so in ((1, t3), (0, t4)):
            for i in range(8):
                if i == 4:
                    g.e(f"s_add_u32 s{so}, s{so}, 4096")
                g.ld(vr(OF + 32 * tk + 4 * i, 4), vL16, sWS, so, (i % 4) * 1024, tag=("o", tk, i))
        side = deque()

        def mf(tk, n, i):
            acc = AC[2 * tk + n]
            c = vr(acc, 16) if i else "0"
            g.e(f"v_mfma_f32_32x32x16_bf16 {vr(acc, 16)}, {CW[2 * i + n](0, 4)}, {vr(OF + 32 * tk + 4 * i, 4)}, {c}")
        for i in range(8):
            g.vwait(("o", 1, i))
            mf(1, 1, i)
            mf(1, 0, i)
        w3 = g.reduce_write(AC[3], 3, SC)
        w2 = g.reduce_write(AC[2], 2, SC)
        w1 = g.reduce_write(AC[1], 1, SC)
        side.extend(w3[:2] + [None] * 3 + w3[2:] + w2)
        for i in range(8):
            g.vwait(("o", 0, i))
            mf(0, 1, i)
            for _ in range(2):
                if side:
                    o = side.popleft()
                    if o:
                        o()
        side.extend(w1[:2] + [None] * 4 + w1[2:])
        for i in range(8):
            mf(0, 0, i)
            for _ in range(2):
                if side:
                    o = side.popleft()
                    if o:
                        o()
        while side:
            o = side.popleft()
            if o:
                o()
        g.reduce_finish(layer, 0, AC[0], 80, SC, False)
        g.stamp(f"C{layer}st")

    def phaseD(self, layer):
        g = self
        cfg = g.cfg
        LB = LB0 + layer * LBS
        X = 16
        ACC = [144 + 16 * i for i in range(6)]
        rs, bi, tmp = 240, 241, 242
        vB = [vL16, 244, 245]
        ET = 246
        SB = 224
        g.e(f"v_and_b32 v{vt0}, 60, v{vL4}\ns_lshl_b32 s{t2}, s{sT}, 7\ns_add_u32 s{t2}, s{t2}, {FC}")
        g.e(f"v_add_u32 v{vB[1]}, 0x10000, v{vL16}\nv_add_u32 v{vB[2]}, 0x20000, v{vL16}")
        g.e(f"s_mul_i32 s{t11}, s{sHP}, 229376\ns_add_u32 s{t11}, s{t11}, {W13}")
        g.e(f"s_mul_i32 s6, s{sT}, {112 * 1024}\ns_mul_i32 s{t3}, s{sHP}, 7168\ns_add_u32 s6, s6, s{t3}\ns_add_u32 s6, s6, {LB + oH}\ns_add_u32 s7, s6, 4096")
        g.vwait0()
        g.signal(3, layer + 1, True)
        g.e("s_barrier")
        frs = [(ks, n) for a, b in cfg.passes for ks in range(32) for n in range(a, b)]

        def wread(f):
            slot = f % 160
            g.ds(f"ds_read_b128 {ar(WB + 4 * (f % 8), 4)}, v{vB[slot // 64]} offset:{(slot % 64) * 1024}", ("w", f))
        LEAD = 7
        for f in range(LEAD):
            wread(f)
        g.poll(vt0, t2, layer + 1, True)
        g.stamp(f"D{layer}go")
        g.load_x_stats(layer, 0, LB + oX1, X, SB)
        for op in g.dma_ops(104, 14, t11, 104 * 1024, "w13b", (t8, t9)):
            op()
        g.sum_stats(SB, rs, bi, tmp)

        accof = {}
        free = list(ACC)
        side = deque()
        for ks in range(32):
            side.append(("x", ks))
            side.extend(g.norm_ops(X, ks, rs, bi, tmp))
        mem = deque()

        def take(n):
            while n > 0 and side:
                o = side.popleft()
                if isinstance(o, tuple):
                    g.vwait(o)
                elif callable(o):
                    o()
                    n -= 1
                else:
                    g.e(o)
                    n -= 2 if o.startswith(("v_exp", "v_rcp")) else 1

        def epi_ops(n):
            a = accof[n]
            ops = []
            for half in range(2):
                r0 = a + 4 * half
                for i in range(4):
                    ops.append(f"v_mul_f32 v{ET + i}, s{sNL}, v{r0 + i}")
                for i in range(4):
                    ops.append(f"v_exp_f32 v{ET + i}, v{ET + i}")
                for i in range(4):
                    ops.append(f"v_mul_f32 v{r0 + i}, v{r0 + i}, v{r0 + 8 + i}")
                for i in range(4):
                    ops.append(f"v_add_f32 v{ET + i}, 1.0, v{ET + i}")
                for i in range(4):
                    ops.append(f"v_rcp_f32 v{ET + i}, v{ET + i}")
                for i in range(4):
                    ops.append(f"v_mul_f32 v{r0 + i}, v{r0 + i}, v{ET + i}")
            for i in range(4):
                ops.append(f"v_cvt_pk_bf16_f32 v{a + 8 + i}, v{a + 2 * i}, v{a + 2 * i + 1}")
            ops.append(lambda: g.st(vr(a + 8, 4), vL16, sWS, (6, 7)[n // 4], (n % 4) * 1024, tag="hst"))
            ops.append(lambda: free.append(a))
            return ops

        take(22)
        if layer == 0 and cfg.ew_in_b < 56:
            mem.extend(g.ew_ops(cfg.ew_in_b, 56, (t4, t5)))
        f = 0
        for pi, (a, b) in enumerate(cfg.passes):
            wdt = b - a
            for n in range(a, b):
                while not free:
                    take(1)
                accof[n] = free.pop(0)
            nm = 32 * wdt
            tot = sum(0 if isinstance(o, tuple) else (2 if isinstance(o, str) and o.startswith(("v_exp", "v_rcp")) else 1) for o in side)
            done = 0
            for ks in range(32):
                for n in range(a, b):
                    if f % 4 == 0:
                        g.lwait(("w", min(f + 3, 223)))
                    c = vr(accof[n], 16) if ks else "0"
                    g.e(f"v_mfma_f32_32x32x16_bf16 {vr(accof[n], 16)}, {ar(WB + 4 * (f % 8), 4)}, {vr(X + 4 * ks, 4)}, {c}")
                    fn = f + LEAD
                    if fn == 104:
                        g.vwait("w13b")
                        g.e("s_barrier")
                        mem.extendleft(reversed(g.dma_ops(160, 16, t11, 0, "w13c", (t8, t9))))
                    if fn == 160:
                        g.vwait("w13c")
                        g.lwait0()
                        g.e("s_barrier")
                        if layer == 0:
                            def wqb():
                                g.e(f"s_mul_i32 s{t10}, s{sHP}, {96 * 1024}\ns_add_u32 s{t10}, s{t10}, {WQ}")
                            mem.append(wqb)
                            mem.extend(g.dma_ops(0, 24, t10, 65536, "wq", (t8, t9)))
                    if fn < 224:
                        wread(fn)
                    m = ks * wdt + (n - a) + 1
                    if pi == 0:
                        take(-(-20 * (n - a + 1) // wdt) - -(-20 * (n - a) // wdt))
                    else:
                        want = -(-tot * m // nm) - done
                        if m <= 3:
                            want = 0
                        want = min(want, 6)
                        take(want)
                        done += want
                    if mem and (f % 2 == 1 or pi > 0):
                        mem.popleft()()
                    f += 1
            while side:
                take(1)
            for n in range(a, b):
                side.extend(epi_ops(n))
        g.e("s_barrier")
        while mem:
            mem.popleft()()
        while side:
            take(1)
        g.stamp(f"D{layer}st")

    def phaseE(self, layer, final):
        g = self
        LB = LB0 + layer * LBS
        HR, NR = 16, 44
        AC = [192, 208, 224, 240]
        SC = 0
        g.e(f"""
        v_and_b32 v{vt0}, 28, v{vL4}
        s_lshr_b32 s{t2}, s{sTA}, 1
        s_lshl_b32 s{t2}, s{t2}, 2
        s_add_u32 s{t2}, s{t2}, s{sW}
        s_lshl_b32 s{t2}, s{t2}, 7
        s_add_u32 s{t2}, s{t2}, {FD}
        s_mul_i32 s{t5}, s{sW}, {28 * 1024}
        s_add_u32 s{t5}, s{t5}, {LB + oH}
        s_mul_i32 s{t3}, s{sTB}, {112 * 1024}
        s_add_u32 s{t3}, s{t3}, s{t5}
        s_mul_i32 s{t4}, s{sTA}, {112 * 1024}
        s_add_u32 s{t4}, s{t4}, s{t5}
        """)
        g.vwait("hst")
        g.signal(4, layer + 1, True)
        g.poll(vt0, t2, layer + 1, True)
        g.stamp(f"E{layer}go")

        def ldh(m):
            tk, i = (1, m) if m < 28 else (0, m - 28)
            so = t3 if tk else t4
            if i and i % 4 == 0:
                g.e(f"s_add_u32 s{so}, s{so}, 4096")
            g.ld(vr(HR + 4 * (m % NR), 4), vL16, sWS, so, (i % 4) * 1024, tag=("h", m))
        for m in range(NR):
            ldh(m)

        def mf(tk, n, i):
            m = i if tk else 28 + i
            acc = AC[2 * tk + n]
            c = vr(acc, 16) if i else "0"
            g.e(f"v_mfma_f32_32x32x16_bf16 {vr(acc, 16)}, {ar(4 * (2 * i + n), 4)}, {vr(HR + 4 * (m % NR), 4)}, {c}")
        side = deque()

        def pop():
            if side:
                o = side.popleft()
                if o:
                    o()
        for i in range(28):
            g.vwait(("h", i))
            mf(1, 1, i)
            mf(1, 0, i)
            if i + NR < 56:
                ldh(i + NR)
        w3 = g.reduce_write(AC[3], 3, SC)
        w2 = g.reduce_write(AC[2], 2, SC)
        w1 = g.reduce_write(AC[1], 1, SC)
        side.extend(w3[:2] + [None] * 4 + w3[2:] + w2)
        SK = 6
        for i in range(28 + SK):
            if i < 28:
                g.vwait(("h", 28 + i))
                mf(0, 1, i)
                pop()
            if i == 28:
                side.extend(w1[:2] + [None] * 3 + w1[2:])
            if i >= SK:
                mf(0, 0, i - SK)
                pop()
                if i >= 28:
                    pop()
        while side:
            pop()
        g.reduce_finish(layer, 1, AC[0], 16, SC, final)
        g.stamp(f"E{layer}st")
        if not final:
            g.vwait0()
            g.signal(5, layer + 1, True)

    def build(self):
        g = self
        cfg = g.cfg
        g.prologue()
        done = False
        for layer in range(2):
            for ph in "ABCDE":
                if ph == "A":
                    g.phaseA(layer)
                elif ph == "B":
                    g.phaseB(layer)
                elif ph == "C":
                    g.phaseC(layer)
                elif ph == "D":
                    g.phaseD(layer)
                else:
                    g.phaseE(layer, layer == 1)
                if cfg.stop == f"{ph}{layer}":
                    done = True
                    break
            if done:
                break
        if cfg.ts:
            g.vwait0()
            g.stamp("end") if g.nts < 18 else None
            g.e(f"s_lshl_b32 s{t0}, s2, 2\ns_add_u32 s{t0}, s{t0}, s{sW}\ns_lshl_b32 s{t0}, s{t0}, 7\ns_add_u32 s{t0}, s{t0}, {TS}")
            g.e(f"v_mov_b32 v{vt0}, 0")
            for i in range(g.nts):
                g.e(f"v_writelane_b32 v{vt0}, s{sTS + i}, {i}")
            g.e(f"v_writelane_b32 v{vt0}, s{sMode}, 31")
            g.e("s_mov_b32 exec_hi, 0")
            g.st(vr(vt0), vL4, sWS, t0, 0, w=1)
        g.e("L_exit:\ns_endpgm")
        for t in g.tail:
            g.e(t)
        lines, rep = fix_hazards(g.lines)
        return lines, rep


HEADER = """; Fused two-layer transformer block (LN+QKV, attention, WO, LN+W1/W3+SwiGLU, W2), one persistent launch.
; @launch grid=(256,1,1) block=(256,1,1) lds=163840
.amdgcn_target "amdgcn-amd-amdhsa--gfx950"
.text
.globl {name}_kernel
.p2align 8
.type {name}_kernel,@function
{name}_kernel:
"""
FOOTER = """
.section .rodata,"a"
.p2align 6
.amdhsa_kernel {name}_kernel
  .amdhsa_next_free_vgpr 512
  .amdhsa_next_free_sgpr 102
  .amdhsa_accum_offset 256
  .amdhsa_group_segment_fixed_size 0
  .amdhsa_kernarg_size 80
  .amdhsa_user_sgpr_count 2
  .amdhsa_user_sgpr_kernarg_segment_ptr 1
  .amdhsa_system_sgpr_workgroup_id_x 1
  .amdhsa_float_denorm_mode_32 3
.end_amdhsa_kernel
"""


def generate(path, **kw):
    cfg = Cfg()
    for k, v in kw.items():
        setattr(cfg, k, v)
    g = Gen(cfg)
    lines, rep = g.build()
    txt = HEADER.format(name=NAME) + "\n".join(("" if l.endswith(":") else "  ") + l for l in lines) + FOOTER.format(name=NAME)
    open(path, "w").write(txt)
    return g, rep


if __name__ == "__main__":
    import argparse
    ap = argparse.ArgumentParser()
    ap.add_argument("-o", default=f"cdna_kernels/{NAME}.s")
    ap.add_argument("--stop")
    ap.add_argument("--ts", action="store_true")
    ap.add_argument("--slow", action="store_true")
    ap.add_argument("-v", action="store_true")
    a = ap.parse_args()
    g, rep = generate(a.o, stop=a.stop, ts=a.ts, force_slow=a.slow)
    print("lines", len(g.lines), "nops inserted", len(rep), "stamps", g.tsnames)
    if a.v:
        for r in rep:
            print(r)
```

```python
import re

TRANS = ("v_exp_f32", "v_log_f32", "v_rcp_f32", "v_rsq_f32", "v_sqrt_f32", "v_sin_f32", "v_cos_f32")


def vr(a, n=1):
    return f"v{a}" if n == 1 else f"v[{a}:{a + n - 1}]"


def ar(a, n=1):
    return f"a{a}" if n == 1 else f"a[{a}:{a + n - 1}]"


def sr(a, n=1):
    return f"s{a}" if n == 1 else f"s[{a}:{a + n - 1}]"


class R:
    def __init__(self, kind, base):
        self.k, self.b = kind, base

    def __call__(self, off=0, n=1):
        return (vr if self.k == "v" else ar)(self.b + off, n)


class Asm:
    def __init__(self):
        self.lines = []
        self.vmq = []
        self.lq = []
        self.tail = []
        self.uid = 0
        self.waited = {}

    def e(self, s):
        for x in s.split("\n"):
            x = x.strip()
            if x:
                self.lines.append(x)

    def label(self, base):
        self.uid += 1
        return f"L_{base}_{self.uid}"

    def vm(self, text, tag=None):
        self.e(text)
        self.vmq.append(tag)

    def vwait(self, tag):
        idx = [i for i, t in enumerate(self.vmq) if t == tag]
        if not idx:
            return False
        i = idx[-1]
        n = len(self.vmq) - 1 - i
        if n > 63:
            n = 63
            i = len(self.vmq) - 1 - n
        self.e(f"s_waitcnt vmcnt({n})")
        for t in self.vmq[:i + 1]:
            self.waited[t] = self.waited.get(t, 0) + 1
        self.vmq = self.vmq[i + 1:]
        return True

    def vwait0(self):
        self.e("s_waitcnt vmcnt(0)")
        for t in self.vmq:
            self.waited[t] = self.waited.get(t, 0) + 1
        self.vmq = []

    def ds(self, text, tag=None):
        self.e(text)
        self.lq.append(tag)

    def lwait(self, tag):
        idx = [i for i, t in enumerate(self.lq) if t == tag]
        if not idx:
            return False
        i = idx[-1]
        n = len(self.lq) - 1 - i
        if n > 15:
            n = 15
            i = len(self.lq) - 1 - n
        self.e(f"s_waitcnt lgkmcnt({n})")
        self.lq = self.lq[i + 1:]
        return True

    def lwait0(self):
        self.e("s_waitcnt lgkmcnt(0)")
        self.lq = []


_REG = re.compile(r"^(-?)(?:abs\()?([vas])(?:(\d+)|\[(\d+):(\d+)\])\)?$")


def regs_of(op):
    op = op.strip()
    if op in ("vcc", "vcc_lo", "vcc_hi"):
        return {("s", 106), ("s", 107)}
    if op in ("exec", "exec_lo", "exec_hi"):
        return {("s", 126), ("s", 127)}
    if op == "m0":
        return {("s", 124)}
    m = _REG.match(op)
    if not m:
        return set()
    k = m.group(2)
    if m.group(3) is not None:
        return {(k, int(m.group(3)))}
    return {(k, i) for i in range(int(m.group(4)), int(m.group(5)) + 1)}


class Ins:
    def __init__(self, text):
        self.text = text
        t = text.split(";")[0].strip()
        self.is_label = t.endswith(":") or t.startswith(".") or not t
        self.op = "" if self.is_label else t.split()[0]
        rest = t[len(self.op):].strip() if not self.is_label else ""
        ops, depth, cur = [], 0, ""
        for ch in rest:
            if ch == "[" or ch == "(":
                depth += 1
            if ch == "]" or ch == ")":
                depth -= 1
            if ch == "," and depth == 0:
                ops.append(cur.strip())
                cur = ""
            else:
                cur += ch
        if cur.strip():
            ops.append(cur.strip())
        self.mods = ""
        if ops:
            last = ops[-1].split(None, 1)
            ops[-1] = last[0]
            self.mods = last[1] if len(last) > 1 else ""
        self.ops = ops
        op = self.op
        self.w, self.r = set(), set()
        self.srcc = set()
        self.ab = set()
        self.data = set()
        self.cls = "other"
        rg = [regs_of(o) for o in ops]
        if op.startswith("v_mfma"):
            self.cls = "mfma"
            self.w = rg[0]
            self.ab = rg[1] | rg[2]
            self.srcc = rg[3]
            self.r = self.ab | self.srcc
        elif op.startswith("v_smfmac"):
            self.cls = "mfma"
            self.w = rg[0]
            self.ab = rg[1] | rg[2] | rg[3]
            self.srcc = rg[0]
            self.r = self.ab | self.srcc
        elif op.startswith("v_"):
            self.cls = "valu"
            if op.startswith("v_permlane"):
                self.w = rg[0] | rg[1]
                self.r = rg[0] | rg[1]
            elif op.startswith("v_nop"):
                pass
            else:
                self.w = set(rg[0])
                self.r = set().union(*rg[1:]) if len(rg) > 1 else set()
                if op.startswith(("v_fmac", "v_dot2c", "v_writelane")):
                    self.r |= rg[0]
                if op.startswith("v_cndmask") and len(ops) == 3:
                    self.r |= regs_of("vcc")
        elif op.startswith("buffer_") or op.startswith("global_"):
            self.cls = "vmem"
            if op in ("buffer_wbl2", "buffer_inv"):
                pass
            elif "lds" in self.mods.split():
                self.r = set().union(*rg) | regs_of("m0")
                self.cls = "vmem"
                self.dma = True
            elif "load" in op:
                self.w = rg[0]
                self.r = set().union(*rg[1:])
            elif op.startswith("buffer_store"):
                self.r = set().union(*rg)
                self.data = rg[0]
            else:
                self.r = set().union(*rg)
        elif op.startswith("ds_"):
            self.cls = "ds"
            if "read" in op:
                self.w = rg[0]
                self.r = set().union(*rg[1:]) if len(rg) > 1 else set()
            else:
                self.r = set().union(*rg)
        elif op.startswith("s_"):
            self.cls = "salu"
            if op.startswith(("s_cmp", "s_cbranch", "s_branch", "s_waitcnt", "s_nop", "s_barrier", "s_sleep", "s_endpgm", "s_setprio")):
                self.r = set().union(*rg) if rg else set()
            else:
                self.w = rg[0] if rg else set()
                self.r = set().union(*rg[1:]) if len(rg) > 1 else set()
        self.trans = op.startswith(TRANS)
        self.dot = op.startswith("v_dot")
        self.passes = 0
        if self.cls == "mfma":
            self.passes = 8 if "32x32" in op else (2 if "4x4x4" in op else 4)

    def states(self):
        if self.is_label:
            return 0
        if self.op == "s_nop":
            return int(self.ops[0]) + 1
        return 1


def need(p, c):
    n = 0
    pv = {x for x in p.w if x[0] in "va"}
    ps = {x for x in p.w if x[0] == "s"}
    if p.cls == "valu":
        if c.cls == "mfma" and pv & c.r:
            n = max(n, 2)
        if c.cls == "valu":
            if c.op.startswith("v_permlane") and pv & c.r:
                n = max(n, 2)
            if c.op.startswith(("v_readlane", "v_readfirstlane")) and pv & c.r:
                n = max(n, 1)
            if "dpp" in c.op and pv & c.r:
                n = max(n, 2)
            if p.trans and not c.trans and pv & c.r:
                n = max(n, 1)
            if ps & c.r:
                n = max(n, 4 if c.op.startswith(("v_readlane", "v_writelane")) else 2)
            if "sdwa" in p.op and pv & (c.r | c.w):
                n = max(n, 1)
            if p.dot:
                if c.op == p.op:
                    csrc = set().union(*[regs_of(o) for o in c.ops[1:3]])
                    if pv & csrc:
                        n = max(n, 3)
                elif pv & (c.r | c.w):
                    n = max(n, 3)
        if p.dot and c.cls in ("vmem", "ds", "mfma") and pv & c.r:
            n = max(n, 3)
        if c.cls == "vmem" and ps & c.r:
            n = max(n, 5)
        if c.cls == "salu" and ps & c.r:
            n = max(n, 1)
        if c.op.startswith("s_cbranch_vcc") and ps & regs_of("vcc"):
            n = max(n, 1)
    if p.cls == "mfma":
        big = {2: 5, 4: 8, 8: 12}[p.passes]
        if c.cls == "valu" and pv & (c.r | c.w):
            n = max(n, big)
        if c.cls in ("vmem", "ds") and pv & (c.r | c.w):
            n = max(n, big)
        if c.cls == "mfma":
            if pv & c.ab:
                n = max(n, big)
            ovl = {2: 4, 4: 6, 8: 10}[p.passes]
            if pv & c.srcc and not (pv == c.srcc and c.passes == p.passes):
                n = max(n, ovl)
            if pv & c.w and not (pv == c.srcc and c.passes == p.passes):
                n = max(n, ovl)
            if p.passes == 2 and pv & c.srcc:
                n = max(n, 2)
        if c.cls == "valu" and p.srcc & c.w:
            n = max(n, {2: 1, 4: 3, 8: 7}[p.passes])
    if p.cls == "vmem" and len(p.data) >= 3 and p.data & c.w:
        n = max(n, 2 if c.cls == "valu" else 1)
    if p.cls == "salu" and regs_of("m0") & p.w and c.cls == "vmem" and regs_of("m0") & c.r:
        n = max(n, 1)
    return n


def fix_hazards(lines, verbose=False):
    out = []
    ins = []
    report = []
    for ln in lines:
        c = Ins(ln)
        if not c.is_label:
            dist = 0
            worst = 0
            why = None
            for p in reversed(ins):
                if dist >= 20:
                    break
                if not p.is_label:
                    k = need(p, c) - dist
                    if k > worst:
                        worst, why = k, p
                dist += p.states()
            if worst > 0:
                nop = f"s_nop {worst - 1}"
                out.append(nop)
                ins.append(Ins(nop))
                report.append((worst, why.text, ln))
        out.append(ln)
        ins.append(c)
    return out, report
```

```python
import os
import sys
from collections import deque

sys.path.insert(0, os.path.dirname(os.path.abspath(__file__)))
from asmlib import Asm, R, ar, fix_hazards, sr, vr

NAME = "interleave_layers__mha_block__glu_gated_swiglu__prompt"

FA_L, FB, FD, FC, FE, FA_G, FR, FX = 0x0000, 0x4000, 0x8000, 0xC000, 0xE000, 0x10000, 0x14000, 0x16000
TS = 0x80000
ST = 0x100000
WQ, WO, W13, W2 = 0x200000, 0x380000, 0x400000, 0x780000
WX13, WXQ, WXD = 0x940000, 0x960000, 0x970000
LB0, LBS = 0xA00000, 0x1400000
oQ, oKV, oO, oX1, oX2, oH = 0x0, 0x200000, 0x600000, 0x800000, 0xA00000, 0xC00000
WS_BYTES = 0x10000000

sWS, sXIN, sOUT, sDBG, sWQ, sRA, sRB = 8, 12, 16, 20, 24, 28, 32
sX, sC, sW, sT, sHP, sTA, sTB, sNA, sCB, sMode, sTO, sMask = range(36, 48)
t0, t1, t2, t3, t4, t5, t6, t7, t8, t9, t10, t11 = range(48, 60)
sVM = 60
pX, pWQ, pWO, pBX, pW1, pW3, pW2, pOUT, pDBG, pWS = range(64, 84, 2)
sTS = 84
sSN2 = 100
vL16, vL4, vIdx, vFl = 0, 1, 2, 3
vt0, vt1, vt2, vt3 = 4, 5, 6, 7
vRes = 8
WB = 224

LOG2E = 1.4426950408889634
TIMEOUT = 0x80000


def f2u(x):
    import struct
    return struct.unpack("<I", struct.pack("<f", x))[0]


class Cfg:
    passes = [(0, 4), (4, 6), (6, 7)]
    stop = None
    ts = False
    ts_skip = ('start', 'C1st', 'D1st', 'E1st', 'A1st', 'B1st', 'C0st')
    ts_only = None
    force_slow = False
    force_fallback = False
    pf_w13 = 2
    gp = 3
    hpx = 0
    wmods = 'sc1'
    early_c = False
    warm = 0
    dbg = ''
    rot = 's_lshr_b32 s{t1}, s{sHP}, 1'
    rl_sleep = 16
    lag_a = 8
    st_a = 6
    st_d = 2
    cpf = True
    sk_e = 10
    out_mods = ''
    rl0 = 9
    rl_lat = 12
    rl_gap = 14
    up_a = 8
    up_d = 8
    up_e = 10
    up_c = 10
    ew_in_b = 56


class Gen(Asm):
    def __init__(self, cfg):
        super().__init__()
        self.cfg = cfg
        self.nts = 0
        self.m0_owner = None
        self.tsnames = []

    def srd(self, s, ptr, size):
        self.e(f"s_mov_b32 s{s}, s{ptr}\ns_mov_b32 s{s + 1}, s{ptr + 1}\ns_mov_b32 s{s + 2}, {size}\ns_mov_b32 s{s + 3}, 0x20000")

    def ld(self, dst, voff, srd, soff, imm=0, mods="sc1", tag=None, w=4):
        op = {1: "dword", 2: "dwordx2", 4: "dwordx4"}[w]
        so = f"s{soff}" if soff is not None else "0"
        o = f" offset:{imm}" if imm else ""
        self.vm(f"buffer_load_{op} {dst}, v{voff}, {sr(srd, 4)}, {so} offen{o} {mods}".rstrip(), tag)

    def st_text(self, src, voff, srd, soff, imm=0, mods="", w=4):
        op = {1: "dword", 2: "dwordx2", 4: "dwordx4"}[w]
        so = f"s{soff}" if soff is not None else "0"
        o = f" offset:{imm}" if imm else ""
        return f"buffer_store_{op} {src}, v{voff}, {sr(srd, 4)}, {so} offen{o} {mods}".rstrip()

    def st(self, src, voff, srd, soff, imm=0, mods="", tag=None, w=4):
        self.vm(self.st_text(src, voff, srd, soff, imm, mods, w), tag)

    def dma(self, voff, srd, soff, imm=0, mods="sc1", tag=None):
        so = f"s{soff}" if soff is not None else "0"
        o = f" offset:{imm}" if imm else ""
        m = (mods + " lds").strip()
        self.vm(f"buffer_load_dwordx4 v{voff}, {sr(srd, 4)}, {so} offen{o} {m}", tag)

    def stamp(self, name):
        if not self.cfg.ts:
            return
        if self.cfg.ts_only:
            if not name.startswith(self.cfg.ts_only):
                return
        elif name in self.cfg.ts_skip or "_" in name:
            return
        if self.nts >= 16:
            return
        self.e(f"{'s_memtime' if self.cfg.ts == 'cyc' else 's_memrealtime'} s[4:5]\ns_waitcnt lgkmcnt(0)\ns_mov_b32 s{sTS + self.nts}, s4")
        self.lq = []
        self.tsnames.append(name)
        self.nts += 1

    def dual(self, fast, slow, nvm):
        ls, lj = self.label("slow"), self.label("join")
        self.e(f"s_cmp_lg_u32 s{sMode}, 0\ns_cbranch_scc1 {ls}")
        self.e(fast)
        self.e(f"{lj}:")
        self.tail.append(f"{ls}:\n{slow}\ns_branch {lj}")
        self.vmq += [None] * nvm

    def signal(self, ftype, val, local):
        self.e(f"v_mov_b32 v{vt1}, {val}")
        st = f"s_mov_b64 exec, {1 << ftype}\nbuffer_store_dword v{vt1}, v{vFl}, {sr(sWS, 4)}, 0 offen%s\ns_mov_b64 exec, -1"
        if local:
            self.dual(st % "", "buffer_wbl2 sc1\ns_waitcnt vmcnt(0)\n" + st % " sc1", 1)
        else:
            self.e(st % " sc1")
            self.vmq.append(None)

    def poll(self, voff, soff, val, local, sleep=0):
        L = self.label("poll")
        self.e(f"s_mov_b32 s{sTO}, {TIMEOUT}\n{L}:")
        self.e(f"buffer_load_dword v{vt1}, v{voff}, {sr(sWS, 4)}, s{soff} offen sc1")
        self.e(f"s_sub_u32 s{sTO}, s{sTO}, 1\ns_cbranch_scc1 L_exit")
        if sleep:
            self.e(f"s_sleep {sleep}")
        self.vwait0()
        self.e(f"v_cmp_gt_u32 vcc, {val}, v{vt1}\ns_nop 0\ns_cbranch_vccnz {L}")
        if local:
            self.dual("", "buffer_inv sc1\ns_waitcnt vmcnt(0)", 0)

    def salu(self, text):
        self.e(text)

    def prologue(self):
        g = self
        g.e("s_cmp_ge_u32 s2, 256\ns_cbranch_scc1 L_exit")
        g.stamp("entry")
        g.e("s_load_dwordx16 s[64:79], s[0:1], 0\ns_load_dwordx4 s[80:83], s[0:1], 64")
        g.e(f"v_lshrrev_b32 v{vt0}, 6, v0\nv_and_b32 v{vt1}, 63, v0")
        g.e(f"v_readfirstlane_b32 s{sW}, v{vt0}")
        g.e(f"v_lshlrev_b32 v{vL4}, 2, v{vt1}\nv_lshlrev_b32 v{vL16}, 4, v{vt1}")
        g.e(f"""
        s_and_b32 s{sX}, s2, 7
        s_lshr_b32 s{sC}, s2, 3
        s_and_b32 s{sHP}, s{sC}, 15
        s_xor_b32 s{sHP}, s{sHP}, {g.cfg.hpx}
        s_lshr_b32 s{t0}, s{sC}, 4
        s_lshl_b32 s{t0}, s{t0}, 2
        s_add_u32 s{t0}, s{t0}, s{sW}
        s_lshl_b32 s{t1}, s{sX}, 3
        s_add_u32 s{sT}, s{t1}, s{t0}
        """)

    def prologue2(self):
        g = self
        g.e(f"v_mov_b32 v{vIdx}, 0xdddddddd")
        g.e(f"""
        s_and_b32 s{sCB}, s{sC}, 7
        s_lshr_b32 s{t2}, s{sC}, 3
        s_lshl_b32 s{t2}, s{t2}, 1
        s_lshl_b32 s{t3}, s{sX}, 3
        s_add_u32 s{t2}, s{t2}, s{t3}
        s_lshr_b32 s{t3}, s{sW}, 1
        s_add_u32 s{sTA}, s{t2}, s{t3}
        s_xor_b32 s{sTB}, s{sTA}, 1
        s_and_b32 s{sNA}, s{sW}, 1
        s_mov_b32 s{sMask}, 0xffff0000
        s_mov_b32 s{sVM}, 0x0000ffff
        s_mov_b32 s{sVM + 1}, 0x0000ffff
        s_mov_b32 s{sMode}, 1
        s_and_b32 s{t2}, s{sT}, 7
        """)
        g.e(f"v_mov_b32 v{vFl}, 0")
        g.e(f"""
        s_lshl_b32 s{t4}, s{sX}, 4
        s_add_u32 s{t4}, s{t4}, s{sHP}
        s_lshl_b32 s{t4}, s{t4}, 7
        s_lshl_b32 s{t5}, s{t2}, 2
        s_add_u32 s{t4}, s{t4}, s{t5}
        s_add_u32 s{t4}, s{t4}, {FA_L}
        v_writelane_b32 v{vFl}, s{t4}, 0
        s_lshl_b32 s{t4}, s{sHP}, 3
        s_add_u32 s{t4}, s{t4}, s{sX}
        s_lshl_b32 s{t4}, s{t4}, 7
        s_add_u32 s{t4}, s{t4}, s{t5}
        s_add_u32 s{t4}, s{t4}, {FA_G}
        v_writelane_b32 v{vFl}, s{t4}, 1
        s_lshl_b32 s{t4}, s{sX}, 2
        s_add_u32 s{t4}, s{t4}, s{sW}
        s_lshl_b32 s{t4}, s{t4}, 2
        s_lshr_b32 s{t5}, s{sC}, 3
        s_add_u32 s{t4}, s{t4}, s{t5}
        s_lshl_b32 s{t4}, s{t4}, 7
        s_lshl_b32 s{t5}, s{sCB}, 2
        s_add_u32 s{t4}, s{t4}, s{t5}
        s_add_u32 s{t4}, s{t4}, {FB}
        v_writelane_b32 v{vFl}, s{t4}, 2
        s_lshl_b32 s{t4}, s{sTA}, 7
        s_lshl_b32 s{t5}, s{sCB}, 1
        s_add_u32 s{t5}, s{t5}, s{sNA}
        s_lshl_b32 s{t5}, s{t5}, 2
        s_add_u32 s{t4}, s{t4}, s{t5}
        s_add_u32 s{t5}, s{t4}, {FC}
        v_writelane_b32 v{vFl}, s{t5}, 3
        s_add_u32 s{t5}, s{t4}, {FE}
        v_writelane_b32 v{vFl}, s{t5}, 5
        s_lshr_b32 s{t4}, s{sT}, 1
        s_lshl_b32 s{t4}, s{t4}, 2
        s_lshr_b32 s{t5}, s{sHP}, 2
        s_add_u32 s{t4}, s{t4}, s{t5}
        s_lshl_b32 s{t4}, s{t4}, 7
        s_and_b32 s{t5}, s{sT}, 1
        s_lshl_b32 s{t5}, s{t5}, 2
        s_and_b32 s{t7}, s{sHP}, 3
        s_add_u32 s{t5}, s{t5}, s{t7}
        s_lshl_b32 s{t5}, s{t5}, 2
        s_add_u32 s{t4}, s{t4}, s{t5}
        s_add_u32 s{t4}, s{t4}, {FD}
        v_writelane_b32 v{vFl}, s{t4}, 4
        s_lshr_b32 s{t4}, s2, 2
        s_lshl_b32 s{t4}, s{t4}, 7
        s_and_b32 s{t5}, s2, 3
        s_lshl_b32 s{t5}, s{t5}, 2
        s_add_u32 s{t4}, s{t4}, s{t5}
        s_add_u32 s{t4}, s{t4}, {FR}
        v_writelane_b32 v{vFl}, s{t4}, 6
        s_lshl_b32 s{t4}, s{sX}, 5
        s_add_u32 s{t4}, s{t4}, s{sC}
        s_lshl_b32 s{t4}, s{t4}, 2
        s_add_u32 s{t4}, s{t4}, {FX}
        v_writelane_b32 v{vFl}, s{t4}, 7
        """)

    def zero_flags(self):
        g = self
        L = g.label("zf")
        g.e(f"s_cmp_lt_u32 s2, 8\ns_cbranch_scc0 {L}")
        g.e("v_mov_b32 v248, 0\nv_mov_b32 v249, 0\nv_mov_b32 v250, 0\nv_mov_b32 v251, 0")
        g.e(f"s_lshl_b32 s{t2}, s2, 2\ns_add_u32 s{t2}, s{t2}, s{sW}\ns_mul_i32 s{t2}, s{t2}, 3072")
        for i in range(3):
            g.e(g.st_text(vr(248, 4), vL16, sWS, t2, 1024 * i, "sc1"))
        g.e(f"{L}:")

    def code_prefetch(self):
        g = self
        g.e(f"""
        s_getpc_b64 s[4:5]
        L_pc:
        s_lshl_b32 s{t8}, s{sC}, 2
        s_add_u32 s{t8}, s{t8}, s{sW}
        s_and_b32 s{t8}, s{t8}, 15
        s_lshl_b32 s{t8}, s{t8}, 13
        v_lshlrev_b32 v{vt2}, 3, v{vL16}
        v_add_u32 v{vt2}, s{t8}, v{vt2}
        v_min_u32 v{vt2}, L_end-L_pc-4, v{vt2}
        """)
        g.vm(f"global_load_dword v255, v{vt2}, s[4:5]", "cpf")

    def handshake_send(self):
        g = self
        L = g.label("hs")
        g.e(f"s_cmp_lt_u32 s2, 8\ns_cbranch_scc0 {L}")
        g.e(f"s_lshl_b32 s{t9}, s2, 2\ns_add_u32 s{t9}, s{t9}, s{sW}\ns_lshl_b32 s{t9}, s{t9}, 2")
        g.e(f"v_mov_b32 v{vt1}, 1\nv_mov_b32 v{vt2}, s{t9}\ns_mov_b64 exec, 1")
        g.e(f"buffer_store_dword v{vt1}, v{vt2}, {sr(sDBG, 4)}, 0 offen sc1\ns_mov_b64 exec, -1\n{L}:")

    def late_check(self, tag, ld_text, chk, sleep):
        g = self
        ls, lj, lp = g.label("lslow"), g.label("ljoin"), g.label("lp")
        g.vwait(tag)
        g.e(chk + f"\ns_nop 0\ns_cbranch_vccnz {ls}\n{lj}:")
        g.tail.append(f"""{ls}:
        s_mov_b32 s{sTO}, {TIMEOUT}
        {lp}:
        s_sleep {sleep}
        {ld_text}
        s_sub_u32 s{sTO}, s{sTO}, 1
        s_cbranch_scc1 L_exit
        s_waitcnt vmcnt(0)
        {chk}
        s_nop 0
        s_cbranch_vccnz {lp}
        s_branch {lj}""")

    def handshake_load(self):
        self.e(f"v_and_b32 v254, 0x7c, v{vL4}")
        self.ld(vr(vt1), 254, sDBG, None, 0, tag="hs", w=1)

    def handshake_check(self):
        self.late_check("hs", f"v_and_b32 v254, 0x7c, v{vL4}\nbuffer_load_dword v{vt1}, v254, {sr(sDBG, 4)}, 0 offen sc1",
                        f"v_cmp_eq_u32 vcc, 0, v{vt1}", 8)

    def xcc_send(self):
        g = self
        L = g.label("xs")
        g.e(f"s_cmp_eq_u32 s{sW}, 0\ns_cbranch_scc0 {L}")
        g.e(f"s_getreg_b32 s{t11}, hwreg(HW_REG_XCC_ID, 0, 4)\ns_or_b32 s{t11}, s{t11}, 0x80\nv_mov_b32 v{vt1}, s{t11}")
        g.e(f"s_mov_b64 exec, 0x80\nbuffer_store_dword v{vt1}, v{vFl}, {sr(sWS, 4)}, 0 offen sc1\ns_mov_b64 exec, -1\n{L}:")

    def xcc_load(self):
        g = self
        g.e(f"v_and_b32 v{vt3}, 0x7c, v{vL4}\ns_lshl_b32 s{t7}, s{sX}, 7\ns_add_u32 s{t7}, s{t7}, {FX}")
        g.ld(vr(vt2), vt3, sWS, t7, 0, tag="xcc", w=1)

    def xcc_check(self):
        g = self
        g.late_check("xcc", f"buffer_load_dword v{vt2}, v{vt3}, {sr(sWS, 4)}, s{t7} offen sc1", f"v_cmp_eq_u32 vcc, 0, v{vt2}", 8)
        g.e(f"""
        v_readfirstlane_b32 s{t7}, v{vt2}
        s_nop 1
        v_cmp_ne_u32 vcc, s{t7}, v{vt2}
        s_nop 1
        s_cmp_lg_u64 vcc, 0
        s_cselect_b32 s{sMode}, 1, 0
        """)
        if g.cfg.force_slow:
            g.e(f"s_mov_b32 s{sMode}, 1")

    def stats_tail(self, s1, s2, rs, cden, BX, half=False):
        return [
            f"v_mul_f32 v{s1}, {f2u(1 / 512):#x}, v{s1}",
            f"v_mul_f32 v{s2}, {f2u(1 / 512):#x}, v{s2}",
            f"v_fma_f32 v{s2}, -v{s1}, v{s1}, v{s2}",
            f"v_max_f32 v{s2}, 0, v{s2}",
            f"v_add_f32 v{cden}, {f2u(1e-5):#x}, v{s2}",
            f"v_rsq_f32 v{rs}, v{cden}",
            f"v_mul_f32 v{s1}, {'-0.5' if half else '-1.0'}, v{s1}",
            f"v_cvt_pk_bf16_f32 v{BX}, v{s1}, v{s1}",
            f"v_mov_b32 v{BX + 1}, v{BX}",
            f"v_mov_b32 v{BX + 2}, v{BX}",
            f"v_mov_b32 v{BX + 3}, v{BX}",
        ]

    def stats_ops(self, SB, rs, cden, BX):
        ops = [("v", "stat")]
        n = 16
        while n > 1:
            n //= 2
            for i in range(n):
                ops.append(f"v_add_f32 v{SB + i}, v{SB + i}, v{SB + n + i}")
        ops += [f"v_mov_b32 v{SB + 1}, v{SB}", "s_nop 1", f"v_permlane32_swap_b32 v{SB}, v{SB + 1}"]
        return ops + self.stats_tail(SB, SB + 1, rs, cden, BX)

    def take(self, side, n):
        while n > 0 and side:
            o = side.popleft()
            if o is None:
                n -= 1
            elif isinstance(o, tuple):
                (self.vwait if o[0] == "v" else self.lwait)(o[1])
            elif callable(o):
                o()
                n -= 1
            else:
                self.e(o)
                n -= 2 if o.startswith(("v_exp", "v_rcp", "v_rsq")) else 1

    def load_x_stats(self, layer, which, xoff, X, SB, up):
        g = self
        g.e(f"s_lshl_b32 s{t0}, s{sT}, 12\ns_add_u32 s{t0}, s{t0}, {ST + (2 * layer + which) * 0x40000}")
        g.e(f"s_lshl_b32 s{t1}, s{sT}, 15\ns_add_u32 s{t1}, s{t1}, {xoff}")

        def pre():
            for ks in range(up):
                ldx(ks)

        def ldx(ks):
            if ks and ks % 4 == 0:
                g.e(f"s_add_u32 s{t1}, s{t1}, 4096")
            g.ld(vr(X + 4 * ks, 4), vL16, sWS, t1, (ks % 4) * 1024, tag=("x", ks))
        return (pre, [lambda ks=ks: ldx(ks) for ks in range(up, 32)],
                [lambda q=q: g.ld(vr(SB + 4 * q, 4), vL16, sWS, t0, q * 1024, tag="stat") for q in range(4)])

    def l2_prefetch(self, sbase, nbytes, vtmp):
        g = self
        ops = [lambda: g.e(f"v_and_b32 v{vtmp}, 0x3c0, v{vL16}\nv_lshlrev_b32 v{vtmp}, 1, v{vtmp}")]
        assert nbytes % 2048 == 0
        for i in range(nbytes // 2048):
            def op(i=i):
                if i and i % 2 == 0:
                    g.e(f"s_add_u32 s{sbase}, s{sbase}, 4096")
                g.ld(vr(vtmp + 1), vtmp, sWS, sbase, (i % 2) * 2048, mods="sc1", tag="pf", w=1)
            ops.append(op)
        return ops

    def dma_ops(self, first, count, gsoff_expr, lds_base, tag, ts):
        g = self
        a, b = ts
        ops = []
        uid = g.label("dma")

        def setup():
            g.e(f"s_mul_i32 s{a}, s{sW}, {count * 1024}")
            g.e(f"s_add_u32 s{b}, s{a}, s{gsoff_expr}")
        ops.append(setup)

        def setup2():
            g.e(f"s_add_u32 s{b}, s{b}, {first * 1024}\ns_add_u32 s{a}, s{a}, {lds_base}")
        ops.append(setup2)
        for i in range(count):
            def op(i=i):
                if i % 4 == 0 and i:
                    g.e(f"s_add_u32 s{a}, s{a}, 4096")
                if g.m0_owner != (uid, i // 4):
                    g.e(f"s_mov_b32 m0, s{a}")
                    g.m0_owner = (uid, i // 4)
                    if not (i % 4 == 0 and i):
                        g.e("s_nop 0")
                if i % 4 == 0 and i:
                    g.e(f"s_add_u32 s{b}, s{b}, 4096")
                g.dma(vL16, sWS, b, (i % 4) * 1024, mods=g.cfg.wmods, tag=tag)
            ops.append(op)
        return ops

    D_AX = [208, 212, 216, 220, 224, 244, 252]
    A_X, A_ACC = 16, {"q": 144, "k": 160, "v": 176}
    A_P, A_AX = 208, {"k": 208, "v": 212, "q": 232}
    A_RS, A_CD, A_KA, A_VA, A_BX, A_QM, A_RC = 240, 241, 242, 243, 248, 252, 192

    def a_addr(self, layer):
        g = self
        LB = LB0 + layer * LBS
        vK, vV = g.A_KA, g.A_VA
        g.e(f"""
        v_lshrrev_b32 v{vt0}, 4, v{vL16}
        v_and_b32 v{vt2}, 0x33, v{vt0}
        v_bfe_u32 v{vt3}, v{vt0}, 2, 1
        v_lshl_add_u32 v{vt2}, v{vt3}, 3, v{vt2}
        v_bfe_u32 v{vt3}, v{vt0}, 3, 1
        v_lshl_add_u32 v{vt2}, v{vt3}, 2, v{vt2}
        v_lshlrev_b32 v{vK}, 4, v{vt2}
        v_bfe_u32 v{vt2}, v{vt0}, 4, 1
        v_lshlrev_b32 v{vV}, 17, v{vt2}
        v_lshrrev_b32 v{vt2}, 5, v{vt0}
        v_lshl_add_u32 v{vV}, v{vt2}, 8, v{vV}
        v_and_b32 v{vt2}, 15, v{vt0}
        v_lshl_add_u32 v{vV}, v{vt2}, 4, v{vV}
        """)

    def a_saddr(self, layer):
        LB = LB0 + layer * LBS
        return [
            f"s_lshl_b32 s{t11}, s{sHP}, 7", f"s_add_u32 s{t11}, s{t11}, s{sT}",
            f"s_lshl_b32 s{t7}, s{t11}, 11", f"s_add_u32 s{t7}, s{t7}, {LB + oKV}", f"s_add_u32 s{t8}, s{t7}, 0x20000",
            f"s_lshl_b32 s{t9}, s{t11}, 10", f"s_add_u32 s{t9}, s{t9}, {LB + oQ}", f"s_add_u32 s{t10}, s{t9}, 0x10000"]

    def a_rc_ops(self, sarea):
        g = self
        RC = g.A_RC
        ops = [f"v_and_b32 v{vt0}, 0x7c, v{vL4}", f"v_add_u32 v{vt0}, s{sarea}, v{vt0}",
               lambda: g.ds(f"ds_write_b32 v{vt0}, v{g.A_RS}", "rcw"),
               f"v_lshrrev_b32 v{vt0}, 9, v{vL16}", f"v_lshlrev_b32 v{vt0}, 4, v{vt0}", f"v_add_u32 v{vt0}, s{sarea}, v{vt0}",
               f"v_mul_f32 v{g.A_QM}, {f2u(0.25 * LOG2E):#x}, v{g.A_RS}"]
        for j in range(4):
            ops.append(lambda j=j: g.ds(f"ds_read_b128 {vr(RC + 4 * j, 4)}, v{vt0} offset:{32 * j}", "rc"))
        return ops

    def a_epi(self, n, qmods=''):
        g = self
        A = g.A_ACC[n]
        P = g.A_P + {"k": 0, "v": 8, "q": 16}[n]
        ops = [("l", "rc")] if n == "v" else []
        for h in range(2):
            for i in range(8 * h, 8 * h + 8):
                m = {"k": g.A_RS, "q": g.A_QM, "v": g.A_RC + i}[n]
                ops.append(f"v_mul_f32 v{A + i}, v{m}, v{A + i}")
            for i in range(4 * h, 4 * h + 4):
                ops.append(f"v_cvt_pk_bf16_f32 v{P + i}, v{A + 2 * i}, v{A + 2 * i + 1}")
            if n == "k":
                ops.append(lambda h=h: g.st(vr(P + 4 * h, 4), g.A_KA, sWS, (t7, t8)[h], 0, "sc1"))
            elif n == "v":
                ops.append(lambda h=h: g.st(vr(P + 4 * h, 4), g.A_VA, sWS, t7, 1024 + 512 * h, "sc1"))
            else:
                ops.append(lambda h=h: g.st(vr(P + 4 * h, 4), vL16, sWS, (t9, t10)[h], 0, qmods))
        return ops

    def a_mfma(self, n, w, x, first):
        acc = vr(self.A_ACC[n], 16)
        a_, b_ = (x, w) if n == "v" else (w, x)
        self.e(f"v_mfma_f32_32x32x16_bf16 {acc}, {a_}, {b_}, {'0' if first else acc}")

    def phaseA0(self):
        g = self
        X, S1, S2 = g.A_X, 192, 208
        vo0, vo1, vRd, vRs, vWd, vTr = 224, 225, 226, 230, 232, 236
        CS, ONE = 0, 48
        LW = 65536
        g.e(f"""
        v_lshrrev_b32 v{vt0}, 4, v{vL16}
        v_lshrrev_b32 v{vt2}, 3, v{vt0}
        v_lshlrev_b32 v{vo0}, 10, v{vt2}
        v_lshrrev_b32 v{vt2}, 1, v{vt2}
        v_and_b32 v{vt3}, 7, v{vt0}
        v_xor_b32 v{vt2}, v{vt2}, v{vt3}
        v_lshl_add_u32 v{vo0}, v{vt2}, 4, v{vo0}
        v_xor_b32 v{vo1}, 64, v{vo0}
        s_lshl_b32 s{t0}, s{sT}, 15
        {g.cfg.rot.format(t1=t1, sHP=sHP, sC=sC, sX=sX)}
        s_lshl_b32 s{t6}, s{sW}, 14
        s_lshl_b32 s6, s{sHP}, 6
        s_mul_i32 s7, s{sW}, 3072
        s_add_u32 s7, s7, {LW}
        """)
        for i in range(3):
            r = vWd + i
            g.e(f"""
            v_add_u32 v{vt2}, {64 * i}, v{vt0}
            v_mul_u32_u24 v{vt3}, 0x1556, v{vt2}
            v_lshrrev_b32 v{vt3}, 16, v{vt3}
            v_mul_u32_u24 v{r}, 12, v{vt3}
            v_sub_u32 v{vt2}, v{vt2}, v{r}
            v_mul_u32_u24 v{r}, 3072, v{vt3}
            v_lshrrev_b32 v{vt3}, 2, v{vt2}
            v_lshl_add_u32 v{r}, v{vt3}, 10, v{r}
            v_and_b32 v{vt2}, 3, v{vt2}
            v_lshl_add_u32 v{r}, v{vt2}, 4, v{r}
            """)
        g.e("s_waitcnt lgkmcnt(0)")
        g.srd(sXIN, pX, 2048 * 1024)
        g.srd(sWQ, pWQ, 512 * 3072)
        g.stamp("start")

        def grp_ops(c):
            ops = []
            for j in range(4):
                def op(j=j):
                    if j == 0:
                        g.e(f"s_add_u32 s{t2}, s{t1}, {c}\ns_and_b32 s{t2}, s{t2}, 7\ns_lshl_b32 s3, s{t2}, 7\ns_add_u32 s3, s3, s{t0}")
                    g.e(f"s_add_u32 s{t5}, s{t6}, {(c % 4) * 4096 + j * 1024}\ns_mov_b32 m0, s{t5}")
                    g.e("s_add_u32 s3, s3, 8192" if j else "s_nop 0")
                    g.dma((vo0, vo1)[j % 2], sXIN, 3, 0, mods="", tag=("xc", c))
                ops.append(op)
            for i in range(3):
                def op(i=i):
                    if i == 0:
                        g.e(f"s_add_u32 s{t2}, s{t1}, {c}\ns_and_b32 s{t2}, s{t2}, 7\ns_lshl_b32 s{t2}, s{t2}, 2")
                        g.e(f"s_add_u32 s{t2}, s{t2}, s{sW}\ns_mul_i32 s3, s{t2}, 49152\ns_add_u32 s3, s3, s6")
                    g.e(f"s_add_u32 s{t5}, s7, {c * 4 * 3072 + i * 1024}\ns_mov_b32 m0, s{t5}\ns_nop 0")
                    g.dma(vWd + i, sWQ, 3, 0, mods="", tag=("w", c))
                ops.append(op)
            return ops
        if g.cfg.warm:
            g.e(f"""
            s_lshl_b32 s{t2}, s{sC}, 2
            s_add_u32 s{t2}, s{t2}, s{sW}
            s_mul_i32 s{t3}, s{t2}, 12288
            s_lshl_b32 s{t2}, s{t2}, 11
            s_lshl_b32 s{t4}, s{sX}, 18
            s_add_u32 s{t2}, s{t2}, s{t4}
            v_lshlrev_b32 v254, 3, v{vL16}
            v_and_b32 v253, 0x780, v254
            """)
            if g.cfg.warm == 2:
                for op in grp_ops(0):
                    op()
            g.ld("v255", 253, sXIN, t2, 0, mods="", w=1)
            g.ld("v255", 254, sWQ, t3, 0, mods="", w=1)
            g.e(f"v_and_b32 v254, 0xf80, v254\ns_add_u32 s{t3}, s{t3}, 8192")
            g.ld("v255", 254, sWQ, t3, 0, mods="", w=1)
        if g.cfg.warm != 2:
            for op in grp_ops(0):
                op()
        g.srd(sWS, pWS, WS_BYTES)
        g.srd(sDBG, pDBG, 256)
        g.zero_flags()
        g.prologue2()
        g.e(f"""
        v_and_b32 v{vt2}, 31, v{vt0}
        v_lshrrev_b32 v{vt3}, 5, v{vt0}
        v_lshlrev_b32 v{vRs}, 10, v{vt2}
        v_lshl_add_u32 v{vRs}, v{vt3}, 4, v{vRs}
        v_bfe_u32 v{vt1}, v{vt0}, 1, 3
        v_xor_b32 v{vt1}, v{vt1}, v{vt3}
        v_lshlrev_b32 v{vt1}, 4, v{vt1}
        v_lshl_add_u32 v{vt1}, v{vt2}, 7, v{vt1}
        v_add_u32 v{vt1}, s{t6}, v{vt1}
        """)
        for i in range(4):
            g.e(f"s_add_u32 s{t2}, s{sW}, {i}\ns_and_b32 s{t2}, s{t2}, 3\ns_lshl_b32 s{t2}, s{t2}, 5\nv_xor_b32 v{vRd + i}, s{t2}, v{vt1}")
        g.e(f"""
        v_lshrrev_b32 v{vt2}, 5, v{vt0}
        v_lshlrev_b32 v{vt2}, 3, v{vt2}
        v_bfe_u32 v{vt3}, v{vt0}, 2, 2
        v_add_u32 v{vt2}, v{vt2}, v{vt3}
        v_mul_u32_u24 v{vt1}, 192, v{vt2}
        v_bfe_u32 v{vt3}, v{vt0}, 4, 1
        v_lshl_add_u32 v{vt1}, v{vt3}, 5, v{vt1}
        v_and_b32 v{vt3}, 1, v{vt0}
        v_lshl_add_u32 v{vt1}, v{vt3}, 4, v{vt1}
        v_bfe_u32 v{vt3}, v{vt0}, 1, 1
        v_lshl_add_u32 v{vt1}, v{vt3}, 3, v{vt1}
        """)
        for i in range(4):
            g.e(f"s_add_u32 s{t2}, s{sW}, {i}\ns_and_b32 s{t2}, s{t2}, 3\ns_mul_i32 s{t2}, s{t2}, 3072\ns_add_u32 s{t2}, s{t2}, {LW}\nv_add_u32 v{vTr + i}, s{t2}, v{vt1}")
        g.e(f"v_mov_b32 v{vt1}, 0x3f803f80")
        for i in range(4):
            g.e(f"v_accvgpr_write_b32 a{ONE + i}, v{vt1}")
        for op in grp_ops(1):
            op()
        g.stamp("A0_d1")
        g.a_addr(0)
        g.relayout_setup(0)
        g.relayout_setup(1)
        if g.cfg.cpf:
            g.code_prefetch()
        g.stamp("A0_i")
        for op in grp_ops(2):
            op()

        def xread(c):
            return [("v", ("xc", c))] + [
                lambda i=i: g.ds(f"ds_read_b128 {vr(X + 4 * (4 * c + i), 4)}, v{vRd + i} offset:{(c % 4) * 4096}", ("x", c)) for i in range(4)]

        names = "kvq"
        seg = {"q": 0, "k": 1, "v": 2}

        def wread(f):
            st, n = divmod(f, 3)
            c, i = divmod(st, 4)
            if n == 0 and i == 0:
                g.vwait(("w", c))
                g.e("s_barrier")
            if n == 0 and c == 4:
                g.e(f"v_add_u32 v{vTr + i}, 49152, v{vTr + i}")
            b = WB + 4 * (f % 8)
            off = (c % 4) * 12288 + seg[names[n]] * 64
            g.ds(f"ds_read_b64_tr_b16 {ar(b, 2)}, v{vTr + i} offset:{off}", ("w", f))
            g.ds(f"ds_read_b64_tr_b16 {ar(b + 2, 2)}, v{vTr + i} offset:{off + 768}", ("w", f))

        def resld():
            g.e(f"""
            s_lshl_b32 s{t0}, s{sTA}, 15
            s_lshl_b32 s{t2}, s{sCB}, 1
            s_add_u32 s{t2}, s{t2}, s{sNA}
            s_lshl_b32 s{t2}, s{t2}, 6
            s_add_u32 s{t0}, s{t0}, s{t2}
            """)
            g.ld(vr(vRes, 4), vRs, sXIN, t0, 0, mods="", tag="res")
            g.ld(vr(vRes + 4, 4), vRs, sXIN, t0, 32, mods="", tag="res")

        def mf4(d, a, b, first):
            g.e(f"v_mfma_f32_4x4x4_16b_bf16 {d}, {a}, {b}, {'0' if first else d}")

        def stat_mf(st):
            for hh in range(2):
                x = vr(X + 4 * st + 2 * hh, 2)
                mf4(vr(S1 + 4 * hh, 4), ar(ONE, 2), x, st == 0)
                mf4(vr(S2 + 4 * hh, 4), x, x, st == 0)
            g.take(side, 2)

        side = deque(xread(0))
        g.take(side, 99)
        g.stamp("A0_x0")
        LEAD = 5
        for f in range(LEAD):
            wread(f)
        rld = g.relayout_dma_ops()
        XA = 8192
        for c in range(8):
            if c + 3 < 8:
                side.extend(grp_ops(c + 3))
            if c == 0:
                side.extendleft(reversed(xread(1) + [g.handshake_send]))
            elif c + 1 < 8:
                side.extend(xread(c + 1))
            if c == 3:
                side.appendleft(g.handshake_load)
            if c == 4:
                side.append(g.handshake_check)
                side.append(resld)
                side.extend(rld)
            if c == 6:
                side.extend(g.a_saddr(0))
            g.lwait(("x", c))
            if c == 7:
                for i in range(4):
                    stat_mf(28 + i)
                sel = [f"v_add_f32 v{S1}, v{S1}, v{S1 + 4}"] + [f"v_add_f32 v{S2 + r}, v{S2 + r}, v{S2 + 4 + r}" for r in range(4)]
                for m, stp in ((0xaaaaaaaa, 1), (0xcccccccc, 2)):
                    sel += [f"s_mov_b32 s{t2}, {m:#x}", f"s_mov_b32 s{t3}, {m:#x}"]
                    sel += [f"v_cndmask_b32 v{S2 + r}, v{S2 + r}, v{S2 + r + stp}, s[{t2}:{t3}]" for r in range(0, 4, 2 * stp)]
                sel += ["s_nop 1", f"v_permlane32_swap_b32 v{S1}, v{S2}", f"v_add_f32 v{S1}, v{S1}, v{S2}",
                        f"v_mov_b32 v{S2}, v{S1}", "s_nop 1", f"v_permlane32_swap_b32 v{S1}, v{S2}"]
                sel += g.stats_tail(S1, S2, g.A_RS, g.A_CD, g.A_BX)
                sel += [f"s_add_u32 s{t2}, s{t6}, 12288"] + g.a_rc_ops(t2)
            for i in range(4):
                st = 4 * c + i
                g.lwait(("w", 3 * st + 2))
                for n in range(3):
                    f = 3 * st + n
                    wb = ar(WB + 4 * (f % 8), 4)
                    g.a_mfma(names[n], wb, vr(X + 4 * st, 4), st == 0)
                    if i == 0:
                        for hh in range(2):
                            mf4(ar(CS + 8 * n + 4 * hh, 4), ar(ONE, 2), ar(WB + 4 * (f % 8) + 2 * hh, 2), c == 0)
                    if f + LEAD < 96:
                        wread(f + LEAD)
                    g.take(side, 2 if c < 7 else 5)
                    if c == 7 and i == 0 and n == 1:
                        side.extend(sel)
                if c == 7 and i == 1:
                    g.e(f"s_lshl_b32 s{t4}, s{sW}, 2\ns_add_u32 s{t4}, s{t4}, {XA}\nv_add_u32 v253, s{t4}, v{vL16}")
                    for n in range(3):
                        g.e(f"""
                        v_accvgpr_read_b32 v{vt2}, a{CS + 8 * n}
                        v_accvgpr_read_b32 v254, a{CS + 8 * n + 4}
                        v_add_f32 v{vt2}, v{vt2}, v254
                        v_cvt_pk_bf16_f32 v254, v{vt2}, v{vt2}
                        v_lshlrev_b32 v254, 16, v254
                        v_sub_f32 v254, v{vt2}, v254
                        v_cvt_pk_bf16_f32 v254, v{vt2}, v254
                        """)
                        g.ds(f"ds_write_b32 v253, v254 offset:{1024 * n}", "csw")
                if c < 7:
                    stat_mf(st)
            g.take(side, 99)
            g.stamp(f"A0_g{c}")
        g.lwait0()
        g.e("s_barrier")
        for n in range(3):
            g.ds(f"ds_read_b128 {vr(g.A_AX[names[n]], 4)}, v{vL16} offset:{XA + 1024 * n}", ("ax", n))
        for n in range(3):
            g.lwait(("ax", n))
            g.a_mfma(names[n], vr(g.A_AX[names[n]], 4), vr(g.A_BX, 4), False)
        side = deque(g.a_epi("k") + g.a_epi("v") + g.a_epi("q", "sc1"))
        g.take(side, 999)
        g.stamp("A0st")

    def phaseA1(self, layer):
        g = self
        cfg = g.cfg
        LB = LB0 + layer * LBS
        X, SB = g.A_X, 192
        vA0, vA1 = 224, 225
        LW = 65536
        g.e(f"v_add_u32 v{vA0}, {LW}, v{vL16}\nv_add_u32 v{vA1}, {LW + 49152}, v{vL16}")
        g.a_addr(layer)
        g.e("\n".join(g.a_saddr(layer)))
        g.e(f"s_lshl_b32 s{t4}, s{sHP}, 10\ns_add_u32 s{t4}, s{t4}, {WXQ}\ns_lshl_b32 s{t6}, s{sW}, 8\ns_add_u32 s{t6}, s{t6}, {48 * 1024}")
        g.e(f"v_and_b32 v{vt0}, 60, v{vL4}\ns_lshl_b32 s{t2}, s{sT}, 7\ns_add_u32 s{t2}, s{t2}, {FE}")
        pre, xrest, stl = g.load_x_stats(layer - 1, 1, LB - LBS + oX2, X, SB, cfg.up_a)
        seg = {"q": 0, "k": 1, "v": 2}
        LAG = cfg.lag_a
        seq = []
        for ks in range(32):
            seq += [("k", ks), ("v", ks)] + ([("q", ks - LAG)] if ks >= LAG else [])
        nmain = len(seq)
        seq += [("q", ks) for ks in range(32 - LAG, 32)]

        def wread(f):
            n, ks = seq[f]
            off = ((ks % 16) * 3 + seg[n]) * 1024
            g.ds(f"ds_read_b128 {ar(WB + 4 * (f % 8), 4)}, v{vA0 if ks < 16 else vA1} offset:{off}", ("w", f))
        LEAD = 7
        for f in range(LEAD):
            wread(f)
        g.poll(vt0, t2, layer, True)
        g.stamp(f"A{layer}go")
        pre()

        def axld(n):
            g.ld(vr(g.A_AX[n], 4), vL16, sWS, t4, 0, tag="ax")
            g.e(f"s_add_u32 s{t4}, s{t4}, 16384")
        xrest = deque(xrest)
        mem = deque(stl + [lambda n=n: axld(n) for n in "qkv"])
        side = deque()
        for f, (n, ks) in enumerate(seq):
            if f == nmain:
                g.take(side, 999)
                g.vwait("ax")
                for m in "kv":
                    g.a_mfma(m, vr(g.A_AX[m], 4), vr(g.A_BX, 4), False)
                side.extend([None] * 8 + g.a_epi("k") + g.a_epi("v"))
            if n == "k":
                g.vwait(("x", ks))
            if f % 4 == 0:
                g.lwait(("w", min(f + 3, 95)))
            g.a_mfma(n, ar(WB + 4 * (f % 8), 4), vr(X + 4 * ks, 4), ks == 0)
            if f + LEAD < 96:
                wread(f + LEAD)
            if n == "k" and xrest:
                xrest.popleft()()
            elif n == "v" and ks >= cfg.st_a and mem:
                mem.popleft()()
                if not mem:
                    side.extend([None] * 30 + g.stats_ops(SB, g.A_RS, g.A_CD, g.A_BX) + g.a_rc_ops(t6))
            g.take(side, 3 if f < nmain else 7)
            if n == "k" and ks % 8 == 7:
                g.stamp(f"A{layer}_{ks}")
        g.a_mfma("q", vr(g.A_AX["q"], 4), vr(g.A_BX, 4), False)
        g.e("s_barrier")
        g.stamp(f"A{layer}_m")
        side.extend(g.a_epi("q"))
        g.take(side, 999)
        g.stamp(f"A{layer}st")

    RL_SRD = ((28, 32), (80, 16))
    RL_DO = (64, 70)
    RL_XO = (62, 63)
    RL_V = 244
    RL_LDS = 65536

    def relayout_setup(self, ui):
        g = self
        passes = g.cfg.passes
        RA, RB = g.RL_SRD[ui]
        sDO, sDS = g.RL_DO[ui], g.RL_DO[ui] + 1
        sXO = g.RL_XO[ui]
        u, sRS, sSO, sMH, sWO = t7, t9, t10, t8, t11
        a0, a1, a2, a3 = t2, t3, t4, t5
        vS, vT = g.RL_V + ui, g.RL_V + 2 + ui
        L = [g.label("rl") for _ in range(5)]
        if ui == 0:
            g.e(f"s_mov_b32 s{u}, s2\ns_cmp_ge_u32 s{u}, 224\ns_cbranch_scc1 {L[0]}")
            g.srd(RA, pW1, 512 * 3584)
            g.srd(RB, pW3, 512 * 3584)
            g.e(f"""
            s_mov_b32 s{sRS}, 3584
            s_lshr_b32 s{a0}, s{u}, 3
            s_and_b32 s{a1}, s{u}, 7
            s_lshl_b32 s{a2}, s{a1}, 2
            s_add_u32 s{a2}, s{a2}, s{sW}
            s_mul_i32 s{sSO}, s{a2}, {16 * 3584}
            s_lshl_b32 s{a2}, s{a0}, 7
            s_add_u32 s{sSO}, s{sSO}, s{a2}
            s_lshl_b32 s{a0}, s{a0}, 2
            s_add_u32 s{a0}, s{a0}, s{sW}
            s_lshl_b32 s{sXO}, s{a0}, 10
            s_add_u32 s{sXO}, s{sXO}, {WX13}
            s_mul_i32 s{a2}, s{a0}, 9363
            s_lshr_b32 s{a2}, s{a2}, 16
            s_mul_i32 s{a3}, s{a2}, 7
            s_sub_u32 s{a3}, s{a0}, s{a3}
            s_mul_i32 s{sDO}, s{a2}, 229376
            s_add_u32 s{sDO}, s{sDO}, {W13}
            s_mov_b32 s{a2}, {passes[0][0]}
            s_mov_b32 s{sDS}, {(passes[0][1] - passes[0][0]) * 1024}
            """)
            for a, b in passes[1:]:
                g.e(f"s_cmp_ge_u32 s{a3}, {a}\ns_cselect_b32 s{a2}, {a}, s{a2}\ns_cselect_b32 s{sDS}, {(b - a) * 1024}, s{sDS}")
            g.e(f"""
            s_mul_i32 s{a0}, s{a2}, 31
            s_add_u32 s{a0}, s{a0}, s{a3}
            s_lshl_b32 s{a0}, s{a0}, 10
            s_add_u32 s{sDO}, s{sDO}, s{a0}
            s_mov_b32 s{sMH}, 8192
            s_lshl_b32 s{sWO}, s{sW}, 5
            """)
            other, nks, wdst, first, ptr = "wo", 32, WO, 224, pWO
        else:
            g.e(f"s_sub_u32 s{a0}, s2, 208\ns_cmp_ge_u32 s2, 208\ns_cselect_b32 s{u}, s{a0}, s2\ns_cmp_lt_u32 s{u}, 112\ns_cbranch_scc1 {L[0]}")
            g.srd(RA, pWQ, 512 * 3072)
            g.srd(RB, pWQ, 512 * 3072 - 128)
            g.e(f"""
            s_add_u32 s{RB}, s{RB}, 128
            s_addc_u32 s{RB + 1}, s{RB + 1}, 0
            s_mov_b32 s{sRS}, 3072
            s_sub_u32 s{a0}, s{u}, 112
            s_and_b32 s{a1}, s{a0}, 7
            s_lshr_b32 s{a0}, s{a0}, 3
            s_lshl_b32 s{a2}, s{a1}, 2
            s_add_u32 s{a2}, s{a2}, s{sW}
            s_mul_i32 s{sSO}, s{a2}, {16 * 3072}
            s_lshl_b32 s{a2}, s{a0}, 8
            s_add_u32 s{sSO}, s{sSO}, s{a2}
            s_lshl_b32 s{a0}, s{a0}, 2
            s_add_u32 s{a0}, s{a0}, s{sW}
            s_lshl_b32 s{sXO}, s{a0}, 10
            s_add_u32 s{sXO}, s{sXO}, {WXQ}
            s_and_b32 s{a2}, s{a0}, 15
            s_mul_i32 s{sDO}, s{a2}, {32 * 3072}
            s_lshr_b32 s{a2}, s{a0}, 4
            s_lshl_b32 s{a2}, s{a2}, 10
            s_add_u32 s{sDO}, s{sDO}, s{a2}
            s_add_u32 s{sDO}, s{sDO}, {WQ}
            s_mov_b32 s{sDS}, 3072
            s_mov_b32 s{sMH}, 32
            s_lshr_b32 s{sWO}, s{sW}, 1
            s_lshl_b32 s{sWO}, s{sWO}, 13
            s_and_b32 s{a2}, s{sW}, 1
            s_lshl_b32 s{a2}, s{a2}, 6
            s_add_u32 s{sWO}, s{sWO}, s{a2}
            """)
            other, nks, wdst, first, ptr = "w2", 112, W2, 0, pW2
        g.e(f"""
        s_lshl_b32 s{a0}, s{sDS}, 2
        s_mul_i32 s{a0}, s{a0}, s{a1}
        s_add_u32 s{sDO}, s{sDO}, s{a0}
        s_and_b32 s{a0}, s{a1}, 4
        s_lshl_b32 s{a0}, s{a0}, 7
        s_add_u32 s{sXO}, s{sXO}, s{a0}
        s_and_b32 s{a0}, s{a1}, 3
        s_lshl_b32 s{a0}, s{a0}, 2
        s_add_u32 s{sXO}, s{sXO}, s{a0}
        s_branch {L[1]}
        {L[0]}:
        """)
        g.srd(RA, ptr, nks * 16 * 1024)
        g.srd(RB, ptr, nks * 16 * 1024 - 512)
        g.e(f"""
        s_add_u32 s{RB}, s{RB}, 512
        s_addc_u32 s{RB + 1}, s{RB + 1}, 0
        s_mov_b32 s{sRS}, 1024
        s_sub_u32 s{a0}, s{u}, {first}
        s_lshl_b32 s{sSO}, s{a0}, 14
        s_lshl_b32 s{a1}, s{sW}, 7
        s_add_u32 s{sSO}, s{sSO}, s{a1}
        s_lshr_b32 s{a1}, s{sW}, 1
        s_lshl_b32 s{sWO}, s{a1}, 13
        s_mul_i32 s{a1}, s{a1}, {4 * nks}
        s_add_u32 s{a1}, s{a1}, s{a0}
        s_lshl_b32 s{sDO}, s{a1}, 11
        s_and_b32 s{a1}, s{sW}, 1
        s_lshl_b32 s{a2}, s{a1}, 10
        s_add_u32 s{sDO}, s{sDO}, s{a2}
        s_add_u32 s{sDO}, s{sDO}, {wdst}
        s_mov_b32 s{sDS}, {nks * 2048}
        s_lshl_b32 s{a2}, s{a1}, 6
        s_add_u32 s{sWO}, s{sWO}, s{a2}
        s_mov_b32 s{sMH}, 32
        s_lshl_b32 s{sXO}, s{u}, 2
        s_add_u32 s{sXO}, s{sXO}, s{sW}
        s_and_b32 s{sXO}, s{sXO}, 63
        s_lshl_b32 s{sXO}, s{sXO}, 10
        s_add_u32 s{sXO}, s{sXO}, {WXD}
        {L[1]}:
        v_lshrrev_b32 v{vS}, 7, v{vL16}
        v_mul_lo_u32 v{vS}, v{vS}, s{sRS}
        v_and_b32 v{vT}, 0x70, v{vL16}
        v_add3_u32 v{vS}, v{vS}, v{vT}, s{sSO}
        s_lshl_b32 s{4 + ui}, s{sRS}, 3
        s_add_u32 s{sWO}, s{sWO}, {g.RL_LDS + ui * 16384}
        v_bfe_u32 v{vT}, v{vL16}, 8, 1
        v_mul_lo_u32 v{vT}, v{vT}, s{sMH}
        v_add_u32 v{vT}, s{sWO}, v{vT}
        v_lshrrev_b32 v{vt2}, 9, v{vL16}
        v_lshl_add_u32 v{vT}, v{vt2}, 10, v{vT}
        v_bfe_u32 v{vt2}, v{vL16}, 6, 2
        v_lshl_add_u32 v{vT}, v{vt2}, 7, v{vT}
        v_and_b32 v{vt2}, 16, v{vL16}
        v_add_u32 v{vT}, v{vt2}, v{vT}
        v_bfe_u32 v{vt2}, v{vL16}, 5, 1
        v_lshl_add_u32 v{vT}, v{vt2}, 3, v{vT}
        v_add_u32 v{g.RL_V + 4 + ui}, s{4 + ui}, v{vS}
        """)

    def relayout_dma_ops(self):
        g = self
        ops = []
        for ui in range(2):
            for i in range(4):
                def op(ui=ui, i=i):
                    g.e(f"s_lshl_b32 s{t5}, s{sW}, 11\ns_add_u32 s{t5}, s{t5}, {g.RL_LDS + ui * 16384 + (i // 2) * 8192 + (i % 2) * 1024}")
                    g.e(f"s_mov_b32 m0, s{t5}\ns_nop 0")
                    g.dma(g.RL_V + ui + 4 * (i % 2), g.RL_SRD[ui][i // 2], None, 0, mods="", tag="rl")
                ops.append(op)
        return ops

    def relayout_out_ops(self, D):
        g = self
        ops = []
        CS, ONE = 224, 240
        for ui in range(2):
            sDO, sDS = g.RL_DO[ui], g.RL_DO[ui] + 1
            for i in range(4):
                d = D + 4 * (i % 2)

                def rd(ui=ui, i=i, d=d):
                    vS = (vt2, vt3)[ui]
                    g.ds(f"ds_read_b64_tr_b16 {vr(d, 2)}, v{vS} offset:{i * 2048}", ("rl", i))
                    g.ds(f"ds_read_b64_tr_b16 {vr(d + 2, 2)}, v{vS} offset:{i * 2048 + 512}", ("rl", i))

                def wr(i=i, d=d, sDO=sDO, sDS=sDS):
                    g.lwait(("rl", i))
                    g.st(vr(d, 4), vL16, sWS, sDO, 0, "sc1", tag="rlst")
                    g.e(f"s_add_u32 s{sDO}, s{sDO}, s{sDS}")

                def cs(i=i, d=d):
                    g.e(f"v_mfma_f32_32x32x16_bf16 {ar(CS, 16)}, {ar(ONE, 4)}, {vr(d, 4)}, {ar(CS, 16) if i else '0'}")
                ops += [(rd, "A"), (wr, "C"), (cs, "D")]

            def xo(ui=ui):
                g.e(f"""
                v_accvgpr_read_b32 v254, a{CS}
                v_and_b32 v{vt0}, 0x1f0, v{vL16}
                v_cvt_pk_bf16_f32 v255, v254, v254
                v_lshlrev_b32 v255, 16, v255
                v_sub_f32 v255, v254, v255
                v_cvt_pk_bf16_f32 v255, v254, v255
                """)
                g.st(vr(255), vt0, sWS, g.RL_XO[ui], 0, "sc1", tag="rlst", w=1)
            ops.append((xo, "X"))
        return ops

    def ew_ops(self, lo, hi, ts):
        g = self
        a, b = ts
        ops = []

        def setup():
            g.e(f"s_mul_i32 s{a}, s{sCB}, {112 * 2048}\ns_mul_i32 s{b}, s{sW}, {28 * 2048}")
        def setup2():
            g.e(f"s_add_u32 s{a}, s{a}, s{b}\ns_add_u32 s{a}, s{a}, {W2 + (lo // 4) * 4096}")
        def setup3():
            g.e(f"s_lshl_b32 s{b}, s{sNA}, 10\ns_add_u32 s{a}, s{a}, s{b}")
        def setup4():
            g.e(f"s_xor_b32 s{b}, s{a}, 1024")
        ops += [setup, setup2, setup3, setup4]
        assert lo % 4 == 0
        for idx in range(lo, hi):
            def op(idx=idx):
                i, n = divmod(idx, 2)
                if idx > lo and idx % 4 == 0:
                    g.e(f"s_add_u32 s{a}, s{a}, 4096\ns_add_u32 s{b}, s{b}, 4096")
                g.ld(ar(4 * idx, 4), vL16, sWS, (a, b)[n], (i % 2) * 2048, mods=g.cfg.wmods, tag="ew")
            ops.append(op)
        return ops

    def phaseB(self, layer):
        g = self
        cfg = g.cfg
        LB = LB0 + layer * LBS
        O, Q, S, KV = 16, 144, 176, 208
        vV = 252
        CW = [R("a", 224 + 4 * i) for i in range(8)] + [R("v", 220 + 4 * i) for i in range(8)]
        SBo, SBl = 104 * 1024, 152 * 1024
        sKV, sG = 6, 7
        for j in range(8):
            for r in range(9):
                g.e(f"v_mov_b32 v{O + 16 * j + r}, 0")
        g.vwait0()
        g.signal(0, layer + 1, layer > 0)
        g.e(f"v_mov_b32 v{vt0}, 0x3f803f80\ns_mov_b32 s{t0}, 0x00110000\ns_mov_b32 s{t1}, 0x00110000")
        if layer == 0:
            for i in range(4):
                g.e(f"v_accvgpr_write_b32 a{240 + i}, v{vt0}")
        g.e(f"v_cndmask_b32 v{vt0}, 0, v{vt0}, s[{t0}:{t1}]")
        for e in range(3):
            for r in range(4, 12):
                g.e(f"v_mov_b32 v{KV + 12 * e + r}, v{vt0}")
        if layer == 0:
            g.e(f"v_mov_b32 v{vt2}, v{g.RL_V + 2}\nv_mov_b32 v{vt3}, v{g.RL_V + 3}")
        g.e(f"""
        v_lshrrev_b32 v{vt0}, 9, v{vL16}
        v_lshlrev_b32 v{vV}, 8, v{vt0}
        v_and_b32 v{vt0}, 0xf0, v{vL16}
        v_add_u32 v{vV}, v{vV}, v{vt0}
        v_bfe_u32 v{vt0}, v{vL16}, 5, 3
        v_add_u32 v{vt0}, s{sX}, v{vt0}
        v_and_b32 v{vt0}, 7, v{vt0}
        v_lshlrev_b32 v253, 7, v{vt0}
        v_bfe_u32 v{vt0}, v{vL16}, 4, 1
        v_lshl_add_u32 v253, v{vt0}, 2, v253
        v_and_b32 v{vt0}, 28, v{vL4}
        s_lshl_b32 s{t0}, s{sX}, 4
        s_lshr_b32 s{t1}, s{sC}, 1
        s_add_u32 s{t0}, s{t0}, s{t1}
        s_lshl_b32 s{t0}, s{t0}, 7
        s_add_u32 s{t0}, s{t0}, {FA_L}
        s_lshl_b32 s{sG}, s{t1}, 10
        s_lshl_b32 s{t2}, s{sW}, 3
        s_add_u32 s{sG}, s{sG}, s{t2}
        s_add_u32 s{sG}, s{sG}, {FA_G}
        s_lshl_b32 s{t2}, s{sW}, 1
        s_lshl_b32 s{sKV}, s{sC}, 6
        s_add_u32 s{sKV}, s{sKV}, s{t2}
        s_lshl_b32 s{sKV}, s{sKV}, 11
        s_add_u32 s{sKV}, s{sKV}, {LB + oKV}
        s_lshl_b32 s{t3}, s{sC}, 6
        s_lshl_b32 s{t4}, s{sX}, 3
        s_add_u32 s{t3}, s{t3}, s{t4}
        s_lshl_b32 s{t3}, s{t3}, 10
        s_add_u32 s{t3}, s{t3}, {LB + oQ}
        """)
        l3, l0 = g.label("b3"), g.label("b0")
        g.e(f"s_barrier\ns_cmp_eq_u32 s{sW}, 3\ns_cbranch_scc0 {l3}")
        g.e(f"v_readlane_b32 s{t5}, v{vFl}, 1\nv_mov_b32 v{vt1}, {layer + 1}\ns_mov_b64 exec, 15\ns_sub_u32 s{t5}, s{t5}, 12\ns_nop 1")
        g.e(f"buffer_store_dword v{vt1}, v{vL4}, {sr(sWS, 4)}, s{t5} offen sc1\ns_mov_b64 exec, -1\n{l3}:")
        g.e(f"s_cmp_eq_u32 s{sW}, 0\ns_cbranch_scc0 {l0}")
        keep = list(g.vmq)
        g.poll(vt0, t0, layer + 1, False, sleep=0 if layer else 1)
        g.vmq = keep
        g.e(f"{l0}:\ns_barrier")
        if layer > 0:
            g.dual("", "buffer_inv sc1\ns_waitcnt vmcnt(0)", 0)
        g.stamp(f"B{layer}go")

        def kv_addr(kt):
            g.e(f"s_add_u32 s3, s{sX}, {kt // 2}\ns_and_b32 s3, s3, 7")
            g.e(f"s_lshl_b32 s3, s3, 14\ns_add_u32 s3, s3, s{sKV}")

        def ldK(kt):
            g.ld(vr(KV + 12 * (kt % 3), 4), vL16, sWS, 3, (kt % 2) * 2048, tag=("K", kt))

        def ldV(kt):
            e = KV + 12 * (kt % 3)
            g.e(f"s_mov_b64 exec, s[{sVM}:{sVM + 1}]")
            g.ld(vr(e + 4, 4), vV, sWS, 3, (kt % 2) * 2048 + 1024, tag=("V", kt))
            g.ld(vr(e + 8, 4), vV, sWS, 3, (kt % 2) * 2048 + 1536, tag=("V", kt))
            g.e("s_mov_b64 exec, -1")

        def ldQ(j):
            g.e(f"s_add_u32 s{t4}, s{t2}, {2 + j}\ns_and_b32 s{t4}, s{t4}, 7\ns_lshl_b32 s{t4}, s{t4}, 10\ns_add_u32 s{t4}, s{t4}, s{t3}")
            g.ld(vr(Q + 4 * j, 4), vL16, sWS, t4, 0, tag=("Q", j))
        kv_addr(0)
        ldK(0)
        ldQ(0)
        ldQ(1)
        ldV(0)
        for j in range(2, 8):
            ldQ(j)
        ldK(1)
        ldV(1)

        gaps = {}

        def at(n, gap, fn):
            gaps.setdefault((n, gap), []).append(fn)

        def spread(ops, n0, per_tile=3, gapset="ABC"):
            n, k = n0, 0
            for op in ops:
                at(n, gapset[k], op)
                k += 1
                if k == min(per_tile, len(gapset)):
                    n, k = n + 1, 0
            return n + 1

        for j in range(1, 8):
            at(j - 1, "A", lambda j=j: g.vwait(("Q", j)))
        at(0, "B", lambda: g.vwait(("V", 0)))
        for kt in range(1, 16):
            at(8 * kt - 1, "A", lambda kt=kt: g.vwait(("V", kt)))

        vG = 253

        def gpoll_ld():
            g.ld(vr(vt1), vG, sWS, sG, 0, tag="gf", w=1)

        def gpoll_snap():
            g.vwait("gf")
            g.e(f"v_cmp_gt_u32 s[{sSN2}:{sSN2 + 1}], {layer + 1}, v{vt1}")

        def gcheck(kt):
            ls, lj, lp = g.label("gslow"), g.label("gjoin"), g.label("gp")
            m = 3 << kt
            g.e(f"s_and_b32 s{t11}, s{sSN2}, {m}\ns_cbranch_scc1 {ls}\n{lj}:")
            g.tail.append(f"""{ls}:
            s_mov_b32 s{sTO}, {TIMEOUT}
            {lp}:
            buffer_load_dword v{vt1}, v{vG}, {sr(sWS, 4)}, s{sG} offen sc1
            s_sub_u32 s{sTO}, s{sTO}, 1
            s_cbranch_scc1 L_exit
            s_waitcnt vmcnt(0)
            v_cmp_gt_u32 s[{sSN2}:{sSN2 + 1}], {layer + 1}, v{vt1}
            s_nop 1
            s_and_b32 s{t11}, s{sSN2}, {m}
            s_cbranch_scc0 {lj}
            s_sleep 2
            s_branch {lp}""")
        at(cfg.gp, "C", gpoll_ld)
        at(cfg.gp + 3, "A", gpoll_snap)
        at(cfg.gp + 3, "B", lambda: gcheck(2))
        at(cfg.gp + 3, "B", lambda: kv_addr(2))
        at(cfg.gp + 3, "C", lambda: ldK(2))
        at(cfg.gp + 4, "A", lambda: ldV(2))
        for kt in range(3, 16):
            n = max(8 * (kt - 2), cfg.gp + 4)
            if kt % 2 == 0:
                at(n - 1, "C", lambda kt=kt: gcheck(kt))
                at(n, "A", lambda kt=kt: kv_addr(kt))
            at(n, "B", lambda kt=kt: ldK(kt))
            at(n, "C", lambda kt=kt: ldV(kt))

        def w13base():
            g.e(f"s_mul_i32 s{t11 - 1}, s{sHP}, 229376\ns_add_u32 s{t11 - 1}, s{t11 - 1}, {W13}")
        if layer == 0:
            n = cfg.rl0
            at(8, "A", g.xcc_send)
            at(100, "B", g.xcc_load)
            at(105, "B", g.xcc_check)
            for op, gap in g.relayout_out_ops(244):
                if gap == "X":
                    at(n, "C", op)
                    n += 1
                else:
                    at(n, gap, op)
                    n += gap == "D"

            def rl_sig():
                g.vwait("rlst")
                g.e("s_barrier")
                L = g.label("rls")
                g.e(f"v_mov_b32 v{vt1}, 1\ns_cmp_eq_u32 s{sW}, 0\ns_cbranch_scc0 {L}\ns_mov_b64 exec, 64")
                g.e(f"buffer_store_dword v{vt1}, v{vFl}, {sr(sWS, 4)}, 0 offen sc1\ns_mov_b64 exec, -1\n{L}:")
                g.stamp("R_sig")
            n += 7
            at(n, "A", rl_sig)

            def rl_ld():
                g.e(f"s_mov_b32 s{t10}, {FR}\nv_lshlrev_b32 v248, 3, v{vL16}")
                g.ld(vr(244, 4), 248, sWS, t10, 0, tag="rf")

            def rl_check():
                g.stamp("R_pre")
                g.late_check("rf", f"buffer_load_dwordx4 v[244:247], v248, {sr(sWS, 4)}, s{t10} offen sc1",
                             "v_min_u32 v244, v244, v245\nv_min3_u32 v244, v244, v246, v247\nv_cmp_gt_u32 vcc, 1, v244", cfg.rl_sleep)
                g.stamp("R_chk")
            n += cfg.rl_gap
            at(n, "A", rl_ld)
            n += 5
            at(n, "A", rl_check)
            n0 = n + 1
        else:
            n0 = 10
        at(n0, "A", w13base)
        pops = g.dma_ops(0, 26, t11 - 1, 0, "w13a", (t8, t9))
        if layer == 0 and cfg.ew_in_b:
            pops += g.ew_ops(0, cfg.ew_in_b, (t8, t9))
        if cfg.pf_w13 & (1 << layer):
            def pfb():
                g.e(f"s_lshr_b32 s{t8}, s{sC}, 4\ns_lshl_b32 s{t8}, s{t8}, 2")
            def pfb2():
                g.e(f"s_add_u32 s{t8}, s{t8}, s{sW}\ns_mul_i32 s{t8}, s{t8}, {15 * 1024}")
            def pfb3():
                g.e(f"s_add_u32 s{t8}, s{t8}, s{t11 - 1}\ns_add_u32 s{t8}, s{t8}, {104 * 1024}")
            pops += [pfb, pfb2, pfb3] + g.l2_prefetch(t8, 16 * 1024, 254)

        def pfx():
            g.e(f"s_mul_i32 s{t8}, s{sHP}, 7168\ns_lshl_b32 s{t9}, s{sW}, 11")
        def pfx2():
            g.e(f"s_add_u32 s{t8}, s{t8}, s{t9}\ns_add_u32 s{t8}, s{t8}, {WX13}")
        pops += [pfx, pfx2] + g.l2_prefetch(t8, 2048, 254)
        span = 112 - (n0 + 1)
        for i, op in enumerate(pops):
            k = i * 2 * span // len(pops)
            at(n0 + 1 + k // 2, "AC"[k % 2], op)

        def cw_setup():
            g.e(f"s_lshl_b32 s{t8}, s{sCB}, 16\ns_lshl_b32 s{t9}, s{sW}, 14")
        def cw_setup2():
            g.e(f"s_add_u32 s{t8}, s{t8}, s{t9}\ns_lshl_b32 s{t9}, s{sNA}, 10")
        def cw_setup3():
            g.e(f"s_add_u32 s{t8}, s{t8}, s{t9}\ns_add_u32 s{t8}, s{t8}, {WO}")
        def cw_setup4():
            g.e(f"s_xor_b32 s{t9}, s{t8}, 1024")
        cw = []
        for idx in range(16):
            def op(idx=idx):
                i, n_ = divmod(idx, 2)
                if idx and idx % 4 == 0:
                    g.e(f"s_add_u32 s{t8}, s{t8}, 4096\ns_add_u32 s{t9}, s{t9}, 4096")
                g.ld(CW[idx](0, 4), vL16, sWS, (t8, t9)[n_], (i % 2) * 2048, mods=g.cfg.wmods, tag="cw")
            cw.append(op)
        spread([cw_setup, cw_setup2, cw_setup3, cw_setup4] + cw[:11], 113, 2, "AC")
        spread(cw[11:], 121, 1, "B")

        def red_addr(d):
            g.e(f"s_add_u32 s{t0}, s{sW}, {1 + d}\ns_and_b32 s{t0}, s{t0}, 3")
        def red_addr2(d):
            g.e(f"s_mul_i32 s{t0}, s{t0}, 6\ns_add_u32 s{t0}, s{t0}, {2 * d}")
        def red_addr3(d):
            g.e(f"s_lshl_b32 s{t1}, s{t0}, 11\ns_add_u32 s{t1}, s{t1}, {SBo}\nv_add_u32 v{vt0}, s{t1}, v{vL16}")
            g.e(f"s_lshl_b32 s{t1}, s{t0}, 8\ns_add_u32 s{t1}, s{t1}, {SBl}\nv_add_u32 v{vt2}, s{t1}, v{vL4}")

        def red_wr(j, part):
            b = O + 16 * j
            s_ = j % 2
            if part == 0:
                g.ds(f"ds_write_b128 v{vt0}, {vr(b, 4)} offset:{s_ * 2048}")
            elif part == 1:
                g.ds(f"ds_write_b128 v{vt0}, {vr(b + 4, 4)} offset:{s_ * 2048 + 1024}")
            else:
                g.ds(f"ds_write_b32 v{vt2}, v{b + 8} offset:{s_ * 256}")
        for j in range(6):
            n = 120 + j + 2
            if j % 2 == 0:
                at(n - 1, "A", lambda d=j // 2: red_addr(d))
                at(n - 1, "B", lambda d=j // 2: red_addr2(d))
                at(n - 1, "D", lambda d=j // 2: red_addr3(d))
            at(n, "A", lambda j=j: red_wr(j, 0))
            at(n, "B", lambda j=j: red_wr(j, 1))
            at(n, "C", lambda j=j: red_wr(j, 2))

        def run(n, gap):
            for fn in gaps.pop((n, gap), []):
                fn()

        def qk(n):
            kt, j = divmod(n, 8)
            g.e(f"v_mfma_f32_32x32x16_bf16 {vr(S + 16 * (n % 2), 16)}, {vr(KV + 12 * (kt % 3), 4)}, {vr(Q + 4 * j, 4)}, 0")

        def pv(n, half):
            kt, j = divmod(n, 8)
            g.e(f"v_smfmac_f32_32x32x32_bf16 {vr(O + 16 * j, 16)}, {vr(KV + 12 * (kt % 3) + 4 + 4 * half, 4)}, {vr(S + 16 * (n % 2) + 8 * half, 8)}, v{vIdx}")

        g.vwait(("Q", 0))
        qk(0)
        for n in range(128):
            sb = S + 16 * (n % 2)
            ex = [f"v_exp_f32 v{sb + i}, v{sb + i}" for i in range(16)]
            g.e("\n".join(ex[0:2]))
            if n:
                pv(n - 1, 1)
            run(n, "A")
            g.e("\n".join(ex[2:5]))
            if n < 127:
                qk(n + 1)
            run(n, "B")
            g.e("\n".join(ex[5:10]))
            pv(n, 0)
            run(n, "C")
            g.e("\n".join(ex[10:16]))
            run(n, "D")
            if n % 8 == 7:
                g.stamp(f"B{layer}_{n // 8}")
        assert not gaps, gaps.keys()
        g.vwait("w13a")
        g.lwait0()
        pv(127, 1)
        g.e("s_barrier")
        g.e(f"""
        s_mul_i32 s{t0}, s{sW}, 6
        s_lshl_b32 s{t1}, s{t0}, 11
        s_add_u32 s{t1}, s{t1}, {SBo}
        v_add_u32 v{vt0}, s{t1}, v{vL16}
        s_lshl_b32 s{t1}, s{t0}, 8
        s_add_u32 s{t1}, s{t1}, {SBl}
        v_add_u32 v{vt2}, s{t1}, v{vL4}
        """)
        PB = 16
        for s_ in range(2):
            for d in range(3):
                b = PB + 10 * (3 * s_ + d)
                g.ds(f"ds_read_b128 {vr(b, 4)}, v{vt0} offset:{(2 * d + s_) * 2048}", ("p", s_))
                g.ds(f"ds_read_b128 {vr(b + 4, 4)}, v{vt0} offset:{(2 * d + s_) * 2048 + 1024}", ("p", s_))
                g.ds(f"ds_read_b32 v{b + 8}, v{vt2} offset:{(2 * d + s_) * 256}", ("p", s_))
            if s_ == 0:
                g.e(f"""
                s_lshl_b32 s{t0}, s{sX}, 3
                s_lshl_b32 s{t1}, s{sW}, 1
                s_add_u32 s{t0}, s{t0}, s{t1}
                s_lshl_b32 s{t0}, s{t0}, 5
                s_add_u32 s{t0}, s{t0}, s{sC}
                s_lshl_b32 s{t0}, s{t0}, 10
                s_add_u32 s{t0}, s{t0}, {LB + oO}
                s_add_u32 s{t1}, s{t0}, 32768
                """)
        for s_ in range(2):
            ob = O + 16 * (6 + s_)
            g.lwait(("p", s_))
            for d in range(3):
                b = PB + 10 * (3 * s_ + d)
                g.e(f"v_add_f32 v{ob + 8}, v{ob + 8}, v{b + 8}")
                for i in range(0, 8, 2):
                    g.e(f"v_pk_add_f32 {vr(ob + i, 2)}, {vr(ob + i, 2)}, {vr(b + i, 2)}")
        g.softmax_guard(layer, O + 96, O + 112)
        for s_ in range(2):
            ob = O + 16 * (6 + s_)
            g.e(f"v_rcp_f32 v{ob + 10}, v{ob + 8}\ns_nop 0")
            for i in range(0, 8, 2):
                g.e(f"v_pk_mul_f32 {vr(ob + i, 2)}, {vr(ob + i, 2)}, {vr(ob + 10, 2)} op_sel_hi:[1,0]")
            for i in range(4):
                g.e(f"v_cvt_pk_bf16_f32 v{ob + 12 + i}, v{ob + 2 * i}, v{ob + 2 * i + 1}")
            g.st(vr(ob + 12, 4), vL16, sWS, (t0, t1)[s_], 0, tag="ost")
        g.stamp(f"B{layer}st")
        self.CW = CW

    def softmax_guard(self, layer, o0, o1):
        pass

    def reduce_write(self, acc, d, base):
        g = self
        ops = []

        def addr():
            g.e(f"s_xor_b32 s{t6}, s{sW}, {d}\ns_mul_i32 s{t6}, s{t6}, 12288")
        def addr2():
            g.e(f"s_add_u32 s{t6}, s{t6}, {base + (d - 1) * 4096}\nv_add_u32 v{vt0}, s{t6}, v{vL16}")
        ops += [addr, addr2]
        for q in range(4):
            ops.append(lambda q=q: g.ds(f"ds_write_b128 v{vt0}, {vr(acc + 4 * q, 4)} offset:{q * 1024}"))
        return ops

    def reduce_pre(self, layer, which, base, Z, final):
        g = self
        LB = LB0 + layer * LBS
        g.e(f"s_mul_i32 s{t6}, s{sW}, 12288\ns_add_u32 s{t6}, s{t6}, {base}\nv_add_u32 v{vt2}, s{t6}, v{vL16}")
        for i in range(8):
            g.e(f"v_lshlrev_b32 v{Z + 2 * i}, 16, v{vRes + i}\nv_and_b32 v{Z + 2 * i + 1}, s{sMask}, v{vRes + i}")
        g.e(f"s_lshl_b32 s{t0}, s{sCB}, 1\ns_add_u32 s{t0}, s{t0}, s{sNA}")
        if final:
            g.srd(sOUT, pOUT, 2048 * 1024)
            g.e(f"""
            v_lshrrev_b32 v{vt1}, 4, v{vL16}
            v_and_b32 v{vt3}, 31, v{vt1}
            v_lshrrev_b32 v{vt1}, 5, v{vt1}
            v_lshlrev_b32 v{vt3}, 10, v{vt3}
            v_lshl_add_u32 v{vt3}, v{vt1}, 4, v{vt3}
            s_lshl_b32 s{t7}, s{sTA}, 15
            s_lshl_b32 s{t8}, s{t0}, 6
            s_add_u32 s{t7}, s{t7}, s{t8}
            """)
        else:
            g.e(f"""
            v_mov_b32 v{vt3}, 0x3f803f80
            s_lshl_b32 s{t7}, s{sTA}, 15
            s_lshl_b32 s{t8}, s{t0}, 11
            s_add_u32 s{t7}, s{t7}, s{t8}
            s_add_u32 s{t7}, s{t7}, {LB + (oX1, oX2)[which]}
            s_lshl_b32 s{t8}, s{sTA}, 12
            s_lshr_b32 s{t9}, s{t0}, 2
            s_lshl_b32 s{t9}, s{t9}, 10
            s_add_u32 s{t8}, s{t8}, s{t9}
            s_and_b32 s{t9}, s{t0}, 3
            s_lshl_b32 s{t9}, s{t9}, 2
            s_add_u32 s{t8}, s{t8}, s{t9}
            s_add_u32 s{t8}, s{t8}, {ST + (2 * layer + which) * 0x40000}
            """)

    def reduce_read_ops(self, ds_, PB, Z):
        g = self
        ops = []

        def bar():
            g.lwait0()
            g.e("s_barrier")
        ops.append(bar)
        for k, d in enumerate(ds_):
            for q in range(4):
                ops.append(lambda k=k, d=d, q=q: g.ds(
                    f"ds_read_b128 {vr(PB + 16 * k + 4 * q, 4)}, v{vt2} offset:{(d - 1) * 4096 + q * 1024}", ("p", d, q)))
        for k, d in enumerate(ds_):
            for q in range(4):
                def add(k=k, d=d, q=q):
                    g.lwait(("p", d, q))
                    for i in range(4 * q, 4 * q + 4):
                        g.e(f"v_add_f32 v{Z + i}, v{Z + i}, v{PB + 16 * k + i}")
                ops.append(add)
        return ops

    def reduce_finish(self, layer, which, acc, Z, final):
        g = self
        g.stamp(f"{'CE'[which]}{layer}_r0")
        for h in range(2):
            for i in range(8 * h, 8 * h + 8, 2):
                g.e(f"v_pk_add_f32 {vr(acc + i, 2)}, {vr(acc + i, 2)}, {vr(Z + i, 2)}")
            for i in range(4 * h, 4 * h + 4):
                g.e(f"v_cvt_pk_bf16_f32 v{vRes + i}, v{acc + 2 * i}, v{acc + 2 * i + 1}")
            if final:
                g.st(vr(vRes + 4 * h, 4), vt3, sOUT, t7, 32 * h, g.cfg.out_mods)
            else:
                g.st(vr(vRes + 4 * h, 4), vL16, sWS, t7, 1024 * h)
        if final:
            return
        for i in range(4):
            g.e(f"v_mov_b32 v{Z + i}, 0")
        for i in range(8):
            g.e(f"v_dot2c_f32_bf16 v{Z + i % 2}, v{vRes + i}, v{vt3}")
            g.e(f"v_dot2c_f32_bf16 v{Z + 2 + i % 2}, v{vRes + i}, v{vRes + i}")
        g.e(f"s_nop 1\nv_add_f32 v{Z}, v{Z}, v{Z + 1}\nv_add_f32 v{Z + 2}, v{Z + 2}, v{Z + 3}\ns_nop 1")
        g.e(f"v_permlane32_swap_b32 v{Z}, v{Z + 2}\nv_add_f32 v{Z}, v{Z}, v{Z + 2}")
        g.dual(g.st_text(vr(Z), vL16, sWS, t8, 0, "", 1), g.st_text(vr(Z), vL16, sWS, t8, 0, "sc1", 1), 1)
        g.vmq[-1] = "stst"

    def splitk_body(self, nks, wreg, hreg, ldh, nup, AC, PB, Z, SC, SK, name):
        g = self
        nxt = [nup]
        for m in range(nup):
            ldh(m)

        def more():
            if nxt[0] < 2 * nks and nxt[0] - self.ring < self.consumed:
                ldh(nxt[0])
                nxt[0] += 1

        def mf(tk, n, i):
            m = i if tk else nks + i
            acc = AC[2 * tk + n]
            c = vr(acc, 16) if i else "0"
            g.e(f"v_mfma_f32_32x32x16_bf16 {vr(acc, 16)}, {wreg(2 * i + n)}, {hreg(m)}, {c}")
        side = deque()

        def pop(k=1):
            for _ in range(k):
                if side:
                    o = side.popleft()
                    if o:
                        o()
        self.consumed = 0
        for i in range(nks):
            g.vwait(("h", i))
            mf(1, 1, i)
            mf(1, 0, i)
            self.consumed = i + 1
            more()
            if i % 8 == 7:
                g.stamp(f"{name}_{i}")
        w3 = g.reduce_write(AC[3], 3, SC)
        w2 = g.reduce_write(AC[2], 2, SC)
        w1 = g.reduce_write(AC[1], 1, SC)
        side.extend(w3[:2] + [None] * 2 + w3[2:] + w2)
        early = nks >= 16 or g.cfg.early_c
        if early:
            side.extend([None] * 2 + g.reduce_read_ops((3, 2), PB, Z))
        per = 1 if nks >= 16 else (4 if early else 2)
        for i in range(nks + SK):
            if i < nks:
                g.vwait(("h", nks + i))
                mf(0, 1, i)
                more()
                pop(per)
            if i == nks:
                pop(len(side))
                side.extend(w1[:2] + [None] * 3 + w1[2:])
                side.extend(g.reduce_read_ops((1,) if early else (3, 2, 1), PB, Z))
                per = -(-len(side) // SK)
            if i >= SK:
                mf(0, 0, i - SK)
                pop(per)
            if i % 8 == 7:
                g.stamp(f"{name}_a{i}")
        pop(len(side))

    def phaseC(self, layer):
        g = self
        LB = LB0 + layer * LBS
        CW = g.CW
        OF = 144
        AC = [16, 32, 48, 64]
        PB, Z = 80, 128
        SC = 104 * 1024
        g.e(f"""
        v_and_b32 v{vt0}, 28, v{vL4}
        s_lshl_b32 s{t2}, s{sX}, 2
        s_lshr_b32 s{t3}, s{sC}, 3
        s_add_u32 s{t2}, s{t2}, s{t3}
        s_lshl_b32 s{t2}, s{t2}, 2
        s_add_u32 s{t2}, s{t2}, s{sW}
        s_lshl_b32 s{t2}, s{t2}, 7
        s_add_u32 s{t2}, s{t2}, {FB}
        s_lshl_b32 s{t3}, s{sTB}, 15
        s_lshl_b32 s{t4}, s{sW}, 13
        s_add_u32 s{t3}, s{t3}, s{t4}
        s_add_u32 s{t3}, s{t3}, {LB + oO}
        s_xor_b32 s{t4}, s{t3}, 32768
        """)
        g.vwait("ost")
        g.signal(2, layer + 1, True)
        g.e("s_barrier")
        g.reduce_pre(layer, 0, SC, Z, False)
        g.poll(vt0, t2, layer + 1, True)
        g.stamp(f"C{layer}go")

        def ldo(m):
            tk, i = (1, m) if m < 8 else (0, m - 8)
            so = t3 if tk else t4
            if i == 4:
                g.e(f"s_add_u32 s{so}, s{so}, 4096")
            g.ld(vr(OF + 4 * m, 4), vL16, sWS, so, (i % 4) * 1024, tag=("h", m))
        self.ring = 16
        g.splitk_body(8, lambda i: CW[i](0, 4), lambda m: vr(OF + 4 * m, 4), ldo, g.cfg.up_c, AC, PB, Z, SC, 8, f"C{layer}")
        g.reduce_finish(layer, 0, AC[0], Z, False)
        g.stamp(f"C{layer}st")

    def phaseD(self, layer):
        g = self
        cfg = g.cfg
        assert cfg.passes == [(0, 4), (4, 6), (6, 7)]
        LB = LB0 + layer * LBS
        X = 16
        ACC = [144 + 16 * i for i in range(6)] + [144]
        vB = [vL16, 240, 241]
        kexp, cden = 242, 243
        ET = 244
        BX = 248
        AX = g.D_AX
        SB = 128
        g.e(f"v_and_b32 v{vt0}, 60, v{vL4}\ns_lshl_b32 s{t2}, s{sT}, 7\ns_add_u32 s{t2}, s{t2}, {FC}")
        g.e(f"v_add_u32 v{vB[1]}, 0x10000, v{vL16}\nv_add_u32 v{vB[2]}, 0x20000, v{vL16}")
        g.e(f"s_mul_i32 s{t11}, s{sHP}, 229376\ns_add_u32 s{t11}, s{t11}, {W13}")
        g.e(f"s_mul_i32 s{t3}, s{sHP}, 7168\ns_mul_i32 s6, s{sT}, {112 * 1024}\ns_add_u32 s6, s6, s{t3}\ns_add_u32 s6, s6, {LB + oH}\ns_add_u32 s7, s6, 4096")
        g.e(f"s_add_u32 s{t3}, s{t3}, {WX13}\ns_add_u32 s3, s{t3}, 4096")
        g.vwait("stst")
        g.signal(3, layer + 1, True)
        g.e("s_barrier")

        def wread(f):
            slot = f % 160
            g.ds(f"ds_read_b128 {ar(WB + 4 * (f % 8), 4)}, v{vB[slot // 64]} offset:{(slot % 64) * 1024}", ("w", f))
        LEAD = 7
        for f in range(LEAD):
            wread(f)
        pre, xrest, stl = g.load_x_stats(layer, 0, LB + oX1, X, SB, cfg.up_d)
        xrest = deque(xrest)
        g.poll(vt0, t2, layer + 1, True)
        g.stamp(f"D{layer}go")
        pre()
        side = deque()
        mem = deque()
        late = deque()

        def epi_ops(n):
            a = ACC[n]
            ops = []
            for half in range(2):
                r0 = a + 4 * half
                for i in range(4):
                    ops.append(f"v_mul_f32 v{ET + i}, v{kexp}, v{r0 + i}")
                for i in range(4):
                    ops.append(f"v_exp_f32 v{ET + i}, v{ET + i}")
                for i in range(4):
                    ops.append(f"v_mul_f32 v{r0 + i}, v{r0 + i}, v{r0 + 8 + i}")
                for i in range(4):
                    ops.append(f"v_fma_f32 v{ET + i}, v{ET + i}, v{cden}, v{cden}")
                for i in range(4):
                    ops.append(f"v_rcp_f32 v{ET + i}, v{ET + i}")
                for i in range(4):
                    ops.append(f"v_mul_f32 v{r0 + i}, v{r0 + i}, v{ET + i}")
            for i in range(4):
                ops.append(f"v_cvt_pk_bf16_f32 v{a + 8 + i}, v{a + 2 * i}, v{a + 2 * i + 1}")
            ops.append(lambda: g.st(vr(a + 8, 4), vL16, sWS, (6, 7)[n // 4], (n % 4) * 1024, tag="hst"))
            return ops

        def xmf(n, first):
            acc = vr(ACC[n], 16)
            g.e(f"v_mfma_f32_32x32x16_bf16 {acc}, {vr(AX[n], 4)}, {vr(BX, 4)}, {'0' if first else acc}")

        def stats_go():
            side.extend([None] * 16 + g.stats_ops(SB, kexp, cden, BX) + ["s_nop 0", f"v_mul_f32 v{kexp}, {f2u(-LOG2E):#x}, v{kexp}"])
        if "s" not in cfg.dbg:
            mem.extend(stl + [stats_go])
        if "b" not in cfg.dbg:
            mem.extend(g.dma_ops(104, 7, t11, 104 * 1024, "w13b", (t8, t9)))
            mem.extend(lambda n=n: g.ld(vr(AX[n], 4), vL16, sWS, (t3, 3)[n // 4], (n % 4) * 1024, tag="ax") for n in range(7))
            mem.extend(g.dma_ops(132, 7, t11, 132 * 1024, "w13b2", (t8, t9)))
        if layer == 0 and cfg.ew_in_b < 56:
            mem.extend(g.ew_ops(cfg.ew_in_b, 56, (t4, t5)))
        f = 0
        for pi, (a, b) in enumerate(cfg.passes):
            wdt = b - a
            nm = 32 * wdt
            tot = sum(0 if isinstance(o, tuple) else (2 if isinstance(o, str) and o.startswith(("v_exp", "v_rcp")) else 1) for o in side)
            done = 0
            for ks in range(32):
                for n in range(a, b):
                    if pi == 0 and n == a and "x" not in cfg.dbg:
                        g.vwait(("x", ks))
                    if f % 4 == 0:
                        g.lwait(("w", min(f + 3, 223)))
                    c = vr(ACC[n], 16) if ks or pi else "0"
                    g.e(f"v_mfma_f32_32x32x16_bf16 {vr(ACC[n], 16)}, {ar(WB + 4 * (f % 8), 4)}, {vr(X + 4 * ks, 4)}, {c}")
                    fn = f + LEAD
                    if fn == 104:
                        assert "b" in cfg.dbg or g.vmq.count("w13b") + self.waited.get("w13b", 0) == 7 * (layer + 1)
                        g.vwait("w13b")
                        if "B" not in cfg.dbg:
                            g.e("s_barrier")
                        if "c" not in cfg.dbg:
                            late.extend(g.dma_ops(160, 16, t11, 0, "w13c", (t6, t7)))
                    if fn == 132:
                        assert "b" in cfg.dbg or g.vmq.count("w13b2") + self.waited.get("w13b2", 0) == 7 * (layer + 1)
                        g.vwait("w13b2")
                        g.e("s_barrier")
                    if fn == 160:
                        assert not late
                        g.vwait("w13c")
                        if "B" not in cfg.dbg:
                            g.lwait0()
                            g.e("s_barrier")
                        if layer == 0:
                            def wqb():
                                g.e(f"s_mul_i32 s{t10}, s{sHP}, {96 * 1024}\ns_add_u32 s{t10}, s{t10}, {WQ}")
                            mem.append(wqb)
                            mem.extend(g.dma_ops(0, 24, t10, 65536, "wq", (t8, t9)))
                    if fn < 224:
                        wread(fn)
                    m = ks * wdt + (n - a) + 1
                    if pi == 0:
                        g.take(side, 2)
                    else:
                        want = 0 if m <= 2 else min(-(-tot * m // nm) - done, 6)
                        g.take(side, want)
                        done += want
                    if pi == 0 and n == a and xrest:
                        assert len(xrest) > 4 or (not side and "stat" not in g.vmq)
                        xrest.popleft()()
                    elif late and f % 2 == 0:
                        late.popleft()()
                    elif mem and ks >= (cfg.st_d if pi == 0 else 0) and (f % 4 == 2 if xrest else f % 2 == 1):
                        mem.popleft()()
                    f += 1
                    if f % 32 == 0:
                        g.stamp(f"D{layer}_{f}")
            g.take(side, 9999)
            if pi == 0:
                g.vwait("ax")
                for n in range(4):
                    xmf(n, False)
                xmf(4, True)
                xmf(5, True)
            if pi == 1:
                xmf(6, True)
            for n in range(a, b):
                side.extend(epi_ops(n))
        g.e("s_barrier")
        while mem:
            mem.popleft()()
        g.take(side, 9999)
        g.stamp(f"D{layer}st")

    def phaseE(self, layer, final):
        g = self
        LB = LB0 + layer * LBS
        HR, NR = 16, 32
        PB, Z = 144, 176
        AC = [192, 208, 224, 240]
        SC = 0
        g.e(f"""
        v_and_b32 v{vt0}, 28, v{vL4}
        s_lshr_b32 s{t2}, s{sTA}, 1
        s_lshl_b32 s{t2}, s{t2}, 2
        s_add_u32 s{t2}, s{t2}, s{sW}
        s_lshl_b32 s{t2}, s{t2}, 7
        s_add_u32 s{t2}, s{t2}, {FD}
        s_mul_i32 s{t5}, s{sW}, {28 * 1024}
        s_add_u32 s{t5}, s{t5}, {LB + oH}
        s_mul_i32 s{t3}, s{sTB}, {112 * 1024}
        s_add_u32 s{t3}, s{t3}, s{t5}
        s_mul_i32 s{t4}, s{sTA}, {112 * 1024}
        s_add_u32 s{t4}, s{t4}, s{t5}
        """)
        g.vwait("hst")
        g.signal(4, layer + 1, True)
        g.reduce_pre(layer, 1, SC, Z, final)
        g.poll(vt0, t2, layer + 1, True)
        g.stamp(f"E{layer}go")

        def ldh(m):
            tk, i = (1, m) if m < 28 else (0, m - 28)
            so = t3 if tk else t4
            if i and i % 4 == 0:
                g.e(f"s_add_u32 s{so}, s{so}, 4096")
            g.ld(vr(HR + 4 * (m % NR), 4), vL16, sWS, so, (i % 4) * 1024, tag=("h", m))
        self.ring = NR
        g.splitk_body(28, lambda i: ar(4 * i, 4), lambda m: vr(HR + 4 * (m % NR), 4), ldh, g.cfg.up_e, AC, PB, Z, SC, g.cfg.sk_e, f"E{layer}")
        g.reduce_finish(layer, 1, AC[0], Z, final)
        g.stamp(f"E{layer}st")
        if not final:
            g.vwait0()
            g.signal(5, layer + 1, True)

    def build(self):
        g = self
        cfg = g.cfg
        g.prologue()
        done = False
        for layer in range(2):
            for ph in "ABCDE":
                if ph == "A":
                    g.phaseA1(layer) if layer else g.phaseA0()
                elif ph == "B":
                    g.phaseB(layer)
                elif ph == "C":
                    g.phaseC(layer)
                elif ph == "D":
                    g.phaseD(layer)
                else:
                    g.phaseE(layer, layer == 1)
                if cfg.stop == f"{ph}{layer}":
                    done = True
                    break
            if done:
                break
        if cfg.ts:
            g.vwait0()
            g.stamp("end") if g.nts < 16 else None
            g.e(f"s_lshl_b32 s{t0}, s2, 2\ns_add_u32 s{t0}, s{t0}, s{sW}\ns_lshl_b32 s{t0}, s{t0}, 7\ns_add_u32 s{t0}, s{t0}, {TS}")
            g.e(f"v_mov_b32 v{vt0}, 0")
            for i in range(g.nts):
                g.e(f"v_writelane_b32 v{vt0}, s{sTS + i}, {i}")
            g.e(f"v_writelane_b32 v{vt0}, s{sMode}, 31")
            g.e("s_mov_b32 exec_hi, 0")
            g.st(vr(vt0), vL4, sWS, t0, 0, w=1)
        g.e("L_exit:\ns_endpgm")
        for t in g.tail:
            g.e(t)
        g.e("L_end:")
        lines, rep = fix_hazards(g.lines)
        return lines, rep


HEADER = """; Fused two-layer transformer block (LN+QKV, attention, WO, LN+W1/W3+SwiGLU, W2), one persistent launch.
; @launch grid=(256,1,1) block=(256,1,1) lds=163840
.amdgcn_target "amdgcn-amd-amdhsa--gfx950"
.text
.globl {name}_kernel
.p2align 8
.type {name}_kernel,@function
{name}_kernel:
"""
FOOTER = """
.section .rodata,"a"
.p2align 6
.amdhsa_kernel {name}_kernel
  .amdhsa_next_free_vgpr 512
  .amdhsa_next_free_sgpr 102
  .amdhsa_accum_offset 256
  .amdhsa_group_segment_fixed_size 0
  .amdhsa_kernarg_size 80
  .amdhsa_user_sgpr_count 2
  .amdhsa_user_sgpr_kernarg_segment_ptr 1
  .amdhsa_system_sgpr_workgroup_id_x 1
  .amdhsa_float_denorm_mode_32 3
.end_amdhsa_kernel
"""


def generate(path, **kw):
    cfg = Cfg()
    for k, v in kw.items():
        setattr(cfg, k, v)
    g = Gen(cfg)
    lines, rep = g.build()
    txt = HEADER.format(name=NAME) + "\n".join(("" if l.endswith(":") else "  ") + l for l in lines) + FOOTER.format(name=NAME)
    open(path, "w").write(txt)
    return g, rep


if __name__ == "__main__":
    import argparse
    ap = argparse.ArgumentParser()
    ap.add_argument("-o", default=f"cdna_kernels/{NAME}.s")
    ap.add_argument("--stop")
    ap.add_argument("--ts", action="store_true")
    ap.add_argument("--slow", action="store_true")
    ap.add_argument("-v", action="store_true")
    a = ap.parse_args()
    g, rep = generate(a.o, stop=a.stop, ts=a.ts, force_slow=a.slow)
    print("lines", len(g.lines), "nops inserted", len(rep), "stamps", g.tsnames)
    if a.v:
        for r in rep:
            print(r)
```

```python
import os
import sys
from collections import deque

sys.path.insert(0, os.path.dirname(os.path.abspath(__file__)))
from asmlib import Asm, R, ar, fix_hazards, sr, vr

NAME = "interleave_layers__mha_block__glu_gated_swiglu__prompt"

FA_L, FB, FD, FC, FE, FA_G, FR, FX = 0x0000, 0x4000, 0x8000, 0xC000, 0xE000, 0x10000, 0x14000, 0x16000
TS = 0x80000
ST = 0x100000
WQ, WO, W13, W2 = 0x200000, 0x380000, 0x400000, 0x780000
WX13, WXQ, WXD = 0x940000, 0x960000, 0x970000
LB0, LBS = 0xA00000, 0x1400000
oQ, oKV, oO, oX1, oX2, oH = 0x0, 0x200000, 0x600000, 0x800000, 0xA00000, 0xC00000
WS_BYTES = 0x10000000
ALIAS = True


def set_alias(v):
    global ALIAS
    ALIAS = v


def aQ(l):
    return 0xA00000 if ALIAS else LB0 + l * LBS + oQ


def aO(l):
    return 0xA00000 if ALIAS else LB0 + l * LBS + oO


def aX(l, which):
    return 0xC00000 if ALIAS else LB0 + l * LBS + (oX1, oX2)[which]


def aH(l):
    return 0xE00000 if ALIAS else LB0 + l * LBS + oH


def aKV(l):
    return 0x1600000 + l * 0x400000 if ALIAS else LB0 + l * LBS + oKV


def aST(l, which):
    return ST if ALIAS else ST + (2 * l + which) * 0x40000

sWS, sXIN, sOUT, sDBG, sWQ, sRA, sRB = 8, 12, 16, 20, 24, 28, 32
sX, sC, sW, sT, sHP, sTA, sTB, sNA, sCB, sMode, sTO, sMask = range(36, 48)
t0, t1, t2, t3, t4, t5, t6, t7, t8, t9, t10, t11 = range(48, 60)
sVM = 60
pX, pWQ, pWO, pBX, pW1, pW3, pW2, pOUT, pDBG, pWS = range(64, 84, 2)
sTS = 84
sSN2 = 100
vL16, vL4, vIdx, vFl = 0, 1, 2, 3
vt0, vt1, vt2, vt3 = 4, 5, 6, 7
vRes = 8
WB = 224

LOG2E = 1.4426950408889634
TIMEOUT = 0x80000


def f2u(x):
    import struct
    return struct.unpack("<I", struct.pack("<f", x))[0]


class Cfg:
    passes = [(0, 4), (4, 6), (6, 7)]
    stop = None
    ts = False
    ts_skip = ('start', 'C1st', 'E1st', 'A1st', 'C0st')
    ts_only = None
    force_slow = False
    force_fallback = False
    pf_w13 = (0, 4)
    bg_end = 112
    gp = 3
    ne = 4
    d_sig = 196
    d_pl = 206
    d_ck = 214
    d_nl = 1
    e_pre = 10
    e_sig = 6
    e_pl = 5
    e_ck = 5
    spin = None
    ws_off = 0
    kvpf = (None, None)
    warm_w = 9
    rl_in_b = False
    cold_touch = 2
    ct0 = 24
    x2_d = True
    bar_c = 80
    alias = True
    touch = 'BHA'
    tb0 = 97
    kvmods = 'sc1'
    ts_dbg = None
    hpx = 0
    wmods = 'sc1'
    early_c = False
    warm = 3
    dbg = ''
    rot = 's_lshr_b32 s{t1}, s{sHP}, 1'
    rl_sleep = 16
    lag_a = 8
    st_a = 6
    st_d = 2
    cpf = True
    sk_e = 10
    out_mods = ''
    rl0 = 9
    rl_lat = 7
    rl_gap = 20
    up_a = 8
    up_d = 8
    up_e = 10
    up_c = 10
    ew_in_b = 56


class Gen(Asm):
    def __init__(self, cfg):
        super().__init__()
        self.cfg = cfg
        self.nts = 0
        self.m0_owner = None
        self.tsnames = []

    def srd(self, s, ptr, size):
        self.e(f"s_mov_b32 s{s}, s{ptr}\ns_mov_b32 s{s + 1}, s{ptr + 1}\ns_mov_b32 s{s + 2}, {size}\ns_mov_b32 s{s + 3}, 0x20000")

    def ld(self, dst, voff, srd, soff, imm=0, mods="sc1", tag=None, w=4):
        op = {1: "dword", 2: "dwordx2", 4: "dwordx4"}[w]
        so = f"s{soff}" if soff is not None else "0"
        o = f" offset:{imm}" if imm else ""
        self.vm(f"buffer_load_{op} {dst}, v{voff}, {sr(srd, 4)}, {so} offen{o} {mods}".rstrip(), tag)

    def st_text(self, src, voff, srd, soff, imm=0, mods="", w=4):
        op = {1: "dword", 2: "dwordx2", 4: "dwordx4"}[w]
        so = f"s{soff}" if soff is not None else "0"
        o = f" offset:{imm}" if imm else ""
        return f"buffer_store_{op} {src}, v{voff}, {sr(srd, 4)}, {so} offen{o} {mods}".rstrip()

    def st(self, src, voff, srd, soff, imm=0, mods="", tag=None, w=4):
        self.vm(self.st_text(src, voff, srd, soff, imm, mods, w), tag)

    def dma(self, voff, srd, soff, imm=0, mods="sc1", tag=None):
        so = f"s{soff}" if soff is not None else "0"
        o = f" offset:{imm}" if imm else ""
        m = (mods + " lds").strip()
        self.vm(f"buffer_load_dwordx4 v{voff}, {sr(srd, 4)}, {so} offen{o} {m}", tag)

    def stamp(self, name):
        if self.cfg.spin:
            if name == "entry":
                self.e("s_memrealtime s[98:99]\ns_waitcnt lgkmcnt(0)")
            if name == self.cfg.spin[0]:
                L = self.label("spin")
                self.e(f"{L}:\ns_memrealtime s[4:5]\ns_waitcnt lgkmcnt(0)\ns_sub_u32 s4, s4, s98\ns_cmp_lt_u32 s4, {self.cfg.spin[1]}\ns_cbranch_scc1 {L}")
                self.lq = []
        if not self.cfg.ts:
            return
        if self.cfg.ts_only:
            if not name.startswith(self.cfg.ts_only):
                return
        elif name in self.cfg.ts_skip or "_" in name:
            return
        if self.nts >= 16:
            return
        self.e(f"{'s_memtime' if self.cfg.ts == 'cyc' else 's_memrealtime'} s[4:5]\ns_waitcnt lgkmcnt(0)\ns_mov_b32 s{sTS + self.nts}, s4")
        self.lq = []
        self.tsnames.append(name)
        self.nts += 1

    def dual(self, fast, slow, nvm):
        ls, lj = self.label("slow"), self.label("join")
        self.e(f"s_cmp_lg_u32 s{sMode}, 0\ns_cbranch_scc1 {ls}")
        self.e(fast)
        self.e(f"{lj}:")
        self.tail.append(f"{ls}:\n{slow}\ns_branch {lj}")
        self.vmq += [None] * nvm

    def signal(self, ftype, val, local):
        self.e(f"v_mov_b32 v{vt1}, {val}")
        st = f"s_mov_b64 exec, {1 << ftype}\nbuffer_store_dword v{vt1}, v{vFl}, {sr(sWS, 4)}, 0 offen%s\ns_mov_b64 exec, -1"
        if local:
            self.dual(st % "", "buffer_wbl2 sc1\ns_waitcnt vmcnt(0)\n" + st % " sc1", 1)
        else:
            self.e(st % " sc1")
            self.vmq.append(None)

    def poll(self, voff, soff, val, local, sleep=0):
        L = self.label("poll")
        self.e(f"s_mov_b32 s{sTO}, {TIMEOUT}\n{L}:")
        self.e(f"buffer_load_dword v{vt1}, v{voff}, {sr(sWS, 4)}, s{soff} offen sc1")
        self.e(f"s_sub_u32 s{sTO}, s{sTO}, 1\ns_cbranch_scc1 L_exit")
        if sleep:
            self.e(f"s_sleep {sleep}")
        self.vwait0()
        self.e(f"v_cmp_gt_u32 vcc, {val}, v{vt1}\ns_nop 0\ns_cbranch_vccnz {L}")
        if local:
            self.dual("", "buffer_inv sc1\ns_waitcnt vmcnt(0)", 0)

    def salu(self, text):
        self.e(text)

    def prologue(self):
        g = self
        g.e("s_cmp_ge_u32 s2, 256\ns_cbranch_scc1 L_exit")
        g.stamp("entry")
        g.e("s_load_dwordx16 s[64:79], s[0:1], 0\ns_load_dwordx4 s[80:83], s[0:1], 64")
        g.e(f"v_lshrrev_b32 v{vt0}, 6, v0\nv_and_b32 v{vt1}, 63, v0")
        g.e(f"v_readfirstlane_b32 s{sW}, v{vt0}")
        g.e(f"v_lshlrev_b32 v{vL4}, 2, v{vt1}\nv_lshlrev_b32 v{vL16}, 4, v{vt1}")
        g.e(f"""
        s_and_b32 s{sX}, s2, 7
        s_lshr_b32 s{sC}, s2, 3
        s_and_b32 s{sHP}, s{sC}, 15
        s_xor_b32 s{sHP}, s{sHP}, {g.cfg.hpx}
        s_lshr_b32 s{t0}, s{sC}, 4
        s_lshl_b32 s{t0}, s{t0}, 2
        s_add_u32 s{t0}, s{t0}, s{sW}
        s_lshl_b32 s{t1}, s{sX}, 3
        s_add_u32 s{sT}, s{t1}, s{t0}
        """)

    def prologue2(self):
        g = self
        g.e(f"""
        s_and_b32 s{sCB}, s{sC}, 7
        s_lshr_b32 s{t2}, s{sC}, 3
        s_lshl_b32 s{t2}, s{t2}, 1
        s_lshl_b32 s{t3}, s{sX}, 3
        s_add_u32 s{t2}, s{t2}, s{t3}
        s_lshr_b32 s{t3}, s{sW}, 1
        s_add_u32 s{sTA}, s{t2}, s{t3}
        s_xor_b32 s{sTB}, s{sTA}, 1
        s_and_b32 s{sNA}, s{sW}, 1
        s_mov_b32 s{sMask}, 0xffff0000
        s_mov_b32 s{sVM}, 0x0000ffff
        s_mov_b32 s{sVM + 1}, 0x0000ffff
        s_mov_b32 s{sMode}, 1
        s_and_b32 s{t2}, s{sT}, 7
        """)
        g.e(f"v_mov_b32 v{vFl}, 0")
        g.e(f"""
        s_lshl_b32 s{t4}, s{sX}, 4
        s_add_u32 s{t4}, s{t4}, s{sHP}
        s_lshl_b32 s{t4}, s{t4}, 7
        s_lshl_b32 s{t5}, s{t2}, 2
        s_add_u32 s{t4}, s{t4}, s{t5}
        s_add_u32 s{t4}, s{t4}, {FA_L}
        v_writelane_b32 v{vFl}, s{t4}, 0
        s_lshl_b32 s{t4}, s{sHP}, 3
        s_add_u32 s{t4}, s{t4}, s{sX}
        s_lshl_b32 s{t4}, s{t4}, 7
        s_add_u32 s{t4}, s{t4}, s{t5}
        s_add_u32 s{t4}, s{t4}, {FA_G}
        v_writelane_b32 v{vFl}, s{t4}, 1
        s_lshl_b32 s{t4}, s{sX}, 2
        s_add_u32 s{t4}, s{t4}, s{sW}
        s_lshl_b32 s{t4}, s{t4}, 2
        s_lshr_b32 s{t5}, s{sC}, 3
        s_add_u32 s{t4}, s{t4}, s{t5}
        s_lshl_b32 s{t4}, s{t4}, 7
        s_lshl_b32 s{t5}, s{sCB}, 2
        s_add_u32 s{t4}, s{t4}, s{t5}
        s_add_u32 s{t4}, s{t4}, {FB}
        v_writelane_b32 v{vFl}, s{t4}, 2
        s_lshl_b32 s{t4}, s{sTA}, 7
        s_lshl_b32 s{t5}, s{sCB}, 1
        s_add_u32 s{t5}, s{t5}, s{sNA}
        s_lshl_b32 s{t5}, s{t5}, 2
        s_add_u32 s{t4}, s{t4}, s{t5}
        s_add_u32 s{t5}, s{t4}, {FC}
        v_writelane_b32 v{vFl}, s{t5}, 3
        s_add_u32 s{t5}, s{t4}, {FE}
        v_writelane_b32 v{vFl}, s{t5}, 5
        s_lshr_b32 s{t4}, s{sT}, 1
        s_lshl_b32 s{t4}, s{t4}, 2
        s_lshr_b32 s{t5}, s{sHP}, 2
        s_add_u32 s{t4}, s{t4}, s{t5}
        s_lshl_b32 s{t4}, s{t4}, 7
        s_and_b32 s{t5}, s{sT}, 1
        s_lshl_b32 s{t5}, s{t5}, 2
        s_and_b32 s{t7}, s{sHP}, 3
        s_add_u32 s{t5}, s{t5}, s{t7}
        s_lshl_b32 s{t5}, s{t5}, 2
        s_add_u32 s{t4}, s{t4}, s{t5}
        s_add_u32 s{t4}, s{t4}, {FD}
        v_writelane_b32 v{vFl}, s{t4}, 4
        s_lshr_b32 s{t4}, s2, 2
        s_lshl_b32 s{t4}, s{t4}, 7
        s_and_b32 s{t5}, s2, 3
        s_lshl_b32 s{t5}, s{t5}, 2
        s_add_u32 s{t4}, s{t4}, s{t5}
        s_add_u32 s{t4}, s{t4}, {FR}
        v_writelane_b32 v{vFl}, s{t4}, 6
        s_lshl_b32 s{t4}, s{sX}, 5
        s_add_u32 s{t4}, s{t4}, s{sC}
        s_lshl_b32 s{t4}, s{t4}, 2
        s_add_u32 s{t4}, s{t4}, {FX}
        v_writelane_b32 v{vFl}, s{t4}, 7
        """)

    def zero_flags(self):
        g = self
        L = g.label("zf")
        g.e(f"s_cmp_lt_u32 s2, 8\ns_cbranch_scc0 {L}")
        g.e("v_mov_b32 v248, 0\nv_mov_b32 v249, 0\nv_mov_b32 v250, 0\nv_mov_b32 v251, 0")
        g.e(f"s_lshl_b32 s{t2}, s2, 2\ns_add_u32 s{t2}, s{t2}, s{sW}\ns_mul_i32 s{t2}, s{t2}, 3072")
        for i in range(3):
            g.e(g.st_text(vr(248, 4), vL16, sWS, t2, 1024 * i, "sc1"))
        g.e(f"{L}:")

    def code_prefetch(self):
        g = self
        g.e(f"""
        s_getpc_b64 s[4:5]
        L_pc:
        s_lshl_b32 s{t8}, s{sC}, 2
        s_add_u32 s{t8}, s{t8}, s{sW}
        s_and_b32 s{t8}, s{t8}, 15
        s_lshl_b32 s{t8}, s{t8}, 13
        v_lshlrev_b32 v{vt2}, 3, v{vL16}
        v_add_u32 v{vt2}, s{t8}, v{vt2}
        v_min_u32 v{vt2}, L_end-L_pc-4, v{vt2}
        """)
        g.vm(f"global_load_dword v255, v{vt2}, s[4:5]", "cpf")

    def handshake_send(self):
        g = self
        L = g.label("hs")
        g.e(f"s_cmp_lt_u32 s2, 8\ns_cbranch_scc0 {L}")
        g.e(f"s_lshl_b32 s{t9}, s2, 2\ns_add_u32 s{t9}, s{t9}, s{sW}\ns_lshl_b32 s{t9}, s{t9}, 2")
        g.e(f"v_mov_b32 v{vt1}, 1\nv_mov_b32 v{vt2}, s{t9}\ns_mov_b64 exec, 1")
        g.e(f"buffer_store_dword v{vt1}, v{vt2}, {sr(sDBG, 4)}, 0 offen sc1\ns_mov_b64 exec, -1\n{L}:")

    def late_check(self, tag, ld_text, chk, sleep):
        g = self
        ls, lj, lp = g.label("lslow"), g.label("ljoin"), g.label("lp")
        g.vwait(tag)
        g.e(chk + f"\ns_nop 0\ns_cbranch_vccnz {ls}\n{lj}:")
        g.tail.append(f"""{ls}:
        s_mov_b32 s{sTO}, {TIMEOUT}
        {lp}:
        {"s_sleep " + str(sleep) if sleep else ""}
        {ld_text}
        s_sub_u32 s{sTO}, s{sTO}, 1
        s_cbranch_scc1 L_exit
        s_waitcnt vmcnt(0)
        {chk}
        s_nop 0
        s_cbranch_vccnz {lp}
        s_branch {lj}""")

    def handshake_load(self):
        self.e(f"v_and_b32 v254, 0x7c, v{vL4}")
        self.ld(vr(vt1), 254, sDBG, None, 0, tag="hs", w=1)

    def handshake_check(self):
        self.late_check("hs", f"v_and_b32 v254, 0x7c, v{vL4}\nbuffer_load_dword v{vt1}, v254, {sr(sDBG, 4)}, 0 offen sc1",
                        f"v_cmp_eq_u32 vcc, 0, v{vt1}", 8)

    def xcc_send(self):
        g = self
        L = g.label("xs")
        g.e(f"s_cmp_eq_u32 s{sW}, 0\ns_cbranch_scc0 {L}")
        g.e(f"s_getreg_b32 s{t11}, hwreg(HW_REG_XCC_ID, 0, 4)\ns_or_b32 s{t11}, s{t11}, 0x80\nv_mov_b32 v{vt1}, s{t11}")
        g.e(f"s_mov_b64 exec, 0x80\nbuffer_store_dword v{vt1}, v{vFl}, {sr(sWS, 4)}, 0 offen sc1\ns_mov_b64 exec, -1\n{L}:")

    def xcc_load(self):
        g = self
        g.e(f"v_and_b32 v{vt3}, 0x7c, v{vL4}\ns_lshl_b32 s{t7}, s{sX}, 7\ns_add_u32 s{t7}, s{t7}, {FX}")
        g.ld(vr(vt2), vt3, sWS, t7, 0, tag="xcc", w=1)

    def xcc_check(self):
        g = self
        g.late_check("xcc", f"buffer_load_dword v{vt2}, v{vt3}, {sr(sWS, 4)}, s{t7} offen sc1", f"v_cmp_eq_u32 vcc, 0, v{vt2}", 8)
        g.e(f"""
        v_readfirstlane_b32 s{t7}, v{vt2}
        s_nop 1
        v_cmp_ne_u32 vcc, s{t7}, v{vt2}
        s_nop 1
        s_cmp_lg_u64 vcc, 0
        s_cselect_b32 s{sMode}, 1, 0
        """)
        if g.cfg.force_slow:
            g.e(f"s_mov_b32 s{sMode}, 1")

    def stats_tail(self, s1, s2, rs, cden, BX, half=False):
        return [
            f"v_mul_f32 v{s1}, {f2u(1 / 512):#x}, v{s1}",
            f"v_mul_f32 v{s2}, {f2u(1 / 512):#x}, v{s2}",
            f"v_fma_f32 v{s2}, -v{s1}, v{s1}, v{s2}",
            f"v_max_f32 v{s2}, 0, v{s2}",
            f"v_add_f32 v{cden}, {f2u(1e-5):#x}, v{s2}",
            f"v_rsq_f32 v{rs}, v{cden}",
            f"v_mul_f32 v{s1}, {'-0.5' if half else '-1.0'}, v{s1}",
            f"v_cvt_pk_bf16_f32 v{BX}, v{s1}, v{s1}",
            f"v_mov_b32 v{BX + 1}, v{BX}",
            f"v_mov_b32 v{BX + 2}, v{BX}",
            f"v_mov_b32 v{BX + 3}, v{BX}",
        ]

    def stats_ops(self, SB, rs, cden, BX):
        ops = [("v", "stat")]
        n = 16
        while n > 1:
            n //= 2
            for i in range(n):
                ops.append(f"v_add_f32 v{SB + i}, v{SB + i}, v{SB + n + i}")
        ops += [f"v_mov_b32 v{SB + 1}, v{SB}", "s_nop 1", f"v_permlane32_swap_b32 v{SB}, v{SB + 1}"]
        return ops + self.stats_tail(SB, SB + 1, rs, cden, BX)

    def take(self, side, n):
        while n > 0 and side:
            o = side.popleft()
            if o is None:
                n -= 1
            elif isinstance(o, tuple):
                (self.vwait if o[0] == "v" else self.lwait)(o[1])
            elif callable(o):
                o()
                n -= 1
            else:
                self.e(o)
                n -= 2 if o.startswith(("v_exp", "v_rcp", "v_rsq")) else 1

    def load_x_stats(self, layer, which, xoff, X, SB, up):
        g = self
        g.e(f"s_lshl_b32 s{t0}, s{sT}, 12\ns_add_u32 s{t0}, s{t0}, {aST(layer, which)}")
        g.e(f"s_lshl_b32 s{t1}, s{sT}, 15\ns_add_u32 s{t1}, s{t1}, {xoff}")

        def pre():
            for ks in range(up):
                ldx(ks)

        def ldx(ks):
            if ks and ks % 4 == 0:
                g.e(f"s_add_u32 s{t1}, s{t1}, 4096")
            g.ld(vr(X + 4 * ks, 4), vL16, sWS, t1, (ks % 4) * 1024, tag=("x", ks))
        return (pre, [lambda ks=ks: ldx(ks) for ks in range(up, 32)],
                [lambda q=q: g.ld(vr(SB + 4 * q, 4), vL16, sWS, t0, q * 1024, tag="stat") for q in range(4)])

    def l2_prefetch(self, sbase, nbytes, vtmp):
        g = self
        ops = [lambda: g.e(f"v_and_b32 v{vtmp}, 0x3c0, v{vL16}\nv_lshlrev_b32 v{vtmp}, 1, v{vtmp}")]
        assert nbytes % 2048 == 0
        for i in range(nbytes // 2048):
            def op(i=i):
                if i and i % 2 == 0:
                    g.e(f"s_add_u32 s{sbase}, s{sbase}, 4096")
                g.ld(vr(vtmp + 1), vtmp, sWS, sbase, (i % 2) * 2048, mods="sc1", tag="pf", w=1)
            ops.append(op)
        return ops

    def touch_ops(self, salu, sreg, n, vadr, vdst):
        g = self
        ops = [lambda t=t: g.e(t) for t in salu]
        for i in range(n):
            def op(i=i):
                if i and i % 2 == 0:
                    g.e(f"s_add_u32 s{sreg}, s{sreg}, 4096")
                g.ld(vr(vdst), vadr, sWS, sreg, (i % 2) * 2048, mods="sc1", tag="pf", w=1)
            ops.append(op)
        return ops

    def h_addr(self, layer, a, b):
        return [f"s_mul_i32 s{a}, s{sT}, {112 * 1024}\ns_mul_i32 s{b}, s{sHP}, 7168", f"s_add_u32 s{a}, s{a}, s{b}\ns_add_u32 s{a}, s{a}, {aH(layer)}"]

    def x_addr(self, layer, which, a, b):
        x = [f"s_lshl_b32 s{a}, s{sTA}, 4\ns_lshl_b32 s{b}, s{sCB}, 1", f"s_add_u32 s{a}, s{a}, s{b}\ns_add_u32 s{a}, s{a}, s{sNA}",
             f"s_lshl_b32 s{a}, s{a}, 11\ns_add_u32 s{a}, s{a}, {aX(layer, which)}"]
        st = [f"s_lshl_b32 s{a}, s{sTA}, 2\ns_lshr_b32 s{b}, s{sCB}, 1", f"s_add_u32 s{a}, s{a}, s{b}\ns_lshl_b32 s{a}, s{a}, 10",
              f"s_add_u32 s{a}, s{a}, {aST(layer, which)}"]
        return x, st

    def dma_ops(self, first, count, gsoff_expr, lds_base, tag, ts):
        g = self
        a, b = ts
        ops = []
        uid = g.label("dma")

        def setup():
            g.e(f"s_mul_i32 s{a}, s{sW}, {count * 1024}")
            g.e(f"s_add_u32 s{b}, s{a}, s{gsoff_expr}")
        ops.append(setup)

        def setup2():
            g.e(f"s_add_u32 s{b}, s{b}, {first * 1024}\ns_add_u32 s{a}, s{a}, {lds_base}")
        ops.append(setup2)
        for i in range(count):
            def op(i=i):
                if i % 4 == 0 and i:
                    g.e(f"s_add_u32 s{a}, s{a}, 4096")
                if g.m0_owner != (uid, i // 4):
                    g.e(f"s_mov_b32 m0, s{a}")
                    g.m0_owner = (uid, i // 4)
                    if not (i % 4 == 0 and i):
                        g.e("s_nop 0")
                if i % 4 == 0 and i:
                    g.e(f"s_add_u32 s{b}, s{b}, 4096")
                g.dma(vL16, sWS, b, (i % 4) * 1024, mods=g.cfg.wmods, tag=tag)
            ops.append(op)
        return ops

    D_AX = [208, 212, 216, 220, 224, 244, 252]
    A_X, A_ACC = 16, {"q": 144, "k": 160, "v": 176}
    A_P, A_AX = 208, {"k": 208, "v": 212, "q": 232}
    A_RS, A_CD, A_KA, A_VA, A_BX, A_QM, A_RC = 240, 241, 242, 243, 220, 252, 192

    def a_addr(self, layer):
        g = self
        vK, vV = g.A_KA, g.A_VA
        g.e(f"""
        v_lshrrev_b32 v{vt0}, 4, v{vL16}
        v_and_b32 v{vt2}, 0x33, v{vt0}
        v_bfe_u32 v{vt3}, v{vt0}, 2, 1
        v_lshl_add_u32 v{vt2}, v{vt3}, 3, v{vt2}
        v_bfe_u32 v{vt3}, v{vt0}, 3, 1
        v_lshl_add_u32 v{vt2}, v{vt3}, 2, v{vt2}
        v_lshlrev_b32 v{vK}, 4, v{vt2}
        v_bfe_u32 v{vt2}, v{vt0}, 4, 1
        v_lshlrev_b32 v{vV}, 17, v{vt2}
        v_lshrrev_b32 v{vt2}, 5, v{vt0}
        v_lshl_add_u32 v{vV}, v{vt2}, 8, v{vV}
        v_and_b32 v{vt2}, 15, v{vt0}
        v_lshl_add_u32 v{vV}, v{vt2}, 4, v{vV}
        """)

    def a_saddr(self, layer):
        return [
            f"s_lshl_b32 s{t11}, s{sHP}, 7", f"s_add_u32 s{t11}, s{t11}, s{sT}",
            f"s_lshl_b32 s{t7}, s{t11}, 11", f"s_add_u32 s{t7}, s{t7}, {aKV(layer)}", f"s_add_u32 s{t8}, s{t7}, 0x20000",
            f"s_lshl_b32 s{t9}, s{sT}, 4", f"s_add_u32 s{t9}, s{t9}, s{sHP}", f"s_lshl_b32 s{t9}, s{t9}, 11",
            f"s_add_u32 s{t9}, s{t9}, {aQ(layer)}"]

    def a_rc_ops(self, sarea):
        g = self
        RC = g.A_RC
        ops = [f"v_and_b32 v{vt0}, 0x7c, v{vL4}", f"v_add_u32 v{vt0}, s{sarea}, v{vt0}",
               lambda: g.ds(f"ds_write_b32 v{vt0}, v{g.A_RS}", "rcw"),
               f"v_lshrrev_b32 v{vt0}, 9, v{vL16}", f"v_lshlrev_b32 v{vt0}, 4, v{vt0}", f"v_add_u32 v{vt0}, s{sarea}, v{vt0}",
               f"v_mul_f32 v{g.A_QM}, {f2u(0.25 * LOG2E):#x}, v{g.A_RS}"]
        for j in range(4):
            ops.append(lambda j=j: g.ds(f"ds_read_b128 {vr(RC + 4 * j, 4)}, v{vt0} offset:{32 * j}", "rc"))
        return ops

    def a_epi(self, n, qmods=''):
        g = self
        A = g.A_ACC[n]
        P = g.A_P + {"k": 0, "v": 8, "q": 16}[n]
        ops = [("l", "rc")] if n == "v" else []
        for h in range(2):
            for i in range(8 * h, 8 * h + 8):
                m = {"k": g.A_RS, "q": g.A_QM, "v": g.A_RC + i}[n]
                ops.append(f"v_mul_f32 v{A + i}, v{m}, v{A + i}")
            for i in range(4 * h, 4 * h + 4):
                ops.append(f"v_cvt_pk_bf16_f32 v{P + i}, v{A + 2 * i}, v{A + 2 * i + 1}")
            if n == "k":
                ops.append(lambda h=h: g.st(vr(P + 4 * h, 4), g.A_KA, sWS, (t7, t8)[h], 0, "sc1"))
            elif n == "v":
                ops.append(lambda h=h: g.st(vr(P + 4 * h, 4), g.A_VA, sWS, t7, 1024 + 512 * h, "sc1"))
            else:
                ops.append(lambda h=h: g.st(vr(P + 4 * h, 4), vL16, sWS, t9, 1024 * h, qmods))
        return ops

    def a_mfma(self, n, w, x, first):
        acc = vr(self.A_ACC[n], 16)
        a_, b_ = (x, w) if n == "v" else (w, x)
        self.e(f"v_mfma_f32_32x32x16_bf16 {acc}, {a_}, {b_}, {'0' if first else acc}")

    def phaseA0(self):
        g = self
        X, S1, S2 = g.A_X, 192, 208
        vo0, vo1, vRd, vRs, vWd, vTr = 224, 225, 226, 230, 232, 236
        CS, ONE = 0, 48
        LW = 65536
        g.e(f"""
        v_lshrrev_b32 v{vt0}, 4, v{vL16}
        v_lshrrev_b32 v{vt2}, 3, v{vt0}
        v_lshlrev_b32 v{vo0}, 10, v{vt2}
        v_lshrrev_b32 v{vt2}, 1, v{vt2}
        v_and_b32 v{vt3}, 7, v{vt0}
        v_xor_b32 v{vt2}, v{vt2}, v{vt3}
        v_lshl_add_u32 v{vo0}, v{vt2}, 4, v{vo0}
        v_xor_b32 v{vo1}, 64, v{vo0}
        s_lshl_b32 s{t0}, s{sT}, 15
        {g.cfg.rot.format(t1=t1, sHP=sHP, sC=sC, sX=sX)}
        s_lshl_b32 s{t6}, s{sW}, 14
        s_lshl_b32 s6, s{sHP}, 6
        s_mul_i32 s7, s{sW}, 3072
        s_add_u32 s7, s7, {LW}
        """)
        for i in range(3):
            r = vWd + i
            g.e(f"""
            v_add_u32 v{vt2}, {64 * i}, v{vt0}
            v_mul_u32_u24 v{vt3}, 0x1556, v{vt2}
            v_lshrrev_b32 v{vt3}, 16, v{vt3}
            v_mul_u32_u24 v{r}, 12, v{vt3}
            v_sub_u32 v{vt2}, v{vt2}, v{r}
            v_mul_u32_u24 v{r}, 3072, v{vt3}
            v_lshrrev_b32 v{vt3}, 2, v{vt2}
            v_lshl_add_u32 v{r}, v{vt3}, 10, v{r}
            v_and_b32 v{vt2}, 3, v{vt2}
            v_lshl_add_u32 v{r}, v{vt2}, 4, v{r}
            """)
        g.e("s_waitcnt lgkmcnt(0)")
        g.srd(sXIN, pX, 2048 * 1024)
        g.srd(sWQ, pWQ, 512 * 3072)
        g.stamp("start")

        def grp_ops(c):
            ops = []
            for j in range(4):
                def op(j=j):
                    if j == 0:
                        g.e(f"s_add_u32 s{t2}, s{t1}, {c}\ns_and_b32 s{t2}, s{t2}, 7\ns_lshl_b32 s3, s{t2}, 7\ns_add_u32 s3, s3, s{t0}")
                    g.e(f"s_add_u32 s{t5}, s{t6}, {(c % 4) * 4096 + j * 1024}\ns_mov_b32 m0, s{t5}")
                    g.e("s_add_u32 s3, s3, 8192" if j else "s_nop 0")
                    g.dma((vo0, vo1)[j % 2], sXIN, 3, 0, mods="", tag=("xc", c))
                ops.append(op)
            for i in range(3):
                def op(i=i):
                    if i == 0:
                        g.e(f"s_add_u32 s{t2}, s{t1}, {c}\ns_and_b32 s{t2}, s{t2}, 7\ns_lshl_b32 s{t2}, s{t2}, 2")
                        g.e(f"s_add_u32 s{t2}, s{t2}, s{sW}\ns_mul_i32 s3, s{t2}, 49152\ns_add_u32 s3, s3, s6")
                    g.e(f"s_add_u32 s{t5}, s7, {c * 4 * 3072 + i * 1024}\ns_mov_b32 m0, s{t5}\ns_nop 0")
                    g.dma(vWd + i, sWQ, 3, 0, mods="", tag=("w", c))
                ops.append(op)
            return ops
        if g.cfg.warm:
            g.e(f"""
            s_lshl_b32 s{t2}, s{sC}, 2
            s_add_u32 s{t2}, s{t2}, s{sW}
            s_mul_i32 s{t3}, s{t2}, 12288
            s_lshl_b32 s{t2}, s{t2}, 11
            s_lshl_b32 s{t4}, s{sX}, 18
            s_add_u32 s{t2}, s{t2}, s{t4}
            v_lshlrev_b32 v254, 3, v{vL16}
            v_and_b32 v253, 0x780, v254
            """)
            if g.cfg.warm == 2:
                for op in grp_ops(0):
                    op()
            g.ld("v255", 253, sXIN, t2, 0, mods="", w=1)
            if g.cfg.warm == 3:
                g.e(f"s_lshl_b32 s{t3}, s2, 2\ns_add_u32 s{t3}, s{t3}, s{sW}\ns_mul_i32 s{t3}, s{t3}, 1536")
                g.ld("v255", 253, sWQ, t3, 0, mods="", w=1)
            else:
                g.ld("v255", 254, sWQ, t3, 0, mods="", w=1)
                g.e(f"v_and_b32 v254, 0xf80, v254\ns_add_u32 s{t3}, s{t3}, 8192")
                g.ld("v255", 254, sWQ, t3, 0, mods="", w=1)
        if g.cfg.warm != 2:
            for op in grp_ops(0):
                op()
        g.srd(sWS, pWS, WS_BYTES - g.cfg.ws_off)
        if g.cfg.ws_off:
            g.e(f"s_add_u32 s{sWS}, s{sWS}, {g.cfg.ws_off}\ns_addc_u32 s{sWS + 1}, s{sWS + 1}, 0")
        g.srd(sDBG, pDBG, 256)
        g.zero_flags()
        g.prologue2()
        g.e(f"""
        v_and_b32 v{vt2}, 31, v{vt0}
        v_lshrrev_b32 v{vt3}, 5, v{vt0}
        v_lshlrev_b32 v{vRs}, 10, v{vt2}
        v_lshl_add_u32 v{vRs}, v{vt3}, 4, v{vRs}
        v_bfe_u32 v{vt1}, v{vt0}, 1, 3
        v_xor_b32 v{vt1}, v{vt1}, v{vt3}
        v_lshlrev_b32 v{vt1}, 4, v{vt1}
        v_lshl_add_u32 v{vt1}, v{vt2}, 7, v{vt1}
        v_add_u32 v{vt1}, s{t6}, v{vt1}
        """)
        for i in range(4):
            g.e(f"s_add_u32 s{t2}, s{sW}, {i}\ns_and_b32 s{t2}, s{t2}, 3\ns_lshl_b32 s{t2}, s{t2}, 5\nv_xor_b32 v{vRd + i}, s{t2}, v{vt1}")
        g.e(f"""
        v_lshrrev_b32 v{vt2}, 5, v{vt0}
        v_lshlrev_b32 v{vt2}, 3, v{vt2}
        v_bfe_u32 v{vt3}, v{vt0}, 2, 2
        v_add_u32 v{vt2}, v{vt2}, v{vt3}
        v_mul_u32_u24 v{vt1}, 192, v{vt2}
        v_bfe_u32 v{vt3}, v{vt0}, 4, 1
        v_lshl_add_u32 v{vt1}, v{vt3}, 5, v{vt1}
        v_and_b32 v{vt3}, 1, v{vt0}
        v_lshl_add_u32 v{vt1}, v{vt3}, 4, v{vt1}
        v_bfe_u32 v{vt3}, v{vt0}, 1, 1
        v_lshl_add_u32 v{vt1}, v{vt3}, 3, v{vt1}
        """)
        for i in range(4):
            g.e(f"s_add_u32 s{t2}, s{sW}, {i}\ns_and_b32 s{t2}, s{t2}, 3\ns_mul_i32 s{t2}, s{t2}, 3072\ns_add_u32 s{t2}, s{t2}, {LW}\nv_add_u32 v{vTr + i}, s{t2}, v{vt1}")
        g.e(f"v_mov_b32 v{vt1}, 0x3f803f80")
        for i in range(4):
            g.e(f"v_accvgpr_write_b32 a{ONE + i}, v{vt1}")
        for op in grp_ops(1):
            op()
        g.stamp("A0_d1")
        g.a_addr(0)
        g.relayout_setup(0)
        g.relayout_setup(1)
        if g.cfg.cpf:
            g.code_prefetch()
        g.stamp("A0_i")
        for op in grp_ops(2):
            op()

        def xread(c):
            return [("v", ("xc", c))] + [
                lambda i=i: g.ds(f"ds_read_b128 {vr(X + 4 * (4 * c + i), 4)}, v{vRd + i} offset:{(c % 4) * 4096}", ("x", c)) for i in range(4)]

        names = "kvq"
        seg = {"q": 0, "k": 1, "v": 2}

        def wread(f):
            st, n = divmod(f, 3)
            c, i = divmod(st, 4)
            if n == 0 and i == 0:
                g.vwait(("w", c))
                g.e("s_barrier")
            if n == 0 and c == 4:
                g.e(f"v_add_u32 v{vTr + i}, 49152, v{vTr + i}")
            b = WB + 4 * (f % 8)
            off = (c % 4) * 12288 + seg[names[n]] * 64
            g.ds(f"ds_read_b64_tr_b16 {ar(b, 2)}, v{vTr + i} offset:{off}", ("w", f))
            g.ds(f"ds_read_b64_tr_b16 {ar(b + 2, 2)}, v{vTr + i} offset:{off + 768}", ("w", f))

        def resld():
            g.e(f"""
            s_lshl_b32 s{t0}, s{sTA}, 15
            s_lshl_b32 s{t2}, s{sCB}, 1
            s_add_u32 s{t2}, s{t2}, s{sNA}
            s_lshl_b32 s{t2}, s{t2}, 6
            s_add_u32 s{t0}, s{t0}, s{t2}
            """)
            g.ld(vr(vRes, 4), vRs, sXIN, t0, 0, mods="", tag="res")
            g.ld(vr(vRes + 4, 4), vRs, sXIN, t0, 32, mods="", tag="res")

        def mf4(d, a, b, first):
            g.e(f"v_mfma_f32_4x4x4_16b_bf16 {d}, {a}, {b}, {'0' if first else d}")

        def stat_mf(st):
            for hh in range(2):
                x = vr(X + 4 * st + 2 * hh, 2)
                mf4(vr(S1 + 4 * hh, 4), ar(ONE, 2), x, st == 0)
                mf4(vr(S2 + 4 * hh, 4), x, x, st == 0)
            g.take(side, 2)

        side = deque(xread(0))
        g.take(side, 99)
        g.stamp("A0_x0")
        LEAD = 5
        for f in range(LEAD):
            wread(f)
        rld = g.relayout_dma_ops()
        wwarm = [lambda: g.e(f"v_and_b32 v253, 0x3c0, v{vL16}\nv_lshlrev_b32 v253, 1, v253\ns_lshl_b32 s{t7}, s2, 2\ns_add_u32 s{t7}, s{t7}, s{sW}")]
        for ptr, share in ((pW1, 1792), (pW3, 1792), (pW2, 1792), (pWO, 512)):
            def op(ptr=ptr, share=share):
                g.srd(sWQ, ptr, share * 1024)
                g.e(f"s_mul_i32 s{t8}, s{t7}, {share}")
                if share < 1792:
                    g.e("v_and_b32 v253, 0x180, v253")
                g.ld("v255", 253, sWQ, t8, 0, mods="", w=1)
            wwarm.append(op)
        XA = 8192
        for c in range(8):
            if c + 3 < 8:
                side.extend(grp_ops(c + 3))
            if c == 0:
                side.extendleft(reversed(xread(1) + [g.handshake_send]))
            elif c + 1 < 8:
                side.extend(xread(c + 1))
            if c == 3:
                side.appendleft(g.handshake_load)
            if c == 4:
                side.append(g.handshake_check)
                side.append(resld)
                if not g.cfg.rl_in_b:
                    side.extend(rld)
            if c == g.cfg.warm_w:
                side.extend(wwarm)
            if c == 6:
                side.extend(g.a_saddr(0))
            g.lwait(("x", c))
            if c == 7:
                for i in range(4):
                    stat_mf(28 + i)
                sel = [f"v_add_f32 v{S1}, v{S1}, v{S1 + 4}"] + [f"v_add_f32 v{S2 + r}, v{S2 + r}, v{S2 + 4 + r}" for r in range(4)]
                for m, stp in ((0xaaaaaaaa, 1), (0xcccccccc, 2)):
                    sel += [f"s_mov_b32 s{t2}, {m:#x}", f"s_mov_b32 s{t3}, {m:#x}"]
                    sel += [f"v_cndmask_b32 v{S2 + r}, v{S2 + r}, v{S2 + r + stp}, s[{t2}:{t3}]" for r in range(0, 4, 2 * stp)]
                sel += ["s_nop 1", f"v_permlane32_swap_b32 v{S1}, v{S2}", f"v_add_f32 v{S1}, v{S1}, v{S2}",
                        f"v_mov_b32 v{S2}, v{S1}", "s_nop 1", f"v_permlane32_swap_b32 v{S1}, v{S2}"]
                sel += g.stats_tail(S1, S2, g.A_RS, g.A_CD, g.A_BX)
                sel += [f"s_add_u32 s{t2}, s{t6}, 12288"] + g.a_rc_ops(t2)
            for i in range(4):
                st = 4 * c + i
                g.lwait(("w", 3 * st + 2))
                for n in range(3):
                    f = 3 * st + n
                    wb = ar(WB + 4 * (f % 8), 4)
                    g.a_mfma(names[n], wb, vr(X + 4 * st, 4), st == 0)
                    if i == 0:
                        for hh in range(2):
                            mf4(ar(CS + 8 * n + 4 * hh, 4), ar(ONE, 2), ar(WB + 4 * (f % 8) + 2 * hh, 2), c == 0)
                    if f + LEAD < 96:
                        wread(f + LEAD)
                    g.take(side, 2 if c < 7 else 5)
                    if c == 7 and i == 0 and n == 1:
                        side.extend(sel)
                if c == 7 and i == 1:
                    g.e(f"s_lshl_b32 s{t4}, s{sW}, 2\ns_add_u32 s{t4}, s{t4}, {XA}\nv_add_u32 v253, s{t4}, v{vL16}")
                    for n in range(3):
                        g.e(f"""
                        v_accvgpr_read_b32 v{vt2}, a{CS + 8 * n}
                        v_accvgpr_read_b32 v254, a{CS + 8 * n + 4}
                        v_add_f32 v{vt2}, v{vt2}, v254
                        v_cvt_pk_bf16_f32 v254, v{vt2}, v{vt2}
                        v_lshlrev_b32 v254, 16, v254
                        v_sub_f32 v254, v{vt2}, v254
                        v_cvt_pk_bf16_f32 v254, v{vt2}, v254
                        """)
                        g.ds(f"ds_write_b32 v253, v254 offset:{1024 * n}", "csw")
                if c < 7:
                    stat_mf(st)
            g.take(side, 99)
            g.stamp(f"A0_g{c}")
        g.lwait0()
        g.e("s_barrier")
        for n in range(3):
            g.ds(f"ds_read_b128 {vr(g.A_AX[names[n]], 4)}, v{vL16} offset:{XA + 1024 * n}", ("ax", n))
        for n in range(3):
            g.lwait(("ax", n))
            g.a_mfma(names[n], vr(g.A_AX[names[n]], 4), vr(g.A_BX, 4), False)
        side = deque(g.a_epi("k") + g.a_epi("v") + g.a_epi("q", "sc1"))
        g.take(side, 999)
        g.stamp("A0st")

    def phaseA1(self, layer):
        g = self
        cfg = g.cfg
        X, SB = g.A_X, 192
        g.A_BX = 236
        vA0, vA1 = 224, 225
        LW = 65536
        g.e(f"v_add_u32 v{vA0}, {LW}, v{vL16}\nv_add_u32 v{vA1}, {LW + 49152}, v{vL16}")
        g.a_addr(layer)
        g.e("\n".join(g.a_saddr(layer)))
        g.e(f"s_lshl_b32 s{t4}, s{sHP}, 10\ns_add_u32 s{t4}, s{t4}, {WXQ}\ns_lshl_b32 s{t6}, s{sW}, 8\ns_add_u32 s{t6}, s{t6}, {48 * 1024}")
        g.e(f"v_and_b32 v{vt0}, 60, v{vL4}\ns_lshl_b32 s{t2}, s{sT}, 7\ns_add_u32 s{t2}, s{t2}, {FE}")
        pre, xrest, stl = g.load_x_stats(layer - 1, 1, aX(layer - 1, 1), X, SB, cfg.up_a)
        seg = {"q": 0, "k": 1, "v": 2}
        LAG = cfg.lag_a
        seq = []
        for ks in range(32):
            seq += [("k", ks), ("v", ks)] + ([("q", ks - LAG)] if ks >= LAG else [])
        nmain = len(seq)
        seq += [("q", ks) for ks in range(32 - LAG, 32)]

        def wread(f):
            n, ks = seq[f]
            off = ((ks % 16) * 3 + seg[n]) * 1024
            g.ds(f"ds_read_b128 {ar(WB + 4 * (f % 8), 4)}, v{vA0 if ks < 16 else vA1} offset:{off}", ("w", f))
        LEAD = 7
        for f in range(LEAD):
            wread(f)
        g.poll(vt0, t2, layer, True)
        g.stamp(f"A{layer}go")
        pre()

        def axld(n):
            g.ld(vr(g.A_AX[n], 4), vL16, sWS, t4, 0, tag="ax")
            g.e(f"s_add_u32 s{t4}, s{t4}, 16384")
        xrest = deque(xrest)
        mem = deque(stl + [lambda n=n: axld(n) for n in "qkv"])
        if "A" in cfg.touch:
            xrest.extend([lambda: g.e(f"v_and_b32 v254, 0x3c0, v{vL16}\nv_lshlrev_b32 v254, 1, v254")] + g.touch_ops([], t9, 1, 254, 255))
        side = deque()
        for f, (n, ks) in enumerate(seq):
            if f == nmain:
                g.take(side, 999)
                g.vwait("ax")
                for m in "kv":
                    g.a_mfma(m, vr(g.A_AX[m], 4), vr(g.A_BX, 4), False)
                side.extend([None] * 8 + g.a_epi("k") + g.a_epi("v"))
            if n == "k":
                g.vwait(("x", ks))
            if f % 4 == 0:
                g.lwait(("w", min(f + 3, 95)))
            g.a_mfma(n, ar(WB + 4 * (f % 8), 4), vr(X + 4 * ks, 4), ks == 0)
            if f + LEAD < 96:
                wread(f + LEAD)
            if n == "k" and xrest:
                xrest.popleft()()
            elif n == "v" and ks >= cfg.st_a and mem:
                mem.popleft()()
                if not mem:
                    side.extend([None] * 30 + g.stats_ops(SB, g.A_RS, g.A_CD, g.A_BX) + g.a_rc_ops(t6))
            g.take(side, 3 if f < nmain else 7)
            if n == "k" and ks % 8 == 7:
                g.stamp(f"A{layer}_{ks}")
        g.a_mfma("q", vr(g.A_AX["q"], 4), vr(g.A_BX, 4), False)
        g.e("s_barrier")
        g.stamp(f"A{layer}_m")
        side.extend(g.a_epi("q"))
        g.take(side, 999)
        g.stamp(f"A{layer}st")

    RL_SRD = ((28, 32), (80, 16))
    RL_DO = (64, 70)
    RL_XO = (62, 63)
    RL_V = 244
    RL_LDS = 65536

    def relayout_setup(self, ui):
        g = self
        passes = g.cfg.passes
        RA, RB = g.RL_SRD[ui]
        sDO, sDS = g.RL_DO[ui], g.RL_DO[ui] + 1
        sXO = g.RL_XO[ui]
        u, sRS, sSO, sMH, sWO = t7, t9, t10, t8, t11
        a0, a1, a2, a3 = t2, t3, t4, t5
        vS, vT = g.RL_V + ui, g.RL_V + 2 + ui
        L = [g.label("rl") for _ in range(5)]
        if ui == 0:
            g.e(f"s_mov_b32 s{u}, s2\ns_cmp_ge_u32 s{u}, 224\ns_cbranch_scc1 {L[0]}")
            g.srd(RA, pW1, 512 * 3584)
            g.srd(RB, pW3, 512 * 3584)
            g.e(f"""
            s_mov_b32 s{sRS}, 3584
            s_lshr_b32 s{a0}, s{u}, 3
            s_and_b32 s{a1}, s{u}, 7
            s_lshl_b32 s{a2}, s{a1}, 2
            s_add_u32 s{a2}, s{a2}, s{sW}
            s_mul_i32 s{sSO}, s{a2}, {16 * 3584}
            s_lshl_b32 s{a2}, s{a0}, 7
            s_add_u32 s{sSO}, s{sSO}, s{a2}
            s_lshl_b32 s{a0}, s{a0}, 2
            s_add_u32 s{a0}, s{a0}, s{sW}
            s_lshl_b32 s{sXO}, s{a0}, 10
            s_add_u32 s{sXO}, s{sXO}, {WX13}
            s_mul_i32 s{a2}, s{a0}, 9363
            s_lshr_b32 s{a2}, s{a2}, 16
            s_mul_i32 s{a3}, s{a2}, 7
            s_sub_u32 s{a3}, s{a0}, s{a3}
            s_mul_i32 s{sDO}, s{a2}, 229376
            s_add_u32 s{sDO}, s{sDO}, {W13}
            s_mov_b32 s{a2}, {passes[0][0]}
            s_mov_b32 s{sDS}, {(passes[0][1] - passes[0][0]) * 1024}
            """)
            for a, b in passes[1:]:
                g.e(f"s_cmp_ge_u32 s{a3}, {a}\ns_cselect_b32 s{a2}, {a}, s{a2}\ns_cselect_b32 s{sDS}, {(b - a) * 1024}, s{sDS}")
            g.e(f"""
            s_mul_i32 s{a0}, s{a2}, 31
            s_add_u32 s{a0}, s{a0}, s{a3}
            s_lshl_b32 s{a0}, s{a0}, 10
            s_add_u32 s{sDO}, s{sDO}, s{a0}
            s_mov_b32 s{sMH}, 8192
            s_lshl_b32 s{sWO}, s{sW}, 5
            """)
            other, nks, wdst, first, ptr = "wo", 32, WO, 224, pWO
        else:
            g.e(f"s_sub_u32 s{a0}, s2, 208\ns_cmp_ge_u32 s2, 208\ns_cselect_b32 s{u}, s{a0}, s2\ns_cmp_lt_u32 s{u}, 112\ns_cbranch_scc1 {L[0]}")
            g.srd(RA, pWQ, 512 * 3072)
            g.srd(RB, pWQ, 512 * 3072 - 128)
            g.e(f"""
            s_add_u32 s{RB}, s{RB}, 128
            s_addc_u32 s{RB + 1}, s{RB + 1}, 0
            s_mov_b32 s{sRS}, 3072
            s_sub_u32 s{a0}, s{u}, 112
            s_and_b32 s{a1}, s{a0}, 7
            s_lshr_b32 s{a0}, s{a0}, 3
            s_lshl_b32 s{a2}, s{a1}, 2
            s_add_u32 s{a2}, s{a2}, s{sW}
            s_mul_i32 s{sSO}, s{a2}, {16 * 3072}
            s_lshl_b32 s{a2}, s{a0}, 8
            s_add_u32 s{sSO}, s{sSO}, s{a2}
            s_lshl_b32 s{a0}, s{a0}, 2
            s_add_u32 s{a0}, s{a0}, s{sW}
            s_lshl_b32 s{sXO}, s{a0}, 10
            s_add_u32 s{sXO}, s{sXO}, {WXQ}
            s_and_b32 s{a2}, s{a0}, 15
            s_mul_i32 s{sDO}, s{a2}, {32 * 3072}
            s_lshr_b32 s{a2}, s{a0}, 4
            s_lshl_b32 s{a2}, s{a2}, 10
            s_add_u32 s{sDO}, s{sDO}, s{a2}
            s_add_u32 s{sDO}, s{sDO}, {WQ}
            s_mov_b32 s{sDS}, 3072
            s_mov_b32 s{sMH}, 32
            s_lshr_b32 s{sWO}, s{sW}, 1
            s_lshl_b32 s{sWO}, s{sWO}, 13
            s_and_b32 s{a2}, s{sW}, 1
            s_lshl_b32 s{a2}, s{a2}, 6
            s_add_u32 s{sWO}, s{sWO}, s{a2}
            """)
            other, nks, wdst, first, ptr = "w2", 112, W2, 0, pW2
        g.e(f"""
        s_lshl_b32 s{a0}, s{sDS}, 2
        s_mul_i32 s{a0}, s{a0}, s{a1}
        s_add_u32 s{sDO}, s{sDO}, s{a0}
        s_and_b32 s{a0}, s{a1}, 4
        s_lshl_b32 s{a0}, s{a0}, 7
        s_add_u32 s{sXO}, s{sXO}, s{a0}
        s_and_b32 s{a0}, s{a1}, 3
        s_lshl_b32 s{a0}, s{a0}, 2
        s_add_u32 s{sXO}, s{sXO}, s{a0}
        s_branch {L[1]}
        {L[0]}:
        """)
        g.srd(RA, ptr, nks * 16 * 1024)
        g.srd(RB, ptr, nks * 16 * 1024 - 512)
        g.e(f"""
        s_add_u32 s{RB}, s{RB}, 512
        s_addc_u32 s{RB + 1}, s{RB + 1}, 0
        s_mov_b32 s{sRS}, 1024
        s_sub_u32 s{a0}, s{u}, {first}
        s_lshl_b32 s{sSO}, s{a0}, 14
        s_lshl_b32 s{a1}, s{sW}, 7
        s_add_u32 s{sSO}, s{sSO}, s{a1}
        s_lshr_b32 s{a1}, s{sW}, 1
        s_lshl_b32 s{sWO}, s{a1}, 13
        s_mul_i32 s{a1}, s{a1}, {4 * nks}
        s_add_u32 s{a1}, s{a1}, s{a0}
        s_lshl_b32 s{sDO}, s{a1}, 11
        s_and_b32 s{a1}, s{sW}, 1
        s_lshl_b32 s{a2}, s{a1}, 10
        s_add_u32 s{sDO}, s{sDO}, s{a2}
        s_add_u32 s{sDO}, s{sDO}, {wdst}
        s_mov_b32 s{sDS}, {nks * 2048}
        s_lshl_b32 s{a2}, s{a1}, 6
        s_add_u32 s{sWO}, s{sWO}, s{a2}
        s_mov_b32 s{sMH}, 32
        s_lshl_b32 s{sXO}, s{u}, 2
        s_add_u32 s{sXO}, s{sXO}, s{sW}
        s_and_b32 s{sXO}, s{sXO}, 63
        s_lshl_b32 s{sXO}, s{sXO}, 10
        s_add_u32 s{sXO}, s{sXO}, {WXD}
        {L[1]}:
        v_lshrrev_b32 v{vS}, 7, v{vL16}
        v_mul_lo_u32 v{vS}, v{vS}, s{sRS}
        v_and_b32 v{vT}, 0x70, v{vL16}
        v_add3_u32 v{vS}, v{vS}, v{vT}, s{sSO}
        s_lshl_b32 s{4 + ui}, s{sRS}, 3
        s_add_u32 s{sWO}, s{sWO}, {g.RL_LDS + ui * 16384}
        v_bfe_u32 v{vT}, v{vL16}, 8, 1
        v_mul_lo_u32 v{vT}, v{vT}, s{sMH}
        v_add_u32 v{vT}, s{sWO}, v{vT}
        v_lshrrev_b32 v{vt2}, 9, v{vL16}
        v_lshl_add_u32 v{vT}, v{vt2}, 10, v{vT}
        v_bfe_u32 v{vt2}, v{vL16}, 6, 2
        v_lshl_add_u32 v{vT}, v{vt2}, 7, v{vT}
        v_and_b32 v{vt2}, 16, v{vL16}
        v_add_u32 v{vT}, v{vt2}, v{vT}
        v_bfe_u32 v{vt2}, v{vL16}, 5, 1
        v_lshl_add_u32 v{vT}, v{vt2}, 3, v{vT}
        v_add_u32 v{g.RL_V + 4 + ui}, s{4 + ui}, v{vS}
        """)

    def relayout_dma_ops(self):
        g = self
        ops = []
        for ui in range(2):
            for i in range(4):
                def op(ui=ui, i=i):
                    g.e(f"s_lshl_b32 s{t5}, s{sW}, 11\ns_add_u32 s{t5}, s{t5}, {g.RL_LDS + ui * 16384 + (i // 2) * 8192 + (i % 2) * 1024}")
                    g.e(f"s_mov_b32 m0, s{t5}\ns_nop 0")
                    g.dma(g.RL_V + ui + 4 * (i % 2), g.RL_SRD[ui][i // 2], None, 0, mods="", tag="rl")
                ops.append(op)
        return ops

    def relayout_out_ops(self):
        g = self
        ops = []
        CS, ONE = 224, 240
        for ui in range(2):
            sDO, sDS = g.RL_DO[ui], g.RL_DO[ui] + 1
            for i in range(4):
                d = 244

                def rd(ui=ui, i=i, d=d):
                    vS = (vt2, vt3)[ui]
                    g.ds(f"ds_read_b64_tr_b16 {vr(d, 2)}, v{vS} offset:{i * 2048}", ("rl", i))
                    g.ds(f"ds_read_b64_tr_b16 {vr(d + 2, 2)}, v{vS} offset:{i * 2048 + 512}", ("rl", i))

                def wr(i=i, d=d, sDO=sDO, sDS=sDS):
                    g.lwait(("rl", i))
                    g.st(vr(d, 4), vL16, sWS, sDO, 0, "sc1", tag="rlst")
                    g.e(f"s_add_u32 s{sDO}, s{sDO}, s{sDS}")

                def cs(i=i, d=d):
                    g.e(f"v_mfma_f32_32x32x16_bf16 {ar(CS, 16)}, {ar(ONE, 4)}, {vr(d, 4)}, {ar(CS, 16) if i else '0'}")
                ops += [(rd, "A"), (wr, "C"), (cs, "D")]

            def xo(ui=ui):
                g.e(f"""
                v_accvgpr_read_b32 v254, a{CS}
                v_and_b32 v{vt0}, 0x1f0, v{vL16}
                v_cvt_pk_bf16_f32 v255, v254, v254
                v_lshlrev_b32 v255, 16, v255
                v_sub_f32 v255, v254, v255
                v_cvt_pk_bf16_f32 v255, v254, v255
                """)
                g.st(vr(255), vt0, sWS, g.RL_XO[ui], 0, "sc1", tag="rlst", w=1)
            ops.append((xo, "X"))
        return ops

    def ew_ops(self, lo, hi, ts):
        g = self
        a, b = ts
        ops = []

        def setup():
            g.e(f"s_mul_i32 s{a}, s{sCB}, {112 * 2048}\ns_mul_i32 s{b}, s{sW}, {28 * 2048}")
        def setup2():
            g.e(f"s_add_u32 s{a}, s{a}, s{b}\ns_add_u32 s{a}, s{a}, {W2 + (lo // 4) * 4096}")
        def setup3():
            g.e(f"s_lshl_b32 s{b}, s{sNA}, 10\ns_add_u32 s{a}, s{a}, s{b}")
        def setup4():
            g.e(f"s_xor_b32 s{b}, s{a}, 1024")
        ops += [setup, setup2, setup3, setup4]
        assert lo % 4 == 0
        for idx in range(lo, hi):
            def op(idx=idx):
                i, n = divmod(idx, 2)
                if idx > lo and idx % 4 == 0:
                    g.e(f"s_add_u32 s{a}, s{a}, 4096\ns_add_u32 s{b}, s{b}, 4096")
                g.ld(ar(4 * idx, 4), vL16, sWS, (a, b)[n], (i % 2) * 2048, mods=g.cfg.wmods, tag="ew")
            ops.append(op)
        return ops

    def phaseB(self, layer):
        g = self
        cfg = g.cfg
        O, Q, S, KV = 16, 144, 176, 208
        vV = 252
        CW = [R("a", 224 + 4 * i) for i in range(8)] + [R("v", 220 + 4 * i) for i in range(8)]
        SBo, SBl = 104 * 1024, 152 * 1024
        sKV, sG = 6, 7
        for j in range(8):
            for r in range(9):
                g.e(f"v_mov_b32 v{O + 16 * j + r}, 0")
        g.vwait0()
        g.signal(0, layer + 1, layer > 0)
        g.e(f"v_mov_b32 v{vIdx}, 0xdddddddd")
        g.e(f"v_mov_b32 v{vt0}, 0x3f803f80\ns_mov_b32 s{t0}, 0x00110000\ns_mov_b32 s{t1}, 0x00110000")
        if layer == 0:
            for i in range(4):
                g.e(f"v_accvgpr_write_b32 a{240 + i}, v{vt0}")
        g.e(f"v_cndmask_b32 v{vt0}, 0, v{vt0}, s[{t0}:{t1}]")
        for e in range(3):
            for r in range(4, 12):
                g.e(f"v_mov_b32 v{KV + 12 * e + r}, v{vt0}")
        if layer == 0:
            g.e(f"v_mov_b32 v{vt2}, v{g.RL_V + 2}\nv_mov_b32 v{vt3}, v{g.RL_V + 3}")
        g.e(f"""
        v_lshrrev_b32 v{vt0}, 9, v{vL16}
        v_lshlrev_b32 v{vV}, 8, v{vt0}
        v_and_b32 v{vt0}, 0xf0, v{vL16}
        v_add_u32 v{vV}, v{vV}, v{vt0}
        v_bfe_u32 v{vt0}, v{vL16}, 5, 3
        v_add_u32 v{vt0}, s{sX}, v{vt0}
        v_and_b32 v{vt0}, 7, v{vt0}
        v_lshlrev_b32 v253, 7, v{vt0}
        v_bfe_u32 v{vt0}, v{vL16}, 4, 1
        v_lshl_add_u32 v253, v{vt0}, 2, v253
        v_and_b32 v{vt0}, 28, v{vL4}
        s_lshl_b32 s{t0}, s{sX}, 4
        s_lshr_b32 s{t1}, s{sC}, 1
        s_add_u32 s{t0}, s{t0}, s{t1}
        s_lshl_b32 s{t0}, s{t0}, 7
        s_add_u32 s{t0}, s{t0}, {FA_L}
        s_lshl_b32 s{sG}, s{t1}, 10
        s_lshl_b32 s{t2}, s{sW}, 3
        s_add_u32 s{sG}, s{sG}, s{t2}
        s_add_u32 s{sG}, s{sG}, {FA_G}
        s_lshl_b32 s{t2}, s{sW}, 1
        s_lshl_b32 s{sKV}, s{sC}, 6
        s_add_u32 s{sKV}, s{sKV}, s{t2}
        s_lshl_b32 s{sKV}, s{sKV}, 11
        s_add_u32 s{sKV}, s{sKV}, {aKV(layer)}
        s_lshl_b32 s{t3}, s{sX}, 8
        s_add_u32 s{t3}, s{t3}, s{sC}
        s_lshl_b32 s{t3}, s{t3}, 10
        s_add_u32 s{t3}, s{t3}, {aQ(layer)}
        """)
        l3, l0 = g.label("b3"), g.label("b0")
        g.e(f"s_barrier\ns_cmp_eq_u32 s{sW}, 3\ns_cbranch_scc0 {l3}")
        g.e(f"v_readlane_b32 s{t5}, v{vFl}, 1\nv_mov_b32 v{vt1}, {layer + 1}\ns_mov_b64 exec, 15\ns_sub_u32 s{t5}, s{t5}, 12\ns_nop 1")
        g.e(f"buffer_store_dword v{vt1}, v{vL4}, {sr(sWS, 4)}, s{t5} offen sc1\ns_mov_b64 exec, -1\n{l3}:")
        g.e(f"s_cmp_eq_u32 s{sW}, 0\ns_cbranch_scc0 {l0}")
        keep = list(g.vmq)
        g.poll(vt0, t0, layer + 1, False, sleep=0 if layer else 1)
        g.vmq = keep
        g.e(f"{l0}:\ns_barrier")
        if layer > 0:
            g.dual("", "buffer_inv sc1\ns_waitcnt vmcnt(0)", 0)
        g.stamp(f"B{layer}go")

        def kv_addr(kt):
            g.e(f"s_add_u32 s3, s{sX}, {kt // 2}\ns_and_b32 s3, s3, 7")
            g.e(f"s_lshl_b32 s3, s3, 14\ns_add_u32 s3, s3, s{sKV}")

        def ldK(kt):
            g.ld(vr(KV + 12 * (kt % 3), 4), vL16, sWS, 3, (kt % 2) * 2048, mods=cfg.kvmods, tag=("K", kt))

        def ldV(kt):
            e = KV + 12 * (kt % 3)
            g.e(f"s_mov_b64 exec, s[{sVM}:{sVM + 1}]")
            g.ld(vr(e + 4, 4), vV, sWS, 3, (kt % 2) * 2048 + 1024, mods=cfg.kvmods, tag=("V", kt))
            g.ld(vr(e + 8, 4), vV, sWS, 3, (kt % 2) * 2048 + 1536, mods=cfg.kvmods, tag=("V", kt))
            g.e("s_mov_b64 exec, -1")

        def ldQ(j):
            g.e(f"s_add_u32 s{t4}, s{t2}, {2 + j}\ns_and_b32 s{t4}, s{t4}, 7\ns_lshl_b32 s{t4}, s{t4}, 15\ns_add_u32 s{t4}, s{t4}, s{t3}")
            g.ld(vr(Q + 4 * j, 4), vL16, sWS, t4, 0, tag=("Q", j))
        kv_addr(0)
        ldK(0)
        ldQ(0)
        ldQ(1)
        ldV(0)
        for j in range(2, 8):
            ldQ(j)
        ldK(1)
        ldV(1)

        gaps = {}

        def at(n, gap, fn):
            gaps.setdefault((n, gap), []).append(fn)

        def spread(ops, n0, per_tile=3, gapset="ABC"):
            n, k = n0, 0
            for op in ops:
                at(n, gapset[k], op)
                k += 1
                if k == min(per_tile, len(gapset)):
                    n, k = n + 1, 0
            return n + 1

        for j in range(1, 8):
            at(j - 1, "A", lambda j=j: g.vwait(("Q", j)))
        at(0, "B", lambda: g.vwait(("V", 0)))
        for kt in range(1, 16):
            at(8 * kt - 1, "A", lambda kt=kt: g.vwait(("V", kt)))

        vG = 253

        def gpoll_ld():
            g.ld(vr(vt1), vG, sWS, sG, 0, tag="gf", w=1)

        def gpoll_snap():
            g.vwait("gf")
            g.e(f"v_cmp_gt_u32 s[{sSN2}:{sSN2 + 1}], {layer + 1}, v{vt1}")

        def gcheck(kt):
            ls, lj, lp = g.label("gslow"), g.label("gjoin"), g.label("gp")
            m = 3 << kt
            g.e(f"s_and_b32 s{t11}, s{sSN2}, {m}\ns_cbranch_scc1 {ls}\n{lj}:")
            g.tail.append(f"""{ls}:
            s_mov_b32 s{sTO}, {TIMEOUT}
            {lp}:
            buffer_load_dword v{vt1}, v{vG}, {sr(sWS, 4)}, s{sG} offen sc1
            s_sub_u32 s{sTO}, s{sTO}, 1
            s_cbranch_scc1 L_exit
            s_waitcnt vmcnt(0)
            v_cmp_gt_u32 s[{sSN2}:{sSN2 + 1}], {layer + 1}, v{vt1}
            s_nop 1
            s_and_b32 s{t11}, s{sSN2}, {m}
            s_cbranch_scc0 {lj}
            s_sleep 2
            s_branch {lp}""")
        at(cfg.gp, "C", gpoll_ld)
        at(cfg.gp + 3, "A", gpoll_snap)
        at(cfg.gp + 3, "B", lambda: gcheck(2))
        at(cfg.gp + 3, "B", lambda: kv_addr(2))
        at(cfg.gp + 3, "C", lambda: ldK(2))
        at(cfg.gp + 4, "A", lambda: ldV(2))
        for kt in range(3, 16):
            n = max(8 * (kt - 2), cfg.gp + 4)
            if kt % 2 == 0:
                at(n - 1, "C", lambda kt=kt: gcheck(kt))
                at(n, "A", lambda kt=kt: kv_addr(kt))
            at(n, "B", lambda kt=kt: ldK(kt))
            at(n, "C", lambda kt=kt: ldV(kt))

        if cfg.kvpf[layer]:
            k0, n0_, stp = cfg.kvpf[layer]
            at(n0_ - 1, "A", lambda: g.e(f"v_and_b32 v250, 0x3c0, v{vL16}\nv_lshlrev_b32 v250, 1, v250"))
            for i, kt in enumerate(range(k0, 16)):
                def op(kt=kt):
                    if kt % 2 == 0:
                        gcheck(kt)
                        g.e(f"s_add_u32 s{t6}, s{sX}, {kt // 2}\ns_and_b32 s{t6}, s{t6}, 7\ns_lshl_b32 s{t6}, s{t6}, 14\ns_add_u32 s{t6}, s{t6}, s{sKV}")
                    g.ld("v251", 250, sWS, t6, (kt % 2) * 2048, tag="pf", w=1)
                at(n0_ + i * stp, "A", op)

        def w13base():
            g.e(f"s_mul_i32 s{t11 - 1}, s{sHP}, 229376\ns_add_u32 s{t11 - 1}, s{t11 - 1}, {W13}")
        if layer == 0:
            n = cfg.rl0
            if cfg.rl_in_b:
                def rl_bar():
                    g.vwait("rl")
                    g.e("s_barrier")
                n = spread(g.relayout_dma_ops(), cfg.rl0, 3, "ABC") + cfg.rl_lat
                at(n - 1, "C", rl_bar)
            if cfg.cold_touch:
                ct = [lambda: g.e(f"v_and_b32 v250, 0x3c0, v{vL16}\nv_lshlrev_b32 v250, 1, v250")]
                xa, sa = g.x_addr(layer, 0, t4, t5)
                groups = [g.touch_ops(xa, t4, 1, 250, 251) + g.touch_ops(sa, t4, 1, 250, 251)]
                if cfg.cold_touch > 1:
                    hh = g.touch_ops(g.h_addr(layer, t4, t5), t4, 4, 250, 251)
                    groups += [hh[:3], hh[3:4], hh[4:5], hh[5:]] if cfg.cold_touch == 3 else [hh[:4], hh[4:]]
                at(cfg.ct0, "A", ct[0])
                for gi, grp in enumerate(groups):
                    spread(grp, cfg.ct0 + 1 + 8 * gi, 3, "ABC")
            at(8, "A", g.xcc_send)
            at(100, "B", g.xcc_load)
            at(105, "B", g.xcc_check)
            for op, gap in g.relayout_out_ops():
                if gap == "X":
                    at(n, "C", op)
                    n += 1
                else:
                    at(n, gap, op)
                    n += gap == "D"

            def rl_sig():
                g.vwait("rlst")
                g.e("s_barrier")
                L = g.label("rls")
                g.e(f"v_mov_b32 v{vt1}, 1\ns_cmp_eq_u32 s{sW}, 0\ns_cbranch_scc0 {L}\ns_mov_b64 exec, 64")
                g.e(f"buffer_store_dword v{vt1}, v{vFl}, {sr(sWS, 4)}, 0 offen sc1\ns_mov_b64 exec, -1\n{L}:")
                g.stamp("R_sig")
            n += 7
            at(n, "A", rl_sig)

            def rl_ld():
                g.e(f"s_mov_b32 s{t10}, {FR}\nv_lshlrev_b32 v248, 3, v{vL16}")
                g.ld(vr(244, 4), 248, sWS, t10, 0, tag="rf")

            def rl_check():
                g.stamp("R_pre")
                g.late_check("rf", f"buffer_load_dwordx4 v[244:247], v248, {sr(sWS, 4)}, s{t10} offen sc1",
                             "v_min_u32 v244, v244, v245\nv_min3_u32 v244, v244, v246, v247\nv_cmp_gt_u32 vcc, 1, v244", cfg.rl_sleep)
                g.stamp("R_chk")
            n += cfg.rl_gap
            at(n, "A", rl_ld)
            n += 5
            at(n, "A", rl_check)
            n0 = n + 1
        else:
            n0 = 10
        at(n0, "A", w13base)

        def costed(ops, nsetup, c):
            return [(op, 0.0) for op in ops[:nsetup]] + [(op, c) for op in ops[nsetup:]]
        pops = costed(g.dma_ops(0, 26, t11 - 1, 0, "w13a", (t8, t9)), 2, 0.5)
        if layer == 0 and cfg.ew_in_b:
            pops += costed(g.ew_ops(0, cfg.ew_in_b, (t8, t9)), 4, 0.25)
        p16 = lambda: g.e(f"v_and_b32 v254, 0x3c0, v{vL16}\nv_lshlrev_b32 v254, 1, v254")
        pops.append((p16, 0.0))
        npf = cfg.pf_w13[layer]
        if npf:
            pa = [f"s_lshr_b32 s{t4}, s{sC}, 4\ns_lshl_b32 s{t4}, s{t4}, 2", f"s_add_u32 s{t4}, s{t4}, s{sW}\ns_mul_i32 s{t4}, s{t4}, {npf * 2048}",
                  f"s_add_u32 s{t4}, s{t4}, s{t11 - 1}\ns_add_u32 s{t4}, s{t4}, {104 * 1024}"]
            pops += costed(g.touch_ops(pa, t4, npf, 254, 255), 3, 2.0)
        pa = [f"s_mul_i32 s{t4}, s{sHP}, 7168\ns_lshl_b32 s{t5}, s{sW}, 11", f"s_add_u32 s{t4}, s{t4}, s{t5}\ns_add_u32 s{t4}, s{t4}, {WX13}"]
        pops += costed(g.touch_ops(pa, t4, 1, 254, 255), 2, 1.0)
        if "B" in cfg.touch:
            xa, sa = g.x_addr(layer, 0, t4, t5)
            oa = [f"s_lshl_b32 s{t4}, s{sX}, 2\ns_add_u32 s{t4}, s{t4}, s{sW}", f"s_lshl_b32 s{t4}, s{t4}, 6\ns_add_u32 s{t4}, s{t4}, s{sC}",
                  f"s_lshl_b32 s{t4}, s{t4}, 10\ns_add_u32 s{t4}, s{t4}, {aO(layer)}"]
            if "H" in cfg.touch:
                pops += costed(g.touch_ops(g.h_addr(layer, t4, t5), t4, 4, 254, 255), 2, 1.75)
            pops += costed(g.touch_ops(xa, t4, 1, 254, 255), 3, 2.0) + costed(g.touch_ops(sa, t4, 1, 254, 255), 3, 0.3)
            pops += costed(g.touch_ops(oa, t4, 1, 254, 255), 3, 1.0)
            pops += costed(g.touch_ops([f"s_add_u32 s{t4}, s{t4}, 32768"], t4, 1, 254, 255), 1, 1.0)

        cws = [f"s_lshl_b32 s{t8}, s{sCB}, 16\ns_lshl_b32 s{t9}, s{sW}, 14", f"s_add_u32 s{t8}, s{t8}, s{t9}\ns_lshl_b32 s{t9}, s{sNA}, 10",
               f"s_add_u32 s{t8}, s{t8}, s{t9}\ns_add_u32 s{t8}, s{t8}, {WO}", f"s_xor_b32 s{t9}, s{t8}, 1024"]
        cw = []
        for idx in range(16):
            def op(idx=idx):
                i, n_ = divmod(idx, 2)
                if idx and idx % 4 == 0:
                    g.e(f"s_add_u32 s{t8}, s{t8}, 4096\ns_add_u32 s{t9}, s{t9}, 4096")
                g.ld(CW[idx](0, 4), vL16, sWS, (t8, t9)[n_], (i % 2) * 2048, mods=g.cfg.wmods, tag="cw")
            cw.append(op)
        pops += costed([lambda t=t: g.e(t) for t in cws] + cw[:8], 4, 0.25)
        tot = sum(c + 0.05 for _, c in pops)
        span = 3 * (cfg.bg_end - (n0 + 1))
        acc, last = 0.0, -1
        for op, c in pops:
            k = max(int(acc / tot * span), last + 1)
            last = k
            acc += c + 0.05
            at(n0 + 1 + k // 3, "ABC"[k % 3], op)
        assert n0 + 1 + last // 3 < 116, (n0, last)
        spread(cw[8:11], 116, 1, "B")
        spread(cw[11:], 121, 1, "B")

        def red_addr(d):
            g.e(f"s_add_u32 s{t0}, s{sW}, {1 + d}\ns_and_b32 s{t0}, s{t0}, 3")
        def red_addr2(d):
            g.e(f"s_mul_i32 s{t0}, s{t0}, 6\ns_add_u32 s{t0}, s{t0}, {2 * d}")
        def red_addr3(d):
            g.e(f"s_lshl_b32 s{t1}, s{t0}, 11\ns_add_u32 s{t1}, s{t1}, {SBo}\nv_add_u32 v{vt0}, s{t1}, v{vL16}")
            g.e(f"s_lshl_b32 s{t1}, s{t0}, 8\ns_add_u32 s{t1}, s{t1}, {SBl}\nv_add_u32 v{vt2}, s{t1}, v{vL4}")

        def red_wr(j, part):
            b = O + 16 * j
            s_ = j % 2
            if part == 0:
                g.ds(f"ds_write_b128 v{vt0}, {vr(b, 4)} offset:{s_ * 2048}")
            elif part == 1:
                g.ds(f"ds_write_b128 v{vt0}, {vr(b + 4, 4)} offset:{s_ * 2048 + 1024}")
            else:
                g.ds(f"ds_write_b32 v{vt2}, v{b + 8} offset:{s_ * 256}")
        for j in range(6):
            n = 120 + j + 2
            if j % 2 == 0:
                at(n - 1, "A", lambda d=j // 2: red_addr(d))
                at(n - 1, "B", lambda d=j // 2: red_addr2(d))
                at(n - 1, "D", lambda d=j // 2: red_addr3(d))
            at(n, "A", lambda j=j: red_wr(j, 0))
            at(n, "B", lambda j=j: red_wr(j, 1))
            at(n, "C", lambda j=j: red_wr(j, 2))

        def run(n, gap):
            for fn in gaps.pop((n, gap), []):
                fn()

        def qk(n):
            kt, j = divmod(n, 8)
            g.e(f"v_mfma_f32_32x32x16_bf16 {vr(S + 16 * (n % 2), 16)}, {vr(KV + 12 * (kt % 3), 4)}, {vr(Q + 4 * j, 4)}, 0")

        def pv(n, half):
            kt, j = divmod(n, 8)
            g.e(f"v_smfmac_f32_32x32x32_bf16 {vr(O + 16 * j, 16)}, {vr(KV + 12 * (kt % 3) + 4 + 4 * half, 4)}, {vr(S + 16 * (n % 2) + 8 * half, 8)}, v{vIdx}")

        g.vwait(("Q", 0))
        qk(0)
        for n in range(128):
            sb = S + 16 * (n % 2)
            ex = [f"v_exp_f32 v{sb + i}, v{sb + i}" for i in range(16)]
            g.e("\n".join(ex[0:2]))
            if n:
                pv(n - 1, 1)
            run(n, "A")
            g.e("\n".join(ex[2:5]))
            if n < 127:
                qk(n + 1)
            run(n, "B")
            g.e("\n".join(ex[5:10]))
            pv(n, 0)
            run(n, "C")
            g.e("\n".join(ex[10:16]))
            run(n, "D")
            if n % 8 == 7:
                g.stamp(f"B{layer}_{n // 8}")
        assert not gaps, gaps.keys()
        g.vwait("w13a")
        g.lwait0()
        pv(127, 1)
        g.e("s_barrier")
        g.e(f"""
        s_mul_i32 s{t0}, s{sW}, 6
        s_lshl_b32 s{t1}, s{t0}, 11
        s_add_u32 s{t1}, s{t1}, {SBo}
        v_add_u32 v{vt0}, s{t1}, v{vL16}
        s_lshl_b32 s{t1}, s{t0}, 8
        s_add_u32 s{t1}, s{t1}, {SBl}
        v_add_u32 v{vt2}, s{t1}, v{vL4}
        """)
        PB = 16
        for s_ in range(2):
            for d in range(3):
                b = PB + 10 * (3 * s_ + d)
                g.ds(f"ds_read_b128 {vr(b, 4)}, v{vt0} offset:{(2 * d + s_) * 2048}", ("p", s_))
                g.ds(f"ds_read_b128 {vr(b + 4, 4)}, v{vt0} offset:{(2 * d + s_) * 2048 + 1024}", ("p", s_))
                g.ds(f"ds_read_b32 v{b + 8}, v{vt2} offset:{(2 * d + s_) * 256}", ("p", s_))
            if s_ == 0:
                g.e(f"""
                s_lshl_b32 s{t0}, s{sX}, 3
                s_lshl_b32 s{t1}, s{sW}, 1
                s_add_u32 s{t0}, s{t0}, s{t1}
                s_lshl_b32 s{t0}, s{t0}, 5
                s_add_u32 s{t0}, s{t0}, s{sC}
                s_lshl_b32 s{t0}, s{t0}, 10
                s_add_u32 s{t0}, s{t0}, {aO(layer)}
                s_add_u32 s{t1}, s{t0}, 32768
                """)
        for s_ in range(2):
            ob = O + 16 * (6 + s_)
            g.lwait(("p", s_))
            for d in range(3):
                b = PB + 10 * (3 * s_ + d)
                g.e(f"v_add_f32 v{ob + 8}, v{ob + 8}, v{b + 8}")
                for i in range(0, 8, 2):
                    g.e(f"v_pk_add_f32 {vr(ob + i, 2)}, {vr(ob + i, 2)}, {vr(b + i, 2)}")
        g.softmax_guard(layer, O + 96, O + 112)
        for s_ in range(2):
            ob = O + 16 * (6 + s_)
            g.e(f"v_rcp_f32 v{ob + 10}, v{ob + 8}\ns_nop 0")
            for i in range(0, 8, 2):
                g.e(f"v_pk_mul_f32 {vr(ob + i, 2)}, {vr(ob + i, 2)}, {vr(ob + 10, 2)} op_sel_hi:[1,0]")
            for i in range(4):
                g.e(f"v_cvt_pk_bf16_f32 v{ob + 12 + i}, v{ob + 2 * i}, v{ob + 2 * i + 1}")
            g.st(vr(ob + 12, 4), vL16, sWS, (t0, t1)[s_], 0, tag="ost")
        g.stamp(f"B{layer}st")
        self.CW = CW

    def softmax_guard(self, layer, o0, o1):
        g = self
        Q, S, KV, vV = 144, 176, 208, 252
        M, T = 16, 18
        ls, lj, l1, l2 = g.label("fb"), g.label("fbj"), g.label("fb1"), g.label("fb2")
        for k, o in enumerate((o0, o1)):
            g.e(f"v_maximum3_f32 v{T + k}, abs(v{o}), abs(v{o + 1}), abs(v{o + 2})")
            g.e(f"v_maximum3_f32 v{T + k}, abs(v{o + 3}), abs(v{o + 4}), v{T + k}")
            g.e(f"v_maximum3_f32 v{T + k}, abs(v{o + 5}), abs(v{o + 6}), v{T + k}")
        g.e(f"""
        v_maximum3_f32 v{T}, abs(v{o0 + 7}), abs(v{o1 + 7}), v{T}
        v_minimum3_f32 v{M}, v{o0 + 8}, v{o1 + 8}, v{o1 + 8}
        v_maximum3_f32 v{M + 1}, v{o0 + 8}, v{o1 + 8}, v{o1 + 8}
        v_maximum3_f32 v{T}, v{T}, v{T + 1}, v{T + 1}
        s_mov_b32 s{t2}, {f2u(2.0 ** -64):#x}
        s_mov_b32 s{t3}, {f2u(2.0 ** 120):#x}
        s_mov_b32 s{t4}, 0x7f7fffff
        v_cmp_nle_f32 vcc, s{t2}, v{M}
        v_cmp_nge_f32 s[{t6}:{t7}], s{t3}, v{M + 1}
        v_cmp_nge_f32 s[{t8}:{t9}], s{t4}, v{T}
        s_nop 0
        s_or_b64 vcc, vcc, s[{t6}:{t7}]
        s_or_b64 vcc, vcc, s[{t8}:{t9}]
        s_cbranch_{'scc0' if g.cfg.force_fallback else 'scc1'} {ls}
        {lj}:
        """)
        fb = [f"{ls}:", f"s_lshl_b32 s{t2}, s{sC}, 17", f"s_add_u32 s{t2}, s{t2}, {aKV(layer)}", f"s_mov_b32 s{t3}, s{t2}",
              f"s_add_u32 s{t4}, s{t2}, 0x20000", f"v_mov_b32 v{M}, 0xff800000", f"v_mov_b32 v{M + 1}, 0xff800000", f"{l1}:",
              f"buffer_load_dwordx4 {vr(KV, 4)}, v{vL16}, {sr(sWS, 4)}, s{t3} offen sc1", "s_waitcnt vmcnt(0)"]
        for k in range(2):
            fb.append(f"v_mfma_f32_32x32x16_bf16 {vr(S + 16 * k, 16)}, {vr(KV, 4)}, {vr(Q + 24 + 4 * k, 4)}, 0")
        fb.append("s_nop 15")
        for k in range(2):
            for i in range(0, 16, 2):
                fb.append(f"v_max3_f32 v{M + k}, v{S + 16 * k + i}, v{S + 16 * k + i + 1}, v{M + k}")
        fb += [f"s_add_u32 s{t3}, s{t3}, 2048", f"s_cmp_lt_u32 s{t3}, s{t4}", f"s_cbranch_scc1 {l1}"]
        for k in range(2):
            fb += [f"v_mov_b32 v{T}, v{M + k}", "s_nop 1", f"v_permlane32_swap_b32 v{M + k}, v{T}", f"v_max_f32 v{M + k}, v{M + k}, v{T}"]
        for o in (o0, o1):
            fb += [f"v_mov_b32 v{o + r}, 0" for r in range(16)]
        fb += [f"s_mov_b32 s{t3}, s{t2}", f"{l2}:",
               f"buffer_load_dwordx4 {vr(KV, 4)}, v{vL16}, {sr(sWS, 4)}, s{t3} offen sc1",
               f"s_mov_b64 exec, s[{sVM}:{sVM + 1}]",
               f"buffer_load_dwordx4 {vr(KV + 4, 4)}, v{vV}, {sr(sWS, 4)}, s{t3} offen offset:1024 sc1",
               f"buffer_load_dwordx4 {vr(KV + 8, 4)}, v{vV}, {sr(sWS, 4)}, s{t3} offen offset:1536 sc1",
               "s_mov_b64 exec, -1", "s_waitcnt vmcnt(0)"]
        for k in range(2):
            fb.append(f"v_mfma_f32_32x32x16_bf16 {vr(S + 16 * k, 16)}, {vr(KV, 4)}, {vr(Q + 24 + 4 * k, 4)}, 0")
        fb.append("s_nop 15")
        for k in range(2):
            fb += [f"v_sub_f32 v{S + 16 * k + i}, v{S + 16 * k + i}, v{M + k}" for i in range(16)]
            fb += [f"v_exp_f32 v{S + 16 * k + i}, v{S + 16 * k + i}" for i in range(16)]
        fb.append("s_nop 1")
        for k, o in enumerate((o0, o1)):
            for h in range(2):
                fb.append(f"v_smfmac_f32_32x32x32_bf16 {vr(o, 16)}, {vr(KV + 4 + 4 * h, 4)}, {vr(S + 16 * k + 8 * h, 8)}, v{vIdx}")
        fb += [f"s_add_u32 s{t3}, s{t3}, 2048", f"s_cmp_lt_u32 s{t3}, s{t4}", "s_nop 7", f"s_cbranch_scc1 {l2}", "s_nop 15", f"s_branch {lj}"]
        g.tail.append("\n".join(fb))

    def reduce_write(self, acc, d, base):
        g = self
        ops = []

        def addr():
            g.e(f"s_xor_b32 s{t6}, s{sW}, {d}\ns_mul_i32 s{t6}, s{t6}, 12288")
        def addr2():
            g.e(f"s_add_u32 s{t6}, s{t6}, {base + (d - 1) * 4096}\nv_add_u32 v{vt0}, s{t6}, v{vL16}")
        ops += [addr, addr2]
        for q in range(4):
            ops.append(lambda q=q: g.ds(f"ds_write_b128 v{vt0}, {vr(acc + 4 * q, 4)} offset:{q * 1024}"))
        return ops

    def reduce_pre(self, layer, which, base, Z, final):
        g = self
        g.e(f"s_mul_i32 s{t6}, s{sW}, 12288\ns_add_u32 s{t6}, s{t6}, {base}\nv_add_u32 v{vt2}, s{t6}, v{vL16}")
        for i in range(8):
            g.e(f"v_lshlrev_b32 v{Z + 2 * i}, 16, v{vRes + i}\nv_and_b32 v{Z + 2 * i + 1}, s{sMask}, v{vRes + i}")
        g.e(f"s_lshl_b32 s{t0}, s{sCB}, 1\ns_add_u32 s{t0}, s{t0}, s{sNA}")
        if final:
            g.srd(sOUT, pOUT, 2048 * 1024)
            g.e(f"""
            v_lshrrev_b32 v{vt1}, 4, v{vL16}
            v_and_b32 v{vt3}, 31, v{vt1}
            v_lshrrev_b32 v{vt1}, 5, v{vt1}
            v_lshlrev_b32 v{vt3}, 10, v{vt3}
            v_lshl_add_u32 v{vt3}, v{vt1}, 4, v{vt3}
            s_lshl_b32 s{t7}, s{sTA}, 15
            s_lshl_b32 s{t8}, s{t0}, 6
            s_add_u32 s{t7}, s{t7}, s{t8}
            """)
        else:
            g.e(f"""
            v_mov_b32 v{vt3}, 0x3f803f80
            s_lshl_b32 s{t7}, s{sTA}, 15
            s_lshl_b32 s{t8}, s{t0}, 11
            s_add_u32 s{t7}, s{t7}, s{t8}
            s_add_u32 s{t7}, s{t7}, {aX(layer, which)}
            s_lshl_b32 s{t8}, s{sTA}, 12
            s_lshr_b32 s{t9}, s{t0}, 2
            s_lshl_b32 s{t9}, s{t9}, 10
            s_add_u32 s{t8}, s{t8}, s{t9}
            s_and_b32 s{t9}, s{t0}, 3
            s_lshl_b32 s{t9}, s{t9}, 2
            s_add_u32 s{t8}, s{t8}, s{t9}
            s_add_u32 s{t8}, s{t8}, {aST(layer, which)}
            """)

    def reduce_read_ops(self, ds_, PB, Z):
        g = self
        ops = []

        def bar():
            g.lwait0()
            g.e("s_barrier")
        ops.append(bar)
        for k, d in enumerate(ds_):
            for q in range(4):
                ops.append(lambda k=k, d=d, q=q: g.ds(
                    f"ds_read_b128 {vr(PB + 16 * k + 4 * q, 4)}, v{vt2} offset:{(d - 1) * 4096 + q * 1024}", ("p", d, q)))
        for k, d in enumerate(ds_):
            for q in range(4):
                def add(k=k, d=d, q=q):
                    g.lwait(("p", d, q))
                    for i in range(4 * q, 4 * q + 4):
                        g.e(f"v_add_f32 v{Z + i}, v{Z + i}, v{PB + 16 * k + i}")
                ops.append(add)
        return ops

    def reduce_finish(self, layer, which, acc, Z, final):
        g = self
        g.stamp(f"{'CE'[which]}{layer}_r0")
        for h in range(2):
            for i in range(8 * h, 8 * h + 8, 2):
                g.e(f"v_pk_add_f32 {vr(acc + i, 2)}, {vr(acc + i, 2)}, {vr(Z + i, 2)}")
            for i in range(4 * h, 4 * h + 4):
                g.e(f"v_cvt_pk_bf16_f32 v{vRes + i}, v{acc + 2 * i}, v{acc + 2 * i + 1}")
            if final:
                g.st(vr(vRes + 4 * h, 4), vt3, sOUT, t7, 32 * h, g.cfg.out_mods)
            else:
                g.st(vr(vRes + 4 * h, 4), vL16, sWS, t7, 1024 * h)
        if final:
            return
        for i in range(4):
            g.e(f"v_mov_b32 v{Z + i}, 0")
        for i in range(8):
            g.e(f"v_dot2c_f32_bf16 v{Z + i % 2}, v{vRes + i}, v{vt3}")
            g.e(f"v_dot2c_f32_bf16 v{Z + 2 + i % 2}, v{vRes + i}, v{vRes + i}")
        g.e(f"s_nop 1\nv_add_f32 v{Z}, v{Z}, v{Z + 1}\nv_add_f32 v{Z + 2}, v{Z + 2}, v{Z + 3}\ns_nop 1")
        g.e(f"v_permlane32_swap_b32 v{Z}, v{Z + 2}\nv_add_f32 v{Z}, v{Z}, v{Z + 2}")
        g.dual(g.st_text(vr(Z), vL16, sWS, t8, 0, "", 1), g.st_text(vr(Z), vL16, sWS, t8, 0, "sc1", 1), 1)
        g.vmq[-1] = "stst"

    def splitk_body(self, nks, wreg, hreg, ldh, nup, AC, PB, Z, SC, SK, name, extra=(), after=()):
        g = self
        nxt = [nup]
        after = deque(after)
        for m in range(nup):
            ldh(m)

        def more():
            if nxt[0] < 2 * nks and nxt[0] - self.ring < self.consumed:
                ldh(nxt[0])
                nxt[0] += 1
            elif nxt[0] == 2 * nks and after:
                after.popleft()()

        def mf(tk, n, i):
            m = i if tk else nks + i
            acc = AC[2 * tk + n]
            c = vr(acc, 16) if i else "0"
            g.e(f"v_mfma_f32_32x32x16_bf16 {vr(acc, 16)}, {wreg(2 * i + n)}, {hreg(m)}, {c}")
        side = deque()

        def pop(k=1):
            for _ in range(k):
                if side:
                    o = side.popleft()
                    if o:
                        o()
        self.consumed = 0
        for i in range(nks):
            g.vwait(("h", i))
            mf(1, 1, i)
            mf(1, 0, i)
            self.consumed = i + 1
            more()
            if i % 8 == 7:
                g.stamp(f"{name}_{i}")
        w3 = g.reduce_write(AC[3], 3, SC)
        w2 = g.reduce_write(AC[2], 2, SC)
        w1 = g.reduce_write(AC[1], 1, SC)
        side.extend(w3[:2] + [None] * 2 + w3[2:] + w2)
        early = nks >= 16 or g.cfg.early_c
        if early:
            side.extend([None] * 2 + g.reduce_read_ops((3, 2), PB, Z))
        side.extend(extra)
        per = 1 if nks >= 16 else (4 if early else 2)
        for i in range(nks + SK):
            if i < nks:
                g.vwait(("h", nks + i))
                mf(0, 1, i)
                more()
                pop(per)
            if i == nks:
                pop(len(side))
                side.extend(w1[:2] + [None] * 3 + w1[2:])
                side.extend(g.reduce_read_ops((1,) if early else (3, 2, 1), PB, Z))
                per = -(-len(side) // SK)
            if i >= SK:
                mf(0, 0, i - SK)
                pop(per)
            if i % 8 == 7:
                g.stamp(f"{name}_a{i}")
        pop(len(side))
        while after:
            after.popleft()()

    def phaseC(self, layer):
        g = self
        CW = g.CW
        OF = 144
        AC = [16, 32, 48, 64]
        PB, Z = 80, 128
        SC = 104 * 1024
        g.e(f"""
        v_and_b32 v{vt0}, 28, v{vL4}
        s_lshl_b32 s{t2}, s{sX}, 2
        s_lshr_b32 s{t3}, s{sC}, 3
        s_add_u32 s{t2}, s{t2}, s{t3}
        s_lshl_b32 s{t2}, s{t2}, 2
        s_add_u32 s{t2}, s{t2}, s{sW}
        s_lshl_b32 s{t2}, s{t2}, 7
        s_add_u32 s{t2}, s{t2}, {FB}
        s_lshl_b32 s{t3}, s{sTB}, 15
        s_lshl_b32 s{t4}, s{sW}, 13
        s_add_u32 s{t3}, s{t3}, s{t4}
        s_add_u32 s{t3}, s{t3}, {aO(layer)}
        s_xor_b32 s{t4}, s{t3}, 32768
        """)
        g.vwait("ost")
        g.signal(2, layer + 1, True)
        g.e("s_barrier")
        g.reduce_pre(layer, 0, SC, Z, False)
        g.poll(vt0, t2, layer + 1, True)
        g.stamp(f"C{layer}go")

        def ldo(m):
            tk, i = (1, m) if m < 8 else (0, m - 8)
            so = t3 if tk else t4
            if i == 4:
                g.e(f"s_add_u32 s{so}, s{so}, 4096")
            g.ld(vr(OF + 4 * m, 4), vL16, sWS, so, (i % 4) * 1024, tag=("h", m))
        self.ring = 16
        after = []
        if "C" in g.cfg.touch:
            after = [lambda: g.e(f"v_and_b32 v{vt1}, 0x3c0, v{vL16}\nv_lshlrev_b32 v{vt1}, 1, v{vt1}")]
            after += g.touch_ops(g.h_addr(layer, t9, t10), t9, 4, vt1, vIdx)
        g.splitk_body(8, lambda i: CW[i](0, 4), lambda m: vr(OF + 4 * m, 4), ldo, g.cfg.up_c, AC, PB, Z, SC, 8, f"C{layer}", after=after)
        g.reduce_finish(layer, 0, AC[0], Z, False)
        g.stamp(f"C{layer}st")

    def phaseD(self, layer):
        g = self
        cfg = g.cfg
        assert cfg.passes == [(0, 4), (4, 6), (6, 7)]
        X = 16
        ACC = [144 + 16 * i for i in range(6)] + [144]
        vB = [vL16, 240, 241]
        kexp, cden = 242, 243
        ET = 244
        BX = 248
        AX = g.D_AX
        SB = 224
        g.e(f"v_and_b32 v{vt0}, 60, v{vL4}\ns_lshl_b32 s{t2}, s{sT}, 7\ns_add_u32 s{t2}, s{t2}, {FC}")
        g.e(f"v_add_u32 v{vB[1]}, 0x10000, v{vL16}\nv_add_u32 v{vB[2]}, 0x20000, v{vL16}")
        g.e(f"s_mul_i32 s{t11}, s{sHP}, 229376\ns_add_u32 s{t11}, s{t11}, {W13}")
        g.e(f"s_mul_i32 s{t3}, s{sHP}, 7168\ns_mul_i32 s6, s{sT}, {112 * 1024}\ns_add_u32 s6, s6, s{t3}\ns_add_u32 s6, s6, {aH(layer)}\ns_add_u32 s7, s6, 4096")
        g.e(f"s_add_u32 s{t3}, s{t3}, {WX13}\ns_add_u32 s3, s{t3}, 4096")
        g.vwait("stst")
        g.signal(3, layer + 1, True)
        g.e("s_barrier")

        def wread(f):
            slot = f % 160
            g.ds(f"ds_read_b128 {ar(WB + 4 * (f % 8), 4)}, v{vB[slot // 64]} offset:{(slot % 64) * 1024}", ("w", f))
        LEAD = 7
        for f in range(LEAD):
            wread(f)
        pre, xrest, stl = g.load_x_stats(layer, 0, aX(layer, 0), X, SB, cfg.up_d)
        xrest = deque(xrest)
        g.poll(vt0, t2, layer + 1, True)
        g.stamp(f"D{layer}go")
        pre()
        side = deque()
        mem = deque()
        late = deque()

        def epi_ops(n):
            a = ACC[n]
            ops = []
            for half in range(2):
                r0 = a + 4 * half
                for i in range(4):
                    ops.append(f"v_mul_f32 v{ET + i}, v{kexp}, v{r0 + i}")
                for i in range(4):
                    ops.append(f"v_exp_f32 v{ET + i}, v{ET + i}")
                for i in range(4):
                    ops.append(f"v_mul_f32 v{r0 + i}, v{r0 + i}, v{r0 + 8 + i}")
                for i in range(4):
                    ops.append(f"v_fma_f32 v{ET + i}, v{ET + i}, v{cden}, v{cden}")
                for i in range(4):
                    ops.append(f"v_rcp_f32 v{ET + i}, v{ET + i}")
                for i in range(4):
                    ops.append(f"v_mul_f32 v{r0 + i}, v{r0 + i}, v{ET + i}")
            for i in range(4):
                ops.append(f"v_cvt_pk_bf16_f32 v{a + 8 + i}, v{a + 2 * i}, v{a + 2 * i + 1}")
            ops.append(lambda: g.st(vr(a + 8, 4), vL16, sWS, (6, 7)[n // 4], (n % 4) * 1024, tag="hst" if n == 6 else ("hst", n)))
            return ops

        def xmf(n, first):
            acc = vr(ACC[n], 16)
            g.e(f"v_mfma_f32_32x32x16_bf16 {acc}, {vr(AX[n], 4)}, {vr(BX, 4)}, {'0' if first else acc}")

        def stats_go():
            side.extend([None] * 16 + g.stats_ops(SB, kexp, cden, BX) + ["s_nop 0", f"v_mul_f32 v{kexp}, {f2u(-LOG2E):#x}, v{kexp}"])
        early = deque(stl + [stats_go])
        if "b" not in cfg.dbg:
            mem.extend(g.dma_ops(104, 7, t11, 104 * 1024, "w13b", (t8, t9)))

            def axld(n):
                assert n < 4 or (not side and not early and "stat" not in g.vmq)
                g.ld(vr(AX[n], 4), vL16, sWS, (t3, 3)[n // 4], (n % 4) * 1024, tag="ax")
            mem.extend(lambda n=n: axld(n) for n in range(7))
            mem.extend(g.dma_ops(132, 7, t11, 132 * 1024, "w13b2", (t8, t9)))
        if layer == 0 and cfg.ew_in_b < 56:
            late.extend(g.ew_ops(cfg.ew_in_b, 56, (t4, t5)))
        g.e_plan(layer)
        esetup = g.e_setup(layer)
        f = 0
        for pi, (a, b) in enumerate(cfg.passes):
            wdt = b - a
            nm = 32 * wdt
            tot = sum(0 if isinstance(o, tuple) else (2 if isinstance(o, str) and o.startswith(("v_exp", "v_rcp")) else 1) for o in side)
            done = 0
            for ks in range(32):
                for n in range(a, b):
                    if pi == 0 and n == a and "x" not in cfg.dbg:
                        g.vwait(("x", ks))
                    if f % 4 == 0:
                        g.lwait(("w", min(f + 3, 223)))
                    c = vr(ACC[n], 16) if ks or pi else "0"
                    g.e(f"v_mfma_f32_32x32x16_bf16 {vr(ACC[n], 16)}, {ar(WB + 4 * (f % 8), 4)}, {vr(X + 4 * ks, 4)}, {c}")
                    fn = f + LEAD
                    if fn == 104:
                        assert "b" in cfg.dbg or g.vmq.count("w13b") + self.waited.get("w13b", 0) == 7 * (layer + 1)
                        g.vwait("w13b")
                        if "B" not in cfg.dbg:
                            g.e("s_barrier")
                    if fn == cfg.bar_c:
                        if fn != 104:
                            g.e("s_barrier")
                        late.extendleft(reversed(g.dma_ops(160, 16, t11, 0, "w13c", (t6, t7))))
                    if fn == 132:
                        assert "b" in cfg.dbg or g.vmq.count("w13b2") + self.waited.get("w13b2", 0) == 7 * (layer + 1)
                        g.vwait("w13b2")
                        g.e("s_barrier")
                    if fn == 160:
                        assert g.vmq.count("w13c") + self.waited.get("w13c", 0) == 16 * (layer + 1)
                        g.vwait("w13c")
                        if "B" not in cfg.dbg:
                            g.lwait0()
                            g.e("s_barrier")
                        if layer == 0:
                            def wqb():
                                g.e(f"s_mul_i32 s{t10}, s{sHP}, {96 * 1024}\ns_add_u32 s{t10}, s{t10}, {WQ}")
                            late.append(wqb)
                            late.extend(g.dma_ops(0, 24, t10, 65536, "wq", (t8, t9)))
                    if fn < 224:
                        wread(fn)
                    m = ks * wdt + (n - a) + 1
                    if pi == 0:
                        g.take(side, 2)
                    else:
                        want = 0 if m <= 2 else min(-(-tot * m // nm) - done, 6)
                        g.take(side, want)
                        done += want
                    if f % 2 == 0:
                        if pi == 0 and early and ks >= cfg.st_d and f % 4 == 2:
                            early.popleft()()
                        elif xrest and (f % 4 == 0 or cfg.x2_d):
                            xrest.popleft()()
                        elif mem and (not xrest or f % 4 == 2):
                            mem.popleft()()
                        elif late:
                            late.popleft()()
                    if f == cfg.d_sig:
                        g.vwait(("hst", cfg.ne - 1))
                        g.signal(4, 2 * layer + 1, True)
                    if cfg.d_sig < f <= cfg.d_sig + len(esetup):
                        g.e(esetup[f - cfg.d_sig - 1])
                    if f == cfg.d_pl:
                        g.flag_load("fd1")
                    if f == cfg.d_ck:
                        g.flag_check("fd1", 2 * layer + 1)
                        g.stamp(f"D{layer}_chk")
                    if f >= cfg.d_ck:
                        for _ in range(cfg.d_nl):
                            if g.e_next < cfg.e_pre:
                                g.e_load()
                    f += 1
                    if f % 32 == 0:
                        g.stamp(f"D{layer}_{f}")
            g.take(side, 9999)
            if pi == 0:
                g.vwait("ax")
                for n in range(4):
                    xmf(n, False)
                xmf(4, True)
                xmf(5, True)
            if pi == 1:
                xmf(6, True)
            for n in range(a, b):
                side.extend(epi_ops(n))
        g.e("s_barrier")
        assert not mem
        while late:
            late.popleft()()
        g.stamp(f"D{layer}st")
        return side

    E_HR, E_NR = 16, 32

    def e_plan(self, layer):
        NE = self.cfg.ne
        ea = [7 * f + n for f in range(4) for n in range(NE)]
        la = [7 * f + n for f in range(4) for n in range(NE, 7)]
        self.e_seq = [(1, i) for i in ea] + [(0, i) for i in ea] + [(1, i) for i in la] + [(0, i) for i in la]
        self.e_nearly = 2 * len(ea)
        self.e_next = 0
        self.e_base = None

    def e_setup(self, layer):
        return [f"v_and_b32 v{vt0}, 28, v{vL4}",
                f"s_lshr_b32 s{t2}, s{sTA}, 1\ns_lshl_b32 s{t2}, s{t2}, 2", f"s_add_u32 s{t2}, s{t2}, s{sW}\ns_lshl_b32 s{t2}, s{t2}, 7",
                f"s_add_u32 s{t2}, s{t2}, {FD}\ns_mul_i32 s{t5}, s{sW}, {28 * 1024}", f"s_add_u32 s{t5}, s{t5}, {aH(layer)}\ns_mul_i32 s{t3}, s{sTB}, {112 * 1024}",
                f"s_add_u32 s{t3}, s{t3}, s{t5}\ns_mul_i32 s{t4}, s{sTA}, {112 * 1024}", f"s_add_u32 s{t4}, s{t4}, s{t5}"]

    def e_load(self):
        g = self
        m = g.e_next
        tk, i = g.e_seq[m]
        key = (tk, i // 7, (i % 7) // 4)
        if g.e_base != key:
            g.e(f"s_add_u32 s{t5}, s{(t4, t3)[tk]}, {(i // 7) * 7168 + ((i % 7) // 4) * 4096}")
            g.e_base = key
        g.ld(vr(g.E_HR + 4 * (m % g.E_NR), 4), vL16, sWS, t5, ((i % 7) % 4) * 1024, tag=("h", m))
        g.e_next += 1

    def flag_load(self, tag):
        self.ld(vr(vt1), vt0, sWS, t2, 0, tag=tag, w=1)

    def flag_check(self, tag, val):
        g = self
        g.late_check(tag, f"buffer_load_dword v{vt1}, v{vt0}, {sr(sWS, 4)}, s{t2} offen sc1", f"v_cmp_gt_u32 vcc, {val}, v{vt1}", 0)
        g.dual("", "buffer_inv sc1\ns_waitcnt vmcnt(0)", 0)

    def phaseE(self, layer, final, side):
        g = self
        cfg = g.cfg
        HR, NR = g.E_HR, g.E_NR
        PB, Z = 144, 176
        AC = [240, 224, 208, 192]
        SC = 0
        seq, nearly = g.e_seq, g.e_nearly
        N = len(seq)
        seen = set()
        consumed = [0]

        def more(k=1):
            for _ in range(k):
                if g.e_next < N and g.e_next - NR < consumed[0] and (g.e_next < nearly or state["ok"]):
                    g.e_load()

        def mf(m, n):
            tk, i = seq[m]
            acc = vr(AC[2 * tk + n], 16)
            g.e(f"v_mfma_f32_32x32x16_bf16 {acc}, {ar(4 * (2 * i + n), 4)}, {vr(HR + 4 * (m % NR), 4)}, {acc if (tk, n) in seen else '0'}")
            seen.add((tk, n))
        state = {"ok": False, "st": None}
        nB = N - (N - nearly) // 2
        w3 = g.reduce_write(AC[3], 3, SC)
        w2 = g.reduce_write(AC[2], 2, SC)
        w1 = g.reduce_write(AC[1], 1, SC)
        for m in range(nB):
            assert g.e_next > m
            g.vwait(("h", m))
            for n in (1, 0):
                mf(m, n)
                g.take(side, 5)
            consumed[0] = m + 1
            if state["st"] is None:
                if not side:
                    state["st"] = m
                else:
                    more(2 if g.e_next - m < cfg.e_pre else 1)
            if state["st"] is not None:
                d = m - state["st"]
                if d == cfg.e_sig:
                    g.vwait("hst")
                    g.signal(4, 2 * layer + 2, True)
                    g.stamp(f"E{layer}_sig")
                if d == cfg.e_sig + 1:
                    g.reduce_pre(layer, 1, SC, Z, final)
                if d == cfg.e_sig + cfg.e_pl:
                    g.flag_load("fd2")
                if d == cfg.e_sig + cfg.e_pl + cfg.e_ck:
                    g.flag_check("fd2", 2 * layer + 2)
                    g.stamp(f"E{layer}_chk")
                    state["ok"] = True
                more(2 if g.e_next - m < cfg.up_e else 1)
        assert state["ok"]
        side.extend(w3[:2] + [None] * 2 + w3[2:] + w2 + [None] + g.reduce_read_ops((3, 2), PB, Z))
        nA, SK = N - nB, cfg.sk_e
        per = -(-len(side) // (nA + max(nA - SK, 0)))
        for i in range(nA + SK):
            if i < nA:
                g.vwait(("h", nB + i))
                mf(nB + i, 1)
                more()
                g.take(side, per)
            if i == nA:
                g.take(side, 999)
                side.extend(w1[:2] + [None] * 3 + w1[2:] + g.reduce_read_ops((1,), PB, Z))
                per = -(-len(side) // SK)
            if i >= SK:
                mf(nB + i - SK, 0)
                g.take(side, per)
        g.take(side, 999)
        g.reduce_finish(layer, 1, AC[0], Z, final)
        g.stamp(f"E{layer}st")
        if not final:
            g.vwait0()
            g.signal(5, layer + 1, True)

    def build(self):
        g = self
        cfg = g.cfg
        g.prologue()
        done = False
        for layer in range(2):
            for ph in "ABCDE":
                if ph == "A":
                    g.phaseA1(layer) if layer else g.phaseA0()
                elif ph == "B":
                    g.phaseB(layer)
                elif ph == "C":
                    g.phaseC(layer)
                elif ph == "D":
                    rest = g.phaseD(layer)
                else:
                    g.phaseE(layer, layer == 1, rest)
                if cfg.stop == f"{ph}{layer}":
                    done = True
                    break
            if done:
                break
        if cfg.ts:
            g.vwait0()
            g.stamp("end") if g.nts < 16 else None
            g.e(f"s_lshl_b32 s{t0}, s2, 2\ns_add_u32 s{t0}, s{t0}, s{sW}\ns_lshl_b32 s{t0}, s{t0}, 7\ns_add_u32 s{t0}, s{t0}, {TS}")
            g.e(f"v_mov_b32 v{vt0}, 0")
            for i in range(g.nts):
                g.e(f"v_writelane_b32 v{vt0}, s{sTS + i}, {i}")
            g.e(f"v_writelane_b32 v{vt0}, s{sMode}, 31")
            g.e("s_mov_b32 exec_hi, 0")
            g.st(vr(vt0), vL4, sWS, t0, 0, w=1)
            if cfg.ts_dbg is not None:
                g.e(f"s_cmp_eq_u32 s2, {cfg.ts_dbg}\ns_cbranch_scc0 L_exit\ns_cmp_eq_u32 s{sW}, 0\ns_cbranch_scc0 L_exit")
                g.e(f"v_subrev_u32 v{vt0}, s{sTS}, v{vt0}")
                g.st(vr(vt0), vL4, sDBG, None, 0, w=1)
        g.e("L_exit:\ns_endpgm")
        for t in g.tail:
            g.e(t)
        g.e("L_end:")
        lines, rep = fix_hazards(g.lines)
        return lines, rep


HEADER = """; Fused two-layer transformer block (LN+QKV, attention, WO, LN+W1/W3+SwiGLU, W2), one persistent launch.
; @launch grid=(256,1,1) block=(256,1,1) lds=163840
.amdgcn_target "amdgcn-amd-amdhsa--gfx950"
.text
.globl {name}_kernel
.p2align 8
.type {name}_kernel,@function
{name}_kernel:
"""
FOOTER = """
.section .rodata,"a"
.p2align 6
.amdhsa_kernel {name}_kernel
  .amdhsa_next_free_vgpr 512
  .amdhsa_next_free_sgpr 102
  .amdhsa_accum_offset 256
  .amdhsa_group_segment_fixed_size 0
  .amdhsa_kernarg_size 80
  .amdhsa_user_sgpr_count 2
  .amdhsa_user_sgpr_kernarg_segment_ptr 1
  .amdhsa_system_sgpr_workgroup_id_x 1
  .amdhsa_float_denorm_mode_32 3
.end_amdhsa_kernel
"""


def generate(path, **kw):
    cfg = Cfg()
    for k, v in kw.items():
        setattr(cfg, k, v)
    set_alias(cfg.alias)
    g = Gen(cfg)
    lines, rep = g.build()
    txt = HEADER.format(name=NAME) + "\n".join(("" if l.endswith(":") else "  ") + l for l in lines) + FOOTER.format(name=NAME)
    open(path, "w").write(txt)
    return g, rep


if __name__ == "__main__":
    import argparse
    ap = argparse.ArgumentParser()
    ap.add_argument("-o", default=f"cdna_kernels/{NAME}.s")
    ap.add_argument("--stop")
    ap.add_argument("--ts", action="store_true")
    ap.add_argument("--slow", action="store_true")
    ap.add_argument("-v", action="store_true")
    a = ap.parse_args()
    g, rep = generate(a.o, stop=a.stop, ts=a.ts, force_slow=a.slow)
    print("lines", len(g.lines), "nops inserted", len(rep), "stamps", g.tsnames)
    if a.v:
        for r in rep:
            print(r)
```

```python
import os
import sys
from collections import deque

sys.path.insert(0, os.path.dirname(os.path.abspath(__file__)))
from asmlib import Asm, R, ar, fix_hazards, sr, vr

NAME = "interleave_layers__mha_block__glu_gated_swiglu__prompt"

FA_L, FB, FD, FC, FE, FA_G, FR, FX = 0x0000, 0x4000, 0x8000, 0xC000, 0xE000, 0x10000, 0x14000, 0x16000
TS = 0x80000
ST = 0x100000
WQ, WO, W13, W2 = 0x200000, 0x380000, 0x400000, 0x780000
WX13, WXQ, WXD = 0x940000, 0x960000, 0x970000
LB0, LBS = 0xA00000, 0x1400000
oQ, oKV, oO, oX1, oX2, oH = 0x0, 0x200000, 0x600000, 0x800000, 0xA00000, 0xC00000
WS_BYTES = 0x10000000
ALIAS = True


def set_alias(v):
    global ALIAS
    ALIAS = v


def aQ(l):
    return 0xA00000 if ALIAS else LB0 + l * LBS + oQ


def aO(l):
    return 0xA00000 if ALIAS else LB0 + l * LBS + oO


def aX(l, which):
    return 0xC00000 if ALIAS else LB0 + l * LBS + (oX1, oX2)[which]


def aH(l):
    return 0xE00000 if ALIAS else LB0 + l * LBS + oH


def aKV(l):
    return 0x1600000 + l * 0x400000 if ALIAS else LB0 + l * LBS + oKV


def aST(l, which):
    return ST if ALIAS else ST + (2 * l + which) * 0x40000

sWS, sXIN, sOUT, sDBG, sWQ, sRA, sRB = 8, 12, 16, 20, 24, 28, 32
sX, sC, sW, sT, sHP, sTA, sTB, sNA, sCB, sMode, sTO, sMask = range(36, 48)
t0, t1, t2, t3, t4, t5, t6, t7, t8, t9, t10, t11 = range(48, 60)
sVM = 60
pX, pWQ, pWO, pBX, pW1, pW3, pW2, pOUT, pDBG, pWS = range(64, 84, 2)
sTS = 84
sSN2 = 100
vL16, vL4, vIdx, vFl = 0, 1, 2, 3
vt0, vt1, vt2, vt3 = 4, 5, 6, 7
vRes = 8
WB = 224

LOG2E = 1.4426950408889634
TIMEOUT = 0x200000


def f2u(x):
    import struct
    return struct.unpack("<I", struct.pack("<f", x))[0]


class SOp:
    def __init__(self, fn):
        self.fn = fn

    def __call__(self):
        self.fn()


class Cfg:
    passes = [(0, 4), (4, 6), (6, 7)]
    stop = None
    ts = False
    ts_skip = ('start', 'C1st', 'E1st', 'A1st', 'C0st')
    ts_only = None
    force_slow = False
    force_fallback = False
    pf_w13 = (0, 4)
    bg_end = 108
    b_tail = True
    gp = (3, 3)
    poll2 = 0
    hack16 = ''
    b_opt = 3
    wb = 0
    keep = None
    b_align = 0
    q_up = 4
    v_split = False
    bg_ac = True
    ne = 4
    d_sig = 196
    d_pl = 206
    d_ck = 214
    d_nl = 1
    e_pre = 10
    e_sig = 6
    e_pl = 5
    e_ck = 5
    spin = None
    ws_off = 0
    kvpf = (None, None)
    warm_w = 9
    rl_in_b = False
    rl_in_a = True
    rl_ack = 7
    spare = (0, 6, 7, 16, 22, 23)
    b0_sleep = 1
    b0_g = True
    g2_late = False
    xcc_early = False
    rl_c0 = 1
    rl_c1 = 4
    setup_first = True
    rl_ld = 18
    cold_touch = 0
    ct0 = 24
    x2_d = True
    bar_c = 76
    d_cap = 5
    alias = True
    touch = 'BHA'
    tb0 = 97
    kvmods = 'sc1'
    ts_dbg = None
    hpx = 0
    wmods = 'sc1'
    early_c = False
    warm = 5
    dbg = ''
    rot = 's_lshr_b32 s{t1}, s{sHP}, 1'
    rl_sleep = 16
    lag_a = 8
    lag_end = True
    x2_a = 0
    st_a = 6
    st_d = 6
    c_pre = True
    c_pk = True
    e_single = False
    e_pk = False
    ax_first = 0
    st_cap = 2
    st_pad = 16
    wq_d = 12
    cpf = 2
    defer = None
    sk_e = 10
    out_mods = ''
    rl0 = 9
    rl_lat = 7
    rl_gap = 20
    up_a = 8
    up_d = 8
    up_e = 10
    up_c = 10
    ew_in_b = 56


class Gen(Asm):
    def __init__(self, cfg):
        super().__init__()
        self.cfg = cfg
        self.nts = 0
        self.m0_owner = None
        self.tsnames = []

    def srd(self, s, ptr, size):
        self.e(f"s_mov_b32 s{s}, s{ptr}\ns_mov_b32 s{s + 1}, s{ptr + 1}\ns_mov_b32 s{s + 2}, {size}\ns_mov_b32 s{s + 3}, 0x20000")

    def ld(self, dst, voff, srd, soff, imm=0, mods="sc1", tag=None, w=4):
        op = {1: "dword", 2: "dwordx2", 4: "dwordx4"}[w]
        so = f"s{soff}" if soff is not None else "0"
        o = f" offset:{imm}" if imm else ""
        self.vm(f"buffer_load_{op} {dst}, v{voff}, {sr(srd, 4)}, {so} offen{o} {mods}".rstrip(), tag)

    def st_text(self, src, voff, srd, soff, imm=0, mods="", w=4):
        op = {1: "dword", 2: "dwordx2", 4: "dwordx4"}[w]
        so = f"s{soff}" if soff is not None else "0"
        o = f" offset:{imm}" if imm else ""
        return f"buffer_store_{op} {src}, v{voff}, {sr(srd, 4)}, {so} offen{o} {mods}".rstrip()

    def st(self, src, voff, srd, soff, imm=0, mods="", tag=None, w=4):
        self.vm(self.st_text(src, voff, srd, soff, imm, mods, w), tag)

    def dma(self, voff, srd, soff, imm=0, mods="sc1", tag=None):
        so = f"s{soff}" if soff is not None else "0"
        o = f" offset:{imm}" if imm else ""
        m = (mods + " lds").strip()
        self.vm(f"buffer_load_dwordx4 v{voff}, {sr(srd, 4)}, {so} offen{o} {m}", tag)

    def stamp(self, name):
        if self.cfg.spin:
            if name == "entry":
                self.e("s_memrealtime s[98:99]\ns_waitcnt lgkmcnt(0)")
            if name == self.cfg.spin[0]:
                L = self.label("spin")
                if len(self.cfg.spin) > 2:
                    self.e(self.cfg.spin[2])
                self.e(f"{L}:\ns_memrealtime s[4:5]\ns_waitcnt lgkmcnt(0)\ns_sub_u32 s4, s4, s98\ns_cmp_lt_u32 s4, {self.cfg.spin[1]}\ns_cbranch_scc1 {L}")
                self.lq = []
        if not self.cfg.ts:
            return
        if self.cfg.ts_only:
            if not name.startswith(self.cfg.ts_only):
                return
        elif name in self.cfg.ts_skip or "_" in name or ":" in name:
            return
        if self.nts >= 16:
            return
        self.e(f"{'s_memtime' if self.cfg.ts == 'cyc' else 's_memrealtime'} s[4:5]\ns_waitcnt lgkmcnt(0)\ns_mov_b32 s{sTS + self.nts}, s4")
        self.lq = []
        self.tsnames.append(name)
        self.nts += 1

    def dual(self, fast, slow, nvm):
        ls, lj = self.label("slow"), self.label("join")
        self.e(f"s_cmp_lg_u32 s{sMode}, 0\ns_cbranch_scc1 {ls}")
        self.e(fast)
        self.e(f"{lj}:")
        self.tail.append(f"{ls}:\n{slow}\ns_branch {lj}")
        self.vmq += [None] * nvm

    def signal(self, ftype, val, local):
        self.e(f"v_mov_b32 v{vt1}, {val}")
        st = f"s_mov_b64 exec, {1 << ftype}\nbuffer_store_dword v{vt1}, v{vFl}, {sr(sWS, 4)}, 0 offen%s\ns_mov_b64 exec, -1"
        if local:
            self.dual(st % "", "buffer_wbl2 sc1\ns_waitcnt vmcnt(0)\n" + st % " sc1", 1)
        else:
            self.e(st % " sc1")
            self.vmq.append(None)

    def poll(self, voff, soff, val, local, sleep=0):
        L = self.label("poll")
        ld = f"buffer_load_dword v%d, v{voff}, {sr(sWS, 4)}, s{soff} offen sc1"
        if self.cfg.poll2 and not sleep:
            Ld = self.label("polld")
            self.e(f"s_mov_b32 s{sTO}, {TIMEOUT}")
            self.e(ld % vt1)
            self.e(f"s_nop {self.cfg.poll2}\n{L}:")
            self.e(ld % vIdx)
            self.e(f"s_sub_u32 s{sTO}, s{sTO}, 1\ns_cbranch_scc1 L_exit\ns_waitcnt vmcnt(1)")
            self.e(f"v_cmp_gt_u32 vcc, {val}, v{vt1}\ns_nop 0\ns_cbranch_vccz {Ld}")
            self.e(ld % vt1)
            self.e("s_waitcnt vmcnt(1)")
            self.e(f"v_cmp_gt_u32 vcc, {val}, v{vIdx}\ns_nop 0\ns_cbranch_vccnz {L}\n{Ld}:")
            for t in self.vmq:
                self.waited[t] = self.waited.get(t, 0) + 1
            self.vmq = [None]
        else:
            self.e(f"s_mov_b32 s{sTO}, {TIMEOUT}\n{L}:")
            self.e(ld % vt1)
            self.e(f"s_sub_u32 s{sTO}, s{sTO}, 1\ns_cbranch_scc1 L_exit")
            if sleep:
                self.e(f"s_sleep {sleep}")
            self.vwait0()
            self.e(f"v_cmp_gt_u32 vcc, {val}, v{vt1}\ns_nop 0\ns_cbranch_vccnz {L}")
        if local:
            self.dual("", "buffer_inv sc1\ns_waitcnt vmcnt(0)", 0)

    def salu(self, text):
        self.e(text)

    def prologue(self):
        g = self
        g.e("s_cmp_ge_u32 s2, 256\ns_cbranch_scc1 L_exit")
        g.stamp("entry")
        g.e("s_load_dwordx16 s[64:79], s[0:1], 0\ns_load_dwordx4 s[80:83], s[0:1], 64")
        g.e(f"v_lshrrev_b32 v{vt0}, 6, v0\nv_and_b32 v{vt1}, 63, v0")
        g.e(f"v_readfirstlane_b32 s{sW}, v{vt0}")
        g.e(f"v_lshlrev_b32 v{vL4}, 2, v{vt1}\nv_lshlrev_b32 v{vL16}, 4, v{vt1}")
        g.e(f"""
        s_and_b32 s{sX}, s2, 7
        s_lshr_b32 s{sC}, s2, 3
        s_and_b32 s{sHP}, s{sC}, 15
        s_xor_b32 s{sHP}, s{sHP}, {g.cfg.hpx}
        s_lshr_b32 s{t0}, s{sC}, 4
        s_lshl_b32 s{t0}, s{t0}, 2
        s_add_u32 s{t0}, s{t0}, s{sW}
        s_lshl_b32 s{t1}, s{sX}, 3
        s_add_u32 s{sT}, s{t1}, s{t0}
        """)
        if g.cfg.cpf == 2:
            g.code_prefetch()

    def prologue2(self):
        g = self
        g.e(f"""
        s_and_b32 s{sCB}, s{sC}, 7
        s_lshr_b32 s{t2}, s{sC}, 3
        s_lshl_b32 s{t2}, s{t2}, 1
        s_lshl_b32 s{t3}, s{sX}, 3
        s_add_u32 s{t2}, s{t2}, s{t3}
        s_lshr_b32 s{t3}, s{sW}, 1
        s_add_u32 s{sTA}, s{t2}, s{t3}
        s_xor_b32 s{sTB}, s{sTA}, 1
        s_and_b32 s{sNA}, s{sW}, 1
        s_mov_b32 s{sMask}, 0xffff0000
        s_mov_b32 s{sVM}, 0x0000ffff
        s_mov_b32 s{sVM + 1}, 0x0000ffff
        s_mov_b32 s{sMode}, 1
        s_and_b32 s{t2}, s{sT}, 7
        """)
        g.e(f"v_mov_b32 v{vFl}, 0")
        g.e(f"""
        s_lshl_b32 s{t4}, s{sX}, 4
        s_add_u32 s{t4}, s{t4}, s{sHP}
        s_lshl_b32 s{t4}, s{t4}, 7
        s_lshl_b32 s{t5}, s{t2}, 2
        s_add_u32 s{t4}, s{t4}, s{t5}
        s_add_u32 s{t4}, s{t4}, {FA_L}
        v_writelane_b32 v{vFl}, s{t4}, 0
        s_lshl_b32 s{t4}, s{sHP}, 3
        s_add_u32 s{t4}, s{t4}, s{sX}
        s_lshl_b32 s{t4}, s{t4}, 7
        s_add_u32 s{t4}, s{t4}, s{t5}
        s_add_u32 s{t4}, s{t4}, {FA_G}
        v_writelane_b32 v{vFl}, s{t4}, 1
        s_lshl_b32 s{t4}, s{sX}, 2
        s_add_u32 s{t4}, s{t4}, s{sW}
        s_lshl_b32 s{t4}, s{t4}, 2
        s_lshr_b32 s{t5}, s{sC}, 3
        s_add_u32 s{t4}, s{t4}, s{t5}
        s_lshl_b32 s{t4}, s{t4}, 7
        s_lshl_b32 s{t5}, s{sCB}, 2
        s_add_u32 s{t4}, s{t4}, s{t5}
        s_add_u32 s{t4}, s{t4}, {FB}
        v_writelane_b32 v{vFl}, s{t4}, 2
        s_lshl_b32 s{t4}, s{sTA}, 7
        s_lshl_b32 s{t5}, s{sCB}, 1
        s_add_u32 s{t5}, s{t5}, s{sNA}
        s_lshl_b32 s{t5}, s{t5}, 2
        s_add_u32 s{t4}, s{t4}, s{t5}
        s_add_u32 s{t5}, s{t4}, {FC}
        v_writelane_b32 v{vFl}, s{t5}, 3
        s_add_u32 s{t5}, s{t4}, {FE}
        v_writelane_b32 v{vFl}, s{t5}, 5
        s_lshr_b32 s{t4}, s{sT}, 1
        s_lshl_b32 s{t4}, s{t4}, 2
        s_lshr_b32 s{t5}, s{sHP}, 2
        s_add_u32 s{t4}, s{t4}, s{t5}
        s_lshl_b32 s{t4}, s{t4}, 7
        s_and_b32 s{t5}, s{sT}, 1
        s_lshl_b32 s{t5}, s{t5}, 2
        s_and_b32 s{t7}, s{sHP}, 3
        s_add_u32 s{t5}, s{t5}, s{t7}
        s_lshl_b32 s{t5}, s{t5}, 2
        s_add_u32 s{t4}, s{t4}, s{t5}
        s_add_u32 s{t4}, s{t4}, {FD}
        v_writelane_b32 v{vFl}, s{t4}, 4
        s_lshr_b32 s{t4}, s2, 2
        s_lshl_b32 s{t4}, s{t4}, 7
        s_and_b32 s{t5}, s2, 3
        s_lshl_b32 s{t5}, s{t5}, 2
        s_add_u32 s{t4}, s{t4}, s{t5}
        s_add_u32 s{t4}, s{t4}, {FR}
        v_writelane_b32 v{vFl}, s{t4}, 6
        s_lshl_b32 s{t4}, s{sX}, 5
        s_add_u32 s{t4}, s{t4}, s{sC}
        s_lshl_b32 s{t4}, s{t4}, 2
        s_add_u32 s{t4}, s{t4}, {FX}
        v_writelane_b32 v{vFl}, s{t4}, 7
        """)

    def zero_flags(self):
        g = self
        L = g.label("zf")
        g.e(f"s_cmp_lt_u32 s2, 8\ns_cbranch_scc0 {L}")
        g.e("v_mov_b32 v248, 0\nv_mov_b32 v249, 0\nv_mov_b32 v250, 0\nv_mov_b32 v251, 0")
        g.e(f"s_lshl_b32 s{t2}, s2, 2\ns_add_u32 s{t2}, s{t2}, s{sW}\ns_mul_i32 s{t2}, s{t2}, 3072")
        for i in range(3):
            g.e(g.st_text(vr(248, 4), vL16, sWS, t2, 1024 * i, "sc1"))
        g.e(f"{L}:")

    def code_prefetch(self):
        g = self
        g.e(f"""
        s_getpc_b64 s[4:5]
        L_pc:
        s_lshl_b32 s{t8}, s{sC}, 2
        s_add_u32 s{t8}, s{t8}, s{sW}
        s_and_b32 s{t8}, s{t8}, 15
        s_lshl_b32 s{t8}, s{t8}, 13
        v_lshlrev_b32 v{vt2}, 3, v{vL16}
        v_add_u32 v{vt2}, s{t8}, v{vt2}
        v_min_u32 v{vt2}, L_end-L_pc-4, v{vt2}
        """)
        g.vm(f"global_load_dword v255, v{vt2}, s[4:5]", "cpf")

    def handshake_send(self):
        g = self
        L = g.label("hs")
        g.e(f"s_cmp_lt_u32 s2, 8\ns_cbranch_scc0 {L}")
        g.e(f"s_lshl_b32 s{t9}, s2, 2\ns_add_u32 s{t9}, s{t9}, s{sW}\ns_lshl_b32 s{t9}, s{t9}, 2")
        g.e(f"v_mov_b32 v{vt1}, 1\nv_mov_b32 v{vt2}, s{t9}\ns_mov_b64 exec, 1")
        g.e(f"buffer_store_dword v{vt1}, v{vt2}, {sr(sDBG, 4)}, 0 offen sc1\ns_mov_b64 exec, -1\n{L}:")

    def late_check(self, tag, ld_text, chk, sleep):
        g = self
        ls, lj, lp = g.label("lslow"), g.label("ljoin"), g.label("lp")
        g.vwait(tag)
        g.e(chk + f"\ns_nop 0\ns_cbranch_vccnz {ls}\n{lj}:")
        g.tail.append(f"""{ls}:
        s_mov_b32 s{sTO}, {TIMEOUT}
        {lp}:
        {"s_sleep " + str(sleep) if sleep else ""}
        {ld_text}
        s_sub_u32 s{sTO}, s{sTO}, 1
        s_cbranch_scc1 L_exit
        s_waitcnt vmcnt(0)
        {chk}
        s_nop 0
        s_cbranch_vccnz {lp}
        s_branch {lj}""")

    def handshake_load(self):
        self.e(f"v_and_b32 v254, 0x7c, v{vL4}")
        self.ld(vr(vt1), 254, sDBG, None, 0, tag="hs", w=1)

    def handshake_check(self):
        self.late_check("hs", f"v_and_b32 v254, 0x7c, v{vL4}\nbuffer_load_dword v{vt1}, v254, {sr(sDBG, 4)}, 0 offen sc1",
                        f"v_cmp_eq_u32 vcc, 0, v{vt1}", 8)

    def xcc_send(self):
        g = self
        L = g.label("xs")
        g.e(f"s_cmp_eq_u32 s{sW}, 0\ns_cbranch_scc0 {L}")
        g.e(f"s_getreg_b32 s{t11}, hwreg(HW_REG_XCC_ID, 0, 4)\ns_or_b32 s{t11}, s{t11}, 0x80\nv_mov_b32 v{vt1}, s{t11}")
        g.e(f"s_mov_b64 exec, 0x80\nbuffer_store_dword v{vt1}, v{vFl}, {sr(sWS, 4)}, 0 offen sc1\ns_mov_b64 exec, -1\n{L}:")

    def xcc_load(self, vd=vt2, va=vt3, st=t7):
        g = self
        g.e(f"v_and_b32 v{va}, 0x7c, v{vL4}\ns_lshl_b32 s{st}, s{sX}, 7\ns_add_u32 s{st}, s{st}, {FX}")
        g.ld(vr(vd), va, sWS, st, 0, tag="xcc", w=1)

    def xcc_check(self, vd=vt2, va=vt3, st=t7):
        g = self
        g.late_check("xcc", f"s_lshl_b32 s{st}, s{sX}, 7\ns_add_u32 s{st}, s{st}, {FX}\nbuffer_load_dword v{vd}, v{va}, {sr(sWS, 4)}, s{st} offen sc1",
                     f"v_cmp_eq_u32 vcc, 0, v{vd}", 8)
        g.e(f"""
        v_readfirstlane_b32 s{st}, v{vd}
        s_nop 1
        v_cmp_ne_u32 vcc, s{st}, v{vd}
        s_nop 1
        s_cmp_lg_u64 vcc, 0
        s_cselect_b32 s{sMode}, 1, 0
        """)
        if g.cfg.force_slow:
            g.e(f"s_mov_b32 s{sMode}, 1")

    def stats_tail(self, s1, s2, rs, cden, BX, half=False):
        return [
            f"v_mul_f32 v{s1}, {f2u(1 / 512):#x}, v{s1}",
            f"v_mul_f32 v{s2}, {f2u(1 / 512):#x}, v{s2}",
            f"v_fma_f32 v{s2}, -v{s1}, v{s1}, v{s2}",
            f"v_max_f32 v{s2}, 0, v{s2}",
            f"v_add_f32 v{cden}, {f2u(1e-5):#x}, v{s2}",
            f"v_rsq_f32 v{rs}, v{cden}",
            f"v_mul_f32 v{s1}, {'-0.5' if half else '-1.0'}, v{s1}",
            f"v_cvt_pk_bf16_f32 v{BX}, v{s1}, v{s1}",
            f"v_mov_b32 v{BX + 1}, v{BX}",
            f"v_mov_b32 v{BX + 2}, v{BX}",
            f"v_mov_b32 v{BX + 3}, v{BX}",
        ]

    def stats_ops(self, SB, rs, cden, BX):
        ops = [("v", "stat")]
        n = 16
        while n > 1:
            n //= 2
            for i in range(n):
                ops.append(f"v_add_f32 v{SB + i}, v{SB + i}, v{SB + n + i}")
        ops += [f"v_mov_b32 v{SB + 1}, v{SB}", "s_nop 1", f"v_permlane32_swap_b32 v{SB}, v{SB + 1}"]
        return ops + self.stats_tail(SB, SB + 1, rs, cden, BX)

    def take(self, side, n, exact=False):
        while n > 0 and side:
            o = side.popleft()
            if o is None:
                n -= 1
            elif isinstance(o, tuple):
                (self.vwait if o[0] == "v" else self.lwait)(o[1])
            elif callable(o):
                o()
                n -= 1
            else:
                c = 2 if o.startswith(("v_exp", "v_rcp", "v_rsq")) else 1
                if exact and c > n:
                    side.appendleft(o)
                    break
                self.e(o)
                n -= c

    def load_x_stats(self, layer, which, xoff, X, SB, up):
        g = self
        g.e(f"s_lshl_b32 s{t0}, s{sT}, 12\ns_add_u32 s{t0}, s{t0}, {aST(layer, which)}")
        g.e(f"s_lshl_b32 s{t1}, s{sT}, 15\ns_add_u32 s{t1}, s{t1}, {xoff}")

        def pre():
            for ks in range(up):
                ldx(ks)

        def ldx(ks):
            if ks and ks % 4 == 0:
                g.e(f"s_add_u32 s{t1}, s{t1}, 4096")
            g.ld(vr(X + 4 * ks, 4), vL16, sWS, t1, (ks % 4) * 1024, tag=("x", ks))
        return (pre, [lambda ks=ks: ldx(ks) for ks in range(up, 32)],
                [lambda q=q: g.ld(vr(SB + 4 * q, 4), vL16, sWS, t0, q * 1024, tag="stat") for q in range(4)])

    def l2_prefetch(self, sbase, nbytes, vtmp):
        g = self
        ops = [lambda: g.e(f"v_and_b32 v{vtmp}, 0x3c0, v{vL16}\nv_lshlrev_b32 v{vtmp}, 1, v{vtmp}")]
        assert nbytes % 2048 == 0
        for i in range(nbytes // 2048):
            def op(i=i):
                if i and i % 2 == 0:
                    g.e(f"s_add_u32 s{sbase}, s{sbase}, 4096")
                g.ld(vr(vtmp + 1), vtmp, sWS, sbase, (i % 2) * 2048, mods="sc1", tag="pf", w=1)
            ops.append(op)
        return ops

    def touch_ops(self, salu, sreg, n, vadr, vdst):
        g = self
        ops = [lambda t=t: g.e(t) for t in salu]
        for i in range(n):
            def op(i=i):
                if i and i % 2 == 0:
                    g.e(f"s_add_u32 s{sreg}, s{sreg}, 4096")
                g.ld(vr(vdst), vadr, sWS, sreg, (i % 2) * 2048, mods="sc1", tag="pf", w=1)
            ops.append(op)
        return ops

    def h_addr(self, layer, a, b):
        return [f"s_mul_i32 s{a}, s{sT}, {112 * 1024}\ns_mul_i32 s{b}, s{sHP}, 7168", f"s_add_u32 s{a}, s{a}, s{b}\ns_add_u32 s{a}, s{a}, {aH(layer)}"]

    def x_addr(self, layer, which, a, b):
        x = [f"s_lshl_b32 s{a}, s{sTA}, 4\ns_lshl_b32 s{b}, s{sCB}, 1", f"s_add_u32 s{a}, s{a}, s{b}\ns_add_u32 s{a}, s{a}, s{sNA}",
             f"s_lshl_b32 s{a}, s{a}, 11\ns_add_u32 s{a}, s{a}, {aX(layer, which)}"]
        st = [f"s_lshl_b32 s{a}, s{sTA}, 2\ns_lshr_b32 s{b}, s{sCB}, 1", f"s_add_u32 s{a}, s{a}, s{b}\ns_lshl_b32 s{a}, s{a}, 10",
              f"s_add_u32 s{a}, s{a}, {aST(layer, which)}"]
        return x, st

    def dma_ops(self, first, count, gsoff_expr, lds_base, tag, ts):
        g = self
        a, b = ts
        ops = []
        uid = g.label("dma")

        def setup():
            g.e(f"s_mul_i32 s{a}, s{sW}, {count * 1024}")
            g.e(f"s_add_u32 s{b}, s{a}, s{gsoff_expr}")
        ops.append(SOp(setup))

        def setup2():
            g.e(f"s_add_u32 s{b}, s{b}, {first * 1024}\ns_add_u32 s{a}, s{a}, {lds_base}")
        ops.append(SOp(setup2))
        for i in range(count):
            if i % 4 == 0 and i:
                ops.append(SOp(lambda: g.e(f"s_add_u32 s{a}, s{a}, 4096\ns_add_u32 s{b}, s{b}, 4096")))

            def op(i=i):
                if g.m0_owner != (uid, i // 4):
                    g.e(f"s_mov_b32 m0, s{a}\ns_nop 0")
                    g.m0_owner = (uid, i // 4)
                g.dma(vL16, sWS, b, (i % 4) * 1024, mods=g.cfg.wmods, tag=tag)
            ops.append(op)
        return ops

    @property
    def D_AX(self):
        return [208, 212, 216, 220, 224, 244, 252] if self.cfg.passes[0] == (0, 4) else [208, 212, 216, 224, 228, 232, 236]

    @property
    def D_AXPRE(self):
        return (0, 1, 2, 6) if self.cfg.passes[0] == (0, 4) else (0, 1, 2)

    A_X, A_ACC = 16, {"q": 144, "k": 160, "v": 176}
    A_P, A_AX = 208, {"k": 208, "v": 212, "q": 232}
    A_RS, A_CD, A_KA, A_VA, A_BX, A_QM, A_RC = 240, 241, 242, 243, 220, 252, 192

    def a_addr(self, layer):
        g = self
        vK, vV = g.A_KA, g.A_VA
        g.e(f"""
        v_lshrrev_b32 v{vt0}, 4, v{vL16}
        v_and_b32 v{vt2}, 0x33, v{vt0}
        v_bfe_u32 v{vt3}, v{vt0}, 2, 1
        v_lshl_add_u32 v{vt2}, v{vt3}, 3, v{vt2}
        v_bfe_u32 v{vt3}, v{vt0}, 3, 1
        v_lshl_add_u32 v{vt2}, v{vt3}, 2, v{vt2}
        v_lshlrev_b32 v{vK}, 4, v{vt2}
        v_bfe_u32 v{vt2}, v{vt0}, 4, 1
        v_lshlrev_b32 v{vV}, 17, v{vt2}
        v_lshrrev_b32 v{vt2}, 5, v{vt0}
        v_lshl_add_u32 v{vV}, v{vt2}, 8, v{vV}
        v_and_b32 v{vt2}, 15, v{vt0}
        v_lshl_add_u32 v{vV}, v{vt2}, 4, v{vV}
        """)

    def a_saddr(self, layer):
        return [
            f"s_lshl_b32 s{t11}, s{sHP}, 7", f"s_add_u32 s{t11}, s{t11}, s{sT}",
            f"s_lshl_b32 s{t7}, s{t11}, 11", f"s_add_u32 s{t7}, s{t7}, {aKV(layer)}", f"s_add_u32 s{t8}, s{t7}, 0x20000",
            f"s_lshl_b32 s{t9}, s{sT}, 4", f"s_add_u32 s{t9}, s{t9}, s{sHP}", f"s_lshl_b32 s{t9}, s{t9}, 11",
            f"s_add_u32 s{t9}, s{t9}, {aQ(layer)}"]

    def a_rc_ops(self, sarea):
        g = self
        RC = g.A_RC
        ops = [f"v_and_b32 v{vt0}, 0x7c, v{vL4}", f"v_add_u32 v{vt0}, s{sarea}, v{vt0}",
               lambda: g.ds(f"ds_write_b32 v{vt0}, v{g.A_RS}", "rcw"),
               f"v_lshrrev_b32 v{vt0}, 9, v{vL16}", f"v_lshlrev_b32 v{vt0}, 4, v{vt0}", f"v_add_u32 v{vt0}, s{sarea}, v{vt0}",
               f"v_mul_f32 v{g.A_QM}, {f2u(0.25 * LOG2E):#x}, v{g.A_RS}"]
        for j in range(4):
            ops.append(lambda j=j: g.ds(f"ds_read_b128 {vr(RC + 4 * j, 4)}, v{vt0} offset:{32 * j}", "rc"))
        return ops

    def a_epi(self, n, qmods=''):
        g = self
        A = g.A_ACC[n]
        P = g.A_P + {"k": 0, "v": 8, "q": 16}[n]
        ops = [("l", "rc")] if n == "v" else []
        for h in range(2):
            for i in range(8 * h, 8 * h + 8):
                m = {"k": g.A_RS, "q": g.A_QM, "v": g.A_RC + i}[n]
                ops.append(f"v_mul_f32 v{A + i}, v{m}, v{A + i}")
            for i in range(4 * h, 4 * h + 4):
                ops.append(f"v_cvt_pk_bf16_f32 v{P + i}, v{A + 2 * i}, v{A + 2 * i + 1}")
            if n == "k":
                ops.append(lambda h=h: g.st(vr(P + 4 * h, 4), g.A_KA, sWS, (t7, t8)[h], 0, "sc1"))
            elif n == "v":
                ops.append(lambda h=h: g.st(vr(P + 4 * h, 4), g.A_VA, sWS, t7, 1024 + 512 * h, "sc1"))
            else:
                ops.append(lambda h=h: g.st(vr(P + 4 * h, 4), vL16, sWS, t9, 1024 * h, qmods))
        return ops

    def a_mfma(self, n, w, x, first):
        acc = vr(self.A_ACC[n], 16)
        a_, b_ = (x, w) if n == "v" else (w, x)
        self.e(f"v_mfma_f32_32x32x16_bf16 {acc}, {a_}, {b_}, {'0' if first else acc}")

    def phaseA0(self):
        g = self
        X, S1, S2 = g.A_X, 192, 208
        vo0, vo1, vRd, vRs, vWd, vTr = 224, 225, 226, 230, 232, 236
        CS, ONE = 0, 48
        LW = 65536
        g.e(f"""
        v_lshrrev_b32 v{vt0}, 4, v{vL16}
        v_lshrrev_b32 v{vt2}, 3, v{vt0}
        v_lshlrev_b32 v{vo0}, 10, v{vt2}
        v_lshrrev_b32 v{vt2}, 1, v{vt2}
        v_and_b32 v{vt3}, 7, v{vt0}
        v_xor_b32 v{vt2}, v{vt2}, v{vt3}
        v_lshl_add_u32 v{vo0}, v{vt2}, 4, v{vo0}
        v_xor_b32 v{vo1}, 64, v{vo0}
        s_lshl_b32 s{t0}, s{sT}, 15
        {g.cfg.rot.format(t1=t1, sHP=sHP, sC=sC, sX=sX)}
        s_lshl_b32 s{t6}, s{sW}, 14
        s_lshl_b32 s6, s{sHP}, 6
        s_mul_i32 s7, s{sW}, 3072
        s_add_u32 s7, s7, {LW}
        """)
        for i in range(3):
            r = vWd + i
            g.e(f"""
            v_add_u32 v{vt2}, {64 * i}, v{vt0}
            v_mul_u32_u24 v{vt3}, 0x1556, v{vt2}
            v_lshrrev_b32 v{vt3}, 16, v{vt3}
            v_mul_u32_u24 v{r}, 12, v{vt3}
            v_sub_u32 v{vt2}, v{vt2}, v{r}
            v_mul_u32_u24 v{r}, 3072, v{vt3}
            v_lshrrev_b32 v{vt3}, 2, v{vt2}
            v_lshl_add_u32 v{r}, v{vt3}, 10, v{r}
            v_and_b32 v{vt2}, 3, v{vt2}
            v_lshl_add_u32 v{r}, v{vt2}, 4, v{r}
            """)
        g.e("s_waitcnt lgkmcnt(0)")
        g.srd(sXIN, pX, 2048 * 1024)
        g.srd(sWQ, pWQ, 512 * 3072)
        g.stamp("start")

        def grp_ops(c):
            ops = []
            for j in range(4):
                def op(j=j):
                    if j == 0:
                        g.e(f"s_add_u32 s{t2}, s{t1}, {c}\ns_and_b32 s{t2}, s{t2}, 7\ns_lshl_b32 s3, s{t2}, 7\ns_add_u32 s3, s3, s{t0}")
                    g.e(f"s_add_u32 s{t5}, s{t6}, {(c % 4) * 4096 + j * 1024}\ns_mov_b32 m0, s{t5}")
                    g.e("s_add_u32 s3, s3, 8192" if j else "s_nop 0")
                    g.dma((vo0, vo1)[j % 2], sXIN, 3, 0, mods="", tag=("xc", c))
                ops.append(op)
            for i in range(3):
                def op(i=i):
                    if i == 0:
                        g.e(f"s_add_u32 s{t2}, s{t1}, {c}\ns_and_b32 s{t2}, s{t2}, 7\ns_lshl_b32 s{t2}, s{t2}, 2")
                        g.e(f"s_add_u32 s{t2}, s{t2}, s{sW}\ns_mul_i32 s3, s{t2}, 49152\ns_add_u32 s3, s3, s6")
                    g.e(f"s_add_u32 s{t5}, s7, {(c % 5) * 4 * 3072 + i * 1024}\ns_mov_b32 m0, s{t5}\ns_nop 0")
                    g.dma(vWd + i, sWQ, 3, 0, mods="", tag=("w", c))
                ops.append(op)
            return ops
        if g.cfg.warm:
            g.e(f"""
            s_lshl_b32 s{t2}, s{sC}, 2
            s_add_u32 s{t2}, s{t2}, s{sW}
            s_mul_i32 s{t3}, s{t2}, 12288
            s_lshl_b32 s{t2}, s{t2}, 11
            s_lshl_b32 s{t4}, s{sX}, 18
            s_add_u32 s{t2}, s{t2}, s{t4}
            v_lshlrev_b32 v254, 3, v{vL16}
            v_and_b32 v253, 0x780, v254
            """)
            if g.cfg.warm == 2:
                for op in grp_ops(0):
                    op()
            g.ld("v255", 253, sXIN, t2, 0, mods="", w=1)
            if g.cfg.warm == 5:
                g.e(f"v_lshrrev_b32 v252, 6, v{vL16}\nv_min_u32 v252, 11, v252\nv_lshlrev_b32 v252, 10, v252")
                g.ld("v255", 252, sWQ, t3, 384, mods="", w=1)
            if g.cfg.warm >= 3:
                g.e(f"s_lshl_b32 s{t3}, s2, 2\ns_add_u32 s{t3}, s{t3}, s{sW}\ns_mul_i32 s{t3}, s{t3}, 1536")
                g.ld("v255", 253, sWQ, t3, 0, mods="", w=1)
            else:
                g.ld("v255", 254, sWQ, t3, 0, mods="", w=1)
                g.e(f"v_and_b32 v254, 0xf80, v254\ns_add_u32 s{t3}, s{t3}, 8192")
                g.ld("v255", 254, sWQ, t3, 0, mods="", w=1)
        if g.cfg.warm != 2:
            for op in grp_ops(0):
                op()
        g.srd(sWS, pWS, WS_BYTES - g.cfg.ws_off)
        if g.cfg.ws_off:
            g.e(f"s_add_u32 s{sWS}, s{sWS}, {g.cfg.ws_off}\ns_addc_u32 s{sWS + 1}, s{sWS + 1}, 0")
        g.srd(sDBG, pDBG, 256)
        g.zero_flags()
        if not g.cfg.defer:
            g.prologue2()
        g.e(f"""
        v_and_b32 v{vt2}, 31, v{vt0}
        v_lshrrev_b32 v{vt3}, 5, v{vt0}
        v_bfe_u32 v{vt1}, v{vt0}, 1, 3
        v_xor_b32 v{vt1}, v{vt1}, v{vt3}
        v_lshlrev_b32 v{vt1}, 4, v{vt1}
        v_lshl_add_u32 v{vt1}, v{vt2}, 7, v{vt1}
        v_add_u32 v{vt1}, s{t6}, v{vt1}
        """)
        for i in range(4):
            g.e(f"s_add_u32 s{t2}, s{sW}, {i}\ns_and_b32 s{t2}, s{t2}, 3\ns_lshl_b32 s{t2}, s{t2}, 5\nv_xor_b32 v{vRd + i}, s{t2}, v{vt1}")
        g.e(f"""
        v_lshrrev_b32 v{vt2}, 5, v{vt0}
        v_lshlrev_b32 v{vt2}, 3, v{vt2}
        v_bfe_u32 v{vt3}, v{vt0}, 2, 2
        v_add_u32 v{vt2}, v{vt2}, v{vt3}
        v_mul_u32_u24 v{vt1}, 192, v{vt2}
        v_bfe_u32 v{vt3}, v{vt0}, 4, 1
        v_lshl_add_u32 v{vt1}, v{vt3}, 5, v{vt1}
        v_and_b32 v{vt3}, 1, v{vt0}
        v_lshl_add_u32 v{vt1}, v{vt3}, 4, v{vt1}
        v_bfe_u32 v{vt3}, v{vt0}, 1, 1
        v_lshl_add_u32 v{vt1}, v{vt3}, 3, v{vt1}
        """)
        for i in range(4):
            g.e(f"s_add_u32 s{t2}, s{sW}, {i}\ns_and_b32 s{t2}, s{t2}, 3\ns_mul_i32 s{t2}, s{t2}, 3072\ns_add_u32 s{t2}, s{t2}, {LW}\nv_add_u32 v{vTr + i}, s{t2}, v{vt1}")
        g.e(f"v_mov_b32 v{vt1}, 0x3f803f80")
        for i in range(4):
            g.e(f"v_accvgpr_write_b32 a{ONE + i}, v{vt1}")
        if not g.cfg.setup_first:
            for op in grp_ops(1):
                op()
        g.stamp("A0_d1")
        if not g.cfg.defer:
            g.a_addr(0)
            g.relayout_setup(0)
            g.relayout_setup(1)
        if g.cfg.setup_first:
            for op in grp_ops(1):
                op()
        if g.cfg.cpf == 1:
            g.code_prefetch()
        g.stamp("A0_i")
        if not g.cfg.g2_late:
            for op in grp_ops(2):
                op()
        if g.cfg.warm == 4:
            g.e(f"s_lshl_b32 s{t3}, s{sC}, 2\ns_add_u32 s{t3}, s{t3}, s{sW}\ns_mul_i32 s{t3}, s{t3}, 12288\nv_lshlrev_b32 v254, 3, v{vL16}")
            g.ld("v255", 254, sWQ, t3, 0, mods="", w=1)
            g.e(f"v_and_b32 v254, 0xf80, v254\ns_add_u32 s{t3}, s{t3}, 8192")
            g.ld("v255", 254, sWQ, t3, 0, mods="", w=1)

        def xread(c):
            return [("v", ("xc", c))] + [
                lambda i=i: g.ds(f"ds_read_b128 {vr(X + 4 * (4 * c + i), 4)}, v{vRd + i} offset:{(c % 4) * 4096}", ("x", c)) for i in range(4)]

        names = "kvq"
        seg = {"q": 0, "k": 1, "v": 2}

        def wread(f):
            st, n = divmod(f, 3)
            c, i = divmod(st, 4)
            if n == 0 and i == 0:
                g.vwait(("w", c))
                if g.cfg.rl_in_a and 0 <= c - g.cfg.rl_c1 < 2:
                    assert ("rl", c - g.cfg.rl_c1) in g.vmq or ("rl", c - g.cfg.rl_c1) in g.waited
                    g.vwait(("rl", c - g.cfg.rl_c1))
                g.e("s_barrier")
            b = WB + 4 * (f % 8)
            off = (c % 5) * 12288 + seg[names[n]] * 64
            g.ds(f"ds_read_b64_tr_b16 {ar(b, 2)}, v{vTr + i} offset:{off}", ("w", f))
            g.ds(f"ds_read_b64_tr_b16 {ar(b + 2, 2)}, v{vTr + i} offset:{off + 768}", ("w", f))

        def mf4(d, a, b, first):
            g.e(f"v_mfma_f32_4x4x4_16b_bf16 {d}, {a}, {b}, {'0' if first else d}")

        def stat_mf(st):
            for hh in range(2):
                x = vr(X + 4 * st + 2 * hh, 2)
                mf4(vr(S1 + 4 * hh, 4), ar(ONE, 2), x, st == 0)
                mf4(vr(S2 + 4 * hh, 4), x, x, st == 0)
            g.take(side, 2)

        side = deque(xread(0))
        g.take(side, 99)
        g.stamp("A0_x0")
        LEAD = 5
        for f in range(LEAD):
            wread(f)
        rld = g.relayout_dma_ops()
        rlo = g.relayout_out_ops(216, 52, ONE, (g.RL_V + 2, g.RL_V + 3), 231)
        wwarm = [lambda: g.e(f"v_and_b32 v253, 0x3c0, v{vL16}\nv_lshlrev_b32 v253, 1, v253\ns_lshl_b32 s{t7}, s2, 2\ns_add_u32 s{t7}, s{t7}, s{sW}")]
        for ptr, share in ((pW1, 1792), (pW3, 1792), (pW2, 1792), (pWO, 512)):
            def op(ptr=ptr, share=share):
                g.srd(sWQ, ptr, share * 1024)
                g.e(f"s_mul_i32 s{t8}, s{t7}, {share}")
                if share < 1792:
                    g.e("v_and_b32 v253, 0x180, v253")
                g.ld("v255", 253, sWQ, t8, 0, mods="", w=1)
            wwarm.append(op)
        XA = 8192
        for c in range(8):
            if c == 0 and g.cfg.g2_late:
                side.extend(grp_ops(2))
            if c + 3 < 8:
                side.extend(grp_ops(c + 3))
            if c == 0 and g.cfg.g2_late:
                side.extend(xread(1) + [g.handshake_send])
            elif c == 0:
                side.extendleft(reversed(xread(1) + [g.handshake_send]))
            elif c + 1 < 8:
                side.extend(xread(c + 1))
            if g.cfg.defer:
                for cc, fn in zip(g.cfg.defer, (lambda: g.relayout_setup(0), lambda: g.relayout_setup(1), g.prologue2, lambda: g.a_addr(0))):
                    if cc == c:
                        side.appendleft(fn)
            if c == 3:
                side.appendleft(g.handshake_load)
            if g.cfg.rl_in_a:
                if c == g.cfg.rl_c0:
                    side.extend(rld[:4])
                if c == g.cfg.rl_c0 + 1:
                    side.extend(rld[4:])
                u = c - g.cfg.rl_c1
                if 0 <= u < 2:
                    oo = [o for o, _ in rlo[13 * u:13 * u + 13]]
                    for k in range(4):
                        side.extend([oo[3 * k], None, None, oo[3 * k + 1], oo[3 * k + 2]])
                    side.extend([None] * 4 + [oo[12]])
            if c == 6 and g.cfg.xcc_early:
                side.append(lambda: g.xcc_load(250, 251, t4))
            if c == 4:
                side.append(g.handshake_check)
                if g.cfg.xcc_early:
                    side.append(g.xcc_send)
                if not g.cfg.rl_in_b and not g.cfg.rl_in_a:
                    side.extend(rld)
            if c == g.cfg.warm_w:
                side.extend(wwarm)
            if c == 6:
                side.extend(g.a_saddr(0))
            g.lwait(("x", c))
            if c == 7:
                for i in range(4):
                    stat_mf(28 + i)
                sel = [f"v_add_f32 v{S1}, v{S1}, v{S1 + 4}"] + [f"v_add_f32 v{S2 + r}, v{S2 + r}, v{S2 + 4 + r}" for r in range(4)]
                for m, stp in ((0xaaaaaaaa, 1), (0xcccccccc, 2)):
                    sel += [f"s_mov_b32 s{t2}, {m:#x}", f"s_mov_b32 s{t3}, {m:#x}"]
                    sel += [f"v_cndmask_b32 v{S2 + r}, v{S2 + r}, v{S2 + r + stp}, s[{t2}:{t3}]" for r in range(0, 4, 2 * stp)]
                sel += ["s_nop 1", f"v_permlane32_swap_b32 v{S1}, v{S2}", f"v_add_f32 v{S1}, v{S1}, v{S2}",
                        f"v_mov_b32 v{S2}, v{S1}", "s_nop 1", f"v_permlane32_swap_b32 v{S1}, v{S2}"]
                sel += g.stats_tail(S1, S2, g.A_RS, g.A_CD, g.A_BX)
                sel += [f"s_add_u32 s{t2}, s{t6}, 12288"] + g.a_rc_ops(t2)
            for i in range(4):
                st = 4 * c + i
                g.lwait(("w", 3 * st + 2))
                for n in range(3):
                    f = 3 * st + n
                    wb = ar(WB + 4 * (f % 8), 4)
                    g.a_mfma(names[n], wb, vr(X + 4 * st, 4), st == 0)
                    if i == 0:
                        for hh in range(2):
                            mf4(ar(CS + 8 * n + 4 * hh, 4), ar(ONE, 2), ar(WB + 4 * (f % 8) + 2 * hh, 2), c == 0)
                    if f + LEAD < 96:
                        wread(f + LEAD)
                    g.take(side, 2 if c < 7 else 5)
                    if c == 7 and i == 0 and n == 1:
                        side.extend(sel)
                if c == 7 and i == 1:
                    g.e(f"s_lshl_b32 s{t4}, s{sW}, 2\ns_add_u32 s{t4}, s{t4}, {XA}\nv_add_u32 v253, s{t4}, v{vL16}")
                    for n in range(3):
                        g.e(f"""
                        v_accvgpr_read_b32 v{vt2}, a{CS + 8 * n}
                        v_accvgpr_read_b32 v254, a{CS + 8 * n + 4}
                        v_add_f32 v{vt2}, v{vt2}, v254
                        v_cvt_pk_bf16_f32 v254, v{vt2}, v{vt2}
                        v_lshlrev_b32 v254, 16, v254
                        v_sub_f32 v254, v{vt2}, v254
                        v_cvt_pk_bf16_f32 v254, v{vt2}, v254
                        """)
                        g.ds(f"ds_write_b32 v253, v254 offset:{1024 * n}", "csw")
                if c < 7:
                    stat_mf(st)
            g.take(side, 99)
            g.stamp(f"A0_g{c}")
        g.lwait0()
        g.e("s_barrier")
        for n in range(3):
            g.ds(f"ds_read_b128 {vr(g.A_AX[names[n]], 4)}, v{vL16} offset:{XA + 1024 * n}", ("ax", n))
        for n in range(3):
            g.lwait(("ax", n))
            g.a_mfma(names[n], vr(g.A_AX[names[n]], 4), vr(g.A_BX, 4), False)
        side = deque(g.a_epi("k") + g.a_epi("v") + g.a_epi("q", "sc1"))
        g.take(side, 999)
        if g.cfg.xcc_early:
            g.xcc_check(250, 251, 4)
        g.stamp("A0st")

    def phaseA1(self, layer):
        g = self
        cfg = g.cfg
        X, SB = g.A_X, 192
        g.A_BX = 236
        vA0, vA1 = 224, 225
        LW = 65536
        g.e(f"v_add_u32 v{vA0}, {LW}, v{vL16}\nv_add_u32 v{vA1}, {LW + 49152}, v{vL16}")
        g.a_addr(layer)
        g.e("\n".join(g.a_saddr(layer)))
        g.e(f"s_lshl_b32 s{t4}, s{sHP}, 10\ns_add_u32 s{t4}, s{t4}, {WXQ}\ns_lshl_b32 s{t6}, s{sW}, 8\ns_add_u32 s{t6}, s{t6}, {48 * 1024}")
        g.e(f"v_and_b32 v{vt0}, 60, v{vL4}\ns_lshl_b32 s{t2}, s{sT}, 7\ns_add_u32 s{t2}, s{t2}, {FE}")
        pre, xrest, stl = g.load_x_stats(layer - 1, 1, aX(layer - 1, 1), X, SB, cfg.up_a)
        seg = {"q": 0, "k": 1, "v": 2}
        LAG = cfg.lag_a
        seq = []
        for ks in range(32):
            if cfg.lag_end:
                seq += [("k", ks), ("v", ks)] + ([("q", ks)] if ks < 32 - LAG else [])
            else:
                seq += [("k", ks), ("v", ks)] + ([("q", ks - LAG)] if ks >= LAG else [])
        nmain = len(seq)
        seq += [("q", ks) for ks in range(32 - LAG, 32)]

        def wread(f):
            n, ks = seq[f]
            off = ((ks % 16) * 3 + seg[n]) * 1024
            g.ds(f"ds_read_b128 {ar(WB + 4 * (f % 8), 4)}, v{vA0 if ks < 16 else vA1} offset:{off}", ("w", f))
        LEAD = 7
        for f in range(LEAD):
            wread(f)
        g.poll(vt0, t2, layer, True)
        g.stamp(f"A{layer}go")
        pre()

        def axld(n):
            g.ld(vr(g.A_AX[n], 4), vL16, sWS, t4, 0, tag="ax")
            g.e(f"s_add_u32 s{t4}, s{t4}, 16384")
        xrest = deque(xrest)
        mem = deque(stl + [lambda n=n: axld(n) for n in "qkv"])
        if "A" in cfg.touch:
            xrest.extend([lambda: g.e(f"v_and_b32 v254, 0x3c0, v{vL16}\nv_lshlrev_b32 v254, 1, v254")] + g.touch_ops([], t9, 1, 254, 255))
        side = deque()
        for f, (n, ks) in enumerate(seq):
            if f == nmain:
                g.stamp(f"Z{layer}:Amain")
                g.take(side, 999)
                g.vwait("ax")
                for m in "kv":
                    g.a_mfma(m, vr(g.A_AX[m], 4), vr(g.A_BX, 4), False)
                side.extend([None] * 8 + g.a_epi("k") + g.a_epi("v"))
            if n == "k":
                g.vwait(("x", ks))
                if ks == 0:
                    g.stamp(f"Z{layer}:Afirst")
            if f % 4 == 0:
                g.lwait(("w", min(f + 3, 95)))
            g.a_mfma(n, ar(WB + 4 * (f % 8), 4), vr(X + 4 * ks, 4), ks == 0)
            if f + LEAD < 96:
                wread(f + LEAD)
            if (n == "k" or (n == "q" and ks < cfg.x2_a)) and xrest:
                xrest.popleft()()
            elif n == "v" and ks >= cfg.st_a and mem:
                mem.popleft()()
                if not mem:
                    side.extend([None] * 30 + g.stats_ops(SB, g.A_RS, g.A_CD, g.A_BX) + g.a_rc_ops(t6))
            g.take(side, 3 if f < nmain else 7)
            if n == "k" and ks % 8 == 7:
                g.stamp(f"A{layer}_{ks}")
        g.a_mfma("q", vr(g.A_AX["q"], 4), vr(g.A_BX, 4), False)
        g.e("s_barrier")
        g.stamp(f"A{layer}_m")
        side.extend(g.a_epi("q"))
        g.take(side, 999)
        g.stamp(f"A{layer}st")

    RL_SRD = ((28, 32), (80, 16))
    RL_DO = (64, 70)
    RL_XO = (62, 63)
    RL_V = 244
    RL_LDS = 131072

    def relayout_setup(self, ui):
        g = self
        passes = g.cfg.passes
        RA, RB = g.RL_SRD[ui]
        sDO, sDS = g.RL_DO[ui], g.RL_DO[ui] + 1
        sXO = g.RL_XO[ui]
        u, sRS, sSO, sMH, sWO = t7, t9, t10, t8, t11
        a0, a1, a2, a3 = t2, t3, t4, t5
        vS, vT = g.RL_V + ui, g.RL_V + 2 + ui
        L = [g.label("rl") for _ in range(5)]
        if ui == 0:
            g.e(f"s_mov_b32 s{u}, s2\ns_cmp_ge_u32 s{u}, 224\ns_cbranch_scc1 {L[0]}")
            g.srd(RA, pW1, 512 * 3584)
            g.srd(RB, pW3, 512 * 3584)
            g.e(f"""
            s_mov_b32 s{sRS}, 3584
            s_lshr_b32 s{a0}, s{u}, 3
            s_and_b32 s{a1}, s{u}, 7
            s_lshl_b32 s{a2}, s{a1}, 2
            s_add_u32 s{a2}, s{a2}, s{sW}
            s_mul_i32 s{sSO}, s{a2}, {16 * 3584}
            s_lshl_b32 s{a2}, s{a0}, 7
            s_add_u32 s{sSO}, s{sSO}, s{a2}
            s_lshl_b32 s{a0}, s{a0}, 2
            s_add_u32 s{a0}, s{a0}, s{sW}
            s_lshl_b32 s{sXO}, s{a0}, 10
            s_add_u32 s{sXO}, s{sXO}, {WX13}
            s_mul_i32 s{a2}, s{a0}, 9363
            s_lshr_b32 s{a2}, s{a2}, 16
            s_mul_i32 s{a3}, s{a2}, 7
            s_sub_u32 s{a3}, s{a0}, s{a3}
            s_mul_i32 s{sDO}, s{a2}, 229376
            s_add_u32 s{sDO}, s{sDO}, {W13}
            s_mov_b32 s{a2}, {passes[0][0]}
            s_mov_b32 s{sDS}, {(passes[0][1] - passes[0][0]) * 1024}
            """)
            for a, b in passes[1:]:
                g.e(f"s_cmp_ge_u32 s{a3}, {a}\ns_cselect_b32 s{a2}, {a}, s{a2}\ns_cselect_b32 s{sDS}, {(b - a) * 1024}, s{sDS}")
            g.e(f"""
            s_mul_i32 s{a0}, s{a2}, 31
            s_add_u32 s{a0}, s{a0}, s{a3}
            s_lshl_b32 s{a0}, s{a0}, 10
            s_add_u32 s{sDO}, s{sDO}, s{a0}
            s_mov_b32 s{sMH}, 8192
            s_lshl_b32 s{sWO}, s{sW}, 5
            """)
            other, nks, wdst, first, ptr = "wo", 32, WO, 224, pWO
        else:
            if g.cfg.spare:
                g.e(f"s_mov_b32 s{a0}, s{sC}")
                for v in g.cfg.spare:
                    g.e(f"s_cmp_gt_u32 s{sC}, {v}\ns_subb_u32 s{a0}, s{a0}, 0")
                g.e(f"s_lshl_b32 s{u}, s{a0}, 3\ns_add_u32 s{u}, s{u}, s{sX}\ns_min_u32 s{u}, s{u}, 207\ns_cmp_lt_u32 s{u}, 112\ns_cbranch_scc1 {L[0]}")
            else:
                g.e(f"s_sub_u32 s{a0}, s2, 208\ns_cmp_ge_u32 s2, 208\ns_cselect_b32 s{u}, s{a0}, s2\ns_cmp_lt_u32 s{u}, 112\ns_cbranch_scc1 {L[0]}")
            g.srd(RA, pWQ, 512 * 3072)
            g.srd(RB, pWQ, 512 * 3072 - 128)
            g.e(f"""
            s_add_u32 s{RB}, s{RB}, 128
            s_addc_u32 s{RB + 1}, s{RB + 1}, 0
            s_mov_b32 s{sRS}, 3072
            s_sub_u32 s{a0}, s{u}, 112
            s_and_b32 s{a1}, s{a0}, 7
            s_lshr_b32 s{a0}, s{a0}, 3
            s_lshl_b32 s{a2}, s{a1}, 2
            s_add_u32 s{a2}, s{a2}, s{sW}
            s_mul_i32 s{sSO}, s{a2}, {16 * 3072}
            s_lshl_b32 s{a2}, s{a0}, 8
            s_add_u32 s{sSO}, s{sSO}, s{a2}
            s_lshl_b32 s{a0}, s{a0}, 2
            s_add_u32 s{a0}, s{a0}, s{sW}
            s_lshl_b32 s{sXO}, s{a0}, 10
            s_add_u32 s{sXO}, s{sXO}, {WXQ}
            s_and_b32 s{a2}, s{a0}, 15
            s_mul_i32 s{sDO}, s{a2}, {32 * 3072}
            s_lshr_b32 s{a2}, s{a0}, 4
            s_lshl_b32 s{a2}, s{a2}, 10
            s_add_u32 s{sDO}, s{sDO}, s{a2}
            s_add_u32 s{sDO}, s{sDO}, {WQ}
            s_mov_b32 s{sDS}, 3072
            s_mov_b32 s{sMH}, 32
            s_lshr_b32 s{sWO}, s{sW}, 1
            s_lshl_b32 s{sWO}, s{sWO}, 13
            s_and_b32 s{a2}, s{sW}, 1
            s_lshl_b32 s{a2}, s{a2}, 6
            s_add_u32 s{sWO}, s{sWO}, s{a2}
            """)
            other, nks, wdst, first, ptr = "w2", 112, W2, 0, pW2
        g.e(f"""
        s_lshl_b32 s{a0}, s{sDS}, 2
        s_mul_i32 s{a0}, s{a0}, s{a1}
        s_add_u32 s{sDO}, s{sDO}, s{a0}
        s_and_b32 s{a0}, s{a1}, 4
        s_lshl_b32 s{a0}, s{a0}, 7
        s_add_u32 s{sXO}, s{sXO}, s{a0}
        s_and_b32 s{a0}, s{a1}, 3
        s_lshl_b32 s{a0}, s{a0}, 2
        s_add_u32 s{sXO}, s{sXO}, s{a0}
        s_mov_b32 s{a0}, 0
        s_mov_b32 s{a1}, 0
        s_branch {L[1]}
        {L[0]}:
        """)
        g.srd(RA, ptr, nks * 16 * 1024)
        g.srd(RB, ptr, nks * 16 * 1024 - 512)
        g.e(f"""
        s_add_u32 s{RB}, s{RB}, 512
        s_addc_u32 s{RB + 1}, s{RB + 1}, 0
        s_mov_b32 s{sRS}, 1024
        s_sub_u32 s{a0}, s{u}, {first}
        s_lshl_b32 s{sSO}, s{a0}, 14
        s_lshr_b32 s{a1}, s{sW}, 1
        s_lshl_b32 s{sWO}, s{a1}, 13
        s_mul_i32 s{a1}, s{a1}, {4 * nks}
        s_add_u32 s{a1}, s{a1}, s{a0}
        s_lshl_b32 s{sDO}, s{a1}, 11
        s_and_b32 s{a1}, s{sW}, 1
        s_lshl_b32 s{a2}, s{a1}, 10
        s_add_u32 s{sDO}, s{sDO}, s{a2}
        s_add_u32 s{sDO}, s{sDO}, {wdst}
        s_mov_b32 s{sDS}, {nks * 2048}
        s_lshl_b32 s{a2}, s{a1}, 6
        s_add_u32 s{sWO}, s{sWO}, s{a2}
        s_mov_b32 s{sMH}, 32
        s_lshl_b32 s{sXO}, s{u}, 2
        s_add_u32 s{sXO}, s{sXO}, s{sW}
        s_and_b32 s{sXO}, s{sXO}, 63
        s_lshl_b32 s{sXO}, s{sXO}, 10
        s_add_u32 s{sXO}, s{sXO}, {WXD}
        s_mov_b32 s{a0}, 3
        s_mov_b32 s{a1}, s{sW}
        {L[1]}:
        v_lshrrev_b32 v{vS}, 7, v{vL16}
        v_and_b32 v{vt2}, s{a0}, v{vS}
        v_xor_b32 v{vt2}, s{a1}, v{vt2}
        v_mul_lo_u32 v{vS}, v{vS}, s{sRS}
        v_lshl_add_u32 v{vS}, v{vt2}, 7, v{vS}
        v_and_b32 v{vT}, 0x70, v{vL16}
        v_add3_u32 v{vS}, v{vS}, v{vT}, s{sSO}
        s_lshl_b32 s{4 + ui}, s{sRS}, 3
        s_add_u32 s{sWO}, s{sWO}, {g.RL_LDS + ui * 16384}
        v_bfe_u32 v{vT}, v{vL16}, 8, 1
        v_mul_lo_u32 v{vT}, v{vT}, s{sMH}
        v_add_u32 v{vT}, s{sWO}, v{vT}
        v_lshrrev_b32 v{vt2}, 9, v{vL16}
        v_lshl_add_u32 v{vT}, v{vt2}, 10, v{vT}
        v_bfe_u32 v{vt2}, v{vL16}, 6, 2
        v_lshl_add_u32 v{vT}, v{vt2}, 7, v{vT}
        v_and_b32 v{vt2}, s{a0}, v{vt2}
        v_lshl_add_u32 v{vT}, v{vt2}, 11, v{vT}
        v_and_b32 v{vt2}, 16, v{vL16}
        v_add_u32 v{vT}, v{vt2}, v{vT}
        v_bfe_u32 v{vt2}, v{vL16}, 5, 1
        v_lshl_add_u32 v{vT}, v{vt2}, 3, v{vT}
        v_add_u32 v{g.RL_V + 4 + ui}, s{4 + ui}, v{vS}
        """)
        if ui == 1 and g.cfg.spare:
            mask = sum(1 << v for v in g.cfg.spare)
            g.e(f"""
            s_lshr_b32 s{a0}, {mask:#x}, s{sC}
            s_and_b32 s{a0}, s{a0}, 1
            s_cselect_b32 s{RA + 2}, 0, s{RA + 2}
            s_cselect_b32 s{RB + 2}, 0, s{RB + 2}
            s_cselect_b32 s{sDO}, {WS_BYTES:#x}, s{sDO}
            s_cselect_b32 s{sXO}, {WS_BYTES:#x}, s{sXO}
            """)

    def relayout_dma_ops(self):
        g = self
        ops = []
        for ui in range(2):
            for i in range(4):
                def op(ui=ui, i=i):
                    g.e(f"s_lshl_b32 s{t5}, s{sW}, 11\ns_add_u32 s{t5}, s{t5}, {g.RL_LDS + ui * 16384 + (i // 2) * 8192 + (i % 2) * 1024}")
                    g.e(f"s_mov_b32 m0, s{t5}\ns_nop 0")
                    g.dma(g.RL_V + ui + 4 * (i % 2), g.RL_SRD[ui][i // 2], None, 0, mods="", tag=("rl", ui))
                ops.append(op)
        return ops

    def relayout_out_ops(self, d=244, CS=224, ONE=240, vS=(vt2, vt3), ta=vt0):
        g = self
        ops = []
        for ui in range(2):
            sDO, sDS = g.RL_DO[ui], g.RL_DO[ui] + 1
            for i in range(4):
                def rd(ui=ui, i=i):
                    if i:
                        g.e(f"v_xor_b32 v{vS[ui]}, {(i ^ (i - 1)) << 11}, v{vS[ui]}")
                    g.ds(f"ds_read_b64_tr_b16 {vr(d, 2)}, v{vS[ui]}", ("rl", i))
                    g.ds(f"ds_read_b64_tr_b16 {vr(d + 2, 2)}, v{vS[ui]} offset:512", ("rl", i))

                def wr(i=i, sDO=sDO, sDS=sDS):
                    g.lwait(("rl", i))
                    g.st(vr(d, 4), vL16, sWS, sDO, 0, "sc1", tag="rlst")
                    g.e(f"s_add_u32 s{sDO}, s{sDO}, s{sDS}")

                def cs(i=i):
                    g.e(f"v_mfma_f32_32x32x16_bf16 {ar(CS, 16)}, {ar(ONE, 4)}, {vr(d, 4)}, {ar(CS, 16) if i else '0'}")
                ops += [(rd, "A"), (wr, "C"), (cs, "D")]

            def xo(ui=ui):
                g.e(f"""
                v_accvgpr_read_b32 v254, a{CS}
                v_and_b32 v{ta}, 0x1f0, v{vL16}
                v_cvt_pk_bf16_f32 v255, v254, v254
                v_lshlrev_b32 v255, 16, v255
                v_sub_f32 v255, v254, v255
                v_cvt_pk_bf16_f32 v255, v254, v255
                """)
                g.st(vr(255), ta, sWS, g.RL_XO[ui], 0, "sc1", tag="rlst", w=1)
            ops.append((xo, "X"))
        return ops

    def ew_ops(self, lo, hi, ts):
        g = self
        a, b = ts
        ops = []

        def setup():
            g.e(f"s_mul_i32 s{a}, s{sCB}, {112 * 2048}\ns_mul_i32 s{b}, s{sW}, {28 * 2048}")
        def setup2():
            g.e(f"s_add_u32 s{a}, s{a}, s{b}\ns_add_u32 s{a}, s{a}, {W2 + (lo // 4) * 4096}")
        def setup3():
            g.e(f"s_lshl_b32 s{b}, s{sNA}, 10\ns_add_u32 s{a}, s{a}, s{b}")
        def setup4():
            g.e(f"s_xor_b32 s{b}, s{a}, 1024")
        ops += [setup, setup2, setup3, setup4]
        assert lo % 4 == 0
        for idx in range(lo, hi):
            def op(idx=idx):
                i, n = divmod(idx, 2)
                if idx > lo and idx % 4 == 0:
                    g.e(f"s_add_u32 s{a}, s{a}, 4096\ns_add_u32 s{b}, s{b}, 4096")
                g.ld(ar(4 * idx, 4), vL16, sWS, (a, b)[n], (i % 2) * 2048, mods=g.cfg.wmods, tag="ew")
            ops.append(op)
        return ops

    def phaseB(self, layer):
        g = self
        cfg = g.cfg
        O, Q, S, KV = 16, 144, 176, 208
        vV = 252
        CW = [R("a", 224 + 4 * i) for i in range(8)] + [R("v", 220 + 4 * i) for i in range(8)]
        if cfg.b_tail:
            CW[11:] = [R("v", b) for b in (244, 248, 144, 148, 152)]
        SBo, SBl = 104 * 1024, 152 * 1024
        sKV, sG = 6, 7
        g.e(f"v_mov_b32 v{vt0}, 0x3f803f80\ns_mov_b32 s{t0}, 0x00110000\ns_mov_b32 s{t1}, 0x00110000")
        if layer == 0 and not cfg.rl_in_a:
            for i in range(4):
                g.e(f"v_accvgpr_write_b32 a{240 + i}, v{vt0}")
            g.e(f"v_mov_b32 v{vt2}, v{g.RL_V + 2}\nv_mov_b32 v{vt3}, v{g.RL_V + 3}")
        g.e(f"v_cndmask_b32 v{vIdx}, 0, v{vt0}, s[{t0}:{t1}]")
        for r in range(4, 12):
            g.e(f"v_mov_b32 v{KV + r}, v{vIdx}")

        def late_setup():
            for e in range(1, 3):
                for r in range(4, 12):
                    g.e(f"v_mov_b32 v{KV + 12 * e + r}, v{vIdx}")
            g.e(f"v_mov_b32 v{vIdx}, 0xdddddddd")
            for j in range(8):
                for r in range(9):
                    g.e(f"v_mov_b32 v{O + 16 * j + r}, 0")
            g.e(f"""
            v_bfe_u32 v{vt0}, v{vL16}, 5, 3
            v_add_u32 v{vt0}, s{sX}, v{vt0}
            v_and_b32 v{vt0}, 7, v{vt0}
            v_lshlrev_b32 v253, 7, v{vt0}
            v_bfe_u32 v{vt0}, v{vL16}, 4, 1
            v_lshl_add_u32 v253, v{vt0}, 2, v253
            """)
        g.e(f"""
        v_lshrrev_b32 v{vt0}, 9, v{vL16}
        v_lshlrev_b32 v{vV}, 8, v{vt0}
        v_and_b32 v{vt0}, 0xf0, v{vL16}
        v_add_u32 v{vV}, v{vV}, v{vt0}
        v_and_b32 v{vt0}, 28, v{vL4}
        s_lshl_b32 s{t0}, s{sX}, 4
        s_lshr_b32 s{t1}, s{sC}, 1
        s_add_u32 s{t0}, s{t0}, s{t1}
        s_lshl_b32 s{t0}, s{t0}, 7
        s_add_u32 s{t0}, s{t0}, {FA_L}
        s_lshl_b32 s{sG}, s{t1}, 10
        s_lshl_b32 s{t2}, s{sW}, 3
        s_add_u32 s{sG}, s{sG}, s{t2}
        s_add_u32 s{sG}, s{sG}, {FA_G}
        s_lshl_b32 s{t2}, s{sW}, 1
        s_lshl_b32 s{sKV}, s{sC}, 6
        s_add_u32 s{sKV}, s{sKV}, s{t2}
        s_lshl_b32 s{sKV}, s{sKV}, 11
        s_add_u32 s{sKV}, s{sKV}, {aKV(layer)}
        s_lshl_b32 s{t3}, s{sX}, 8
        s_add_u32 s{t3}, s{t3}, s{sC}
        s_lshl_b32 s{t3}, s{t3}, 10
        s_add_u32 s{t3}, s{t3}, {aQ(layer)}
        """)
        for j in range(8):
            g.e(f"s_add_u32 s{t4 + j}, s{t2}, {2 + j}\ns_and_b32 s{t4 + j}, s{t4 + j}, 7\ns_lshl_b32 s{t4 + j}, s{t4 + j}, 15\ns_add_u32 s{t4 + j}, s{t4 + j}, s{t3}")
        g.e(f"s_lshl_b32 s3, s{sX}, 14\ns_add_u32 s3, s3, s{sKV}")
        g.vwait0()
        g.stamp(f"B{layer}:ack")
        if layer == 0 and cfg.b0_g:
            g.e(f"s_and_b32 s{t0}, s{sG}, 0xfffffc00\ns_lshl_b32 s4, s{sX}, 7\ns_add_u32 s{t0}, s{t0}, s4")
        else:
            g.signal(0, layer + 1, layer > 0 or cfg.xcc_early)
        if cfg.b_opt == 2 and layer > 0:
            g.poll(vt0, t0, layer + 1, True)
        else:
            l3, l0 = g.label("b3"), g.label("b0")
            g.e(f"s_barrier\ns_cmp_eq_u32 s{sW}, 3\ns_cbranch_scc0 {l3}")
            g.e(f"v_readlane_b32 s{t1}, v{vFl}, 1\nv_mov_b32 v{vt1}, {layer + 1}\ns_mov_b64 exec, 15\ns_sub_u32 s{t1}, s{t1}, 12\ns_nop 1")
            g.e(f"buffer_store_dword v{vt1}, v{vL4}, {sr(sWS, 4)}, s{t1} offen sc1\ns_mov_b64 exec, -1\n{l3}:")
            if layer == 0 and cfg.rl_in_a:
                l2 = g.label("b2")
                g.e(f"s_cmp_eq_u32 s{sW}, 2\ns_cbranch_scc0 {l2}\nv_mov_b32 v{vt1}, 1\ns_mov_b64 exec, 64")
                g.e(f"buffer_store_dword v{vt1}, v{vFl}, {sr(sWS, 4)}, 0 offen sc1\ns_mov_b64 exec, -1\n{l2}:")
            g.e(f"s_cmp_eq_u32 s{sW}, 0\ns_cbranch_scc0 {l0}")
            keep = list(g.vmq)
            p2, cfg.poll2 = cfg.poll2, 0
            g.poll(vt0, t0, layer + 1, False, sleep=0 if layer or cfg.xcc_early else cfg.b0_sleep)
            cfg.poll2 = p2
            g.vmq = keep
            g.e(f"{l0}:\ns_barrier")
            if layer > 0:
                g.dual("", "buffer_inv sc1\ns_waitcnt vmcnt(0)", 0)
        g.stamp(f"B{layer}go")

        def kv_addr1(kt):
            g.e(f"s_add_u32 s3, s{sX}, {kt // 2}\ns_and_b32 s3, s3, 7")

        def kv_addr2(kt):
            g.e(f"s_lshl_b32 s3, s3, 14\ns_add_u32 s3, s3, s{sKV}")

        def ldK(kt):
            g.ld(vr(KV + 12 * (kt % 3), 4), vL16, sWS, 3, (kt % 2) * 2048, mods=cfg.kvmods, tag=("K", kt))

        def ldV(kt, halves=(0, 1)):
            e = KV + 12 * (kt % 3)
            g.e(f"s_mov_b64 exec, s[{sVM}:{sVM + 1}]")
            for h in halves:
                g.ld(vr(e + 4 + 4 * h, 4), vV, sWS, 3, (kt % 2) * 2048 + 1024 + 512 * h, mods=cfg.kvmods, tag=("V", kt))
            g.e("s_mov_b64 exec, -1")

        def ldQ(j):
            g.ld(vr(Q + 4 * j, 4), vL16, sWS, t4 + j, 0, tag=("Q", j))
        ldK(0)
        ldQ(0)
        ldQ(1)
        ldV(0)
        for j in range(2, cfg.q_up):
            ldQ(j)
        if cfg.b_opt == 2 and layer > 0:
            for j in range(cfg.q_up, 8):
                ldQ(j)
            ldK(1)
        late_setup()
        if cfg.b_opt == 2 and layer > 0:
            ldV(1)
            g.signal(1, layer + 1, False)

        gaps = {}

        def at(n, gap, fn):
            gaps.setdefault((n, gap), []).append(fn)

        def place(ops, n0, gap0="A", allowed="AC", step=0):
            pos = 3 * n0 + "ABC".index(gap0)
            for op in ops:
                while "ABC"[pos % 3] not in allowed or (pos // 3, "ABC"[pos % 3]) in gaps:
                    pos += 1
                at(pos // 3, "ABC"[pos % 3], op)
                pos += 1 + step
            return pos // 3 + 1

        def spread(ops, n0, per_tile=3, gapset="ABC"):
            return place(ops, n0, gapset[0], gapset, 0 if per_tile > 1 else 2)

        for j in range(1, 8):
            at(j - 1, "a", lambda j=j: g.vwait(("Q", j)))
        at(0, "B", lambda: g.vwait(("V", 0)))
        for kt in range(1, 16):
            at(112 if kt == 15 and cfg.b_tail else 8 * kt - 1, "A", lambda kt=kt: g.vwait(("V", kt)))
        if not (cfg.b_opt == 2 and layer > 0):
            place([lambda j=j: ldQ(j) for j in range(cfg.q_up, 8)] + [lambda: ldK(1), lambda: ldV(1)], 0, "A", "AC")

        def red_addr(d):
            g.e(f"s_add_u32 s{t0}, s{sW}, {1 + d}\ns_and_b32 s{t0}, s{t0}, 3")
        def red_addr2(d):
            g.e(f"s_mul_i32 s{t0}, s{t0}, 6\ns_add_u32 s{t0}, s{t0}, {2 * d}")
        def red_addr3(d):
            g.e(f"s_lshl_b32 s{t1}, s{t0}, 11\ns_add_u32 s{t1}, s{t1}, {SBo}\nv_add_u32 v{(vt0, vt1)[d % 2]}, s{t1}, v{vL16}")
        def red_addr4(d):
            g.e(f"s_lshl_b32 s{t1}, s{t0}, 8\ns_add_u32 s{t1}, s{t1}, {SBl}\nv_add_u32 v{(vt2, vt3)[d % 2]}, s{t1}, v{vL4}")

        def red_wr(j, part):
            b = O + 16 * j
            s_ = j % 2
            va, vb = (vt0, vt1)[(j // 2) % 2], (vt2, vt3)[(j // 2) % 2]
            if part == 0:
                g.ds(f"ds_write_b128 v{va}, {vr(b, 4)} offset:{s_ * 2048}")
            elif part == 1:
                g.ds(f"ds_write_b128 v{va}, {vr(b + 4, 4)} offset:{s_ * 2048 + 1024}")
            else:
                g.ds(f"ds_write_b32 v{vb}, v{b + 8} offset:{s_ * 256}")
        order = [divmod(n, 8) for n in range(128)]
        if cfg.b_tail:
            order[112:] = [(14 + k, j) for j in range(6) for k in range(2)] + [(14, 6), (14, 7), (15, 6), (15, 7)]
            for j in range(6):
                for part in range(3):
                    at(115 + 2 * j, "ABC"[part], lambda j=j, part=part: red_wr(j, (0, 2, 1)[part]))
            for d, n in enumerate((112, 116, 120)):
                at(n, "B", lambda d=d: red_addr(d))
                at(n, "C", lambda d=d: red_addr2(d))
                at(n + 2, "A", lambda d=d: red_addr3(d))
                at(n + 2, "C", lambda d=d: red_addr4(d))
        else:
            for j in range(6):
                at(121 + j, "D", lambda j=j: red_wr(j, 2))
                at(121 + j, "D", lambda j=j: red_wr(j, 0))
                at(122 + j, "A", lambda j=j: red_wr(j, 1))
            for d, n in enumerate((117, 119, 124)):
                at(n, "B", lambda d=d: red_addr(d))
                at(n, "C", lambda d=d: red_addr2(d))
                at(n + 1, "B", lambda d=d: red_addr3(d))
                at(n + 1, "C", lambda d=d: red_addr4(d))
        PB = 16

        def own_addr():
            g.e(f"""
            s_mul_i32 s{t0}, s{sW}, 6
            s_lshl_b32 s{t1}, s{t0}, 11
            s_add_u32 s{t1}, s{t1}, {SBo}
            v_add_u32 v{vt1}, s{t1}, v{vL16}
            s_lshl_b32 s{t1}, s{t0}, 8
            s_add_u32 s{t1}, s{t1}, {SBl}
            v_add_u32 v{vt3}, s{t1}, v{vL4}
            """)

        def own_bar():
            g.vwait("w13a")
            g.lwait0()
            g.e("s_barrier")

        def own_rd(s_, ds_=(0, 1, 2)):
            for d in ds_:
                b = PB + 10 * (3 * s_ + d)
                g.ds(f"ds_read_b128 {vr(b, 4)}, v{vt1} offset:{(2 * d + s_) * 2048}", ("p", s_))
                g.ds(f"ds_read_b128 {vr(b + 4, 4)}, v{vt1} offset:{(2 * d + s_) * 2048 + 1024}", ("p", s_))
                g.ds(f"ds_read_b32 v{b + 8}, v{vt3} offset:{(2 * d + s_) * 256}", ("p", s_))

        def o_addr():
            g.e(f"""
            s_lshl_b32 s{t0}, s{sX}, 3
            s_lshl_b32 s{t1}, s{sW}, 1
            s_add_u32 s{t0}, s{t0}, s{t1}
            s_lshl_b32 s{t0}, s{t0}, 5
            s_add_u32 s{t0}, s{t0}, s{sC}
            s_lshl_b32 s{t0}, s{t0}, 10
            s_add_u32 s{t0}, s{t0}, {aO(layer)}
            s_add_u32 s{t1}, s{t0}, 32768
            """)
        if cfg.b_tail:
            at(124, "A", own_addr)
            at(124, "C", o_addr)
            at(126, "A", own_bar)
            at(126, "B", lambda: own_rd(0, (0,)))
            at(126, "C", lambda: own_rd(0, (1, 2)))
            at(127, "A", lambda: own_rd(1, (0, 1)))
            at(127, "B", lambda: own_rd(1, (2,)))
        else:
            at(126, "C", own_addr)
            at(127, "B", own_bar)
            at(127, "C", lambda: own_rd(0))
            at(127, "D", lambda: own_rd(1))

        vG, vGd = 253, 249

        def gpoll_ld():
            g.ld(vr(vGd), vG, sWS, sG, 0, tag="gf", w=1)

        def gpoll_snap():
            g.vwait("gf")
            g.e(f"v_cmp_gt_u32 s[{sSN2}:{sSN2 + 1}], {layer + 1}, v{vGd}")

        def gcheck(kt):
            ls, lj, lp = g.label("gslow"), g.label("gjoin"), g.label("gp")
            m = 3 << kt
            g.e(f"s_and_b32 s{sTO}, s{sSN2}, {m}\ns_cbranch_scc1 {ls}\n{lj}:")
            g.tail.append(f"""{ls}:
            s_mov_b32 s{sTO}, {TIMEOUT}
            {lp}:
            buffer_load_dword v{vGd}, v{vG}, {sr(sWS, 4)}, s{sG} offen sc1
            s_sub_u32 s{sTO}, s{sTO}, 1
            s_cbranch_scc1 L_exit
            s_waitcnt vmcnt(0)
            v_cmp_gt_u32 s[{sSN2}:{sSN2 + 1}], {layer + 1}, v{vGd}
            s_nop 1
            s_and_b32 s4, s{sSN2}, {m}
            s_cbranch_scc0 {lj}
            s_sleep 2
            s_branch {lp}""")
        gp = cfg.gp[layer]
        place([gpoll_ld], gp, "C")
        n = place([gpoll_snap, lambda: gcheck(2), lambda: kv_addr1(2), lambda: kv_addr2(2), lambda: ldK(2), lambda: ldV(2)], gp + 3, "B", "ABC")
        for kt in range(3, 16):
            n = max(8 * (kt - 2), n)
            if kt % 2 == 0:
                place([lambda kt=kt: gcheck(kt), lambda kt=kt: kv_addr1(kt), lambda kt=kt: kv_addr2(kt)], n - 2, "A", "AC")
            if cfg.v_split:
                n = place([lambda kt=kt: ldK(kt), lambda kt=kt: ldV(kt, (0,)), lambda kt=kt: ldV(kt, (1,))], n, "A", "AC")
            else:
                n = place([lambda kt=kt: ldK(kt), lambda kt=kt: ldV(kt)], n, "A", "AC")

        def w13base():
            g.e(f"s_mul_i32 s{t11 - 1}, s{sHP}, 229376\ns_add_u32 s{t11 - 1}, s{t11 - 1}, {W13}")
        if layer == 0:
            n = cfg.rl0
            if cfg.rl_in_b:
                def rl_bar():
                    g.vwait(("rl", 1))
                    g.e("s_barrier")
                n = spread(g.relayout_dma_ops(), cfg.rl0, 3, "ABC") + cfg.rl_lat
                at(n - 1, "C", rl_bar)
            if cfg.cold_touch:
                ct = [lambda: g.e(f"v_and_b32 v250, 0x3c0, v{vL16}\nv_lshlrev_b32 v250, 1, v250")]
                xa, sa = g.x_addr(layer, 0, t4, t5)
                groups = [g.touch_ops(xa, t4, 1, 250, 251) + g.touch_ops(sa, t4, 1, 250, 251)]
                if cfg.cold_touch > 1:
                    hh = g.touch_ops(g.h_addr(layer, t4, t5), t4, 4, 250, 251)
                    groups += [hh[:3], hh[3:4], hh[4:5], hh[5:]] if cfg.cold_touch == 3 else [hh[:4], hh[4:]]
                at(cfg.ct0, "A", ct[0])
                for gi, grp in enumerate(groups):
                    spread(grp, cfg.ct0 + 1 + 8 * gi, 3, "ABC")
            place([lambda: g.e(f"v_bfe_u32 v250, v{vL16}, 4, 5\nv_lshlrev_b32 v250, 10, v250"),
                   lambda: g.e(f"v_lshrrev_b32 v251, 9, v{vL16}\nv_lshl_add_u32 v250, v251, 4, v250"),
                   lambda: g.e(f"s_lshl_b32 s{t0}, s{sCB}, 1\ns_add_u32 s{t0}, s{t0}, s{sNA}"),
                   lambda: g.e(f"s_lshl_b32 s{t0}, s{t0}, 6\ns_lshl_b32 s{t1}, s{sTA}, 15"),
                   lambda: g.e(f"s_add_u32 s{t0}, s{t0}, s{t1}"),
                   lambda: g.ld(vr(vRes, 4), 250, sXIN, t0, 0, mods="", tag="res"),
                   lambda: g.ld(vr(vRes + 4, 4), 250, sXIN, t0, 32, mods="", tag="res")], 9, "A", "AC")
            if not cfg.xcc_early:
                at(8, "A", g.xcc_send)
                at(100, "B", g.xcc_load)
                at(105, "B", g.xcc_check)
            if not cfg.rl_in_a:
                for op, gap in g.relayout_out_ops():
                    if gap == "X":
                        at(n, "C", op)
                        n += 1
                    else:
                        at(n, gap, op)
                        n += gap == "D"

                def rl_sig():
                    g.vwait("rlst")
                    g.e("s_barrier")
                    L = g.label("rls")
                    g.e(f"v_mov_b32 v{vt1}, 1\ns_cmp_eq_u32 s{sW}, 0\ns_cbranch_scc0 {L}\ns_mov_b64 exec, 64")
                    g.e(f"buffer_store_dword v{vt1}, v{vFl}, {sr(sWS, 4)}, 0 offen sc1\ns_mov_b64 exec, -1\n{L}:")
                    g.stamp("R_sig")
                n += cfg.rl_ack
                at(n, "A", rl_sig)

            def rl_ld():
                g.e(f"s_mov_b32 s{t10}, {FR}\nv_lshlrev_b32 v248, 3, v{vL16}")
                g.ld(vr(244, 4), 248, sWS, t10, 0, tag="rf")

            def rl_check():
                g.stamp("R_pre")
                g.late_check("rf", f"buffer_load_dwordx4 v[244:247], v248, {sr(sWS, 4)}, s{t10} offen sc1",
                             "v_min_u32 v244, v244, v245\nv_min3_u32 v244, v244, v246, v247\nv_cmp_gt_u32 vcc, 1, v244", cfg.rl_sleep)
                g.stamp("R_chk")
            n = cfg.rl_ld if cfg.rl_in_a else n + cfg.rl_gap
            at(n, "A", rl_ld)
            n += 5
            at(n, "A", rl_check)
            n0 = n + 1
        else:
            n0 = 10
        at(n0, "A", w13base)

        def costed(ops, nsetup, c):
            return [(op, 0.0) for op in ops[:nsetup]] + [(op, 0.0 if isinstance(op, SOp) else c) for op in ops[nsetup:]]
        pops = costed(g.dma_ops(0, 26, t11 - 1, 0, "w13a", (t8, t9)), 2, 0.5)
        if layer == 0 and cfg.ew_in_b:
            pops += costed(g.ew_ops(0, cfg.ew_in_b, (t8, t9)), 4, 0.25)
        p16 = lambda: g.e(f"v_and_b32 v254, 0x3c0, v{vL16}\nv_lshlrev_b32 v254, 1, v254")
        pops.append((p16, 0.0))
        npf = cfg.pf_w13[layer]
        if npf:
            pa = [f"s_lshr_b32 s{t4}, s{sC}, 4\ns_lshl_b32 s{t4}, s{t4}, 2", f"s_add_u32 s{t4}, s{t4}, s{sW}\ns_mul_i32 s{t4}, s{t4}, {npf * 2048}",
                  f"s_add_u32 s{t4}, s{t4}, s{t11 - 1}\ns_add_u32 s{t4}, s{t4}, {104 * 1024}"]
            pops += costed(g.touch_ops(pa, t4, npf, 254, 255), 3, 2.0)
        pa = [f"s_mul_i32 s{t4}, s{sHP}, 7168\ns_lshl_b32 s{t5}, s{sW}, 11", f"s_add_u32 s{t4}, s{t4}, s{t5}\ns_add_u32 s{t4}, s{t4}, {WX13}"]
        pops += costed(g.touch_ops(pa, t4, 1, 254, 255), 2, 1.0)
        if "B" in cfg.touch:
            xa, sa = g.x_addr(layer, 0, t4, t5)
            oa = [f"s_lshl_b32 s{t4}, s{sX}, 2\ns_add_u32 s{t4}, s{t4}, s{sW}", f"s_lshl_b32 s{t4}, s{t4}, 6\ns_add_u32 s{t4}, s{t4}, s{sC}",
                  f"s_lshl_b32 s{t4}, s{t4}, 10\ns_add_u32 s{t4}, s{t4}, {aO(layer)}"]
            if "H" in cfg.touch:
                pops += costed(g.touch_ops(g.h_addr(layer, t4, t5), t4, 4, 254, 255), 2, 1.75)
            pops += costed(g.touch_ops(xa, t4, 1, 254, 255), 3, 2.0) + costed(g.touch_ops(sa, t4, 1, 254, 255), 3, 0.3)
            pops += costed(g.touch_ops(oa, t4, 1, 254, 255), 3, 1.0)
            pops += costed(g.touch_ops([f"s_add_u32 s{t4}, s{t4}, 32768"], t4, 1, 254, 255), 1, 1.0)

        cws = [f"s_lshl_b32 s{t8}, s{sCB}, 16\ns_lshl_b32 s{t9}, s{sW}, 14", f"s_add_u32 s{t8}, s{t8}, s{t9}\ns_lshl_b32 s{t9}, s{sNA}, 10",
               f"s_add_u32 s{t8}, s{t8}, s{t9}\ns_add_u32 s{t8}, s{t8}, {WO}", f"s_xor_b32 s{t9}, s{t8}, 1024"]
        cw = []
        for idx in range(16):
            def op(idx=idx):
                i, n_ = divmod(idx, 2)
                if idx and idx % 4 == 0:
                    g.e(f"s_add_u32 s{t8}, s{t8}, 4096\ns_add_u32 s{t9}, s{t9}, 4096")
                g.ld(CW[idx](0, 4), vL16, sWS, (t8, t9)[n_], (i % 2) * 2048, mods=g.cfg.wmods, tag="cw")
            cw.append(op)
        pops += costed([lambda t=t: g.e(t) for t in cws] + cw[:8], 4, 0.25)
        if "n" in cfg.dbg and layer == 1:
            pops = [(op, c) for op, c in pops if c == 0.0]
        if cfg.keep is not None and layer == 1:
            pops = [(op if c == 0.0 or c in cfg.keep else (lambda: None), c) for op, c in pops]
        tot = sum(c + 0.05 for _, c in pops)
        span = cfg.bg_end - (n0 + 1)
        acc, nxt = 0.0, 0
        for op, c in pops:
            pos = max(3 * (n0 + 1) + int(3 * acc / tot * span), nxt)
            allowed = "AC" if cfg.bg_ac and layer else "ABC"
            while "ABC"[pos % 3] not in allowed or (pos // 3, "ABC"[pos % 3]) in gaps:
                pos += 1
            at(pos // 3, "ABC"[pos % 3], op)
            nxt = pos + 1
            acc += c + 0.05
        assert nxt // 3 < (113 if cfg.b_tail else 116), (n0, nxt)
        if cfg.b_tail:
            n = place(cw[8:13], 113, "A", "ABC")
            place(cw[13:], max(n, 118), "A", "ABC")
        else:
            place(cw[8:11], 116, "A", "AC")
            place(cw[11:], 121, "B", "BC")

        def run(n, gap):
            for fn in gaps.pop((n, gap), []):
                if "k" in cfg.dbg and layer == 1 and 16 <= n < 112:
                    continue
                fn()

        def qk(n):
            kt, j = order[n]
            g.e(f"v_mfma_f32_32x32x16_bf16 {vr(S + 16 * (n % 2), 16)}, {vr(KV + 12 * (kt % 3), 4)}, {vr(Q + 4 * j, 4)}, 0")

        def pv(n, half):
            kt, j = order[n]
            g.e(f"v_smfmac_f32_32x32x32_bf16 {vr(O + 16 * j, 16)}, {vr(KV + 12 * (kt % 3) + 4 + 4 * half, 4)}, {vr(S + 16 * (n % 2) + 8 * half, 8)}, v{vIdx}")

        g.stamp(f"B{layer}:ld")
        g.vwait(("Q", 0))
        g.stamp(f"B{layer}:q0")
        qk(0)
        for n in range(128):
            if cfg.b_align and n % cfg.b_align == 0:
                g.e(".p2align 3, , 4" if False else "")
            sb = S + 16 * (n % 2)
            ex = [f"v_exp_f32 v{sb + i}, v{sb + i}" for i in range(16)]
            g.e("\n".join(ex[0:2]))
            if n:
                pv(n - 1, 1)
            run(n, "A")
            run(n, "a")
            g.e("\n".join(ex[2:5]))
            if n < 127:
                qk(n + 1)
            run(n, "B")
            g.e("\n".join(ex[5:10]))
            pv(n, 0)
            run(n, "C")
            g.e("\n".join(ex[10:16]))
            run(n, "D")
            if n % 8 == 7:
                g.stamp(f"B{layer}_{n // 8}")
            if n in (0, 2, 5, 7, 15, 119, 123, 127):
                g.stamp(f"B{layer}:t{n}")
        assert not gaps, gaps.keys()
        pv(127, 1)
        if not cfg.b_tail:
            o_addr()
        for s_ in range(2):
            ob = O + 16 * (6 + s_)
            g.lwait(("p", s_))
            b0 = PB + 30 * s_
            if s_ == 1:
                for d in (1, 2):
                    g.e(f"v_add_f32 v{b0 + 8}, v{b0 + 8}, v{b0 + 10 * d + 8}")
                    for i in range(0, 8, 2):
                        g.e(f"v_pk_add_f32 {vr(b0 + i, 2)}, {vr(b0 + i, 2)}, {vr(b0 + 10 * d + i, 2)}")
            for d in range(3 if s_ == 0 else 1):
                b = b0 + 10 * d
                g.e(f"v_add_f32 v{ob + 8}, v{ob + 8}, v{b + 8}")
                for i in range(0, 8, 2):
                    g.e(f"v_pk_add_f32 {vr(ob + i, 2)}, {vr(ob + i, 2)}, {vr(b + i, 2)}")
        g.stamp(f"B{layer}:sum")
        g.softmax_guard(layer, O + 96, O + 112)
        for s_ in range(2):
            ob = O + 16 * (6 + s_)
            g.e(f"v_rcp_f32 v{ob + 10}, v{ob + 8}\ns_nop 0")
            for i in range(0, 8, 2):
                g.e(f"v_pk_mul_f32 {vr(ob + i, 2)}, {vr(ob + i, 2)}, {vr(ob + 10, 2)} op_sel_hi:[1,0]")
            for i in range(4):
                g.e(f"v_cvt_pk_bf16_f32 v{ob + 12 + i}, v{ob + 2 * i}, v{ob + 2 * i + 1}")
            g.st(vr(ob + 12, 4), vL16, sWS, (t0, t1)[s_], 0, tag="ost")
        g.stamp(f"B{layer}st")
        self.CW = CW

    def softmax_guard(self, layer, o0, o1):
        g = self
        Q, S, KV, vV = 144, 176, 208, 252
        M, T = 16, 18
        ls, lj, l1, l2 = g.label("fb"), g.label("fbj"), g.label("fb1"), g.label("fb2")
        for k, o in enumerate((o0, o1)):
            g.e(f"v_maximum3_f32 v{T + k}, abs(v{o}), abs(v{o + 1}), abs(v{o + 2})")
            g.e(f"v_maximum3_f32 v{T + k}, abs(v{o + 3}), abs(v{o + 4}), v{T + k}")
            g.e(f"v_maximum3_f32 v{T + k}, abs(v{o + 5}), abs(v{o + 6}), v{T + k}")
        g.e(f"""
        v_maximum3_f32 v{T}, abs(v{o0 + 7}), abs(v{o1 + 7}), v{T}
        v_minimum3_f32 v{M}, v{o0 + 8}, v{o1 + 8}, v{o1 + 8}
        v_maximum3_f32 v{M + 1}, v{o0 + 8}, v{o1 + 8}, v{o1 + 8}
        v_maximum3_f32 v{T}, v{T}, v{T + 1}, v{T + 1}
        s_mov_b32 s{t2}, {f2u(2.0 ** -64):#x}
        s_mov_b32 s{t3}, {f2u(2.0 ** 120):#x}
        s_mov_b32 s{t4}, 0x7f7fffff
        v_cmp_nle_f32 vcc, s{t2}, v{M}
        v_cmp_nge_f32 s[{t6}:{t7}], s{t3}, v{M + 1}
        v_cmp_nge_f32 s[{t10}:{t11}], s{t4}, v{T}
        s_nop 0
        s_or_b64 vcc, vcc, s[{t6}:{t7}]
        s_or_b64 vcc, vcc, s[{t10}:{t11}]
        s_cbranch_{'scc0' if g.cfg.force_fallback else 'scc1'} {ls}
        {lj}:
        """)
        fb = [f"{ls}:", f"s_lshl_b32 s{t2}, s{sC}, 17", f"s_add_u32 s{t2}, s{t2}, {aKV(layer)}", f"s_mov_b32 s{t3}, s{t2}",
              f"s_add_u32 s{t4}, s{t2}, 0x20000", f"v_mov_b32 v{M}, 0xff800000", f"v_mov_b32 v{M + 1}, 0xff800000", f"{l1}:",
              f"buffer_load_dwordx4 {vr(KV, 4)}, v{vL16}, {sr(sWS, 4)}, s{t3} offen sc1", "s_waitcnt vmcnt(0)"]
        for k in range(2):
            fb.append(f"v_mfma_f32_32x32x16_bf16 {vr(S + 16 * k, 16)}, {vr(KV, 4)}, {vr(Q + 24 + 4 * k, 4)}, 0")
        fb.append("s_nop 15")
        for k in range(2):
            for i in range(0, 16, 2):
                fb.append(f"v_max3_f32 v{M + k}, v{S + 16 * k + i}, v{S + 16 * k + i + 1}, v{M + k}")
        fb += [f"s_add_u32 s{t3}, s{t3}, 2048", f"s_cmp_lt_u32 s{t3}, s{t4}", f"s_cbranch_scc1 {l1}"]
        for k in range(2):
            fb += [f"v_mov_b32 v{T}, v{M + k}", "s_nop 1", f"v_permlane32_swap_b32 v{M + k}, v{T}", f"v_max_f32 v{M + k}, v{M + k}, v{T}"]
        for o in (o0, o1):
            fb += [f"v_mov_b32 v{o + r}, 0" for r in range(16)]
        fb += [f"s_mov_b32 s{t3}, s{t2}", f"{l2}:",
               f"buffer_load_dwordx4 {vr(KV, 4)}, v{vL16}, {sr(sWS, 4)}, s{t3} offen sc1",
               f"s_mov_b64 exec, s[{sVM}:{sVM + 1}]",
               f"buffer_load_dwordx4 {vr(KV + 4, 4)}, v{vV}, {sr(sWS, 4)}, s{t3} offen offset:1024 sc1",
               f"buffer_load_dwordx4 {vr(KV + 8, 4)}, v{vV}, {sr(sWS, 4)}, s{t3} offen offset:1536 sc1",
               "s_mov_b64 exec, -1", "s_waitcnt vmcnt(0)"]
        for k in range(2):
            fb.append(f"v_mfma_f32_32x32x16_bf16 {vr(S + 16 * k, 16)}, {vr(KV, 4)}, {vr(Q + 24 + 4 * k, 4)}, 0")
        fb.append("s_nop 15")
        for k in range(2):
            fb += [f"v_sub_f32 v{S + 16 * k + i}, v{S + 16 * k + i}, v{M + k}" for i in range(16)]
            fb += [f"v_exp_f32 v{S + 16 * k + i}, v{S + 16 * k + i}" for i in range(16)]
        fb.append("s_nop 1")
        for k, o in enumerate((o0, o1)):
            for h in range(2):
                fb.append(f"v_smfmac_f32_32x32x32_bf16 {vr(o, 16)}, {vr(KV + 4 + 4 * h, 4)}, {vr(S + 16 * k + 8 * h, 8)}, v{vIdx}")
        fb += [f"s_add_u32 s{t3}, s{t3}, 2048", f"s_cmp_lt_u32 s{t3}, s{t4}", "s_nop 7", f"s_cbranch_scc1 {l2}", "s_nop 15", f"s_branch {lj}"]
        g.tail.append("\n".join(fb))

    def reduce_write(self, acc, d, base):
        g = self
        ops = []

        def addr():
            g.e(f"s_xor_b32 s{t6}, s{sW}, {d}\ns_mul_i32 s{t6}, s{t6}, 12288")
        def addr2():
            g.e(f"s_add_u32 s{t6}, s{t6}, {base + (d - 1) * 4096}\nv_add_u32 v{vt0}, s{t6}, v{vL16}")
        ops += [addr, addr2]
        for q in range(4):
            ops.append(lambda q=q: g.ds(f"ds_write_b128 v{vt0}, {vr(acc + 4 * q, 4)} offset:{q * 1024}"))
        return ops

    def reduce_pre_ops(self, layer, which, base, Z, final):
        g = self
        ops = [f"s_mul_i32 s{t6}, s{sW}, 12288\ns_add_u32 s{t6}, s{t6}, {base}", f"v_add_u32 v{vt2}, s{t6}, v{vL16}"]
        for i in range(8):
            ops += [f"v_lshlrev_b32 v{Z + 2 * i}, 16, v{vRes + i}", f"v_and_b32 v{Z + 2 * i + 1}, s{sMask}, v{vRes + i}"]
        ops.append(f"s_lshl_b32 s{t0}, s{sCB}, 1\ns_add_u32 s{t0}, s{t0}, s{sNA}")
        if final:
            ops.append(lambda: g.srd(sOUT, pOUT, 2048 * 1024))
            ops += [f"v_bfe_u32 v{vt3}, v{vL16}, 4, 5", f"v_lshlrev_b32 v{vt3}, 10, v{vt3}", f"v_lshrrev_b32 v{vIdx}, 9, v{vL16}",
                    f"v_lshl_add_u32 v{vt3}, v{vIdx}, 4, v{vt3}",
                    f"s_lshl_b32 s{t7}, s{sTA}, 15\ns_lshl_b32 s{t8}, s{t0}, 6", f"s_add_u32 s{t7}, s{t7}, s{t8}"]
        else:
            ops += [f"v_mov_b32 v{vt3}, 0x3f803f80",
                    f"s_lshl_b32 s{t7}, s{sTA}, 15\ns_lshl_b32 s{t8}, s{t0}, 11",
                    f"s_add_u32 s{t7}, s{t7}, s{t8}\ns_add_u32 s{t7}, s{t7}, {aX(layer, which)}",
                    f"s_lshl_b32 s{t8}, s{sTA}, 12\ns_lshr_b32 s{t9}, s{t0}, 2",
                    f"s_lshl_b32 s{t9}, s{t9}, 10\ns_add_u32 s{t8}, s{t8}, s{t9}",
                    f"s_and_b32 s{t9}, s{t0}, 3\ns_lshl_b32 s{t9}, s{t9}, 2",
                    f"s_add_u32 s{t8}, s{t8}, s{t9}\ns_add_u32 s{t8}, s{t8}, {aST(layer, which)}"]
        return ops

    def reduce_pre(self, layer, which, base, Z, final):
        self.take(deque(self.reduce_pre_ops(layer, which, base, Z, final)), 999)

    def reduce_read_ops(self, ds_, PB, Z, pk=False):
        g = self
        ops = []

        def bar():
            g.lwait0()
            g.e("s_barrier")
        ops.append(bar)
        for k, d in enumerate(ds_):
            for q in range(4):
                ops.append(lambda k=k, d=d, q=q: g.ds(
                    f"ds_read_b128 {vr(PB + 16 * k + 4 * q, 4)}, v{vt2} offset:{(d - 1) * 4096 + q * 1024}", ("p", d, q)))
        for k, d in enumerate(ds_):
            for q in range(4):
                def add(k=k, d=d, q=q):
                    g.lwait(("p", d, q))
                    if pk:
                        for i in range(4 * q, 4 * q + 4, 2):
                            g.e(f"v_pk_add_f32 {vr(Z + i, 2)}, {vr(Z + i, 2)}, {vr(PB + 16 * k + i, 2)}")
                        return
                    for i in range(4 * q, 4 * q + 4):
                        g.e(f"v_add_f32 v{Z + i}, v{Z + i}, v{PB + 16 * k + i}")
                ops.append(add)
        return ops

    def reduce_finish(self, layer, which, acc, Z, final):
        g = self
        g.stamp(f"{'CE'[which]}{layer}_r0")
        for h in range(2):
            for i in range(8 * h, 8 * h + 8, 2):
                g.e(f"v_pk_add_f32 {vr(acc + i, 2)}, {vr(acc + i, 2)}, {vr(Z + i, 2)}")
            for i in range(4 * h, 4 * h + 4):
                g.e(f"v_cvt_pk_bf16_f32 v{vRes + i}, v{acc + 2 * i}, v{acc + 2 * i + 1}")
            if final:
                g.st(vr(vRes + 4 * h, 4), vt3, sOUT, t7, 32 * h, g.cfg.out_mods)
            else:
                g.st(vr(vRes + 4 * h, 4), vL16, sWS, t7, 1024 * h)
        if final:
            return
        for i in range(4):
            g.e(f"v_mov_b32 v{Z + i}, 0")
        for i in range(8):
            g.e(f"v_dot2c_f32_bf16 v{Z + i % 2}, v{vRes + i}, v{vt3}")
            g.e(f"v_dot2c_f32_bf16 v{Z + 2 + i % 2}, v{vRes + i}, v{vRes + i}")
        g.e(f"s_nop 1\nv_add_f32 v{Z}, v{Z}, v{Z + 1}\nv_add_f32 v{Z + 2}, v{Z + 2}, v{Z + 3}\ns_nop 1")
        g.e(f"v_permlane32_swap_b32 v{Z}, v{Z + 2}\nv_add_f32 v{Z}, v{Z}, v{Z + 2}")
        g.dual(g.st_text(vr(Z), vL16, sWS, t8, 0, "", 1), g.st_text(vr(Z), vL16, sWS, t8, 0, "sc1", 1), 1)
        g.vmq[-1] = "stst"

    def splitk_body(self, nks, wreg, hreg, ldh, nup, AC, PB, Z, SC, SK, name, extra=(), after=()):
        g = self
        nxt = [nup]
        after = deque(after)
        for m in range(nup):
            ldh(m)

        def more():
            if nxt[0] < 2 * nks and nxt[0] - self.ring < self.consumed:
                ldh(nxt[0])
                nxt[0] += 1
            elif nxt[0] == 2 * nks and after:
                after.popleft()()

        def mf(tk, n, i):
            m = i if tk else nks + i
            acc = AC[2 * tk + n]
            c = vr(acc, 16) if i else "0"
            g.e(f"v_mfma_f32_32x32x16_bf16 {vr(acc, 16)}, {wreg(2 * i + n)}, {hreg(m)}, {c}")
        side = deque()

        def pop(k=1):
            for _ in range(k):
                if side:
                    o = side.popleft()
                    if o:
                        o()
        self.consumed = 0
        for i in range(nks):
            g.vwait(("h", i))
            if i == 0:
                g.stamp(f"Z{name[1]}:Cfirst")
            mf(1, 1, i)
            mf(1, 0, i)
            self.consumed = i + 1
            more()
            if i % 8 == 7:
                g.stamp(f"{name}_{i}")
        w3 = g.reduce_write(AC[3], 3, SC)
        w2 = g.reduce_write(AC[2], 2, SC)
        w1 = g.reduce_write(AC[1], 1, SC)
        side.extend(w3[:2] + [None] * 2 + w3[2:] + w2)
        early = nks >= 16 or g.cfg.early_c
        if early:
            side.extend([None] * 2 + g.reduce_read_ops((3, 2), PB, Z))
        side.extend(extra)
        per = 1 if nks >= 16 else (4 if early else 2)
        for i in range(nks + SK):
            if i < nks:
                g.vwait(("h", nks + i))
                mf(0, 1, i)
                more()
                pop(per)
            if i == nks:
                g.stamp(f"Z{name[1]}:CAB")
                pop(len(side))
                side.extend(w1[:2] + [None] * 3 + w1[2:])
                rr = g.reduce_read_ops((1,) if early else (3, 2, 1), PB, Z, pk=g.cfg.c_pk)
                side.extend(rr)
                per = -(-(len(side) - (len(rr) // 2 if g.cfg.c_pk else 0)) // SK)
            if i >= SK:
                mf(0, 0, i - SK)
                pop(per)
            if i % 8 == 7:
                g.stamp(f"{name}_a{i}")
        pop(len(side))
        while after:
            after.popleft()()

    def phaseC(self, layer):
        g = self
        CW = g.CW
        OF = 144
        AC = [16, 32, 48, 64]
        PB, Z = 80, 128
        SC = 104 * 1024
        g.e(f"""
        v_and_b32 v{vt0}, 28, v{vL4}
        s_lshl_b32 s{t2}, s{sX}, 2
        s_lshr_b32 s{t3}, s{sC}, 3
        s_add_u32 s{t2}, s{t2}, s{t3}
        s_lshl_b32 s{t2}, s{t2}, 2
        s_add_u32 s{t2}, s{t2}, s{sW}
        s_lshl_b32 s{t2}, s{t2}, 7
        s_add_u32 s{t2}, s{t2}, {FB}
        s_lshl_b32 s{t3}, s{sTB}, 15
        s_lshl_b32 s{t4}, s{sW}, 13
        s_add_u32 s{t3}, s{t3}, s{t4}
        s_add_u32 s{t3}, s{t3}, {aO(layer)}
        s_xor_b32 s{t4}, s{t3}, 32768
        """)
        g.vwait("ost")
        g.stamp(f"Z{layer}:Back")
        g.signal(2, layer + 1, True)
        g.e("s_barrier")
        g.reduce_pre(layer, 0, SC, Z, False)
        g.poll(vt0, t2, layer + 1, True)
        g.stamp(f"C{layer}go")

        def ofr(m):
            return 208 + 4 * m if m < 3 and g.cfg.b_tail else OF + 4 * m

        def ldo(m):
            tk, i = (1, m) if m < 8 else (0, m - 8)
            so = t3 if tk else t4
            if i == 4:
                g.e(f"s_add_u32 s{so}, s{so}, 4096")
            g.ld(vr(ofr(m), 4), vL16, sWS, so, (i % 4) * 1024, tag=("h", m))
        self.ring = 16
        after = []
        if "C" in g.cfg.touch:
            after = [lambda: g.e(f"v_and_b32 v{vt1}, 0x3c0, v{vL16}\nv_lshlrev_b32 v{vt1}, 1, v{vt1}")]
            after += g.touch_ops(g.h_addr(layer, t9, t10), t9, 4, vt1, vIdx)
        if g.cfg.c_pre:
            after += [lambda: g.e(f"s_mul_i32 s{t9}, s{sHP}, 7168\ns_add_u32 s{t9}, s{t9}, {WX13}\ns_add_u32 s{t10}, s{t9}, 4096")]
            after += [lambda n=n: g.ld(vr(g.D_AX[n], 4), vL16, sWS, (t9, t10)[n // 4], (n % 4) * 1024, tag=("ax", n)) for n in g.D_AXPRE]
            after += [lambda: g.e(f"s_mul_i32 s{t11}, s{sHP}, 229376\ns_add_u32 s{t11}, s{t11}, {W13}")]
            after += g.dma_ops(152, 2, t11, 152 * 1024, "w13e", (t9, t10))
        g.splitk_body(8, lambda i: CW[i](0, 4), lambda m: vr(ofr(m), 4), ldo, g.cfg.up_c, AC, PB, Z, SC, 8, f"C{layer}", after=after)
        g.reduce_finish(layer, 0, AC[0], Z, False)
        g.stamp(f"C{layer}st")

    def phaseD(self, layer):
        g = self
        cfg = g.cfg
        p421 = cfg.passes == [(0, 4), (4, 6), (6, 7)]
        assert p421 or cfg.passes[:2] in ([(0, 3), (3, 5)], [(0, 2), (2, 4)])
        X = 16
        ACC = [144 + 16 * i for i in range(6)] + [144] if p421 else [144, 160, 176, 192, 208, 144, 160]
        vB = [vL16, 240, 241]
        kexp, cden = 242, 243
        ET = 244
        BX = 248
        AX = g.D_AX
        SB = 224
        g.e(f"v_and_b32 v{vt0}, 60, v{vL4}\ns_lshl_b32 s{t2}, s{sT}, 7\ns_add_u32 s{t2}, s{t2}, {FC}")
        g.e(f"v_add_u32 v{vB[1]}, 0x10000, v{vL16}\nv_add_u32 v{vB[2]}, 0x20000, v{vL16}")
        g.e(f"s_mul_i32 s{t11}, s{sHP}, 229376\ns_add_u32 s{t11}, s{t11}, {W13}")
        g.e(f"s_mul_i32 s{t3}, s{sHP}, 7168\ns_mul_i32 s6, s{sT}, {112 * 1024}\ns_add_u32 s6, s6, s{t3}\ns_add_u32 s6, s6, {aH(layer)}\ns_add_u32 s7, s6, 4096")
        g.e(f"s_add_u32 s{t3}, s{t3}, {WX13}\ns_add_u32 s3, s{t3}, 4096")
        g.vwait("stst")
        g.stamp(f"Z{layer}:Cack")
        g.signal(3, layer + 1, True)
        g.e("s_barrier")

        def wread(f):
            slot = f % 160
            g.ds(f"ds_read_b128 {ar(WB + 4 * (f % 8), 4)}, v{vB[slot // 64]} offset:{(slot % 64) * 1024}", ("w", f))
        LEAD = 7
        for f in range(LEAD):
            wread(f)
        pre, xrest, stl = g.load_x_stats(layer, 0, aX(layer, 0), X, SB, cfg.up_d)
        xrest = deque(xrest)
        g.poll(vt0, t2, layer + 1, True)
        g.stamp(f"D{layer}go")
        pre()
        side = deque()
        mem = deque()

        def epi_ops(n):
            a = ACC[n]
            ops = []
            for half in range(2):
                r0 = a + 4 * half
                for i in range(4):
                    ops.append(f"v_mul_f32 v{ET + i}, v{kexp}, v{r0 + i}")
                for i in range(4):
                    ops.append(f"v_exp_f32 v{ET + i}, v{ET + i}")
                for i in range(4):
                    ops.append(f"v_mul_f32 v{r0 + i}, v{r0 + i}, v{r0 + 8 + i}")
                for i in range(4):
                    ops.append(f"v_fma_f32 v{ET + i}, v{ET + i}, v{cden}, v{cden}")
                for i in range(4):
                    ops.append(f"v_rcp_f32 v{ET + i}, v{ET + i}")
                for i in range(4):
                    ops.append(f"v_mul_f32 v{r0 + i}, v{r0 + i}, v{ET + i}")
            for i in range(4):
                ops.append(f"v_cvt_pk_bf16_f32 v{a + 8 + i}, v{a + 2 * i}, v{a + 2 * i + 1}")
            if "h" in cfg.dbg and n < 3:
                ops.append(lambda: g.vmq.append(("hst", n)) or g.e("s_nop 0") or g.vmq.pop())
            else:
                ops.append(lambda: g.st(vr(a + 8, 4), vL16, sWS, (6, 7)[n // 4], (n % 4) * 1024, tag="hst" if n == 6 else ("hst", n)))
            return ops

        def xmf(n, first):
            acc = vr(ACC[n], 16)
            assert g.vmq.count(("ax", n)) + g.waited.get(("ax", n), 0) == layer + 1, n
            g.vwait(("ax", n))
            g.e(f"v_mfma_f32_32x32x16_bf16 {acc}, {vr(AX[n], 4)}, {vr(BX, 4)}, {'0' if first else acc}")

        def stats_go():
            side.extend([None] * cfg.st_pad + g.stats_ops(SB, kexp, cden, BX) + ["s_nop 0", f"v_mul_f32 v{kexp}, {f2u(-LOG2E):#x}, v{kexp}",
                                                                                           lambda: state.update(done=True)])
        def axld(n):
            assert not 224 <= AX[n] < 240 or state.get("done")
            g.ld(vr(AX[n], 4), vL16, sWS, (t3, 3)[n // 4], (n % 4) * 1024, tag=("ax", n))
        state = {"stats": False}

        def stats_mark():
            state["stats"] = True
            stats_go()
        xr = list(xrest)
        k = cfg.st_d
        mem.extend(xr[:k] + stl + [SOp(stats_mark)] + xr[k:])
        nb2 = (152 - 132) // 4 if cfg.c_pre else 7
        axs = [lambda n=n: axld(n) for n in range(7) if not (cfg.c_pre and n in g.D_AXPRE)]
        mem.extend(axs[:cfg.ax_first])
        mem.extend(g.dma_ops(104, 7, t11, 104 * 1024, "w13b", (t8, t9)))
        mem.extend(axs[cfg.ax_first:])
        mem.extend(g.dma_ops(132, nb2, t11, 132 * 1024, "w13b2", (t8, t9)))
        batches = {104: ("w13b", 7), 132: ("w13b2", nb2), 160: ("w13c", 8), 192: ("w13d", 8)}
        g.e_plan(layer)
        esetup = g.e_setup(layer)
        f = 0
        for pi, (a, b) in enumerate(cfg.passes):
            wdt = b - a
            nm = 32 * wdt
            tot = sum(0 if isinstance(o, tuple) else (2 if isinstance(o, str) and o.startswith(("v_exp", "v_rcp")) else 1) for o in side)
            done = 0
            for ks in range(32):
                for n in range(a, b):
                    if pi == 0 and n == a:
                        assert ("x", ks) in g.vmq or ("x", ks) in g.waited
                        g.vwait(("x", ks))
                        if ks == 0:
                            g.stamp(f"Z{layer}:Dfirst")
                    if f % 4 == 0:
                        g.lwait(("w", min(f + 3, 223)))
                    c = vr(ACC[n], 16) if ks or pi else "0"
                    g.e(f"v_mfma_f32_32x32x16_bf16 {vr(ACC[n], 16)}, {ar(WB + 4 * (f % 8), 4)}, {vr(X + 4 * ks, 4)}, {c}")
                    fn = f + LEAD
                    if fn in batches:
                        tag, cnt = batches[fn]
                        assert g.vmq.count(tag) + self.waited.get(tag, 0) == cnt * (layer + 1), (fn, tag)
                        g.vwait(tag)
                        if fn == 160 and layer == 0:
                            g.lwait0()
                        g.e("s_barrier")
                    if fn == cfg.bar_c:
                        if fn not in batches:
                            g.e("s_barrier")
                        if "c" in cfg.dbg:
                            batches[160] = batches[192] = ("none", 0)
                        elif "l" in cfg.dbg:
                            mem.extend(g.dma_ops(0, 8, t11, 0, "w13c", (t8, t9)))
                            mem.extend(g.dma_ops(0, 8, t11, 32 * 1024, "w13d", (t8, t9)))
                        else:
                            mem.extend(g.dma_ops(160, 8, t11, 0, "w13c", (t8, t9)))
                            mem.extend(g.dma_ops(192, 8, t11, 32 * 1024, "w13d", (t8, t9)))
                        if layer == 0 and cfg.ew_in_b < 56:
                            mem.extend(g.ew_ops(cfg.ew_in_b, 56, (t4, t5)))
                    if fn == 160 and layer == 0:
                        mem.append(SOp(lambda: g.e(f"s_mul_i32 s64, s{sHP}, {96 * 1024}\ns_add_u32 s64, s64, {WQ}")))
                        wq = g.dma_ops(0, 24, 64, 65536, "wq", (62, 63))
                        cut = [i for i, o in enumerate(wq) if not isinstance(o, SOp)][cfg.wq_d - 1] + 1 if cfg.wq_d else 2
                        mem.extend(wq[:cut])
                        g.wq_rest = wq[cut:]
                    if fn < 224:
                        wread(fn)
                    m = ks * wdt + (n - a) + 1
                    if pi == 0:
                        g.take(side, cfg.st_cap)
                    else:
                        if cfg.d_cap:
                            g.take(side, 0 if m <= 2 else cfg.d_cap - (f % 4 == 3), exact=True)
                        else:
                            want = 0 if m <= 2 else min(-(-tot * m // nm) - done, 6)
                            g.take(side, want)
                            done += want
                    if mem and isinstance(mem[0], SOp):
                        mem.popleft()()
                    elif mem and f % 2 == 0:
                        mem.popleft()()
                    if f == cfg.d_sig:
                        assert g.vmq.count(("hst", cfg.ne - 1)) + g.waited.get(("hst", cfg.ne - 1), 0) == layer + 1
                        g.vwait(("hst", cfg.ne - 1))
                        g.signal(4, 2 * layer + 1, True)
                    if cfg.d_sig < f <= cfg.d_sig + len(esetup):
                        g.e(esetup[f - cfg.d_sig - 1])
                    if f == cfg.d_pl:
                        g.flag_load("fd1")
                    if f == cfg.d_ck:
                        g.flag_check("fd1", 2 * layer + 1)
                        g.stamp(f"D{layer}_chk")
                    if f >= cfg.d_ck:
                        for _ in range(cfg.d_nl):
                            if g.e_next < cfg.e_pre:
                                g.e_load()
                    f += 1
                    if f % 32 == 0:
                        g.stamp(f"D{layer}_{f}")
                    g.stamp(f"Dx{layer}:{f}.")
            g.take(side, 9999)
            if pi == 0:
                assert state["stats"]
                for n in range(a, b):
                    xmf(n, False)
            if pi + 1 < len(cfg.passes):
                for n in range(*cfg.passes[pi + 1]):
                    xmf(n, True)
            for n in range(a, b):
                side.extend(epi_ops(n))
        g.e("s_barrier")
        while mem:
            mem.popleft()()
        g.stamp(f"D{layer}st")
        return side

    E_HR, E_NR = 16, 32

    def e_plan(self, layer):
        NE = self.cfg.ne
        ea = [7 * f + n for f in range(4) for n in range(NE)]
        la = [7 * f + n for f in range(4) for n in range(NE, 7)]
        self.e_seq = [(1, i) for i in ea] + [(0, i) for i in ea] + [(1, i) for i in la] + [(0, i) for i in la]
        self.e_nearly = 2 * len(ea)
        self.e_next = 0
        self.e_base = None

    def e_setup(self, layer):
        return [f"v_and_b32 v{vt0}, 28, v{vL4}",
                f"s_lshr_b32 s{t2}, s{sTA}, 1\ns_lshl_b32 s{t2}, s{t2}, 2", f"s_add_u32 s{t2}, s{t2}, s{sW}\ns_lshl_b32 s{t2}, s{t2}, 7",
                f"s_add_u32 s{t2}, s{t2}, {FD}\ns_mul_i32 s{t5}, s{sW}, {28 * 1024}", f"s_add_u32 s{t5}, s{t5}, {aH(layer)}\ns_mul_i32 s{t3}, s{sTB}, {112 * 1024}",
                f"s_add_u32 s{t3}, s{t3}, s{t5}\ns_mul_i32 s{t4}, s{sTA}, {112 * 1024}", f"s_add_u32 s{t4}, s{t4}, s{t5}"]

    def e_load(self):
        g = self
        m = g.e_next
        tk, i = g.e_seq[m]
        key = (tk, i // 7, (i % 7) // 4)
        if g.e_base != key:
            g.e(f"s_add_u32 s{t5}, s{(t4, t3)[tk]}, {(i // 7) * 7168 + ((i % 7) // 4) * 4096}")
            g.e_base = key
        g.ld(vr(g.E_HR + 4 * (m % g.E_NR), 4), vL16, sWS, t5, ((i % 7) % 4) * 1024, tag=("h", m))
        g.e_next += 1

    def flag_load(self, tag):
        self.ld(vr(vt1), vt0, sWS, t2, 0, tag=tag, w=1)

    def flag_check(self, tag, val):
        g = self
        g.late_check(tag, f"buffer_load_dword v{vt1}, v{vt0}, {sr(sWS, 4)}, s{t2} offen sc1", f"v_cmp_gt_u32 vcc, {val}, v{vt1}", 0)
        g.dual("", "buffer_inv sc1\ns_waitcnt vmcnt(0)", 0)

    def phaseE(self, layer, final, side):
        g = self
        cfg = g.cfg
        HR, NR = g.E_HR, g.E_NR
        PB, Z = 144, 176
        AC = [240, 224, 208, 192]
        SC = 0
        seq, nearly = g.e_seq, g.e_nearly
        N = len(seq)
        seen = set()
        consumed = [0]

        def more(k=1):
            for _ in range(k):
                if g.e_next < N and g.e_next - NR < consumed[0] and (g.e_next < nearly or state["ok"]):
                    g.e_load()

        def mf(m, n):
            tk, i = seq[m]
            acc = vr(AC[2 * tk + n], 16)
            g.e(f"v_mfma_f32_32x32x16_bf16 {acc}, {ar(4 * (2 * i + n), 4)}, {vr(HR + 4 * (m % NR), 4)}, {acc if (tk, n) in seen else '0'}")
            seen.add((tk, n))
        state = {"ok": False, "st": None}
        nB = N - (N - nearly) // 2
        w3 = g.reduce_write(AC[3], 3, SC)
        w2 = g.reduce_write(AC[2], 2, SC)
        w1 = g.reduce_write(AC[1], 1, SC)
        for m in range(nB):
            assert g.e_next > m
            g.vwait(("h", m))
            for n in (1, 0):
                mf(m, n)
                g.take(side, 5 if state["st"] is None else 2, exact=True)
            consumed[0] = m + 1
            g.stamp(f"Ex{layer}:{m}.")
            if state["st"] is None:
                if not side:
                    state["st"] = m
                else:
                    more(2 if g.e_next - m < cfg.e_pre else 1)
            if state["st"] is not None:
                d = m - state["st"]
                if d == cfg.e_sig:
                    g.vwait("hst")
                    g.signal(4, 2 * layer + 2, True)
                    g.stamp(f"E{layer}_sig")
                if d == 0:
                    side.extend(g.reduce_pre_ops(layer, 1, SC, Z, final))
                if d == cfg.e_sig + cfg.e_pl:
                    g.flag_load("fd2")
                if d == cfg.e_sig + cfg.e_pl + cfg.e_ck:
                    g.flag_check("fd2", 2 * layer + 2)
                    g.stamp(f"E{layer}_chk")
                    state["ok"] = True
                more(2 if g.e_next - m < cfg.up_e else 1)
        assert state["ok"]
        if cfg.e_single:
            PB = 128
            assert all(not 28 <= m % NR for m in range(nB, N))
            side.extend(w3[:2] + [None] * 2 + w3[2:] + w2)
        else:
            side.extend(w3[:2] + [None] * 2 + w3[2:] + w2 + [None] + g.reduce_read_ops((3, 2), PB, Z))
        tailq = deque(g.wq_rest if layer == 0 else [])
        if final and cfg.wb:
            def wb():
                L = g.label("wb")
                g.e(f"s_lshl_b32 s{t5}, s{sC}, 2\ns_add_u32 s{t5}, s{t5}, s{sW}\ns_cmp_lt_u32 s{t5}, {cfg.wb}\ns_cbranch_scc0 {L}\nbuffer_wbl2 sc1\n{L}:")
            tailq.append(wb)
        nA, SK = N - nB, cfg.sk_e
        per = -(-len(side) // (nA + max(nA - SK, 0)))
        for i in range(nA + SK):
            if i < nA:
                g.vwait(("h", nB + i))
                mf(nB + i, 1)
                more()
                g.take(side, per)
            if g.e_next == N and tailq:
                while isinstance(tailq[0], SOp):
                    tailq.popleft()()
                tailq.popleft()()
            if i == nA:
                g.stamp(f"Ex{layer}:AB.")
                g.take(side, 999)
                rr = g.reduce_read_ops((3, 2, 1) if cfg.e_single else (1,), PB, Z, pk=cfg.e_pk)
                side.extend(w1[:2] + [None] * 3 + w1[2:] + rr)
                per = -(-(len(side) - (len(rr) // 2 if cfg.e_pk else 0)) // SK)
            if i >= SK:
                mf(nB + i - SK, 0)
                g.take(side, per)
        g.take(side, 999)
        while tailq:
            tailq.popleft()()
        g.reduce_finish(layer, 1, AC[0], Z, final)
        g.stamp(f"E{layer}st")
        if not final:
            g.vwait0()
            g.stamp(f"Z{layer}:Eack")
            g.signal(5, layer + 1, True)
            g.e("s_barrier")

    def build(self):
        g = self
        cfg = g.cfg
        g.prologue()
        done = False
        for layer in range(2):
            for ph in "ABCDE":
                mark = len(g.lines)
                if ph == "A":
                    g.phaseA1(layer) if layer else g.phaseA0()
                elif ph == "B":
                    g.phaseB(layer)
                elif ph == "C":
                    g.phaseC(layer)
                elif ph == "D":
                    rest = g.phaseD(layer)
                else:
                    g.phaseE(layer, layer == 1, rest)
                if ph in cfg.hack16:
                    import re
                    out, k = [], 0
                    for ln in g.lines[mark:]:
                        m = re.match(r"v_mfma_f32_32x32x16_bf16 v\[(\d+):\d+\], (\S+), (\S+), (\S+)$", ln)
                        if m:
                            b = int(m.group(1))
                            for h in range(2):
                                o = b + 4 * ((2 * k + h) % 4)
                                c = "0" if m.group(4) == "0" else f"v[{o}:{o + 3}]"
                                out.append(f"v_mfma_f32_16x16x32_bf16 v[{o}:{o + 3}], {m.group(2)}, {m.group(3)}, {c}")
                            k += 1
                        else:
                            out.append(ln)
                    g.lines[mark:] = out
                if cfg.stop == f"{ph}{layer}":
                    done = True
                    break
            if done:
                break
        if cfg.ts:
            g.vwait0()
            g.stamp("end") if g.nts < 16 else None
            g.e(f"s_lshl_b32 s{t0}, s2, 2\ns_add_u32 s{t0}, s{t0}, s{sW}\ns_lshl_b32 s{t0}, s{t0}, 7\ns_add_u32 s{t0}, s{t0}, {TS}")
            g.e(f"v_mov_b32 v{vt0}, 0")
            for i in range(g.nts):
                g.e(f"v_writelane_b32 v{vt0}, s{sTS + i}, {i}")
            g.e(f"v_writelane_b32 v{vt0}, s{sMode}, 31")
            g.e("s_mov_b32 exec_hi, 0")
            g.st(vr(vt0), vL4, sWS, t0, 0, w=1)
            if cfg.ts_dbg is not None:
                g.e(f"s_cmp_eq_u32 s2, {cfg.ts_dbg}\ns_cbranch_scc0 L_exit\ns_cmp_eq_u32 s{sW}, 0\ns_cbranch_scc0 L_exit")
                g.e(f"v_subrev_u32 v{vt0}, s{sTS}, v{vt0}")
                g.st(vr(vt0), vL4, sDBG, None, 0, w=1)
        g.e("L_exit:\ns_endpgm")
        for t in g.tail:
            g.e(t)
        g.e("L_end:")
        lines, rep = fix_hazards(g.lines)
        return lines, rep


HEADER = """; Fused two-layer transformer block (LN+QKV, attention, WO, LN+W1/W3+SwiGLU, W2), one persistent launch.
; @launch grid=(256,1,1) block=(256,1,1) lds=163840
.amdgcn_target "amdgcn-amd-amdhsa--gfx950"
.text
.globl {name}_kernel
.p2align 8
.type {name}_kernel,@function
{name}_kernel:
"""
FOOTER = """
.section .rodata,"a"
.p2align 6
.amdhsa_kernel {name}_kernel
  .amdhsa_next_free_vgpr 512
  .amdhsa_next_free_sgpr 102
  .amdhsa_accum_offset 256
  .amdhsa_group_segment_fixed_size 0
  .amdhsa_kernarg_size 80
  .amdhsa_user_sgpr_count 2
  .amdhsa_user_sgpr_kernarg_segment_ptr 1
  .amdhsa_system_sgpr_workgroup_id_x 1
  .amdhsa_float_denorm_mode_32 3
.end_amdhsa_kernel
"""


def generate(path, **kw):
    cfg = Cfg()
    for k, v in kw.items():
        setattr(cfg, k, v)
    set_alias(cfg.alias)
    g = Gen(cfg)
    lines, rep = g.build()
    txt = HEADER.format(name=NAME) + "\n".join(("" if l.endswith(":") else "  ") + l for l in lines) + FOOTER.format(name=NAME)
    open(path, "w").write(txt)
    return g, rep


if __name__ == "__main__":
    import argparse
    ap = argparse.ArgumentParser()
    ap.add_argument("-o", default=f"cdna_kernels/{NAME}.s")
    ap.add_argument("--stop")
    ap.add_argument("--ts", action="store_true")
    ap.add_argument("--slow", action="store_true")
    ap.add_argument("-v", action="store_true")
    a = ap.parse_args()
    g, rep = generate(a.o, stop=a.stop, ts=a.ts, force_slow=a.slow)
    print("lines", len(g.lines), "nops inserted", len(rep), "stamps", g.tsnames)
    if a.v:
        for r in rep:
            print(r)
```

```python
import os
import sys
from collections import deque

sys.path.insert(0, os.path.dirname(os.path.abspath(__file__)))
from asmlib import Asm, R, ar, fix_hazards, sr, vr

NAME = "interleave_layers__mha_block__glu_gated_swiglu__prompt"

FA_L, FB, FD, FC, FE, FA_G, FR, FX = 0x0000, 0x4000, 0x8000, 0xC000, 0xE000, 0x10000, 0x14000, 0x16000
TS = 0x80000
ST = 0x100000
WQ, WO, W13, W2 = 0x200000, 0x380000, 0x400000, 0x780000
WX13, WXQ, WXD = 0x940000, 0x960000, 0x970000
LB0, LBS = 0xA00000, 0x1400000
oQ, oKV, oO, oX1, oX2, oH = 0x0, 0x200000, 0x600000, 0x800000, 0xA00000, 0xC00000
WS_BYTES = 0x10000000
ALIAS = True


def set_alias(v):
    global ALIAS
    ALIAS = v


def aQ(l):
    return 0xA00000 if ALIAS else LB0 + l * LBS + oQ


def aO(l):
    return 0xA00000 if ALIAS else LB0 + l * LBS + oO


def aX(l, which):
    return 0xC00000 if ALIAS else LB0 + l * LBS + (oX1, oX2)[which]


def aH(l):
    return 0xE00000 if ALIAS else LB0 + l * LBS + oH


def aKV(l):
    return 0x1600000 + l * 0x400000 if ALIAS else LB0 + l * LBS + oKV


def aST(l, which):
    return ST if ALIAS else ST + (2 * l + which) * 0x40000

sWS, sXIN, sOUT, sDBG, sWQ, sRA, sRB = 8, 12, 16, 20, 24, 28, 32
sX, sC, sW, sT, sHP, sTA, sTB, sNA, sCB, sMode, sTO, sMask = range(36, 48)
t0, t1, t2, t3, t4, t5, t6, t7, t8, t9, t10, t11 = range(48, 60)
sVM = 60
pX, pWQ, pWO, pBX, pW1, pW3, pW2, pOUT, pDBG, pWS = range(64, 84, 2)
sTS = 84
sSN2 = 100
vL16, vL4, vIdx, vFl = 0, 1, 2, 3
vt0, vt1, vt2, vt3 = 4, 5, 6, 7
vRes = 8
WB = 224

LOG2E = 1.4426950408889634
TIMEOUT = 0x200000


def f2u(x):
    import struct
    return struct.unpack("<I", struct.pack("<f", x))[0]


class SOp:
    def __init__(self, fn):
        self.fn = fn

    def __call__(self):
        self.fn()


class Cfg:
    passes = [(0, 4), (4, 6), (6, 7)]
    stop = None
    ts = False
    ts_skip = ('start', 'C1st', 'E1st', 'A1st', 'C0st')
    ts_only = None
    force_slow = False
    force_fallback = False
    pf_w13 = (0, 4)
    bg_end = 108
    b_tail = True
    gp = (3, 3)
    hmods = ('', '')
    hlmods = 'sc1'
    poll2 = 0
    hack16 = ''
    b_opt = 3
    wb = 0
    keep = None
    b_align = 0
    q_up = 4
    v_split = False
    bg_ac = True
    ne = 4
    e3 = False
    e2_sig = 2
    e2_pl = 7
    e2_ck = 11
    d_step = 1
    d_sig = 196
    d_pl = 206
    d_ck = 214
    d_nl = 1
    e_pre = 10
    e_sig = 6
    e_pl = 5
    e_ck = 5
    spin = None
    ws_off = 0
    kvpf = (None, None)
    warm_w = 9
    rl_in_b = False
    rl_in_a = True
    rl_ack = 7
    spare = (0, 6, 7, 16, 22, 23)
    b0_sleep = 1
    b0_g = True
    kv_touch = False
    g2_late = False
    xcc_early = False
    rl_c0 = 1
    rl_c1 = 4
    setup_first = True
    rl_ld = 18
    cold_touch = 0
    ct0 = 24
    x2_d = True
    bar_c = 76
    d_cap = 5
    alias = True
    touch = 'BHA'
    tb0 = 97
    kvmods = 'sc1'
    ts_dbg = None
    hpx = 0
    wmods = 'sc1'
    early_c = False
    warm = 5
    dbg = ''
    rot = 's_lshr_b32 s{t1}, s{sHP}, 1'
    rl_sleep = 16
    lag_a = 8
    lag_end = True
    x2_a = 0
    st_a = 6
    st_d = 6
    c_pre = True
    c_pk = True
    e_single = False
    e_pk = False
    ax_first = 0
    st_cap = 2
    st_pad = 16
    wq_d = 12
    cpf = 2
    defer = None
    sk_e = 10
    out_mods = ''
    rl0 = 9
    rl_lat = 7
    rl_gap = 20
    up_a = 8
    up_d = 8
    up_e = 10
    up_c = 10
    ew_in_b = 56


class Gen(Asm):
    def __init__(self, cfg):
        super().__init__()
        self.cfg = cfg
        self.nts = 0
        self.m0_owner = None
        self.tsnames = []

    def srd(self, s, ptr, size):
        self.e(f"s_mov_b32 s{s}, s{ptr}\ns_mov_b32 s{s + 1}, s{ptr + 1}\ns_mov_b32 s{s + 2}, {size}\ns_mov_b32 s{s + 3}, 0x20000")

    def ld(self, dst, voff, srd, soff, imm=0, mods="sc1", tag=None, w=4):
        op = {1: "dword", 2: "dwordx2", 4: "dwordx4"}[w]
        so = f"s{soff}" if soff is not None else "0"
        o = f" offset:{imm}" if imm else ""
        self.vm(f"buffer_load_{op} {dst}, v{voff}, {sr(srd, 4)}, {so} offen{o} {mods}".rstrip(), tag)

    def st_text(self, src, voff, srd, soff, imm=0, mods="", w=4):
        op = {1: "dword", 2: "dwordx2", 4: "dwordx4"}[w]
        so = f"s{soff}" if soff is not None else "0"
        o = f" offset:{imm}" if imm else ""
        return f"buffer_store_{op} {src}, v{voff}, {sr(srd, 4)}, {so} offen{o} {mods}".rstrip()

    def st(self, src, voff, srd, soff, imm=0, mods="", tag=None, w=4):
        self.vm(self.st_text(src, voff, srd, soff, imm, mods, w), tag)

    def dma(self, voff, srd, soff, imm=0, mods="sc1", tag=None):
        so = f"s{soff}" if soff is not None else "0"
        o = f" offset:{imm}" if imm else ""
        m = (mods + " lds").strip()
        self.vm(f"buffer_load_dwordx4 v{voff}, {sr(srd, 4)}, {so} offen{o} {m}", tag)

    def stamp(self, name):
        if self.cfg.spin:
            if name == "entry":
                self.e("s_memrealtime s[98:99]\ns_waitcnt lgkmcnt(0)")
            if name == self.cfg.spin[0]:
                L = self.label("spin")
                if len(self.cfg.spin) > 2:
                    self.e(self.cfg.spin[2])
                self.e(f"{L}:\ns_memrealtime s[4:5]\ns_waitcnt lgkmcnt(0)\ns_sub_u32 s4, s4, s98\ns_cmp_lt_u32 s4, {self.cfg.spin[1]}\ns_cbranch_scc1 {L}")
                self.lq = []
        if not self.cfg.ts:
            return
        if self.cfg.ts_only:
            if not name.startswith(self.cfg.ts_only):
                return
        elif name in self.cfg.ts_skip or "_" in name or ":" in name:
            return
        if self.nts >= 16:
            return
        self.e(f"{'s_memtime' if self.cfg.ts == 'cyc' else 's_memrealtime'} s[4:5]\ns_waitcnt lgkmcnt(0)\ns_mov_b32 s{sTS + self.nts}, s4")
        self.lq = []
        self.tsnames.append(name)
        self.nts += 1

    def dual(self, fast, slow, nvm):
        ls, lj = self.label("slow"), self.label("join")
        self.e(f"s_cmp_lg_u32 s{sMode}, 0\ns_cbranch_scc1 {ls}")
        self.e(fast)
        self.e(f"{lj}:")
        self.tail.append(f"{ls}:\n{slow}\ns_branch {lj}")
        self.vmq += [None] * nvm

    def signal(self, ftype, val, local):
        self.e(f"v_mov_b32 v{vt1}, {val}")
        st = f"s_mov_b64 exec, {1 << ftype}\nbuffer_store_dword v{vt1}, v{vFl}, {sr(sWS, 4)}, 0 offen%s\ns_mov_b64 exec, -1"
        if local:
            self.dual(st % "", "buffer_wbl2 sc1\ns_waitcnt vmcnt(0)\n" + st % " sc1", 1)
        else:
            self.e(st % " sc1")
            self.vmq.append(None)

    def poll(self, voff, soff, val, local, sleep=0):
        L = self.label("poll")
        ld = f"buffer_load_dword v%d, v{voff}, {sr(sWS, 4)}, s{soff} offen sc1"
        if self.cfg.poll2 and not sleep:
            Ld = self.label("polld")
            self.e(f"s_mov_b32 s{sTO}, {TIMEOUT}")
            self.e(ld % vt1)
            self.e(f"s_nop {self.cfg.poll2}\n{L}:")
            self.e(ld % vIdx)
            self.e(f"s_sub_u32 s{sTO}, s{sTO}, 1\ns_cbranch_scc1 L_exit\ns_waitcnt vmcnt(1)")
            self.e(f"v_cmp_gt_u32 vcc, {val}, v{vt1}\ns_nop 0\ns_cbranch_vccz {Ld}")
            self.e(ld % vt1)
            self.e("s_waitcnt vmcnt(1)")
            self.e(f"v_cmp_gt_u32 vcc, {val}, v{vIdx}\ns_nop 0\ns_cbranch_vccnz {L}\n{Ld}:")
            for t in self.vmq:
                self.waited[t] = self.waited.get(t, 0) + 1
            self.vmq = [None]
        else:
            self.e(f"s_mov_b32 s{sTO}, {TIMEOUT}\n{L}:")
            self.e(ld % vt1)
            self.e(f"s_sub_u32 s{sTO}, s{sTO}, 1\ns_cbranch_scc1 L_exit")
            if sleep:
                self.e(f"s_sleep {sleep}")
            self.vwait0()
            self.e(f"v_cmp_gt_u32 vcc, {val}, v{vt1}\ns_nop 0\ns_cbranch_vccnz {L}")
        if local:
            self.dual("", "buffer_inv sc1\ns_waitcnt vmcnt(0)", 0)

    def salu(self, text):
        self.e(text)

    def prologue(self):
        g = self
        g.e("s_cmp_ge_u32 s2, 256\ns_cbranch_scc1 L_exit")
        g.stamp("entry")
        g.e("s_load_dwordx16 s[64:79], s[0:1], 0\ns_load_dwordx4 s[80:83], s[0:1], 64")
        g.e(f"v_lshrrev_b32 v{vt0}, 6, v0\nv_and_b32 v{vt1}, 63, v0")
        g.e(f"v_readfirstlane_b32 s{sW}, v{vt0}")
        g.e(f"v_lshlrev_b32 v{vL4}, 2, v{vt1}\nv_lshlrev_b32 v{vL16}, 4, v{vt1}")
        g.e(f"""
        s_and_b32 s{sX}, s2, 7
        s_lshr_b32 s{sC}, s2, 3
        s_and_b32 s{sHP}, s{sC}, 15
        s_xor_b32 s{sHP}, s{sHP}, {g.cfg.hpx}
        s_lshr_b32 s{t0}, s{sC}, 4
        s_lshl_b32 s{t0}, s{t0}, 2
        s_add_u32 s{t0}, s{t0}, s{sW}
        s_lshl_b32 s{t1}, s{sX}, 3
        s_add_u32 s{sT}, s{t1}, s{t0}
        """)
        if g.cfg.cpf == 2:
            g.code_prefetch()

    def prologue2(self):
        g = self
        g.e(f"""
        s_and_b32 s{sCB}, s{sC}, 7
        s_lshr_b32 s{t2}, s{sC}, 3
        s_lshl_b32 s{t2}, s{t2}, 1
        s_lshl_b32 s{t3}, s{sX}, 3
        s_add_u32 s{t2}, s{t2}, s{t3}
        s_lshr_b32 s{t3}, s{sW}, 1
        s_add_u32 s{sTA}, s{t2}, s{t3}
        s_xor_b32 s{sTB}, s{sTA}, 1
        s_and_b32 s{sNA}, s{sW}, 1
        s_mov_b32 s{sMask}, 0xffff0000
        s_mov_b32 s{sVM}, 0x0000ffff
        s_mov_b32 s{sVM + 1}, 0x0000ffff
        s_mov_b32 s{sMode}, 1
        s_and_b32 s{t2}, s{sT}, 7
        """)
        g.e(f"v_mov_b32 v{vFl}, 0")
        g.e(f"""
        s_lshl_b32 s{t4}, s{sX}, 4
        s_add_u32 s{t4}, s{t4}, s{sHP}
        s_lshl_b32 s{t4}, s{t4}, 7
        s_lshl_b32 s{t5}, s{t2}, 2
        s_add_u32 s{t4}, s{t4}, s{t5}
        s_add_u32 s{t4}, s{t4}, {FA_L}
        v_writelane_b32 v{vFl}, s{t4}, 0
        s_lshl_b32 s{t4}, s{sHP}, 3
        s_add_u32 s{t4}, s{t4}, s{sX}
        s_lshl_b32 s{t4}, s{t4}, 7
        s_add_u32 s{t4}, s{t4}, s{t5}
        s_add_u32 s{t4}, s{t4}, {FA_G}
        v_writelane_b32 v{vFl}, s{t4}, 1
        s_lshl_b32 s{t4}, s{sX}, 2
        s_add_u32 s{t4}, s{t4}, s{sW}
        s_lshl_b32 s{t4}, s{t4}, 2
        s_lshr_b32 s{t5}, s{sC}, 3
        s_add_u32 s{t4}, s{t4}, s{t5}
        s_lshl_b32 s{t4}, s{t4}, 7
        s_lshl_b32 s{t5}, s{sCB}, 2
        s_add_u32 s{t4}, s{t4}, s{t5}
        s_add_u32 s{t4}, s{t4}, {FB}
        v_writelane_b32 v{vFl}, s{t4}, 2
        s_lshl_b32 s{t4}, s{sTA}, 7
        s_lshl_b32 s{t5}, s{sCB}, 1
        s_add_u32 s{t5}, s{t5}, s{sNA}
        s_lshl_b32 s{t5}, s{t5}, 2
        s_add_u32 s{t4}, s{t4}, s{t5}
        s_add_u32 s{t5}, s{t4}, {FC}
        v_writelane_b32 v{vFl}, s{t5}, 3
        s_add_u32 s{t5}, s{t4}, {FE}
        v_writelane_b32 v{vFl}, s{t5}, 5
        s_lshr_b32 s{t4}, s{sT}, 1
        s_lshl_b32 s{t4}, s{t4}, 2
        s_lshr_b32 s{t5}, s{sHP}, 2
        s_add_u32 s{t4}, s{t4}, s{t5}
        s_lshl_b32 s{t4}, s{t4}, 7
        s_and_b32 s{t5}, s{sT}, 1
        s_lshl_b32 s{t5}, s{t5}, 2
        s_and_b32 s{t7}, s{sHP}, 3
        s_add_u32 s{t5}, s{t5}, s{t7}
        s_lshl_b32 s{t5}, s{t5}, 2
        s_add_u32 s{t4}, s{t4}, s{t5}
        s_add_u32 s{t4}, s{t4}, {FD}
        v_writelane_b32 v{vFl}, s{t4}, 4
        s_lshr_b32 s{t4}, s2, 2
        s_lshl_b32 s{t4}, s{t4}, 7
        s_and_b32 s{t5}, s2, 3
        s_lshl_b32 s{t5}, s{t5}, 2
        s_add_u32 s{t4}, s{t4}, s{t5}
        s_add_u32 s{t4}, s{t4}, {FR}
        v_writelane_b32 v{vFl}, s{t4}, 6
        s_lshl_b32 s{t4}, s{sX}, 5
        s_add_u32 s{t4}, s{t4}, s{sC}
        s_lshl_b32 s{t4}, s{t4}, 2
        s_add_u32 s{t4}, s{t4}, {FX}
        v_writelane_b32 v{vFl}, s{t4}, 7
        """)

    def zero_flags(self):
        g = self
        L = g.label("zf")
        g.e(f"s_cmp_lt_u32 s2, 8\ns_cbranch_scc0 {L}")
        g.e("v_mov_b32 v248, 0\nv_mov_b32 v249, 0\nv_mov_b32 v250, 0\nv_mov_b32 v251, 0")
        g.e(f"s_lshl_b32 s{t2}, s2, 2\ns_add_u32 s{t2}, s{t2}, s{sW}\ns_mul_i32 s{t2}, s{t2}, 3072")
        for i in range(3):
            g.e(g.st_text(vr(248, 4), vL16, sWS, t2, 1024 * i, "sc1"))
        g.e(f"{L}:")

    def code_prefetch(self):
        g = self
        g.e(f"""
        s_getpc_b64 s[4:5]
        L_pc:
        s_lshl_b32 s{t8}, s{sC}, 2
        s_add_u32 s{t8}, s{t8}, s{sW}
        s_and_b32 s{t8}, s{t8}, 15
        s_lshl_b32 s{t8}, s{t8}, 13
        v_lshlrev_b32 v{vt2}, 3, v{vL16}
        v_add_u32 v{vt2}, s{t8}, v{vt2}
        v_min_u32 v{vt2}, L_end-L_pc-4, v{vt2}
        """)
        g.vm(f"global_load_dword v255, v{vt2}, s[4:5]", "cpf")

    def handshake_send(self):
        g = self
        L = g.label("hs")
        g.e(f"s_cmp_lt_u32 s2, 8\ns_cbranch_scc0 {L}")
        g.e(f"s_lshl_b32 s{t9}, s2, 2\ns_add_u32 s{t9}, s{t9}, s{sW}\ns_lshl_b32 s{t9}, s{t9}, 2")
        g.e(f"v_mov_b32 v{vt1}, 1\nv_mov_b32 v{vt2}, s{t9}\ns_mov_b64 exec, 1")
        g.e(f"buffer_store_dword v{vt1}, v{vt2}, {sr(sDBG, 4)}, 0 offen sc1\ns_mov_b64 exec, -1\n{L}:")

    def late_check(self, tag, ld_text, chk, sleep):
        g = self
        ls, lj, lp = g.label("lslow"), g.label("ljoin"), g.label("lp")
        g.vwait(tag)
        g.e(chk + f"\ns_nop 0\ns_cbranch_vccnz {ls}\n{lj}:")
        g.tail.append(f"""{ls}:
        s_mov_b32 s{sTO}, {TIMEOUT}
        {lp}:
        {"s_sleep " + str(sleep) if sleep else ""}
        {ld_text}
        s_sub_u32 s{sTO}, s{sTO}, 1
        s_cbranch_scc1 L_exit
        s_waitcnt vmcnt(0)
        {chk}
        s_nop 0
        s_cbranch_vccnz {lp}
        s_branch {lj}""")

    def handshake_load(self):
        self.e(f"v_and_b32 v254, 0x7c, v{vL4}")
        self.ld(vr(vt1), 254, sDBG, None, 0, tag="hs", w=1)

    def handshake_check(self):
        self.late_check("hs", f"v_and_b32 v254, 0x7c, v{vL4}\nbuffer_load_dword v{vt1}, v254, {sr(sDBG, 4)}, 0 offen sc1",
                        f"v_cmp_eq_u32 vcc, 0, v{vt1}", 8)

    def xcc_send(self):
        g = self
        L = g.label("xs")
        g.e(f"s_cmp_eq_u32 s{sW}, 0\ns_cbranch_scc0 {L}")
        g.e(f"s_getreg_b32 s{t11}, hwreg(HW_REG_XCC_ID, 0, 4)\ns_or_b32 s{t11}, s{t11}, 0x80\nv_mov_b32 v{vt1}, s{t11}")
        g.e(f"s_mov_b64 exec, 0x80\nbuffer_store_dword v{vt1}, v{vFl}, {sr(sWS, 4)}, 0 offen sc1\ns_mov_b64 exec, -1\n{L}:")

    def xcc_load(self, vd=vt2, va=vt3, st=t7):
        g = self
        g.e(f"v_and_b32 v{va}, 0x7c, v{vL4}\ns_lshl_b32 s{st}, s{sX}, 7\ns_add_u32 s{st}, s{st}, {FX}")
        g.ld(vr(vd), va, sWS, st, 0, tag="xcc", w=1)

    def xcc_check(self, vd=vt2, va=vt3, st=t7):
        g = self
        g.late_check("xcc", f"s_lshl_b32 s{st}, s{sX}, 7\ns_add_u32 s{st}, s{st}, {FX}\nbuffer_load_dword v{vd}, v{va}, {sr(sWS, 4)}, s{st} offen sc1",
                     f"v_cmp_eq_u32 vcc, 0, v{vd}", 8)
        g.e(f"""
        v_readfirstlane_b32 s{st}, v{vd}
        s_nop 1
        v_cmp_ne_u32 vcc, s{st}, v{vd}
        s_nop 1
        s_cmp_lg_u64 vcc, 0
        s_cselect_b32 s{sMode}, 1, 0
        """)
        if g.cfg.force_slow:
            g.e(f"s_mov_b32 s{sMode}, 1")

    def stats_tail(self, s1, s2, rs, cden, BX):
        def rnd(r):
            return [f"v_cvt_pk_bf16_f32 v{r}, v{r}, v{r}", f"v_lshlrev_b32 v{r}, 16, v{r}"]
        return [
            f"v_mul_f32 v{s1}, {f2u(-1 / 512):#x}, v{s1}",
            f"v_mul_f32 v{s2}, {f2u(1 / 512):#x}, v{s2}",
            f"v_fma_f32 v{s2}, -v{s1}, v{s1}, v{s2}",
            f"v_max_f32 v{s2}, 0, v{s2}"] + rnd(s2) + [
            f"v_add_f32 v{s2}, {f2u(1e-5):#x}, v{s2}"] + rnd(s2) + [
            f"v_sqrt_f32 v{s2}, v{s2}",
            f"v_cvt_pk_bf16_f32 v{BX}, v{s1}, v{s1}"] + rnd(s2) + [
            f"v_rcp_f32 v{rs}, v{s2}",
            f"v_mul_f32 v{cden}, v{s2}, v{s2}",
            f"v_mov_b32 v{BX + 1}, v{BX}",
            f"v_mov_b32 v{BX + 2}, v{BX}",
            f"v_mov_b32 v{BX + 3}, v{BX}",
        ]

    def stats_ops(self, SB, rs, cden, BX):
        ops = [("v", "stat")]
        n = 16
        while n > 1:
            n //= 2
            for i in range(n):
                ops.append(f"v_add_f32 v{SB + i}, v{SB + i}, v{SB + n + i}")
        ops += [f"v_mov_b32 v{SB + 1}, v{SB}", "s_nop 1", f"v_permlane32_swap_b32 v{SB}, v{SB + 1}"]
        return ops + self.stats_tail(SB, SB + 1, rs, cden, BX)

    def take(self, side, n, exact=False):
        while n > 0 and side:
            o = side.popleft()
            if o is None:
                n -= 1
            elif isinstance(o, tuple):
                (self.vwait if o[0] == "v" else self.lwait)(o[1])
            elif callable(o):
                o()
                n -= 1
            else:
                c = 2 if o.startswith(("v_exp", "v_rcp", "v_rsq", "v_sqrt")) else 1
                if exact and c > n:
                    side.appendleft(o)
                    break
                self.e(o)
                n -= c

    def load_x_stats(self, layer, which, xoff, X, SB, up):
        g = self
        g.e(f"s_lshl_b32 s{t0}, s{sT}, 12\ns_add_u32 s{t0}, s{t0}, {aST(layer, which)}")
        g.e(f"s_lshl_b32 s{t1}, s{sT}, 15\ns_add_u32 s{t1}, s{t1}, {xoff}")

        def pre():
            for ks in range(up):
                ldx(ks)

        def ldx(ks):
            if ks and ks % 4 == 0:
                g.e(f"s_add_u32 s{t1}, s{t1}, 4096")
            g.ld(vr(X + 4 * ks, 4), vL16, sWS, t1, (ks % 4) * 1024, tag=("x", ks))
        return (pre, [lambda ks=ks: ldx(ks) for ks in range(up, 32)],
                [lambda q=q: g.ld(vr(SB + 4 * q, 4), vL16, sWS, t0, q * 1024, tag="stat") for q in range(4)])

    def l2_prefetch(self, sbase, nbytes, vtmp):
        g = self
        ops = [lambda: g.e(f"v_and_b32 v{vtmp}, 0x3c0, v{vL16}\nv_lshlrev_b32 v{vtmp}, 1, v{vtmp}")]
        assert nbytes % 2048 == 0
        for i in range(nbytes // 2048):
            def op(i=i):
                if i and i % 2 == 0:
                    g.e(f"s_add_u32 s{sbase}, s{sbase}, 4096")
                g.ld(vr(vtmp + 1), vtmp, sWS, sbase, (i % 2) * 2048, mods="sc1", tag="pf", w=1)
            ops.append(op)
        return ops

    def touch_ops(self, salu, sreg, n, vadr, vdst):
        g = self
        ops = [lambda t=t: g.e(t) for t in salu]
        for i in range(n):
            def op(i=i):
                if i and i % 2 == 0:
                    g.e(f"s_add_u32 s{sreg}, s{sreg}, 4096")
                g.ld(vr(vdst), vadr, sWS, sreg, (i % 2) * 2048, mods="sc1", tag="pf", w=1)
            ops.append(op)
        return ops

    def h_addr(self, layer, a, b):
        return [f"s_mul_i32 s{a}, s{sT}, {112 * 1024}\ns_mul_i32 s{b}, s{sHP}, 7168", f"s_add_u32 s{a}, s{a}, s{b}\ns_add_u32 s{a}, s{a}, {aH(layer)}"]

    def x_addr(self, layer, which, a, b):
        x = [f"s_lshl_b32 s{a}, s{sTA}, 4\ns_lshl_b32 s{b}, s{sCB}, 1", f"s_add_u32 s{a}, s{a}, s{b}\ns_add_u32 s{a}, s{a}, s{sNA}",
             f"s_lshl_b32 s{a}, s{a}, 11\ns_add_u32 s{a}, s{a}, {aX(layer, which)}"]
        st = [f"s_lshl_b32 s{a}, s{sTA}, 2\ns_lshr_b32 s{b}, s{sCB}, 1", f"s_add_u32 s{a}, s{a}, s{b}\ns_lshl_b32 s{a}, s{a}, 10",
              f"s_add_u32 s{a}, s{a}, {aST(layer, which)}"]
        return x, st

    def dma_ops(self, first, count, gsoff_expr, lds_base, tag, ts):
        g = self
        a, b = ts
        ops = []
        uid = g.label("dma")

        def setup():
            g.e(f"s_mul_i32 s{a}, s{sW}, {count * 1024}")
            g.e(f"s_add_u32 s{b}, s{a}, s{gsoff_expr}")
        ops.append(SOp(setup))

        def setup2():
            g.e(f"s_add_u32 s{b}, s{b}, {first * 1024}\ns_add_u32 s{a}, s{a}, {lds_base}")
        ops.append(SOp(setup2))
        for i in range(count):
            if i % 4 == 0 and i:
                ops.append(SOp(lambda: g.e(f"s_add_u32 s{a}, s{a}, 4096\ns_add_u32 s{b}, s{b}, 4096")))

            def op(i=i):
                if g.m0_owner != (uid, i // 4):
                    g.e(f"s_mov_b32 m0, s{a}\ns_nop 0")
                    g.m0_owner = (uid, i // 4)
                g.dma(vL16, sWS, b, (i % 4) * 1024, mods=g.cfg.wmods, tag=tag)
            ops.append(op)
        return ops

    @property
    def D_AX(self):
        return [208, 212, 216, 220, 224, 244, 252] if self.cfg.passes[0] == (0, 4) else [208, 212, 216, 224, 228, 232, 236]

    @property
    def D_AXPRE(self):
        return (0, 1, 2, 6) if self.cfg.passes[0] == (0, 4) else (0, 1, 2)

    A_X, A_ACC = 16, {"q": 144, "k": 160, "v": 176}
    A_P, A_AX = 208, {"k": 208, "v": 212, "q": 232}
    A_RS, A_CD, A_KA, A_VA, A_BX, A_QM, A_RC = 240, 241, 242, 243, 220, 252, 192

    def a_addr(self, layer):
        g = self
        vK, vV = g.A_KA, g.A_VA
        g.e(f"""
        v_lshrrev_b32 v{vt0}, 4, v{vL16}
        v_and_b32 v{vt2}, 0x33, v{vt0}
        v_bfe_u32 v{vt3}, v{vt0}, 2, 1
        v_lshl_add_u32 v{vt2}, v{vt3}, 3, v{vt2}
        v_bfe_u32 v{vt3}, v{vt0}, 3, 1
        v_lshl_add_u32 v{vt2}, v{vt3}, 2, v{vt2}
        v_lshlrev_b32 v{vK}, 4, v{vt2}
        v_bfe_u32 v{vt2}, v{vt0}, 4, 1
        v_lshlrev_b32 v{vV}, 17, v{vt2}
        v_lshrrev_b32 v{vt2}, 5, v{vt0}
        v_lshl_add_u32 v{vV}, v{vt2}, 8, v{vV}
        v_and_b32 v{vt2}, 15, v{vt0}
        v_lshl_add_u32 v{vV}, v{vt2}, 4, v{vV}
        """)

    def a_saddr(self, layer):
        return [
            f"s_lshl_b32 s{t11}, s{sHP}, 7", f"s_add_u32 s{t11}, s{t11}, s{sT}",
            f"s_lshl_b32 s{t7}, s{t11}, 11", f"s_add_u32 s{t7}, s{t7}, {aKV(layer)}", f"s_add_u32 s{t8}, s{t7}, 0x20000",
            f"s_lshl_b32 s{t9}, s{sT}, 4", f"s_add_u32 s{t9}, s{t9}, s{sHP}", f"s_lshl_b32 s{t9}, s{t9}, 11",
            f"s_add_u32 s{t9}, s{t9}, {aQ(layer)}"]

    def a_rc_ops(self, sarea):
        g = self
        RC = g.A_RC
        ops = [f"v_and_b32 v{vt0}, 0x7c, v{vL4}", f"v_add_u32 v{vt0}, s{sarea}, v{vt0}",
               lambda: g.ds(f"ds_write_b32 v{vt0}, v{g.A_RS}", "rcw"),
               f"v_lshrrev_b32 v{vt0}, 9, v{vL16}", f"v_lshlrev_b32 v{vt0}, 4, v{vt0}", f"v_add_u32 v{vt0}, s{sarea}, v{vt0}",
               f"v_mul_f32 v{g.A_QM}, {f2u(0.25 * LOG2E):#x}, v{g.A_RS}"]
        for j in range(4):
            ops.append(lambda j=j: g.ds(f"ds_read_b128 {vr(RC + 4 * j, 4)}, v{vt0} offset:{32 * j}", "rc"))
        return ops

    def a_epi(self, n, qmods=''):
        g = self
        A = g.A_ACC[n]
        P = g.A_P + {"k": 0, "v": 8, "q": 16}[n]
        ops = [("l", "rc")] if n == "v" else []
        for h in range(2):
            for i in range(8 * h, 8 * h + 8):
                m = {"k": g.A_RS, "q": g.A_QM, "v": g.A_RC + i}[n]
                ops.append(f"v_mul_f32 v{A + i}, v{m}, v{A + i}")
            for i in range(4 * h, 4 * h + 4):
                ops.append(f"v_cvt_pk_bf16_f32 v{P + i}, v{A + 2 * i}, v{A + 2 * i + 1}")
            if n == "k":
                ops.append(lambda h=h: g.st(vr(P + 4 * h, 4), g.A_KA, sWS, (t7, t8)[h], 0, "sc1"))
            elif n == "v":
                ops.append(lambda h=h: g.st(vr(P + 4 * h, 4), g.A_VA, sWS, t7, 1024 + 512 * h, "sc1"))
            else:
                ops.append(lambda h=h: g.st(vr(P + 4 * h, 4), vL16, sWS, t9, 1024 * h, qmods))
        return ops

    def a_mfma(self, n, w, x, first):
        acc = vr(self.A_ACC[n], 16)
        a_, b_ = (x, w) if n == "v" else (w, x)
        self.e(f"v_mfma_f32_32x32x16_bf16 {acc}, {a_}, {b_}, {'0' if first else acc}")

    def phaseA0(self):
        g = self
        X, S1, S2 = g.A_X, 192, 208
        vo0, vo1, vRd, vRs, vWd, vTr = 224, 225, 226, 230, 232, 236
        CS, ONE = 0, 48
        LW = 65536
        g.e(f"""
        v_lshrrev_b32 v{vt0}, 4, v{vL16}
        v_lshrrev_b32 v{vt2}, 3, v{vt0}
        v_lshlrev_b32 v{vo0}, 10, v{vt2}
        v_lshrrev_b32 v{vt2}, 1, v{vt2}
        v_and_b32 v{vt3}, 7, v{vt0}
        v_xor_b32 v{vt2}, v{vt2}, v{vt3}
        v_lshl_add_u32 v{vo0}, v{vt2}, 4, v{vo0}
        v_xor_b32 v{vo1}, 64, v{vo0}
        s_lshl_b32 s{t0}, s{sT}, 15
        {g.cfg.rot.format(t1=t1, sHP=sHP, sC=sC, sX=sX)}
        s_lshl_b32 s{t6}, s{sW}, 14
        s_lshl_b32 s6, s{sHP}, 6
        s_mul_i32 s7, s{sW}, 3072
        s_add_u32 s7, s7, {LW}
        """)
        for i in range(3):
            r = vWd + i
            g.e(f"""
            v_add_u32 v{vt2}, {64 * i}, v{vt0}
            v_mul_u32_u24 v{vt3}, 0x1556, v{vt2}
            v_lshrrev_b32 v{vt3}, 16, v{vt3}
            v_mul_u32_u24 v{r}, 12, v{vt3}
            v_sub_u32 v{vt2}, v{vt2}, v{r}
            v_mul_u32_u24 v{r}, 3072, v{vt3}
            v_lshrrev_b32 v{vt3}, 2, v{vt2}
            v_lshl_add_u32 v{r}, v{vt3}, 10, v{r}
            v_and_b32 v{vt2}, 3, v{vt2}
            v_lshl_add_u32 v{r}, v{vt2}, 4, v{r}
            """)
        g.e("s_waitcnt lgkmcnt(0)")
        g.srd(sXIN, pX, 2048 * 1024)
        g.srd(sWQ, pWQ, 512 * 3072)
        g.stamp("start")

        def grp_ops(c):
            ops = []
            for j in range(4):
                def op(j=j):
                    if j == 0:
                        g.e(f"s_add_u32 s{t2}, s{t1}, {c}\ns_and_b32 s{t2}, s{t2}, 7\ns_lshl_b32 s3, s{t2}, 7\ns_add_u32 s3, s3, s{t0}")
                    g.e(f"s_add_u32 s{t5}, s{t6}, {(c % 4) * 4096 + j * 1024}\ns_mov_b32 m0, s{t5}")
                    g.e("s_add_u32 s3, s3, 8192" if j else "s_nop 0")
                    g.dma((vo0, vo1)[j % 2], sXIN, 3, 0, mods="", tag=("xc", c))
                ops.append(op)
            for i in range(3):
                def op(i=i):
                    if i == 0:
                        g.e(f"s_add_u32 s{t2}, s{t1}, {c}\ns_and_b32 s{t2}, s{t2}, 7\ns_lshl_b32 s{t2}, s{t2}, 2")
                        g.e(f"s_add_u32 s{t2}, s{t2}, s{sW}\ns_mul_i32 s3, s{t2}, 49152\ns_add_u32 s3, s3, s6")
                    g.e(f"s_add_u32 s{t5}, s7, {(c % 5) * 4 * 3072 + i * 1024}\ns_mov_b32 m0, s{t5}\ns_nop 0")
                    g.dma(vWd + i, sWQ, 3, 0, mods="", tag=("w", c))
                ops.append(op)
            return ops
        if g.cfg.warm:
            g.e(f"""
            s_lshl_b32 s{t2}, s{sC}, 2
            s_add_u32 s{t2}, s{t2}, s{sW}
            s_mul_i32 s{t3}, s{t2}, 12288
            s_lshl_b32 s{t2}, s{t2}, 11
            s_lshl_b32 s{t4}, s{sX}, 18
            s_add_u32 s{t2}, s{t2}, s{t4}
            v_lshlrev_b32 v254, 3, v{vL16}
            v_and_b32 v253, 0x780, v254
            """)
            if g.cfg.warm == 2:
                for op in grp_ops(0):
                    op()
            g.ld("v255", 253, sXIN, t2, 0, mods="", w=1)
            if g.cfg.warm == 5:
                g.e(f"v_lshrrev_b32 v252, 6, v{vL16}\nv_min_u32 v252, 11, v252\nv_lshlrev_b32 v252, 10, v252")
                g.ld("v255", 252, sWQ, t3, 384, mods="", w=1)
            if g.cfg.warm >= 3:
                g.e(f"s_lshl_b32 s{t3}, s2, 2\ns_add_u32 s{t3}, s{t3}, s{sW}\ns_mul_i32 s{t3}, s{t3}, 1536")
                g.ld("v255", 253, sWQ, t3, 0, mods="", w=1)
            else:
                g.ld("v255", 254, sWQ, t3, 0, mods="", w=1)
                g.e(f"v_and_b32 v254, 0xf80, v254\ns_add_u32 s{t3}, s{t3}, 8192")
                g.ld("v255", 254, sWQ, t3, 0, mods="", w=1)
        if g.cfg.warm != 2:
            for op in grp_ops(0):
                op()
        g.srd(sWS, pWS, WS_BYTES - g.cfg.ws_off)
        if g.cfg.ws_off:
            g.e(f"s_add_u32 s{sWS}, s{sWS}, {g.cfg.ws_off}\ns_addc_u32 s{sWS + 1}, s{sWS + 1}, 0")
        g.srd(sDBG, pDBG, 256)
        g.zero_flags()
        if not g.cfg.defer:
            g.prologue2()
        g.e(f"""
        v_and_b32 v{vt2}, 31, v{vt0}
        v_lshrrev_b32 v{vt3}, 5, v{vt0}
        v_bfe_u32 v{vt1}, v{vt0}, 1, 3
        v_xor_b32 v{vt1}, v{vt1}, v{vt3}
        v_lshlrev_b32 v{vt1}, 4, v{vt1}
        v_lshl_add_u32 v{vt1}, v{vt2}, 7, v{vt1}
        v_add_u32 v{vt1}, s{t6}, v{vt1}
        """)
        for i in range(4):
            g.e(f"s_add_u32 s{t2}, s{sW}, {i}\ns_and_b32 s{t2}, s{t2}, 3\ns_lshl_b32 s{t2}, s{t2}, 5\nv_xor_b32 v{vRd + i}, s{t2}, v{vt1}")
        g.e(f"""
        v_lshrrev_b32 v{vt2}, 5, v{vt0}
        v_lshlrev_b32 v{vt2}, 3, v{vt2}
        v_bfe_u32 v{vt3}, v{vt0}, 2, 2
        v_add_u32 v{vt2}, v{vt2}, v{vt3}
        v_mul_u32_u24 v{vt1}, 192, v{vt2}
        v_bfe_u32 v{vt3}, v{vt0}, 4, 1
        v_lshl_add_u32 v{vt1}, v{vt3}, 5, v{vt1}
        v_and_b32 v{vt3}, 1, v{vt0}
        v_lshl_add_u32 v{vt1}, v{vt3}, 4, v{vt1}
        v_bfe_u32 v{vt3}, v{vt0}, 1, 1
        v_lshl_add_u32 v{vt1}, v{vt3}, 3, v{vt1}
        """)
        for i in range(4):
            g.e(f"s_add_u32 s{t2}, s{sW}, {i}\ns_and_b32 s{t2}, s{t2}, 3\ns_mul_i32 s{t2}, s{t2}, 3072\ns_add_u32 s{t2}, s{t2}, {LW}\nv_add_u32 v{vTr + i}, s{t2}, v{vt1}")
        g.e(f"v_mov_b32 v{vt1}, 0x3f803f80")
        for i in range(4):
            g.e(f"v_accvgpr_write_b32 a{ONE + i}, v{vt1}")
        if not g.cfg.setup_first:
            for op in grp_ops(1):
                op()
        g.stamp("A0_d1")
        if not g.cfg.defer:
            g.a_addr(0)
            g.relayout_setup(0)
            g.relayout_setup(1)
        if g.cfg.setup_first:
            for op in grp_ops(1):
                op()
        if g.cfg.cpf == 1:
            g.code_prefetch()
        g.stamp("A0_i")
        if not g.cfg.g2_late:
            for op in grp_ops(2):
                op()
        if g.cfg.warm == 4:
            g.e(f"s_lshl_b32 s{t3}, s{sC}, 2\ns_add_u32 s{t3}, s{t3}, s{sW}\ns_mul_i32 s{t3}, s{t3}, 12288\nv_lshlrev_b32 v254, 3, v{vL16}")
            g.ld("v255", 254, sWQ, t3, 0, mods="", w=1)
            g.e(f"v_and_b32 v254, 0xf80, v254\ns_add_u32 s{t3}, s{t3}, 8192")
            g.ld("v255", 254, sWQ, t3, 0, mods="", w=1)

        def xread(c):
            return [("v", ("xc", c))] + [
                lambda i=i: g.ds(f"ds_read_b128 {vr(X + 4 * (4 * c + i), 4)}, v{vRd + i} offset:{(c % 4) * 4096}", ("x", c)) for i in range(4)]

        names = "kvq"
        seg = {"q": 0, "k": 1, "v": 2}

        def wread(f):
            st, n = divmod(f, 3)
            c, i = divmod(st, 4)
            if n == 0 and i == 0:
                g.vwait(("w", c))
                if g.cfg.rl_in_a and 0 <= c - g.cfg.rl_c1 < 2:
                    assert ("rl", c - g.cfg.rl_c1) in g.vmq or ("rl", c - g.cfg.rl_c1) in g.waited
                    g.vwait(("rl", c - g.cfg.rl_c1))
                g.e("s_barrier")
            b = WB + 4 * (f % 8)
            off = (c % 5) * 12288 + seg[names[n]] * 64
            g.ds(f"ds_read_b64_tr_b16 {ar(b, 2)}, v{vTr + i} offset:{off}", ("w", f))
            g.ds(f"ds_read_b64_tr_b16 {ar(b + 2, 2)}, v{vTr + i} offset:{off + 768}", ("w", f))

        def mf4(d, a, b, first):
            g.e(f"v_mfma_f32_4x4x4_16b_bf16 {d}, {a}, {b}, {'0' if first else d}")

        def stat_mf(st):
            for hh in range(2):
                x = vr(X + 4 * st + 2 * hh, 2)
                mf4(vr(S1 + 4 * hh, 4), ar(ONE, 2), x, st == 0)
                mf4(vr(S2 + 4 * hh, 4), x, x, st == 0)
            g.take(side, 2)

        side = deque(xread(0))
        g.take(side, 99)
        g.stamp("A0_x0")
        LEAD = 5
        for f in range(LEAD):
            wread(f)
        rld = g.relayout_dma_ops()
        rlo = g.relayout_out_ops(216, 52, ONE, (g.RL_V + 2, g.RL_V + 3), 231)
        wwarm = [lambda: g.e(f"v_and_b32 v253, 0x3c0, v{vL16}\nv_lshlrev_b32 v253, 1, v253\ns_lshl_b32 s{t7}, s2, 2\ns_add_u32 s{t7}, s{t7}, s{sW}")]
        for ptr, share in ((pW1, 1792), (pW3, 1792), (pW2, 1792), (pWO, 512)):
            def op(ptr=ptr, share=share):
                g.srd(sWQ, ptr, share * 1024)
                g.e(f"s_mul_i32 s{t8}, s{t7}, {share}")
                if share < 1792:
                    g.e("v_and_b32 v253, 0x180, v253")
                g.ld("v255", 253, sWQ, t8, 0, mods="", w=1)
            wwarm.append(op)
        XA = 8192
        for c in range(8):
            if c == 0 and g.cfg.g2_late:
                side.extend(grp_ops(2))
            if c + 3 < 8:
                side.extend(grp_ops(c + 3))
            if c == 0 and g.cfg.g2_late:
                side.extend(xread(1) + [g.handshake_send])
            elif c == 0:
                side.extendleft(reversed(xread(1) + [g.handshake_send]))
            elif c + 1 < 8:
                side.extend(xread(c + 1))
            if g.cfg.defer:
                for cc, fn in zip(g.cfg.defer, (lambda: g.relayout_setup(0), lambda: g.relayout_setup(1), g.prologue2, lambda: g.a_addr(0))):
                    if cc == c:
                        side.appendleft(fn)
            if c == 3:
                side.appendleft(g.handshake_load)
            if g.cfg.rl_in_a:
                if c == g.cfg.rl_c0:
                    side.extend(rld[:4])
                if c == g.cfg.rl_c0 + 1:
                    side.extend(rld[4:])
                u = c - g.cfg.rl_c1
                if 0 <= u < 2:
                    oo = [o for o, _ in rlo[13 * u:13 * u + 13]]
                    for k in range(4):
                        side.extend([oo[3 * k], None, None, oo[3 * k + 1], oo[3 * k + 2]])
                    side.extend([None] * 4 + [oo[12]])
            if c == 6 and g.cfg.xcc_early:
                side.append(lambda: g.xcc_load(250, 251, t4))
            if c == 4:
                side.append(g.handshake_check)
                if g.cfg.xcc_early:
                    side.append(g.xcc_send)
                if not g.cfg.rl_in_b and not g.cfg.rl_in_a:
                    side.extend(rld)
            if c == g.cfg.warm_w:
                side.extend(wwarm)
            if c == 6:
                side.extend(g.a_saddr(0))
            g.lwait(("x", c))
            if c == 7:
                for i in range(4):
                    stat_mf(28 + i)
                sel = [f"v_add_f32 v{S1}, v{S1}, v{S1 + 4}"] + [f"v_add_f32 v{S2 + r}, v{S2 + r}, v{S2 + 4 + r}" for r in range(4)]
                for m, stp in ((0xaaaaaaaa, 1), (0xcccccccc, 2)):
                    sel += [f"s_mov_b32 s{t2}, {m:#x}", f"s_mov_b32 s{t3}, {m:#x}"]
                    sel += [f"v_cndmask_b32 v{S2 + r}, v{S2 + r}, v{S2 + r + stp}, s[{t2}:{t3}]" for r in range(0, 4, 2 * stp)]
                sel += ["s_nop 1", f"v_permlane32_swap_b32 v{S1}, v{S2}", f"v_add_f32 v{S1}, v{S1}, v{S2}",
                        f"v_mov_b32 v{S2}, v{S1}", "s_nop 1", f"v_permlane32_swap_b32 v{S1}, v{S2}"]
                sel += g.stats_tail(S1, S2, g.A_RS, g.A_CD, g.A_BX)
                sel += [f"s_add_u32 s{t2}, s{t6}, 12288"] + g.a_rc_ops(t2)
            for i in range(4):
                st = 4 * c + i
                g.lwait(("w", 3 * st + 2))
                for n in range(3):
                    f = 3 * st + n
                    wb = ar(WB + 4 * (f % 8), 4)
                    g.a_mfma(names[n], wb, vr(X + 4 * st, 4), st == 0)
                    if i == 0:
                        for hh in range(2):
                            mf4(ar(CS + 8 * n + 4 * hh, 4), ar(ONE, 2), ar(WB + 4 * (f % 8) + 2 * hh, 2), c == 0)
                    if f + LEAD < 96:
                        wread(f + LEAD)
                    g.take(side, 2 if c < 7 else 5)
                    if c == 7 and i == 0 and n == 1:
                        side.extend(sel)
                if c == 7 and i == 1:
                    g.e(f"s_lshl_b32 s{t4}, s{sW}, 2\ns_add_u32 s{t4}, s{t4}, {XA}\nv_add_u32 v253, s{t4}, v{vL16}")
                    for n in range(3):
                        g.e(f"""
                        v_accvgpr_read_b32 v{vt2}, a{CS + 8 * n}
                        v_accvgpr_read_b32 v254, a{CS + 8 * n + 4}
                        v_add_f32 v{vt2}, v{vt2}, v254
                        v_cvt_pk_bf16_f32 v254, v{vt2}, v{vt2}
                        v_lshlrev_b32 v254, 16, v254
                        v_sub_f32 v254, v{vt2}, v254
                        v_cvt_pk_bf16_f32 v254, v{vt2}, v254
                        """)
                        g.ds(f"ds_write_b32 v253, v254 offset:{1024 * n}", "csw")
                if c < 7:
                    stat_mf(st)
            g.take(side, 99)
            g.stamp(f"A0_g{c}")
        g.lwait0()
        g.e("s_barrier")
        for n in range(3):
            g.ds(f"ds_read_b128 {vr(g.A_AX[names[n]], 4)}, v{vL16} offset:{XA + 1024 * n}", ("ax", n))
        for n in range(3):
            g.lwait(("ax", n))
            g.a_mfma(names[n], vr(g.A_AX[names[n]], 4), vr(g.A_BX, 4), False)
        side = deque(g.a_epi("k") + g.a_epi("v") + g.a_epi("q", "sc1"))
        g.take(side, 999)
        if g.cfg.xcc_early:
            g.xcc_check(250, 251, 4)
        g.stamp("A0st")

    def phaseA1(self, layer):
        g = self
        cfg = g.cfg
        X, SB = g.A_X, 192
        g.A_BX = 236
        vA0, vA1 = 224, 225
        LW = 65536
        g.e(f"v_add_u32 v{vA0}, {LW}, v{vL16}\nv_add_u32 v{vA1}, {LW + 49152}, v{vL16}")
        g.a_addr(layer)
        g.e("\n".join(g.a_saddr(layer)))
        g.e(f"s_lshl_b32 s{t4}, s{sHP}, 10\ns_add_u32 s{t4}, s{t4}, {WXQ}\ns_lshl_b32 s{t6}, s{sW}, 8\ns_add_u32 s{t6}, s{t6}, {48 * 1024}")
        g.e(f"v_and_b32 v{vt0}, 60, v{vL4}\ns_lshl_b32 s{t2}, s{sT}, 7\ns_add_u32 s{t2}, s{t2}, {FE}")
        pre, xrest, stl = g.load_x_stats(layer - 1, 1, aX(layer - 1, 1), X, SB, cfg.up_a)
        seg = {"q": 0, "k": 1, "v": 2}
        LAG = cfg.lag_a
        seq = []
        for ks in range(32):
            if cfg.lag_end:
                seq += [("k", ks), ("v", ks)] + ([("q", ks)] if ks < 32 - LAG else [])
            else:
                seq += [("k", ks), ("v", ks)] + ([("q", ks - LAG)] if ks >= LAG else [])
        nmain = len(seq)
        seq += [("q", ks) for ks in range(32 - LAG, 32)]

        def wread(f):
            n, ks = seq[f]
            off = ((ks % 16) * 3 + seg[n]) * 1024
            g.ds(f"ds_read_b128 {ar(WB + 4 * (f % 8), 4)}, v{vA0 if ks < 16 else vA1} offset:{off}", ("w", f))
        LEAD = 7
        for f in range(LEAD):
            wread(f)
        g.poll(vt0, t2, layer, True)
        g.stamp(f"A{layer}go")
        pre()

        def axld(n):
            g.ld(vr(g.A_AX[n], 4), vL16, sWS, t4, 0, tag="ax")
            g.e(f"s_add_u32 s{t4}, s{t4}, 16384")
        xrest = deque(xrest)
        mem = deque(stl + [lambda n=n: axld(n) for n in "qkv"])
        if "A" in cfg.touch:
            xrest.extend([lambda: g.e(f"v_and_b32 v254, 0x3c0, v{vL16}\nv_lshlrev_b32 v254, 1, v254")] + g.touch_ops([], t9, 1, 254, 255))
        side = deque()
        for f, (n, ks) in enumerate(seq):
            if f == nmain:
                g.stamp(f"Z{layer}:Amain")
                g.take(side, 999)
                g.vwait("ax")
                for m in "kv":
                    g.a_mfma(m, vr(g.A_AX[m], 4), vr(g.A_BX, 4), False)
                side.extend([None] * 8 + g.a_epi("k") + g.a_epi("v"))
            if n == "k":
                g.vwait(("x", ks))
                if ks == 0:
                    g.stamp(f"Z{layer}:Afirst")
            if f % 4 == 0:
                g.lwait(("w", min(f + 3, 95)))
            g.a_mfma(n, ar(WB + 4 * (f % 8), 4), vr(X + 4 * ks, 4), ks == 0)
            if f + LEAD < 96:
                wread(f + LEAD)
            if (n == "k" or (n == "q" and ks < cfg.x2_a)) and xrest:
                xrest.popleft()()
            elif n == "v" and ks >= cfg.st_a and mem:
                mem.popleft()()
                if not mem:
                    side.extend([None] * 30 + g.stats_ops(SB, g.A_RS, g.A_CD, g.A_BX) + g.a_rc_ops(t6))
            g.take(side, 3 if f < nmain else 7)
            if n == "k" and ks % 8 == 7:
                g.stamp(f"A{layer}_{ks}")
        g.a_mfma("q", vr(g.A_AX["q"], 4), vr(g.A_BX, 4), False)
        g.e("s_barrier")
        g.stamp(f"A{layer}_m")
        side.extend(g.a_epi("q"))
        g.take(side, 999)
        g.stamp(f"A{layer}st")

    RL_SRD = ((28, 32), (80, 16))
    RL_DO = (64, 70)
    RL_XO = (62, 63)
    RL_V = 244
    RL_LDS = 131072

    def relayout_setup(self, ui):
        g = self
        passes = g.cfg.passes
        RA, RB = g.RL_SRD[ui]
        sDO, sDS = g.RL_DO[ui], g.RL_DO[ui] + 1
        sXO = g.RL_XO[ui]
        u, sRS, sSO, sMH, sWO = t7, t9, t10, t8, t11
        a0, a1, a2, a3 = t2, t3, t4, t5
        vS, vT = g.RL_V + ui, g.RL_V + 2 + ui
        L = [g.label("rl") for _ in range(5)]
        if ui == 0:
            g.e(f"s_mov_b32 s{u}, s2\ns_cmp_ge_u32 s{u}, 224\ns_cbranch_scc1 {L[0]}")
            g.srd(RA, pW1, 512 * 3584)
            g.srd(RB, pW3, 512 * 3584)
            g.e(f"""
            s_mov_b32 s{sRS}, 3584
            s_lshr_b32 s{a0}, s{u}, 3
            s_and_b32 s{a1}, s{u}, 7
            s_lshl_b32 s{a2}, s{a1}, 2
            s_add_u32 s{a2}, s{a2}, s{sW}
            s_mul_i32 s{sSO}, s{a2}, {16 * 3584}
            s_lshl_b32 s{a2}, s{a0}, 7
            s_add_u32 s{sSO}, s{sSO}, s{a2}
            s_lshl_b32 s{a0}, s{a0}, 2
            s_add_u32 s{a0}, s{a0}, s{sW}
            s_lshl_b32 s{sXO}, s{a0}, 10
            s_add_u32 s{sXO}, s{sXO}, {WX13}
            s_mul_i32 s{a2}, s{a0}, 9363
            s_lshr_b32 s{a2}, s{a2}, 16
            s_mul_i32 s{a3}, s{a2}, 7
            s_sub_u32 s{a3}, s{a0}, s{a3}
            s_mul_i32 s{sDO}, s{a2}, 229376
            s_add_u32 s{sDO}, s{sDO}, {W13}
            s_mov_b32 s{a2}, {passes[0][0]}
            s_mov_b32 s{sDS}, {(passes[0][1] - passes[0][0]) * 1024}
            """)
            for a, b in passes[1:]:
                g.e(f"s_cmp_ge_u32 s{a3}, {a}\ns_cselect_b32 s{a2}, {a}, s{a2}\ns_cselect_b32 s{sDS}, {(b - a) * 1024}, s{sDS}")
            g.e(f"""
            s_mul_i32 s{a0}, s{a2}, 31
            s_add_u32 s{a0}, s{a0}, s{a3}
            s_lshl_b32 s{a0}, s{a0}, 10
            s_add_u32 s{sDO}, s{sDO}, s{a0}
            s_mov_b32 s{sMH}, 8192
            s_lshl_b32 s{sWO}, s{sW}, 5
            """)
            other, nks, wdst, first, ptr = "wo", 32, WO, 224, pWO
        else:
            if g.cfg.spare:
                g.e(f"s_mov_b32 s{a0}, s{sC}")
                for v in g.cfg.spare:
                    g.e(f"s_cmp_gt_u32 s{sC}, {v}\ns_subb_u32 s{a0}, s{a0}, 0")
                g.e(f"s_lshl_b32 s{u}, s{a0}, 3\ns_add_u32 s{u}, s{u}, s{sX}\ns_min_u32 s{u}, s{u}, 207\ns_cmp_lt_u32 s{u}, 112\ns_cbranch_scc1 {L[0]}")
            else:
                g.e(f"s_sub_u32 s{a0}, s2, 208\ns_cmp_ge_u32 s2, 208\ns_cselect_b32 s{u}, s{a0}, s2\ns_cmp_lt_u32 s{u}, 112\ns_cbranch_scc1 {L[0]}")
            g.srd(RA, pWQ, 512 * 3072)
            g.srd(RB, pWQ, 512 * 3072 - 128)
            g.e(f"""
            s_add_u32 s{RB}, s{RB}, 128
            s_addc_u32 s{RB + 1}, s{RB + 1}, 0
            s_mov_b32 s{sRS}, 3072
            s_sub_u32 s{a0}, s{u}, 112
            s_and_b32 s{a1}, s{a0}, 7
            s_lshr_b32 s{a0}, s{a0}, 3
            s_lshl_b32 s{a2}, s{a1}, 2
            s_add_u32 s{a2}, s{a2}, s{sW}
            s_mul_i32 s{sSO}, s{a2}, {16 * 3072}
            s_lshl_b32 s{a2}, s{a0}, 8
            s_add_u32 s{sSO}, s{sSO}, s{a2}
            s_lshl_b32 s{a0}, s{a0}, 2
            s_add_u32 s{a0}, s{a0}, s{sW}
            s_lshl_b32 s{sXO}, s{a0}, 10
            s_add_u32 s{sXO}, s{sXO}, {WXQ}
            s_and_b32 s{a2}, s{a0}, 15
            s_mul_i32 s{sDO}, s{a2}, {32 * 3072}
            s_lshr_b32 s{a2}, s{a0}, 4
            s_lshl_b32 s{a2}, s{a2}, 10
            s_add_u32 s{sDO}, s{sDO}, s{a2}
            s_add_u32 s{sDO}, s{sDO}, {WQ}
            s_mov_b32 s{sDS}, 3072
            s_mov_b32 s{sMH}, 32
            s_lshr_b32 s{sWO}, s{sW}, 1
            s_lshl_b32 s{sWO}, s{sWO}, 13
            s_and_b32 s{a2}, s{sW}, 1
            s_lshl_b32 s{a2}, s{a2}, 6
            s_add_u32 s{sWO}, s{sWO}, s{a2}
            """)
            other, nks, wdst, first, ptr = "w2", 112, W2, 0, pW2
        g.e(f"""
        s_lshl_b32 s{a0}, s{sDS}, 2
        s_mul_i32 s{a0}, s{a0}, s{a1}
        s_add_u32 s{sDO}, s{sDO}, s{a0}
        s_and_b32 s{a0}, s{a1}, 4
        s_lshl_b32 s{a0}, s{a0}, 7
        s_add_u32 s{sXO}, s{sXO}, s{a0}
        s_and_b32 s{a0}, s{a1}, 3
        s_lshl_b32 s{a0}, s{a0}, 2
        s_add_u32 s{sXO}, s{sXO}, s{a0}
        s_mov_b32 s{a0}, 0
        s_mov_b32 s{a1}, 0
        s_branch {L[1]}
        {L[0]}:
        """)
        g.srd(RA, ptr, nks * 16 * 1024)
        g.srd(RB, ptr, nks * 16 * 1024 - 512)
        g.e(f"""
        s_add_u32 s{RB}, s{RB}, 512
        s_addc_u32 s{RB + 1}, s{RB + 1}, 0
        s_mov_b32 s{sRS}, 1024
        s_sub_u32 s{a0}, s{u}, {first}
        s_lshl_b32 s{sSO}, s{a0}, 14
        s_lshr_b32 s{a1}, s{sW}, 1
        s_lshl_b32 s{sWO}, s{a1}, 13
        s_mul_i32 s{a1}, s{a1}, {4 * nks}
        s_add_u32 s{a1}, s{a1}, s{a0}
        s_lshl_b32 s{sDO}, s{a1}, 11
        s_and_b32 s{a1}, s{sW}, 1
        s_lshl_b32 s{a2}, s{a1}, 10
        s_add_u32 s{sDO}, s{sDO}, s{a2}
        s_add_u32 s{sDO}, s{sDO}, {wdst}
        s_mov_b32 s{sDS}, {nks * 2048}
        s_lshl_b32 s{a2}, s{a1}, 6
        s_add_u32 s{sWO}, s{sWO}, s{a2}
        s_mov_b32 s{sMH}, 32
        s_lshl_b32 s{sXO}, s{u}, 2
        s_add_u32 s{sXO}, s{sXO}, s{sW}
        s_and_b32 s{sXO}, s{sXO}, 63
        s_lshl_b32 s{sXO}, s{sXO}, 10
        s_add_u32 s{sXO}, s{sXO}, {WXD}
        s_mov_b32 s{a0}, 3
        s_mov_b32 s{a1}, s{sW}
        {L[1]}:
        v_lshrrev_b32 v{vS}, 7, v{vL16}
        v_and_b32 v{vt2}, s{a0}, v{vS}
        v_xor_b32 v{vt2}, s{a1}, v{vt2}
        v_mul_lo_u32 v{vS}, v{vS}, s{sRS}
        v_lshl_add_u32 v{vS}, v{vt2}, 7, v{vS}
        v_and_b32 v{vT}, 0x70, v{vL16}
        v_add3_u32 v{vS}, v{vS}, v{vT}, s{sSO}
        s_lshl_b32 s{4 + ui}, s{sRS}, 3
        s_add_u32 s{sWO}, s{sWO}, {g.RL_LDS + ui * 16384}
        v_bfe_u32 v{vT}, v{vL16}, 8, 1
        v_mul_lo_u32 v{vT}, v{vT}, s{sMH}
        v_add_u32 v{vT}, s{sWO}, v{vT}
        v_lshrrev_b32 v{vt2}, 9, v{vL16}
        v_lshl_add_u32 v{vT}, v{vt2}, 10, v{vT}
        v_bfe_u32 v{vt2}, v{vL16}, 6, 2
        v_lshl_add_u32 v{vT}, v{vt2}, 7, v{vT}
        v_and_b32 v{vt2}, s{a0}, v{vt2}
        v_lshl_add_u32 v{vT}, v{vt2}, 11, v{vT}
        v_and_b32 v{vt2}, 16, v{vL16}
        v_add_u32 v{vT}, v{vt2}, v{vT}
        v_bfe_u32 v{vt2}, v{vL16}, 5, 1
        v_lshl_add_u32 v{vT}, v{vt2}, 3, v{vT}
        v_add_u32 v{g.RL_V + 4 + ui}, s{4 + ui}, v{vS}
        """)
        if ui == 1 and g.cfg.spare:
            mask = sum(1 << v for v in g.cfg.spare)
            g.e(f"""
            s_lshr_b32 s{a0}, {mask:#x}, s{sC}
            s_and_b32 s{a0}, s{a0}, 1
            s_cselect_b32 s{RA + 2}, 0, s{RA + 2}
            s_cselect_b32 s{RB + 2}, 0, s{RB + 2}
            s_cselect_b32 s{sDO}, {WS_BYTES:#x}, s{sDO}
            s_cselect_b32 s{sXO}, {WS_BYTES:#x}, s{sXO}
            """)

    def relayout_dma_ops(self):
        g = self
        ops = []
        for ui in range(2):
            for i in range(4):
                def op(ui=ui, i=i):
                    g.e(f"s_lshl_b32 s{t5}, s{sW}, 11\ns_add_u32 s{t5}, s{t5}, {g.RL_LDS + ui * 16384 + (i // 2) * 8192 + (i % 2) * 1024}")
                    g.e(f"s_mov_b32 m0, s{t5}\ns_nop 0")
                    g.dma(g.RL_V + ui + 4 * (i % 2), g.RL_SRD[ui][i // 2], None, 0, mods="", tag=("rl", ui))
                ops.append(op)
        return ops

    def relayout_out_ops(self, d=244, CS=224, ONE=240, vS=(vt2, vt3), ta=vt0):
        g = self
        ops = []
        for ui in range(2):
            sDO, sDS = g.RL_DO[ui], g.RL_DO[ui] + 1
            for i in range(4):
                def rd(ui=ui, i=i):
                    if i:
                        g.e(f"v_xor_b32 v{vS[ui]}, {(i ^ (i - 1)) << 11}, v{vS[ui]}")
                    g.ds(f"ds_read_b64_tr_b16 {vr(d, 2)}, v{vS[ui]}", ("rl", i))
                    g.ds(f"ds_read_b64_tr_b16 {vr(d + 2, 2)}, v{vS[ui]} offset:512", ("rl", i))

                def wr(i=i, sDO=sDO, sDS=sDS):
                    g.lwait(("rl", i))
                    g.st(vr(d, 4), vL16, sWS, sDO, 0, "sc1", tag="rlst")
                    g.e(f"s_add_u32 s{sDO}, s{sDO}, s{sDS}")

                def cs(i=i):
                    g.e(f"v_mfma_f32_32x32x16_bf16 {ar(CS, 16)}, {ar(ONE, 4)}, {vr(d, 4)}, {ar(CS, 16) if i else '0'}")
                ops += [(rd, "A"), (wr, "C"), (cs, "D")]

            def xo(ui=ui):
                g.e(f"""
                v_accvgpr_read_b32 v254, a{CS}
                v_and_b32 v{ta}, 0x1f0, v{vL16}
                v_cvt_pk_bf16_f32 v255, v254, v254
                v_lshlrev_b32 v255, 16, v255
                v_sub_f32 v255, v254, v255
                v_cvt_pk_bf16_f32 v255, v254, v255
                """)
                g.st(vr(255), ta, sWS, g.RL_XO[ui], 0, "sc1", tag="rlst", w=1)
            ops.append((xo, "X"))
        return ops

    def ew_ops(self, lo, hi, ts):
        g = self
        a, b = ts
        ops = []

        def setup():
            g.e(f"s_mul_i32 s{a}, s{sCB}, {112 * 2048}\ns_mul_i32 s{b}, s{sW}, {28 * 2048}")
        def setup2():
            g.e(f"s_add_u32 s{a}, s{a}, s{b}\ns_add_u32 s{a}, s{a}, {W2 + (lo // 4) * 4096}")
        def setup3():
            g.e(f"s_lshl_b32 s{b}, s{sNA}, 10\ns_add_u32 s{a}, s{a}, s{b}")
        def setup4():
            g.e(f"s_xor_b32 s{b}, s{a}, 1024")
        ops += [setup, setup2, setup3, setup4]
        assert lo % 4 == 0
        for idx in range(lo, hi):
            def op(idx=idx):
                i, n = divmod(idx, 2)
                if idx > lo and idx % 4 == 0:
                    g.e(f"s_add_u32 s{a}, s{a}, 4096\ns_add_u32 s{b}, s{b}, 4096")
                g.ld(ar(4 * idx, 4), vL16, sWS, (a, b)[n], (i % 2) * 2048, mods=g.cfg.wmods, tag="ew")
            ops.append(op)
        return ops

    def phaseB(self, layer):
        g = self
        cfg = g.cfg
        O, Q, S, KV = 16, 144, 176, 208
        vV = 252
        CW = [R("a", 224 + 4 * i) for i in range(8)] + [R("v", 220 + 4 * i) for i in range(8)]
        if cfg.b_tail:
            CW[11:] = [R("v", b) for b in (244, 248, 144, 148, 152)]
        SBo, SBl = 104 * 1024, 152 * 1024
        sKV, sG = 6, 7
        g.e(f"v_mov_b32 v{vt0}, 0x3f803f80\ns_mov_b32 s{t0}, 0x00110000\ns_mov_b32 s{t1}, 0x00110000")
        if layer == 0 and not cfg.rl_in_a:
            for i in range(4):
                g.e(f"v_accvgpr_write_b32 a{240 + i}, v{vt0}")
            g.e(f"v_mov_b32 v{vt2}, v{g.RL_V + 2}\nv_mov_b32 v{vt3}, v{g.RL_V + 3}")
        g.e(f"v_cndmask_b32 v{vIdx}, 0, v{vt0}, s[{t0}:{t1}]")
        for r in range(4, 12):
            g.e(f"v_mov_b32 v{KV + r}, v{vIdx}")

        def late_setup():
            for e in range(1, 3):
                for r in range(4, 12):
                    g.e(f"v_mov_b32 v{KV + 12 * e + r}, v{vIdx}")
            g.e(f"v_mov_b32 v{vIdx}, 0xdddddddd")
            for j in range(8):
                for r in range(9):
                    g.e(f"v_mov_b32 v{O + 16 * j + r}, 0")
            g.e(f"""
            v_bfe_u32 v{vt0}, v{vL16}, 5, 3
            v_add_u32 v{vt0}, s{sX}, v{vt0}
            v_and_b32 v{vt0}, 7, v{vt0}
            v_lshlrev_b32 v253, 7, v{vt0}
            v_bfe_u32 v{vt0}, v{vL16}, 4, 1
            v_lshl_add_u32 v253, v{vt0}, 2, v253
            """)
        g.e(f"""
        v_lshrrev_b32 v{vt0}, 9, v{vL16}
        v_lshlrev_b32 v{vV}, 8, v{vt0}
        v_and_b32 v{vt0}, 0xf0, v{vL16}
        v_add_u32 v{vV}, v{vV}, v{vt0}
        v_and_b32 v{vt0}, 28, v{vL4}
        s_lshl_b32 s{t0}, s{sX}, 4
        s_lshr_b32 s{t1}, s{sC}, 1
        s_add_u32 s{t0}, s{t0}, s{t1}
        s_lshl_b32 s{t0}, s{t0}, 7
        s_add_u32 s{t0}, s{t0}, {FA_L}
        s_lshl_b32 s{sG}, s{t1}, 10
        s_lshl_b32 s{t2}, s{sW}, 3
        s_add_u32 s{sG}, s{sG}, s{t2}
        s_add_u32 s{sG}, s{sG}, {FA_G}
        s_lshl_b32 s{t2}, s{sW}, 1
        s_lshl_b32 s{sKV}, s{sC}, 6
        s_add_u32 s{sKV}, s{sKV}, s{t2}
        s_lshl_b32 s{sKV}, s{sKV}, 11
        s_add_u32 s{sKV}, s{sKV}, {aKV(layer)}
        s_lshl_b32 s{t3}, s{sX}, 8
        s_add_u32 s{t3}, s{t3}, s{sC}
        s_lshl_b32 s{t3}, s{t3}, 10
        s_add_u32 s{t3}, s{t3}, {aQ(layer)}
        """)
        for j in range(8):
            g.e(f"s_add_u32 s{t4 + j}, s{t2}, {2 + j}\ns_and_b32 s{t4 + j}, s{t4 + j}, 7\ns_lshl_b32 s{t4 + j}, s{t4 + j}, 15\ns_add_u32 s{t4 + j}, s{t4 + j}, s{t3}")
        g.e(f"s_lshl_b32 s3, s{sX}, 14\ns_add_u32 s3, s3, s{sKV}")
        g.vwait0()
        g.stamp(f"B{layer}:ack")
        if layer == 0 and cfg.b0_g:
            g.e(f"s_and_b32 s{t0}, s{sG}, 0xfffffc00\ns_lshl_b32 s4, s{sX}, 7\ns_add_u32 s{t0}, s{t0}, s4")
        else:
            g.signal(0, layer + 1, layer > 0 or cfg.xcc_early)
        if cfg.b_opt == 2 and layer > 0:
            g.poll(vt0, t0, layer + 1, True)
        else:
            l3, l0 = g.label("b3"), g.label("b0")
            g.e(f"s_barrier\ns_cmp_eq_u32 s{sW}, 3\ns_cbranch_scc0 {l3}")
            g.e(f"v_readlane_b32 s{t1}, v{vFl}, 1\nv_mov_b32 v{vt1}, {layer + 1}\ns_mov_b64 exec, 15\ns_sub_u32 s{t1}, s{t1}, 12\ns_nop 1")
            g.e(f"buffer_store_dword v{vt1}, v{vL4}, {sr(sWS, 4)}, s{t1} offen sc1\ns_mov_b64 exec, -1\n{l3}:")
            if layer == 0 and cfg.rl_in_a:
                l2 = g.label("b2")
                g.e(f"s_cmp_eq_u32 s{sW}, 2\ns_cbranch_scc0 {l2}\nv_mov_b32 v{vt1}, 1\ns_mov_b64 exec, 64")
                g.e(f"buffer_store_dword v{vt1}, v{vFl}, {sr(sWS, 4)}, 0 offen sc1\ns_mov_b64 exec, -1\n{l2}:")
            if cfg.kv_touch:
                lt = g.label("bt")
                g.e(f"""
                s_sub_u32 s4, s{sW}, 1
                s_cmp_lt_u32 s4, 2
                s_cbranch_scc0 {lt}
                s_lshl_b32 s5, s{sHP}, 1
                s_add_u32 s4, s4, s5
                s_lshl_b32 s4, s4, 6
                s_and_b32 s5, s{sT}, 0xfc
                s_add_u32 s4, s4, s5
                s_lshl_b32 s4, s4, 11
                s_add_u32 s4, s4, {aKV(layer)}
                v_lshlrev_b32 v254, 3, v{vL16}
                buffer_load_dword v255, v254, {sr(sWS, 4)}, s4 offen sc1
                {lt}:
                """)
            g.e(f"s_cmp_eq_u32 s{sW}, 0\ns_cbranch_scc0 {l0}")
            keep = list(g.vmq)
            p2, cfg.poll2 = cfg.poll2, 0
            g.poll(vt0, t0, layer + 1, False, sleep=0 if layer or cfg.xcc_early else cfg.b0_sleep)
            cfg.poll2 = p2
            g.vmq = keep
            g.e(f"{l0}:\ns_barrier")
            if layer > 0:
                g.dual("", "buffer_inv sc1\ns_waitcnt vmcnt(0)", 0)
        g.stamp(f"B{layer}go")

        def kv_addr1(kt):
            g.e(f"s_add_u32 s3, s{sX}, {kt // 2}\ns_and_b32 s3, s3, 7")

        def kv_addr2(kt):
            g.e(f"s_lshl_b32 s3, s3, 14\ns_add_u32 s3, s3, s{sKV}")

        def ldK(kt):
            g.ld(vr(KV + 12 * (kt % 3), 4), vL16, sWS, 3, (kt % 2) * 2048, mods=cfg.kvmods, tag=("K", kt))

        def ldV(kt, halves=(0, 1)):
            e = KV + 12 * (kt % 3)
            g.e(f"s_mov_b64 exec, s[{sVM}:{sVM + 1}]")
            for h in halves:
                g.ld(vr(e + 4 + 4 * h, 4), vV, sWS, 3, (kt % 2) * 2048 + 1024 + 512 * h, mods=cfg.kvmods, tag=("V", kt))
            g.e("s_mov_b64 exec, -1")

        def ldQ(j):
            g.ld(vr(Q + 4 * j, 4), vL16, sWS, t4 + j, 0, tag=("Q", j))
        ldK(0)
        ldQ(0)
        ldQ(1)
        ldV(0)
        for j in range(2, cfg.q_up):
            ldQ(j)
        if cfg.b_opt == 2 and layer > 0:
            for j in range(cfg.q_up, 8):
                ldQ(j)
            ldK(1)
        late_setup()
        if cfg.b_opt == 2 and layer > 0:
            ldV(1)
            g.signal(1, layer + 1, False)

        gaps = {}

        def at(n, gap, fn):
            gaps.setdefault((n, gap), []).append(fn)

        def place(ops, n0, gap0="A", allowed="AC", step=0):
            pos = 3 * n0 + "ABC".index(gap0)
            for op in ops:
                while "ABC"[pos % 3] not in allowed or (pos // 3, "ABC"[pos % 3]) in gaps:
                    pos += 1
                at(pos // 3, "ABC"[pos % 3], op)
                pos += 1 + step
            return pos // 3 + 1

        def spread(ops, n0, per_tile=3, gapset="ABC"):
            return place(ops, n0, gapset[0], gapset, 0 if per_tile > 1 else 2)

        for j in range(1, 8):
            at(j - 1, "a", lambda j=j: g.vwait(("Q", j)))
        at(0, "B", lambda: g.vwait(("V", 0)))
        for kt in range(1, 16):
            at(112 if kt == 15 and cfg.b_tail else 8 * kt - 1, "A", lambda kt=kt: g.vwait(("V", kt)))
        if not (cfg.b_opt == 2 and layer > 0):
            place([lambda j=j: ldQ(j) for j in range(cfg.q_up, 8)] + [lambda: ldK(1), lambda: ldV(1)], 0, "A", "AC")

        def red_addr(d):
            g.e(f"s_add_u32 s{t0}, s{sW}, {1 + d}\ns_and_b32 s{t0}, s{t0}, 3")
        def red_addr2(d):
            g.e(f"s_mul_i32 s{t0}, s{t0}, 6\ns_add_u32 s{t0}, s{t0}, {2 * d}")
        def red_addr3(d):
            g.e(f"s_lshl_b32 s{t1}, s{t0}, 11\ns_add_u32 s{t1}, s{t1}, {SBo}\nv_add_u32 v{(vt0, vt1)[d % 2]}, s{t1}, v{vL16}")
        def red_addr4(d):
            g.e(f"s_lshl_b32 s{t1}, s{t0}, 8\ns_add_u32 s{t1}, s{t1}, {SBl}\nv_add_u32 v{(vt2, vt3)[d % 2]}, s{t1}, v{vL4}")

        def red_wr(j, part):
            b = O + 16 * j
            s_ = j % 2
            va, vb = (vt0, vt1)[(j // 2) % 2], (vt2, vt3)[(j // 2) % 2]
            if part == 0:
                g.ds(f"ds_write_b128 v{va}, {vr(b, 4)} offset:{s_ * 2048}")
            elif part == 1:
                g.ds(f"ds_write_b128 v{va}, {vr(b + 4, 4)} offset:{s_ * 2048 + 1024}")
            else:
                g.ds(f"ds_write_b32 v{vb}, v{b + 8} offset:{s_ * 256}")
        order = [divmod(n, 8) for n in range(128)]
        if cfg.b_tail:
            order[112:] = [(14 + k, j) for j in range(6) for k in range(2)] + [(14, 6), (14, 7), (15, 6), (15, 7)]
            for j in range(6):
                for part in range(3):
                    at(115 + 2 * j, "ABC"[part], lambda j=j, part=part: red_wr(j, (0, 2, 1)[part]))
            for d, n in enumerate((112, 116, 120)):
                at(n, "B", lambda d=d: red_addr(d))
                at(n, "C", lambda d=d: red_addr2(d))
                at(n + 2, "A", lambda d=d: red_addr3(d))
                at(n + 2, "C", lambda d=d: red_addr4(d))
        else:
            for j in range(6):
                at(121 + j, "D", lambda j=j: red_wr(j, 2))
                at(121 + j, "D", lambda j=j: red_wr(j, 0))
                at(122 + j, "A", lambda j=j: red_wr(j, 1))
            for d, n in enumerate((117, 119, 124)):
                at(n, "B", lambda d=d: red_addr(d))
                at(n, "C", lambda d=d: red_addr2(d))
                at(n + 1, "B", lambda d=d: red_addr3(d))
                at(n + 1, "C", lambda d=d: red_addr4(d))
        PB = 16

        def own_addr():
            g.e(f"""
            s_mul_i32 s{t0}, s{sW}, 6
            s_lshl_b32 s{t1}, s{t0}, 11
            s_add_u32 s{t1}, s{t1}, {SBo}
            v_add_u32 v{vt1}, s{t1}, v{vL16}
            s_lshl_b32 s{t1}, s{t0}, 8
            s_add_u32 s{t1}, s{t1}, {SBl}
            v_add_u32 v{vt3}, s{t1}, v{vL4}
            """)

        def own_bar():
            g.vwait("w13a")
            g.lwait0()
            g.e("s_barrier")

        def own_rd(s_, ds_=(0, 1, 2)):
            for d in ds_:
                b = PB + 10 * (3 * s_ + d)
                g.ds(f"ds_read_b128 {vr(b, 4)}, v{vt1} offset:{(2 * d + s_) * 2048}", ("p", s_))
                g.ds(f"ds_read_b128 {vr(b + 4, 4)}, v{vt1} offset:{(2 * d + s_) * 2048 + 1024}", ("p", s_))
                g.ds(f"ds_read_b32 v{b + 8}, v{vt3} offset:{(2 * d + s_) * 256}", ("p", s_))

        def o_addr():
            g.e(f"""
            s_lshl_b32 s{t0}, s{sX}, 3
            s_lshl_b32 s{t1}, s{sW}, 1
            s_add_u32 s{t0}, s{t0}, s{t1}
            s_lshl_b32 s{t0}, s{t0}, 5
            s_add_u32 s{t0}, s{t0}, s{sC}
            s_lshl_b32 s{t0}, s{t0}, 10
            s_add_u32 s{t0}, s{t0}, {aO(layer)}
            s_add_u32 s{t1}, s{t0}, 32768
            """)
        if cfg.b_tail:
            at(124, "A", own_addr)
            at(124, "C", o_addr)
            at(126, "A", own_bar)
            at(126, "B", lambda: own_rd(0, (0,)))
            at(126, "C", lambda: own_rd(0, (1, 2)))
            at(127, "A", lambda: own_rd(1, (0, 1)))
            at(127, "B", lambda: own_rd(1, (2,)))
        else:
            at(126, "C", own_addr)
            at(127, "B", own_bar)
            at(127, "C", lambda: own_rd(0))
            at(127, "D", lambda: own_rd(1))

        vG, vGd = 253, 249

        def gpoll_ld():
            g.ld(vr(vGd), vG, sWS, sG, 0, tag="gf", w=1)

        def gpoll_snap():
            g.vwait("gf")
            g.e(f"v_cmp_gt_u32 s[{sSN2}:{sSN2 + 1}], {layer + 1}, v{vGd}")

        def gcheck(kt):
            ls, lj, lp = g.label("gslow"), g.label("gjoin"), g.label("gp")
            m = 3 << kt
            g.e(f"s_and_b32 s{sTO}, s{sSN2}, {m}\ns_cbranch_scc1 {ls}\n{lj}:")
            g.tail.append(f"""{ls}:
            s_mov_b32 s{sTO}, {TIMEOUT}
            {lp}:
            buffer_load_dword v{vGd}, v{vG}, {sr(sWS, 4)}, s{sG} offen sc1
            s_sub_u32 s{sTO}, s{sTO}, 1
            s_cbranch_scc1 L_exit
            s_waitcnt vmcnt(0)
            v_cmp_gt_u32 s[{sSN2}:{sSN2 + 1}], {layer + 1}, v{vGd}
            s_nop 1
            s_and_b32 s4, s{sSN2}, {m}
            s_cbranch_scc0 {lj}
            s_sleep 2
            s_branch {lp}""")
        gp = cfg.gp[layer]
        place([gpoll_ld], gp, "C")
        n = place([gpoll_snap, lambda: gcheck(2), lambda: kv_addr1(2), lambda: kv_addr2(2), lambda: ldK(2), lambda: ldV(2)], gp + 3, "B", "ABC")
        for kt in range(3, 16):
            n = max(8 * (kt - 2), n)
            if kt % 2 == 0:
                place([lambda kt=kt: gcheck(kt), lambda kt=kt: kv_addr1(kt), lambda kt=kt: kv_addr2(kt)], n - 2, "A", "AC")
            if cfg.v_split:
                n = place([lambda kt=kt: ldK(kt), lambda kt=kt: ldV(kt, (0,)), lambda kt=kt: ldV(kt, (1,))], n, "A", "AC")
            else:
                n = place([lambda kt=kt: ldK(kt), lambda kt=kt: ldV(kt)], n, "A", "AC")

        def w13base():
            g.e(f"s_mul_i32 s{t11 - 1}, s{sHP}, 229376\ns_add_u32 s{t11 - 1}, s{t11 - 1}, {W13}")
        if layer == 0:
            n = cfg.rl0
            if cfg.rl_in_b:
                def rl_bar():
                    g.vwait(("rl", 1))
                    g.e("s_barrier")
                n = spread(g.relayout_dma_ops(), cfg.rl0, 3, "ABC") + cfg.rl_lat
                at(n - 1, "C", rl_bar)
            if cfg.cold_touch:
                ct = [lambda: g.e(f"v_and_b32 v250, 0x3c0, v{vL16}\nv_lshlrev_b32 v250, 1, v250")]
                xa, sa = g.x_addr(layer, 0, t4, t5)
                groups = [g.touch_ops(xa, t4, 1, 250, 251) + g.touch_ops(sa, t4, 1, 250, 251)]
                if cfg.cold_touch > 1:
                    hh = g.touch_ops(g.h_addr(layer, t4, t5), t4, 4, 250, 251)
                    groups += [hh[:3], hh[3:4], hh[4:5], hh[5:]] if cfg.cold_touch == 3 else [hh[:4], hh[4:]]
                at(cfg.ct0, "A", ct[0])
                for gi, grp in enumerate(groups):
                    spread(grp, cfg.ct0 + 1 + 8 * gi, 3, "ABC")
            place([lambda: g.e(f"v_bfe_u32 v250, v{vL16}, 4, 5\nv_lshlrev_b32 v250, 10, v250"),
                   lambda: g.e(f"v_lshrrev_b32 v251, 9, v{vL16}\nv_lshl_add_u32 v250, v251, 4, v250"),
                   lambda: g.e(f"s_lshl_b32 s{t0}, s{sCB}, 1\ns_add_u32 s{t0}, s{t0}, s{sNA}"),
                   lambda: g.e(f"s_lshl_b32 s{t0}, s{t0}, 6\ns_lshl_b32 s{t1}, s{sTA}, 15"),
                   lambda: g.e(f"s_add_u32 s{t0}, s{t0}, s{t1}"),
                   lambda: g.ld(vr(vRes, 4), 250, sXIN, t0, 0, mods="", tag="res"),
                   lambda: g.ld(vr(vRes + 4, 4), 250, sXIN, t0, 32, mods="", tag="res")], 9, "A", "AC")
            if not cfg.xcc_early:
                at(8, "A", g.xcc_send)
                at(100, "B", g.xcc_load)
                at(105, "B", g.xcc_check)
            if not cfg.rl_in_a:
                for op, gap in g.relayout_out_ops():
                    if gap == "X":
                        at(n, "C", op)
                        n += 1
                    else:
                        at(n, gap, op)
                        n += gap == "D"

                def rl_sig():
                    g.vwait("rlst")
                    g.e("s_barrier")
                    L = g.label("rls")
                    g.e(f"v_mov_b32 v{vt1}, 1\ns_cmp_eq_u32 s{sW}, 0\ns_cbranch_scc0 {L}\ns_mov_b64 exec, 64")
                    g.e(f"buffer_store_dword v{vt1}, v{vFl}, {sr(sWS, 4)}, 0 offen sc1\ns_mov_b64 exec, -1\n{L}:")
                    g.stamp("R_sig")
                n += cfg.rl_ack
                at(n, "A", rl_sig)

            def rl_ld():
                g.e(f"s_mov_b32 s{t10}, {FR}\nv_lshlrev_b32 v248, 3, v{vL16}")
                g.ld(vr(244, 4), 248, sWS, t10, 0, tag="rf")

            def rl_check():
                g.stamp("R_pre")
                g.late_check("rf", f"buffer_load_dwordx4 v[244:247], v248, {sr(sWS, 4)}, s{t10} offen sc1",
                             "v_min_u32 v244, v244, v245\nv_min3_u32 v244, v244, v246, v247\nv_cmp_gt_u32 vcc, 1, v244", cfg.rl_sleep)
                g.stamp("R_chk")
            n = cfg.rl_ld if cfg.rl_in_a else n + cfg.rl_gap
            at(n, "A", rl_ld)
            n += 5
            at(n, "A", rl_check)
            n0 = n + 1
        else:
            n0 = 10
        at(n0, "A", w13base)

        def costed(ops, nsetup, c):
            return [(op, 0.0) for op in ops[:nsetup]] + [(op, 0.0 if isinstance(op, SOp) else c) for op in ops[nsetup:]]
        pops = costed(g.dma_ops(0, 26, t11 - 1, 0, "w13a", (t8, t9)), 2, 0.5)
        if layer == 0 and cfg.ew_in_b:
            pops += costed(g.ew_ops(0, cfg.ew_in_b, (t8, t9)), 4, 0.25)
        p16 = lambda: g.e(f"v_and_b32 v254, 0x3c0, v{vL16}\nv_lshlrev_b32 v254, 1, v254")
        pops.append((p16, 0.0))
        npf = cfg.pf_w13[layer]
        if npf:
            pa = [f"s_lshr_b32 s{t4}, s{sC}, 4\ns_lshl_b32 s{t4}, s{t4}, 2", f"s_add_u32 s{t4}, s{t4}, s{sW}\ns_mul_i32 s{t4}, s{t4}, {npf * 2048}",
                  f"s_add_u32 s{t4}, s{t4}, s{t11 - 1}\ns_add_u32 s{t4}, s{t4}, {104 * 1024}"]
            pops += costed(g.touch_ops(pa, t4, npf, 254, 255), 3, 2.0)
        pa = [f"s_mul_i32 s{t4}, s{sHP}, 7168\ns_lshl_b32 s{t5}, s{sW}, 11", f"s_add_u32 s{t4}, s{t4}, s{t5}\ns_add_u32 s{t4}, s{t4}, {WX13}"]
        pops += costed(g.touch_ops(pa, t4, 1, 254, 255), 2, 1.0)
        if "B" in cfg.touch:
            xa, sa = g.x_addr(layer, 0, t4, t5)
            oa = [f"s_lshl_b32 s{t4}, s{sX}, 2\ns_add_u32 s{t4}, s{t4}, s{sW}", f"s_lshl_b32 s{t4}, s{t4}, 6\ns_add_u32 s{t4}, s{t4}, s{sC}",
                  f"s_lshl_b32 s{t4}, s{t4}, 10\ns_add_u32 s{t4}, s{t4}, {aO(layer)}"]
            if "H" in cfg.touch:
                pops += costed(g.touch_ops(g.h_addr(layer, t4, t5), t4, 4, 254, 255), 2, 1.75)
            pops += costed(g.touch_ops(xa, t4, 1, 254, 255), 3, 2.0) + costed(g.touch_ops(sa, t4, 1, 254, 255), 3, 0.3)
            pops += costed(g.touch_ops(oa, t4, 1, 254, 255), 3, 1.0)
            pops += costed(g.touch_ops([f"s_add_u32 s{t4}, s{t4}, 32768"], t4, 1, 254, 255), 1, 1.0)

        cws = [f"s_lshl_b32 s{t8}, s{sCB}, 16\ns_lshl_b32 s{t9}, s{sW}, 14", f"s_add_u32 s{t8}, s{t8}, s{t9}\ns_lshl_b32 s{t9}, s{sNA}, 10",
               f"s_add_u32 s{t8}, s{t8}, s{t9}\ns_add_u32 s{t8}, s{t8}, {WO}", f"s_xor_b32 s{t9}, s{t8}, 1024"]
        cw = []
        for idx in range(16):
            def op(idx=idx):
                i, n_ = divmod(idx, 2)
                if idx and idx % 4 == 0:
                    g.e(f"s_add_u32 s{t8}, s{t8}, 4096\ns_add_u32 s{t9}, s{t9}, 4096")
                g.ld(CW[idx](0, 4), vL16, sWS, (t8, t9)[n_], (i % 2) * 2048, mods=g.cfg.wmods, tag="cw")
            cw.append(op)
        pops += costed([lambda t=t: g.e(t) for t in cws] + cw[:8], 4, 0.25)
        if "n" in cfg.dbg and layer == 1:
            pops = [(op, c) for op, c in pops if c == 0.0]
        if cfg.keep is not None and layer == 1:
            pops = [(op if c == 0.0 or c in cfg.keep else (lambda: None), c) for op, c in pops]
        tot = sum(c + 0.05 for _, c in pops)
        span = cfg.bg_end - (n0 + 1)
        acc, nxt = 0.0, 0
        for op, c in pops:
            pos = max(3 * (n0 + 1) + int(3 * acc / tot * span), nxt)
            allowed = "AC" if cfg.bg_ac and layer else "ABC"
            while "ABC"[pos % 3] not in allowed or (pos // 3, "ABC"[pos % 3]) in gaps:
                pos += 1
            at(pos // 3, "ABC"[pos % 3], op)
            nxt = pos + 1
            acc += c + 0.05
        assert nxt // 3 < (113 if cfg.b_tail else 116), (n0, nxt)
        if cfg.b_tail:
            n = place(cw[8:13], 113, "A", "ABC")
            place(cw[13:], max(n, 118), "A", "ABC")
        else:
            place(cw[8:11], 116, "A", "AC")
            place(cw[11:], 121, "B", "BC")

        def run(n, gap):
            for fn in gaps.pop((n, gap), []):
                if "k" in cfg.dbg and layer == 1 and 16 <= n < 112:
                    continue
                fn()

        def qk(n):
            kt, j = order[n]
            g.e(f"v_mfma_f32_32x32x16_bf16 {vr(S + 16 * (n % 2), 16)}, {vr(KV + 12 * (kt % 3), 4)}, {vr(Q + 4 * j, 4)}, 0")

        def pv(n, half):
            kt, j = order[n]
            g.e(f"v_smfmac_f32_32x32x32_bf16 {vr(O + 16 * j, 16)}, {vr(KV + 12 * (kt % 3) + 4 + 4 * half, 4)}, {vr(S + 16 * (n % 2) + 8 * half, 8)}, v{vIdx}")

        g.stamp(f"B{layer}:ld")
        g.vwait(("Q", 0))
        g.stamp(f"B{layer}:q0")
        qk(0)
        for n in range(128):
            if cfg.b_align and n % cfg.b_align == 0:
                g.e(".p2align 3, , 4" if False else "")
            sb = S + 16 * (n % 2)
            ex = [f"v_exp_f32 v{sb + i}, v{sb + i}" for i in range(16)]
            g.e("\n".join(ex[0:2]))
            if n:
                pv(n - 1, 1)
            run(n, "A")
            run(n, "a")
            g.e("\n".join(ex[2:5]))
            if n < 127:
                qk(n + 1)
            run(n, "B")
            g.e("\n".join(ex[5:10]))
            pv(n, 0)
            run(n, "C")
            g.e("\n".join(ex[10:16]))
            run(n, "D")
            if n % 8 == 7:
                g.stamp(f"B{layer}_{n // 8}")
            if n in (0, 2, 5, 7, 15, 119, 123, 127):
                g.stamp(f"B{layer}:t{n}")
        assert not gaps, gaps.keys()
        pv(127, 1)
        if not cfg.b_tail:
            o_addr()
        for s_ in range(2):
            ob = O + 16 * (6 + s_)
            g.lwait(("p", s_))
            b0 = PB + 30 * s_
            if s_ == 1:
                for d in (1, 2):
                    g.e(f"v_add_f32 v{b0 + 8}, v{b0 + 8}, v{b0 + 10 * d + 8}")
                    for i in range(0, 8, 2):
                        g.e(f"v_pk_add_f32 {vr(b0 + i, 2)}, {vr(b0 + i, 2)}, {vr(b0 + 10 * d + i, 2)}")
            for d in range(3 if s_ == 0 else 1):
                b = b0 + 10 * d
                g.e(f"v_add_f32 v{ob + 8}, v{ob + 8}, v{b + 8}")
                for i in range(0, 8, 2):
                    g.e(f"v_pk_add_f32 {vr(ob + i, 2)}, {vr(ob + i, 2)}, {vr(b + i, 2)}")
        g.stamp(f"B{layer}:sum")
        g.softmax_guard(layer, O + 96, O + 112)
        for s_ in range(2):
            ob = O + 16 * (6 + s_)
            g.e(f"v_rcp_f32 v{ob + 10}, v{ob + 8}\ns_nop 0")
            for i in range(0, 8, 2):
                g.e(f"v_pk_mul_f32 {vr(ob + i, 2)}, {vr(ob + i, 2)}, {vr(ob + 10, 2)} op_sel_hi:[1,0]")
            for i in range(4):
                g.e(f"v_cvt_pk_bf16_f32 v{ob + 12 + i}, v{ob + 2 * i}, v{ob + 2 * i + 1}")
            g.st(vr(ob + 12, 4), vL16, sWS, (t0, t1)[s_], 0, tag="ost")
        g.stamp(f"B{layer}st")
        self.CW = CW

    def softmax_guard(self, layer, o0, o1):
        g = self
        Q, S, KV, vV = 144, 176, 208, 252
        M, T = 16, 18
        ls, lj, l1, l2 = g.label("fb"), g.label("fbj"), g.label("fb1"), g.label("fb2")
        for k, o in enumerate((o0, o1)):
            g.e(f"v_maximum3_f32 v{T + k}, abs(v{o}), abs(v{o + 1}), abs(v{o + 2})")
            g.e(f"v_maximum3_f32 v{T + k}, abs(v{o + 3}), abs(v{o + 4}), v{T + k}")
            g.e(f"v_maximum3_f32 v{T + k}, abs(v{o + 5}), abs(v{o + 6}), v{T + k}")
        g.e(f"""
        v_maximum3_f32 v{T}, abs(v{o0 + 7}), abs(v{o1 + 7}), v{T}
        v_minimum3_f32 v{M}, v{o0 + 8}, v{o1 + 8}, v{o1 + 8}
        v_maximum3_f32 v{M + 1}, v{o0 + 8}, v{o1 + 8}, v{o1 + 8}
        v_maximum3_f32 v{T}, v{T}, v{T + 1}, v{T + 1}
        s_mov_b32 s{t2}, {f2u(2.0 ** -64):#x}
        s_mov_b32 s{t3}, {f2u(2.0 ** 120):#x}
        s_mov_b32 s{t4}, 0x7f7fffff
        v_cmp_nle_f32 vcc, s{t2}, v{M}
        v_cmp_nge_f32 s[{t6}:{t7}], s{t3}, v{M + 1}
        v_cmp_nge_f32 s[{t10}:{t11}], s{t4}, v{T}
        s_nop 0
        s_or_b64 vcc, vcc, s[{t6}:{t7}]
        s_or_b64 vcc, vcc, s[{t10}:{t11}]
        s_cbranch_{'scc0' if g.cfg.force_fallback else 'scc1'} {ls}
        {lj}:
        """)
        fb = [f"{ls}:", f"s_lshl_b32 s{t2}, s{sC}, 17", f"s_add_u32 s{t2}, s{t2}, {aKV(layer)}", f"s_mov_b32 s{t3}, s{t2}",
              f"s_add_u32 s{t4}, s{t2}, 0x20000", f"v_mov_b32 v{M}, 0xff800000", f"v_mov_b32 v{M + 1}, 0xff800000", f"{l1}:",
              f"buffer_load_dwordx4 {vr(KV, 4)}, v{vL16}, {sr(sWS, 4)}, s{t3} offen sc1", "s_waitcnt vmcnt(0)"]
        for k in range(2):
            fb.append(f"v_mfma_f32_32x32x16_bf16 {vr(S + 16 * k, 16)}, {vr(KV, 4)}, {vr(Q + 24 + 4 * k, 4)}, 0")
        fb.append("s_nop 15")
        for k in range(2):
            for i in range(0, 16, 2):
                fb.append(f"v_max3_f32 v{M + k}, v{S + 16 * k + i}, v{S + 16 * k + i + 1}, v{M + k}")
        fb += [f"s_add_u32 s{t3}, s{t3}, 2048", f"s_cmp_lt_u32 s{t3}, s{t4}", f"s_cbranch_scc1 {l1}"]
        for k in range(2):
            fb += [f"v_mov_b32 v{T}, v{M + k}", "s_nop 1", f"v_permlane32_swap_b32 v{M + k}, v{T}", f"v_max_f32 v{M + k}, v{M + k}, v{T}"]
        for o in (o0, o1):
            fb += [f"v_mov_b32 v{o + r}, 0" for r in range(16)]
        fb += [f"s_mov_b32 s{t3}, s{t2}", f"{l2}:",
               f"buffer_load_dwordx4 {vr(KV, 4)}, v{vL16}, {sr(sWS, 4)}, s{t3} offen sc1",
               f"s_mov_b64 exec, s[{sVM}:{sVM + 1}]",
               f"buffer_load_dwordx4 {vr(KV + 4, 4)}, v{vV}, {sr(sWS, 4)}, s{t3} offen offset:1024 sc1",
               f"buffer_load_dwordx4 {vr(KV + 8, 4)}, v{vV}, {sr(sWS, 4)}, s{t3} offen offset:1536 sc1",
               "s_mov_b64 exec, -1", "s_waitcnt vmcnt(0)"]
        for k in range(2):
            fb.append(f"v_mfma_f32_32x32x16_bf16 {vr(S + 16 * k, 16)}, {vr(KV, 4)}, {vr(Q + 24 + 4 * k, 4)}, 0")
        fb.append("s_nop 15")
        for k in range(2):
            fb += [f"v_sub_f32 v{S + 16 * k + i}, v{S + 16 * k + i}, v{M + k}" for i in range(16)]
            fb += [f"v_exp_f32 v{S + 16 * k + i}, v{S + 16 * k + i}" for i in range(16)]
        fb.append("s_nop 1")
        for k, o in enumerate((o0, o1)):
            for h in range(2):
                fb.append(f"v_smfmac_f32_32x32x32_bf16 {vr(o, 16)}, {vr(KV + 4 + 4 * h, 4)}, {vr(S + 16 * k + 8 * h, 8)}, v{vIdx}")
        fb += [f"s_add_u32 s{t3}, s{t3}, 2048", f"s_cmp_lt_u32 s{t3}, s{t4}", "s_nop 7", f"s_cbranch_scc1 {l2}", "s_nop 15", f"s_branch {lj}"]
        g.tail.append("\n".join(fb))

    def reduce_write(self, acc, d, base):
        g = self
        ops = []

        def addr():
            g.e(f"s_xor_b32 s{t6}, s{sW}, {d}\ns_mul_i32 s{t6}, s{t6}, 12288")
        def addr2():
            g.e(f"s_add_u32 s{t6}, s{t6}, {base + (d - 1) * 4096}\nv_add_u32 v{vt0}, s{t6}, v{vL16}")
        ops += [addr, addr2]
        for q in range(4):
            ops.append(lambda q=q: g.ds(f"ds_write_b128 v{vt0}, {vr(acc + 4 * q, 4)} offset:{q * 1024}"))
        return ops

    def reduce_pre_ops(self, layer, which, base, Z, final):
        g = self
        ops = [f"s_mul_i32 s{t6}, s{sW}, 12288\ns_add_u32 s{t6}, s{t6}, {base}", f"v_add_u32 v{vt2}, s{t6}, v{vL16}"]
        for i in range(8):
            ops += [f"v_lshlrev_b32 v{Z + 2 * i}, 16, v{vRes + i}", f"v_and_b32 v{Z + 2 * i + 1}, s{sMask}, v{vRes + i}"]
        ops.append(f"s_lshl_b32 s{t0}, s{sCB}, 1\ns_add_u32 s{t0}, s{t0}, s{sNA}")
        if final:
            ops.append(lambda: g.srd(sOUT, pOUT, 2048 * 1024))
            ops += [f"v_bfe_u32 v{vt3}, v{vL16}, 4, 5", f"v_lshlrev_b32 v{vt3}, 10, v{vt3}", f"v_lshrrev_b32 v{vIdx}, 9, v{vL16}",
                    f"v_lshl_add_u32 v{vt3}, v{vIdx}, 4, v{vt3}",
                    f"s_lshl_b32 s{t7}, s{sTA}, 15\ns_lshl_b32 s{t8}, s{t0}, 6", f"s_add_u32 s{t7}, s{t7}, s{t8}"]
        else:
            ops += [f"v_mov_b32 v{vt3}, 0x3f803f80",
                    f"s_lshl_b32 s{t7}, s{sTA}, 15\ns_lshl_b32 s{t8}, s{t0}, 11",
                    f"s_add_u32 s{t7}, s{t7}, s{t8}\ns_add_u32 s{t7}, s{t7}, {aX(layer, which)}",
                    f"s_lshl_b32 s{t8}, s{sTA}, 12\ns_lshr_b32 s{t9}, s{t0}, 2",
                    f"s_lshl_b32 s{t9}, s{t9}, 10\ns_add_u32 s{t8}, s{t8}, s{t9}",
                    f"s_and_b32 s{t9}, s{t0}, 3\ns_lshl_b32 s{t9}, s{t9}, 2",
                    f"s_add_u32 s{t8}, s{t8}, s{t9}\ns_add_u32 s{t8}, s{t8}, {aST(layer, which)}"]
        return ops

    def reduce_pre(self, layer, which, base, Z, final):
        self.take(deque(self.reduce_pre_ops(layer, which, base, Z, final)), 999)

    def reduce_read_ops(self, ds_, PB, Z, pk=False):
        g = self
        ops = []

        def bar():
            g.lwait0()
            g.e("s_barrier")
        ops.append(bar)
        for k, d in enumerate(ds_):
            for q in range(4):
                ops.append(lambda k=k, d=d, q=q: g.ds(
                    f"ds_read_b128 {vr(PB + 16 * k + 4 * q, 4)}, v{vt2} offset:{(d - 1) * 4096 + q * 1024}", ("p", d, q)))
        for k, d in enumerate(ds_):
            for q in range(4):
                def add(k=k, d=d, q=q):
                    g.lwait(("p", d, q))
                    if pk:
                        for i in range(4 * q, 4 * q + 4, 2):
                            g.e(f"v_pk_add_f32 {vr(Z + i, 2)}, {vr(Z + i, 2)}, {vr(PB + 16 * k + i, 2)}")
                        return
                    for i in range(4 * q, 4 * q + 4):
                        g.e(f"v_add_f32 v{Z + i}, v{Z + i}, v{PB + 16 * k + i}")
                ops.append(add)
        return ops

    def reduce_finish(self, layer, which, acc, Z, final):
        g = self
        g.stamp(f"{'CE'[which]}{layer}_r0")
        for h in range(2):
            for i in range(8 * h, 8 * h + 8, 2):
                g.e(f"v_pk_add_f32 {vr(acc + i, 2)}, {vr(acc + i, 2)}, {vr(Z + i, 2)}")
            for i in range(4 * h, 4 * h + 4):
                g.e(f"v_cvt_pk_bf16_f32 v{vRes + i}, v{acc + 2 * i}, v{acc + 2 * i + 1}")
            if final:
                g.st(vr(vRes + 4 * h, 4), vt3, sOUT, t7, 32 * h, g.cfg.out_mods)
            else:
                g.st(vr(vRes + 4 * h, 4), vL16, sWS, t7, 1024 * h)
        if final:
            return
        for i in range(4):
            g.e(f"v_mov_b32 v{Z + i}, 0")
        for i in range(8):
            g.e(f"v_dot2c_f32_bf16 v{Z + i % 2}, v{vRes + i}, v{vt3}")
            g.e(f"v_dot2c_f32_bf16 v{Z + 2 + i % 2}, v{vRes + i}, v{vRes + i}")
        g.e(f"s_nop 1\nv_add_f32 v{Z}, v{Z}, v{Z + 1}\nv_add_f32 v{Z + 2}, v{Z + 2}, v{Z + 3}\ns_nop 1")
        g.e(f"v_permlane32_swap_b32 v{Z}, v{Z + 2}\nv_add_f32 v{Z}, v{Z}, v{Z + 2}")
        g.dual(g.st_text(vr(Z), vL16, sWS, t8, 0, "", 1), g.st_text(vr(Z), vL16, sWS, t8, 0, "sc1", 1), 1)
        g.vmq[-1] = "stst"

    def splitk_body(self, nks, wreg, hreg, ldh, nup, AC, PB, Z, SC, SK, name, extra=(), after=()):
        g = self
        nxt = [nup]
        after = deque(after)
        for m in range(nup):
            ldh(m)

        def more():
            if nxt[0] < 2 * nks and nxt[0] - self.ring < self.consumed:
                ldh(nxt[0])
                nxt[0] += 1
            elif nxt[0] == 2 * nks and after:
                after.popleft()()

        def mf(tk, n, i):
            m = i if tk else nks + i
            acc = AC[2 * tk + n]
            c = vr(acc, 16) if i else "0"
            g.e(f"v_mfma_f32_32x32x16_bf16 {vr(acc, 16)}, {wreg(2 * i + n)}, {hreg(m)}, {c}")
        side = deque()

        def pop(k=1):
            for _ in range(k):
                if side:
                    o = side.popleft()
                    if o:
                        o()
        self.consumed = 0
        for i in range(nks):
            g.vwait(("h", i))
            if i == 0:
                g.stamp(f"Z{name[1]}:Cfirst")
            mf(1, 1, i)
            mf(1, 0, i)
            self.consumed = i + 1
            more()
            if i % 8 == 7:
                g.stamp(f"{name}_{i}")
        w3 = g.reduce_write(AC[3], 3, SC)
        w2 = g.reduce_write(AC[2], 2, SC)
        w1 = g.reduce_write(AC[1], 1, SC)
        side.extend(w3[:2] + [None] * 2 + w3[2:] + w2)
        early = nks >= 16 or g.cfg.early_c
        if early:
            side.extend([None] * 2 + g.reduce_read_ops((3, 2), PB, Z))
        side.extend(extra)
        per = 1 if nks >= 16 else (4 if early else 2)
        for i in range(nks + SK):
            if i < nks:
                g.vwait(("h", nks + i))
                mf(0, 1, i)
                more()
                pop(per)
            if i == nks:
                g.stamp(f"Z{name[1]}:CAB")
                pop(len(side))
                side.extend(w1[:2] + [None] * 3 + w1[2:])
                rr = g.reduce_read_ops((1,) if early else (3, 2, 1), PB, Z, pk=g.cfg.c_pk)
                side.extend(rr)
                per = -(-(len(side) - (len(rr) // 2 if g.cfg.c_pk else 0)) // SK)
            if i >= SK:
                mf(0, 0, i - SK)
                pop(per)
            if i % 8 == 7:
                g.stamp(f"{name}_a{i}")
        pop(len(side))
        while after:
            after.popleft()()

    def phaseC(self, layer):
        g = self
        CW = g.CW
        OF = 144
        AC = [16, 32, 48, 64]
        PB, Z = 80, 128
        SC = 104 * 1024
        g.e(f"""
        v_and_b32 v{vt0}, 28, v{vL4}
        s_lshl_b32 s{t2}, s{sX}, 2
        s_lshr_b32 s{t3}, s{sC}, 3
        s_add_u32 s{t2}, s{t2}, s{t3}
        s_lshl_b32 s{t2}, s{t2}, 2
        s_add_u32 s{t2}, s{t2}, s{sW}
        s_lshl_b32 s{t2}, s{t2}, 7
        s_add_u32 s{t2}, s{t2}, {FB}
        s_lshl_b32 s{t3}, s{sTB}, 15
        s_lshl_b32 s{t4}, s{sW}, 13
        s_add_u32 s{t3}, s{t3}, s{t4}
        s_add_u32 s{t3}, s{t3}, {aO(layer)}
        s_xor_b32 s{t4}, s{t3}, 32768
        """)
        g.vwait("ost")
        g.stamp(f"Z{layer}:Back")
        g.signal(2, layer + 1, True)
        g.e("s_barrier")
        g.reduce_pre(layer, 0, SC, Z, False)
        g.poll(vt0, t2, layer + 1, True)
        g.stamp(f"C{layer}go")

        def ofr(m):
            return 208 + 4 * m if m < 3 and g.cfg.b_tail else OF + 4 * m

        def ldo(m):
            tk, i = (1, m) if m < 8 else (0, m - 8)
            so = t3 if tk else t4
            if i == 4:
                g.e(f"s_add_u32 s{so}, s{so}, 4096")
            g.ld(vr(ofr(m), 4), vL16, sWS, so, (i % 4) * 1024, tag=("h", m))
        self.ring = 16
        after = []
        if "C" in g.cfg.touch:
            after = [lambda: g.e(f"v_and_b32 v{vt1}, 0x3c0, v{vL16}\nv_lshlrev_b32 v{vt1}, 1, v{vt1}")]
            after += g.touch_ops(g.h_addr(layer, t9, t10), t9, 4, vt1, vIdx)
        if g.cfg.c_pre:
            after += [lambda: g.e(f"s_mul_i32 s{t9}, s{sHP}, 7168\ns_add_u32 s{t9}, s{t9}, {WX13}\ns_add_u32 s{t10}, s{t9}, 4096")]
            after += [lambda n=n: g.ld(vr(g.D_AX[n], 4), vL16, sWS, (t9, t10)[n // 4], (n % 4) * 1024, tag=("ax", n)) for n in g.D_AXPRE]
            after += [lambda: g.e(f"s_mul_i32 s{t11}, s{sHP}, 229376\ns_add_u32 s{t11}, s{t11}, {W13}")]
            after += g.dma_ops(152, 2, t11, 152 * 1024, "w13e", (t9, t10))
        g.splitk_body(8, lambda i: CW[i](0, 4), lambda m: vr(ofr(m), 4), ldo, g.cfg.up_c, AC, PB, Z, SC, 8, f"C{layer}", after=after)
        g.reduce_finish(layer, 0, AC[0], Z, False)
        g.stamp(f"C{layer}st")

    def phaseD(self, layer):
        g = self
        cfg = g.cfg
        p421 = cfg.passes == [(0, 4), (4, 6), (6, 7)]
        assert p421 or cfg.passes[:2] in ([(0, 3), (3, 5)], [(0, 2), (2, 4)])
        X = 16
        ACC = [144 + 16 * i for i in range(6)] + [144] if p421 else [144, 160, 176, 192, 208, 144, 160]
        vB = [vL16, 240, 241]
        kexp, cden = 242, 243
        ET = 244
        BX = 248
        AX = g.D_AX
        SB = 224
        g.e(f"v_and_b32 v{vt0}, 60, v{vL4}\ns_lshl_b32 s{t2}, s{sT}, 7\ns_add_u32 s{t2}, s{t2}, {FC}")
        g.e(f"v_add_u32 v{vB[1]}, 0x10000, v{vL16}\nv_add_u32 v{vB[2]}, 0x20000, v{vL16}")
        g.e(f"s_mul_i32 s{t11}, s{sHP}, 229376\ns_add_u32 s{t11}, s{t11}, {W13}")
        g.e(f"s_mul_i32 s{t3}, s{sHP}, 7168\ns_mul_i32 s6, s{sT}, {112 * 1024}\ns_add_u32 s6, s6, s{t3}\ns_add_u32 s6, s6, {aH(layer)}\ns_add_u32 s7, s6, 4096")
        g.e(f"s_add_u32 s{t3}, s{t3}, {WX13}\ns_add_u32 s3, s{t3}, 4096")
        g.vwait("stst")
        g.stamp(f"Z{layer}:Cack")
        g.signal(3, layer + 1, True)
        g.e("s_barrier")

        def wread(f):
            slot = f % 160
            g.ds(f"ds_read_b128 {ar(WB + 4 * (f % 8), 4)}, v{vB[slot // 64]} offset:{(slot % 64) * 1024}", ("w", f))
        LEAD = 7
        for f in range(LEAD):
            wread(f)
        pre, xrest, stl = g.load_x_stats(layer, 0, aX(layer, 0), X, SB, cfg.up_d)
        xrest = deque(xrest)
        g.poll(vt0, t2, layer + 1, True)
        g.stamp(f"D{layer}go")
        pre()
        side = deque()
        mem = deque()

        def epi_ops(n):
            a = ACC[n]
            ops = []
            for half in range(2):
                r0 = a + 4 * half
                for i in range(4):
                    ops.append(f"v_mul_f32 v{ET + i}, v{kexp}, v{r0 + i}")
                for i in range(4):
                    ops.append(f"v_exp_f32 v{ET + i}, v{ET + i}")
                for i in range(4):
                    ops.append(f"v_mul_f32 v{r0 + i}, v{r0 + i}, v{r0 + 8 + i}")
                for i in range(4):
                    ops.append(f"v_fma_f32 v{ET + i}, v{ET + i}, v{cden}, v{cden}")
                for i in range(4):
                    ops.append(f"v_rcp_f32 v{ET + i}, v{ET + i}")
                for i in range(4):
                    ops.append(f"v_mul_f32 v{r0 + i}, v{r0 + i}, v{ET + i}")
            for i in range(4):
                ops.append(f"v_cvt_pk_bf16_f32 v{a + 8 + i}, v{a + 2 * i}, v{a + 2 * i + 1}")
            if "h" in cfg.dbg and n < 3:
                ops.append(lambda: g.vmq.append(("hst", n)) or g.e("s_nop 0") or g.vmq.pop())
            else:
                ops.append(lambda: g.st(vr(a + 8, 4), vL16, sWS, (6, 7)[n // 4], (n % 4) * 1024, cfg.hmods[layer], tag="hst" if n == 6 else ("hst", n)))
            return ops

        def xmf(n, first):
            acc = vr(ACC[n], 16)
            assert g.vmq.count(("ax", n)) + g.waited.get(("ax", n), 0) == layer + 1, n
            g.vwait(("ax", n))
            g.e(f"v_mfma_f32_32x32x16_bf16 {acc}, {vr(AX[n], 4)}, {vr(BX, 4)}, {'0' if first else acc}")

        def stats_go():
            side.extend([None] * cfg.st_pad + g.stats_ops(SB, kexp, cden, BX) + ["s_nop 0", f"v_mul_f32 v{kexp}, {f2u(-LOG2E):#x}, v{kexp}",
                                                                                           lambda: state.update(done=True)])
        def axld(n):
            assert not 224 <= AX[n] < 240 or state.get("done")
            g.ld(vr(AX[n], 4), vL16, sWS, (t3, 3)[n // 4], (n % 4) * 1024, tag=("ax", n))
        state = {"stats": False}

        def stats_mark():
            state["stats"] = True
            stats_go()
        xr = list(xrest)
        k = cfg.st_d
        mem.extend(xr[:k] + stl + [SOp(stats_mark)] + xr[k:])
        nb2 = (152 - 132) // 4 if cfg.c_pre else 7
        axs = [lambda n=n: axld(n) for n in range(7) if not (cfg.c_pre and n in g.D_AXPRE)]
        mem.extend(axs[:cfg.ax_first])
        mem.extend(g.dma_ops(104, 7, t11, 104 * 1024, "w13b", (t8, t9)))
        mem.extend(axs[cfg.ax_first:])
        mem.extend(g.dma_ops(132, nb2, t11, 132 * 1024, "w13b2", (t8, t9)))
        batches = {104: ("w13b", 7), 132: ("w13b2", nb2), 160: ("w13c", 8), 192: ("w13d", 8)}
        g.e_plan(layer)
        esetup = g.e_setup(layer)
        f = 0
        for pi, (a, b) in enumerate(cfg.passes):
            wdt = b - a
            nm = 32 * wdt
            tot = sum(0 if isinstance(o, tuple) else (2 if isinstance(o, str) and o.startswith(("v_exp", "v_rcp")) else 1) for o in side)
            done = 0
            for ks in range(32):
                for n in range(a, b):
                    if pi == 0 and n == a:
                        assert ("x", ks) in g.vmq or ("x", ks) in g.waited
                        g.vwait(("x", ks))
                        if ks == 0:
                            g.stamp(f"Z{layer}:Dfirst")
                    if f % 4 == 0:
                        g.lwait(("w", min(f + 3, 223)))
                    c = vr(ACC[n], 16) if ks or pi else "0"
                    g.e(f"v_mfma_f32_32x32x16_bf16 {vr(ACC[n], 16)}, {ar(WB + 4 * (f % 8), 4)}, {vr(X + 4 * ks, 4)}, {c}")
                    fn = f + LEAD
                    if fn in batches:
                        tag, cnt = batches[fn]
                        assert g.vmq.count(tag) + self.waited.get(tag, 0) == cnt * (layer + 1), (fn, tag)
                        g.vwait(tag)
                        if fn == 160 and layer == 0:
                            g.lwait0()
                        g.e("s_barrier")
                    if fn == cfg.bar_c:
                        if fn not in batches:
                            g.e("s_barrier")
                        if "c" in cfg.dbg:
                            batches[160] = batches[192] = ("none", 0)
                        elif "l" in cfg.dbg:
                            mem.extend(g.dma_ops(0, 8, t11, 0, "w13c", (t8, t9)))
                            mem.extend(g.dma_ops(0, 8, t11, 32 * 1024, "w13d", (t8, t9)))
                        else:
                            mem.extend(g.dma_ops(160, 8, t11, 0, "w13c", (t8, t9)))
                            mem.extend(g.dma_ops(192, 8, t11, 32 * 1024, "w13d", (t8, t9)))
                        if layer == 0 and cfg.ew_in_b < 56:
                            mem.extend(g.ew_ops(cfg.ew_in_b, 56, (t4, t5)))
                    if fn == 160 and layer == 0:
                        mem.append(SOp(lambda: g.e(f"s_mul_i32 s64, s{sHP}, {96 * 1024}\ns_add_u32 s64, s64, {WQ}")))
                        wq = g.dma_ops(0, 24, 64, 65536, "wq", (62, 63))
                        cut = [i for i, o in enumerate(wq) if not isinstance(o, SOp)][cfg.wq_d - 1] + 1 if cfg.wq_d else 2
                        mem.extend(wq[:cut])
                        g.wq_rest = wq[cut:]
                    if fn < 224:
                        wread(fn)
                    m = ks * wdt + (n - a) + 1
                    if pi == 0:
                        g.take(side, cfg.st_cap)
                    else:
                        if cfg.d_cap:
                            g.take(side, 0 if m <= 2 else cfg.d_cap - (f % 4 == 3), exact=True)
                        else:
                            want = 0 if m <= 2 else min(-(-tot * m // nm) - done, 6)
                            g.take(side, want)
                            done += want
                    if mem and isinstance(mem[0], SOp):
                        mem.popleft()()
                    elif mem and f % 2 == 0:
                        mem.popleft()()
                    if f == cfg.d_sig:
                        assert g.vmq.count(("hst", cfg.ne - 1)) + g.waited.get(("hst", cfg.ne - 1), 0) == layer + 1
                        g.vwait(("hst", cfg.ne - 1))
                        g.signal(4, g.e_nst * layer + 1, True)
                    if cfg.d_sig < f <= cfg.d_sig + len(esetup):
                        g.e(esetup[f - cfg.d_sig - 1])
                    if f == cfg.d_pl:
                        g.flag_load("fd1")
                    if f == cfg.d_ck:
                        g.flag_check("fd1", g.e_nst * layer + 1)
                        g.stamp(f"D{layer}_chk")
                    if f >= cfg.d_ck:
                        for _ in range(cfg.d_nl):
                            if g.e_next < cfg.e_pre and g.e_next < f - 192 and (f - cfg.d_ck) % cfg.d_step == 0:
                                g.e_load()
                    f += 1
                    if f % 32 == 0:
                        g.stamp(f"D{layer}_{f}")
                    g.stamp(f"Dx{layer}:{f}.")
            g.take(side, 9999)
            if pi == 0:
                assert state["stats"]
                for n in range(a, b):
                    xmf(n, False)
            if pi + 1 < len(cfg.passes):
                for n in range(*cfg.passes[pi + 1]):
                    xmf(n, True)
            for n in range(a, b):
                side.extend(epi_ops(n))
        g.e("s_barrier")
        while mem:
            mem.popleft()()
        g.stamp(f"D{layer}st")
        return side

    E_HR, E_NR = 16, 32

    def e_plan(self, layer):
        NE = self.cfg.ne
        if self.cfg.e3:
            st = [[7 * f + n for f in range(4) for n in rng] for rng in (range(NE), range(NE, 6), range(6, 7))]
            order = [(1, 0), (0, 0), (1, 1), (1, 2), (0, 1), (0, 2)]
        else:
            st = [[7 * f + n for f in range(4) for n in rng] for rng in (range(NE), range(NE, 7))]
            order = [(1, 0), (0, 0), (1, 1), (0, 1)]
        self.e_seq = [(tk, i) for tk, s_ in order for i in st[s_]]
        self.e_stage = [s_ for tk, s_ in order for i in st[s_]]
        self.e_nst = len(st)
        self.e_next = 0
        self.e_base = None

    def e_setup(self, layer):
        return [f"v_and_b32 v{vt0}, 28, v{vL4}",
                f"s_lshr_b32 s{t2}, s{sTA}, 1\ns_lshl_b32 s{t2}, s{t2}, 2", f"s_add_u32 s{t2}, s{t2}, s{sW}\ns_lshl_b32 s{t2}, s{t2}, 7",
                f"s_add_u32 s{t2}, s{t2}, {FD}\ns_mul_i32 s{t5}, s{sW}, {28 * 1024}", f"s_add_u32 s{t5}, s{t5}, {aH(layer)}\ns_mul_i32 s{t3}, s{sTB}, {112 * 1024}",
                f"s_add_u32 s{t3}, s{t3}, s{t5}\ns_mul_i32 s{t4}, s{sTA}, {112 * 1024}", f"s_add_u32 s{t4}, s{t4}, s{t5}"]

    def e_load(self):
        g = self
        m = g.e_next
        tk, i = g.e_seq[m]
        key = (tk, i // 7, (i % 7) // 4)
        if g.e_base != key:
            g.e(f"s_add_u32 s{t5}, s{(t4, t3)[tk]}, {(i // 7) * 7168 + ((i % 7) // 4) * 4096}")
            g.e_base = key
        g.ld(vr(g.E_HR + 4 * (m % g.E_NR), 4), vL16, sWS, t5, ((i % 7) % 4) * 1024, mods=g.cfg.hlmods, tag=("h", m))
        g.e_next += 1

    def flag_load(self, tag):
        self.ld(vr(vt1), vt0, sWS, t2, 0, tag=tag, w=1)

    def flag_check(self, tag, val):
        g = self
        g.late_check(tag, f"buffer_load_dword v{vt1}, v{vt0}, {sr(sWS, 4)}, s{t2} offen sc1", f"v_cmp_gt_u32 vcc, {val}, v{vt1}", 0)
        g.dual("", "buffer_inv sc1\ns_waitcnt vmcnt(0)", 0)

    def phaseE(self, layer, final, side):
        g = self
        cfg = g.cfg
        HR, NR = g.E_HR, g.E_NR
        PB, Z = 144, 176
        AC = [240, 224, 208, 192]
        SC = 0
        seq, stage, nst = g.e_seq, g.e_stage, g.e_nst
        N = len(seq)
        seen = set()
        consumed = [0]

        def more(k=1):
            for _ in range(k):
                if g.e_next < N and g.e_next - NR < consumed[0] and stage[g.e_next] <= state["ok"]:
                    g.e_load()

        def mf(m, n):
            tk, i = seq[m]
            acc = vr(AC[2 * tk + n], 16)
            g.e(f"v_mfma_f32_32x32x16_bf16 {acc}, {ar(4 * (2 * i + n), 4)}, {vr(HR + 4 * (m % NR), 4)}, {acc if (tk, n) in seen else '0'}")
            seen.add((tk, n))
        state = {"ok": 0, "st": None}
        nB = max(m for m in range(N) if seq[m][0] == 1) + 1
        w3 = g.reduce_write(AC[3], 3, SC)
        w2 = g.reduce_write(AC[2], 2, SC)
        w1 = g.reduce_write(AC[1], 1, SC)
        for m in range(nB):
            assert g.e_next > m, m
            g.vwait(("h", m))
            for n in (1, 0):
                mf(m, n)
                g.take(side, 5 if state["st"] is None else 2, exact=True)
            consumed[0] = m + 1
            g.stamp(f"Ex{layer}:{m}.")
            if nst == 3:
                if m == cfg.e2_sig:
                    g.vwait(("hst", 5))
                    g.signal(4, 3 * layer + 2, True)
                if m == cfg.e2_pl:
                    g.flag_load("fd2")
                if m == cfg.e2_ck:
                    g.flag_check("fd2", 3 * layer + 2)
                    state["ok"] = 1
            if state["st"] is None:
                if not side:
                    state["st"] = m
                else:
                    more(2 if g.e_next - m < cfg.e_pre else 1)
            if state["st"] is not None:
                d = m - state["st"]
                if d == cfg.e_sig:
                    assert nst == 2 or m > cfg.e2_ck
                    g.vwait("hst")
                    g.signal(4, nst * layer + nst, True)
                    g.stamp(f"E{layer}_sig")
                if d == 0:
                    side.extend(g.reduce_pre_ops(layer, 1, SC, Z, final))
                if d == cfg.e_sig + cfg.e_pl:
                    g.flag_load("fd3")
                if d == cfg.e_sig + cfg.e_pl + cfg.e_ck:
                    g.flag_check("fd3", nst * layer + nst)
                    g.stamp(f"E{layer}_chk")
                    state["ok"] = nst - 1
                more(2 if g.e_next - m < cfg.up_e else 1)
        assert state["ok"] == nst - 1
        if cfg.e_single:
            PB = 128
            assert all(not 28 <= m % NR for m in range(nB, N))
            side.extend(w3[:2] + [None] * 2 + w3[2:] + w2)
        else:
            side.extend(w3[:2] + [None] * 2 + w3[2:] + w2 + [None] + g.reduce_read_ops((3, 2), PB, Z))
        tailq = deque(g.wq_rest if layer == 0 else [])
        if final and cfg.wb:
            def wb():
                L = g.label("wb")
                g.e(f"s_lshl_b32 s{t5}, s{sC}, 2\ns_add_u32 s{t5}, s{t5}, s{sW}\ns_cmp_lt_u32 s{t5}, {cfg.wb}\ns_cbranch_scc0 {L}\nbuffer_wbl2 sc1\n{L}:")
            tailq.append(wb)
        nA, SK = N - nB, cfg.sk_e
        per = -(-len(side) // (nA + max(nA - SK, 0)))
        for i in range(nA + SK):
            if i < nA:
                g.vwait(("h", nB + i))
                mf(nB + i, 1)
                more()
                g.take(side, per)
            if g.e_next == N and tailq:
                while isinstance(tailq[0], SOp):
                    tailq.popleft()()
                tailq.popleft()()
            if i == nA:
                g.stamp(f"Ex{layer}:AB.")
                g.take(side, 999)
                rr = g.reduce_read_ops((3, 2, 1) if cfg.e_single else (1,), PB, Z, pk=cfg.e_pk)
                side.extend(w1[:2] + [None] * 3 + w1[2:] + rr)
                per = -(-(len(side) - (len(rr) // 2 if cfg.e_pk else 0)) // SK)
            if i >= SK:
                mf(nB + i - SK, 0)
                g.take(side, per)
        g.take(side, 999)
        while tailq:
            tailq.popleft()()
        g.reduce_finish(layer, 1, AC[0], Z, final)
        g.stamp(f"E{layer}st")
        if not final:
            g.vwait0()
            g.stamp(f"Z{layer}:Eack")
            g.signal(5, layer + 1, True)
            g.e("s_barrier")

    def build(self):
        g = self
        cfg = g.cfg
        g.prologue()
        done = False
        for layer in range(2):
            for ph in "ABCDE":
                mark = len(g.lines)
                if ph == "A":
                    g.phaseA1(layer) if layer else g.phaseA0()
                elif ph == "B":
                    g.phaseB(layer)
                elif ph == "C":
                    g.phaseC(layer)
                elif ph == "D":
                    rest = g.phaseD(layer)
                else:
                    g.phaseE(layer, layer == 1, rest)
                if ph in cfg.hack16:
                    import re
                    out, k = [], 0
                    for ln in g.lines[mark:]:
                        m = re.match(r"v_mfma_f32_32x32x16_bf16 v\[(\d+):\d+\], (\S+), (\S+), (\S+)$", ln)
                        if m:
                            b = int(m.group(1))
                            for h in range(2):
                                o = b + 4 * ((2 * k + h) % 4)
                                c = "0" if m.group(4) == "0" else f"v[{o}:{o + 3}]"
                                out.append(f"v_mfma_f32_16x16x32_bf16 v[{o}:{o + 3}], {m.group(2)}, {m.group(3)}, {c}")
                            k += 1
                        else:
                            out.append(ln)
                    g.lines[mark:] = out
                if cfg.stop == f"{ph}{layer}":
                    done = True
                    break
            if done:
                break
        if cfg.ts:
            g.vwait0()
            g.stamp("end") if g.nts < 16 else None
            g.e(f"s_lshl_b32 s{t0}, s2, 2\ns_add_u32 s{t0}, s{t0}, s{sW}\ns_lshl_b32 s{t0}, s{t0}, 7\ns_add_u32 s{t0}, s{t0}, {TS}")
            g.e(f"v_mov_b32 v{vt0}, 0")
            for i in range(g.nts):
                g.e(f"v_writelane_b32 v{vt0}, s{sTS + i}, {i}")
            g.e(f"v_writelane_b32 v{vt0}, s{sMode}, 31")
            g.e("s_mov_b32 exec_hi, 0")
            g.st(vr(vt0), vL4, sWS, t0, 0, w=1)
            if cfg.ts_dbg is not None:
                g.e(f"s_cmp_eq_u32 s2, {cfg.ts_dbg}\ns_cbranch_scc0 L_exit\ns_cmp_eq_u32 s{sW}, 0\ns_cbranch_scc0 L_exit")
                g.e(f"v_subrev_u32 v{vt0}, s{sTS}, v{vt0}")
                g.st(vr(vt0), vL4, sDBG, None, 0, w=1)
        g.e("L_exit:\ns_endpgm")
        for t in g.tail:
            g.e(t)
        g.e("L_end:")
        lines, rep = fix_hazards(g.lines)
        return lines, rep


HEADER = """; Fused two-layer transformer block (LN+QKV, attention, WO, LN+W1/W3+SwiGLU, W2), one persistent launch.
; @launch grid=(256,1,1) block=(256,1,1) lds=163840
.amdgcn_target "amdgcn-amd-amdhsa--gfx950"
.text
.globl {name}_kernel
.p2align 8
.type {name}_kernel,@function
{name}_kernel:
"""
FOOTER = """
.section .rodata,"a"
.p2align 6
.amdhsa_kernel {name}_kernel
  .amdhsa_next_free_vgpr 512
  .amdhsa_next_free_sgpr 102
  .amdhsa_accum_offset 256
  .amdhsa_group_segment_fixed_size 0
  .amdhsa_kernarg_size 80
  .amdhsa_user_sgpr_count 2
  .amdhsa_user_sgpr_kernarg_segment_ptr 1
  .amdhsa_system_sgpr_workgroup_id_x 1
  .amdhsa_float_denorm_mode_32 3
.end_amdhsa_kernel
"""


def generate(path, **kw):
    cfg = Cfg()
    for k, v in kw.items():
        setattr(cfg, k, v)
    set_alias(cfg.alias)
    g = Gen(cfg)
    lines, rep = g.build()
    txt = HEADER.format(name=NAME) + "\n".join(("" if l.endswith(":") else "  ") + l for l in lines) + FOOTER.format(name=NAME)
    open(path, "w").write(txt)
    return g, rep


if __name__ == "__main__":
    import argparse
    ap = argparse.ArgumentParser()
    ap.add_argument("-o", default=f"cdna_kernels/{NAME}.s")
    ap.add_argument("--stop")
    ap.add_argument("--ts", action="store_true")
    ap.add_argument("--slow", action="store_true")
    ap.add_argument("-v", action="store_true")
    a = ap.parse_args()
    g, rep = generate(a.o, stop=a.stop, ts=a.ts, force_slow=a.slow)
    print("lines", len(g.lines), "nops inserted", len(rep), "stamps", g.tsnames)
    if a.v:
        for r in rep:
            print(r)
```

```python
import os
import sys
from collections import deque

sys.path.insert(0, os.path.dirname(os.path.abspath(__file__)))
from asmlib import Asm, R, ar, fix_hazards, sr, vr

NAME = "interleave_layers__mha_block__glu_gated_swiglu__prompt"

FA_L, FB, FD, FC, FE, FA_G, FR, FX = 0x0000, 0x4000, 0x8000, 0xC000, 0xE000, 0x10000, 0x14000, 0x16000
TS = 0x80000
ST = 0x100000
WQ, WO, W13, W2 = 0x200000, 0x380000, 0x400000, 0x780000
WX13, WXQ, WXD = 0x940000, 0x960000, 0x970000
LB0, LBS = 0xA00000, 0x1400000
oQ, oKV, oO, oX1, oX2, oH = 0x0, 0x200000, 0x600000, 0x800000, 0xA00000, 0xC00000
WS_BYTES = 0x10000000
ALIAS = True


def set_alias(v):
    global ALIAS
    ALIAS = v


def aQ(l):
    return 0xA00000 if ALIAS else LB0 + l * LBS + oQ


def aO(l):
    return 0xA00000 if ALIAS else LB0 + l * LBS + oO


def aX(l, which):
    return 0xC00000 if ALIAS else LB0 + l * LBS + (oX1, oX2)[which]


def aH(l):
    return 0xE00000 if ALIAS else LB0 + l * LBS + oH


def aKV(l):
    return 0x1600000 + l * 0x400000 if ALIAS else LB0 + l * LBS + oKV


def aST(l, which):
    return ST if ALIAS else ST + (2 * l + which) * 0x40000

sWS, sXIN, sOUT, sDBG, sWQ, sRA, sRB = 8, 12, 16, 20, 24, 28, 32
sX, sC, sW, sT, sHP, sTA, sTB, sNA, sCB, sMode, sTO, sMask = range(36, 48)
t0, t1, t2, t3, t4, t5, t6, t7, t8, t9, t10, t11 = range(48, 60)
sVM = 60
pX, pWQ, pWO, pBX, pW1, pW3, pW2, pOUT, pDBG, pWS = range(64, 84, 2)
sTS = 84
sSN2 = 100
vL16, vL4, vIdx, vFl = 0, 1, 2, 3
vt0, vt1, vt2, vt3 = 4, 5, 6, 7
vRes = 8
WB = 224

LOG2E = 1.4426950408889634
TIMEOUT = 0x200000


def f2u(x):
    import struct
    return struct.unpack("<I", struct.pack("<f", x))[0]


class SOp:
    def __init__(self, fn):
        self.fn = fn

    def __call__(self):
        self.fn()


class Cfg:
    passes = [(0, 4), (4, 6), (6, 7)]
    stop = None
    ts = False
    ts_skip = ('start', 'C1st', 'E1st', 'A1st', 'C0st')
    ts_only = None
    force_slow = False
    force_fallback = False
    pf_w13 = (0, 0)
    bg_end = 108
    b_tail = True
    gp = (4, 4)
    ct_b = ((10, 1024, 8), (110, 512, 8))
    ct_d = (78, 4096, 4, (0, 1))
    hmods = ('', '')
    hlmods = 'sc1'
    poll2 = 0
    hack16 = ''
    hack_gap = 2
    b_opt = 3
    wb = 0
    keep = None
    b_align = 0
    q_up = 4
    v_split = False
    bg_ac = True
    ne = 4
    e3 = False
    e2_sig = 2
    e2_pl = 7
    e2_ck = 11
    d_step = 1
    d_sig = 196
    d_pl = 206
    d_ck = 214
    d_nl = 1
    e_pre = 10
    e_sig = 6
    e_pl = 5
    e_ck = 5
    spin = None
    ws_off = 0
    kvpf = (None, None)
    warm_w = 9
    rl_in_b = False
    rl_in_a = True
    rl_ack = 7
    g_sleep = 2
    rl_split = False
    rs_dma = 14
    rs_out = 28
    spare = (0, 6, 7, 16, 22, 23)
    b0_sleep = 1
    b0_g = True
    kv_touch = False
    g2_late = False
    xcc_early = False
    rl_c0 = 1
    rl_c1 = 4
    setup_first = True
    rl_ld = 16
    cold_touch = 0
    ct0 = 24
    x2_d = True
    bar_c = 76
    d_cap = 5
    alias = True
    touch = 'BHEA'
    d_touch = (None, 80)
    h_in_b = (True, False)
    d_t1 = 1
    tb0 = 97
    kvmods = 'sc1'
    ts_dbg = None
    hpx = 0
    wmods = 'sc1'
    early_c = False
    warm = 5
    dbg = ''
    rot = 's_lshr_b32 s{t1}, s{sHP}, 1'
    rl_sleep = 16
    lag_a = 12
    lag_end = True
    x2_a = 8
    st_a = 12
    st_d = 6
    c_pre = True
    c_pk = True
    e_single = False
    e_pk = True
    ax_first = 0
    st_cap = 2
    st_pad = 16
    wq_d = 12
    cpf = 2
    defer = None
    sk_e = 8
    out_mods = ''
    rl0 = 9
    rl_lat = 7
    rl_gap = 20
    up_a = 8
    up_d = 6
    up_e = 10
    up_c = 10
    ew_in_b = 56


class Gen(Asm):
    def __init__(self, cfg):
        super().__init__()
        self.cfg = cfg
        self.nts = 0
        self.m0_owner = None
        self.tsnames = []

    def srd(self, s, ptr, size):
        self.e(f"s_mov_b32 s{s}, s{ptr}\ns_mov_b32 s{s + 1}, s{ptr + 1}\ns_mov_b32 s{s + 2}, {size}\ns_mov_b32 s{s + 3}, 0x20000")

    def ld(self, dst, voff, srd, soff, imm=0, mods="sc1", tag=None, w=4):
        op = {1: "dword", 2: "dwordx2", 4: "dwordx4"}[w]
        so = f"s{soff}" if soff is not None else "0"
        o = f" offset:{imm}" if imm else ""
        self.vm(f"buffer_load_{op} {dst}, v{voff}, {sr(srd, 4)}, {so} offen{o} {mods}".rstrip(), tag)

    def st_text(self, src, voff, srd, soff, imm=0, mods="", w=4):
        op = {1: "dword", 2: "dwordx2", 4: "dwordx4"}[w]
        so = f"s{soff}" if soff is not None else "0"
        o = f" offset:{imm}" if imm else ""
        return f"buffer_store_{op} {src}, v{voff}, {sr(srd, 4)}, {so} offen{o} {mods}".rstrip()

    def st(self, src, voff, srd, soff, imm=0, mods="", tag=None, w=4):
        self.vm(self.st_text(src, voff, srd, soff, imm, mods, w), tag)

    def dma(self, voff, srd, soff, imm=0, mods="sc1", tag=None):
        so = f"s{soff}" if soff is not None else "0"
        o = f" offset:{imm}" if imm else ""
        m = (mods + " lds").strip()
        self.vm(f"buffer_load_dwordx4 v{voff}, {sr(srd, 4)}, {so} offen{o} {m}", tag)

    def stamp(self, name):
        if self.cfg.spin:
            if name == "entry":
                self.e("s_memrealtime s[98:99]\ns_waitcnt lgkmcnt(0)")
            if name == self.cfg.spin[0]:
                L = self.label("spin")
                if len(self.cfg.spin) > 2:
                    self.e(self.cfg.spin[2])
                self.e(f"{L}:\ns_memrealtime s[4:5]\ns_waitcnt lgkmcnt(0)\ns_sub_u32 s4, s4, s98\ns_cmp_lt_u32 s4, {self.cfg.spin[1]}\ns_cbranch_scc1 {L}")
                self.lq = []
        if not self.cfg.ts:
            return
        if self.cfg.ts_only:
            if not name.startswith(self.cfg.ts_only):
                return
        elif name in self.cfg.ts_skip or "_" in name or ":" in name:
            return
        if self.nts >= 16:
            return
        self.e(f"{'s_memtime' if self.cfg.ts == 'cyc' else 's_memrealtime'} s[4:5]\ns_waitcnt lgkmcnt(0)\ns_mov_b32 s{sTS + self.nts}, s4")
        self.lq = []
        self.tsnames.append(name)
        self.nts += 1

    def dual(self, fast, slow, nvm):
        ls, lj = self.label("slow"), self.label("join")
        self.e(f"s_cmp_lg_u32 s{sMode}, 0\ns_cbranch_scc1 {ls}")
        self.e(fast)
        self.e(f"{lj}:")
        self.tail.append(f"{ls}:\n{slow}\ns_branch {lj}")
        self.vmq += [None] * nvm

    def signal(self, ftype, val, local):
        self.e(f"v_mov_b32 v{vt1}, {val}")
        st = f"s_mov_b64 exec, {1 << ftype}\nbuffer_store_dword v{vt1}, v{vFl}, {sr(sWS, 4)}, 0 offen%s\ns_mov_b64 exec, -1"
        if local:
            self.dual(st % "", "buffer_wbl2 sc1\ns_waitcnt vmcnt(0)\n" + st % " sc1", 1)
        else:
            self.e(st % " sc1")
            self.vmq.append(None)

    def poll(self, voff, soff, val, local, sleep=0):
        L = self.label("poll")
        ld = f"buffer_load_dword v%d, v{voff}, {sr(sWS, 4)}, s{soff} offen sc1"
        if self.cfg.poll2 and not sleep:
            Ld = self.label("polld")
            self.e(f"s_mov_b32 s{sTO}, {TIMEOUT}")
            self.e(ld % vt1)
            self.e(f"s_nop {self.cfg.poll2}\n{L}:")
            self.e(ld % vIdx)
            self.e(f"s_sub_u32 s{sTO}, s{sTO}, 1\ns_cbranch_scc1 L_exit\ns_waitcnt vmcnt(1)")
            self.e(f"v_cmp_gt_u32 vcc, {val}, v{vt1}\ns_nop 0\ns_cbranch_vccz {Ld}")
            self.e(ld % vt1)
            self.e("s_waitcnt vmcnt(1)")
            self.e(f"v_cmp_gt_u32 vcc, {val}, v{vIdx}\ns_nop 0\ns_cbranch_vccnz {L}\n{Ld}:")
            for t in self.vmq:
                self.waited[t] = self.waited.get(t, 0) + 1
            self.vmq = [None]
        else:
            self.e(f"s_mov_b32 s{sTO}, {TIMEOUT}\n{L}:")
            self.e(ld % vt1)
            self.e(f"s_sub_u32 s{sTO}, s{sTO}, 1\ns_cbranch_scc1 L_exit")
            if sleep:
                self.e(f"s_sleep {sleep}")
            self.vwait0()
            self.e(f"v_cmp_gt_u32 vcc, {val}, v{vt1}\ns_nop 0\ns_cbranch_vccnz {L}")
        if local:
            self.dual("", "buffer_inv sc1\ns_waitcnt vmcnt(0)", 0)

    def salu(self, text):
        self.e(text)

    def prologue(self):
        g = self
        g.e("s_cmp_ge_u32 s2, 256\ns_cbranch_scc1 L_exit")
        g.stamp("entry")
        g.e("s_load_dwordx16 s[64:79], s[0:1], 0\ns_load_dwordx4 s[80:83], s[0:1], 64")
        g.e(f"v_lshrrev_b32 v{vt0}, 6, v0\nv_and_b32 v{vt1}, 63, v0")
        g.e(f"v_readfirstlane_b32 s{sW}, v{vt0}")
        g.e(f"v_lshlrev_b32 v{vL4}, 2, v{vt1}\nv_lshlrev_b32 v{vL16}, 4, v{vt1}")
        g.e(f"""
        s_and_b32 s{sX}, s2, 7
        s_lshr_b32 s{sC}, s2, 3
        s_and_b32 s{sHP}, s{sC}, 15
        s_xor_b32 s{sHP}, s{sHP}, {g.cfg.hpx}
        s_lshr_b32 s{t0}, s{sC}, 4
        s_lshl_b32 s{t0}, s{t0}, 2
        s_add_u32 s{t0}, s{t0}, s{sW}
        s_lshl_b32 s{t1}, s{sX}, 3
        s_add_u32 s{sT}, s{t1}, s{t0}
        """)
        if g.cfg.cpf == 2:
            g.code_prefetch()

    def prologue2(self):
        g = self
        g.e(f"""
        s_and_b32 s{sCB}, s{sC}, 7
        s_lshr_b32 s{t2}, s{sC}, 3
        s_lshl_b32 s{t2}, s{t2}, 1
        s_lshl_b32 s{t3}, s{sX}, 3
        s_add_u32 s{t2}, s{t2}, s{t3}
        s_lshr_b32 s{t3}, s{sW}, 1
        s_add_u32 s{sTA}, s{t2}, s{t3}
        s_xor_b32 s{sTB}, s{sTA}, 1
        s_and_b32 s{sNA}, s{sW}, 1
        s_mov_b32 s{sMask}, 0xffff0000
        s_mov_b32 s{sVM}, 0x0000ffff
        s_mov_b32 s{sVM + 1}, 0x0000ffff
        s_mov_b32 s{sMode}, 1
        s_and_b32 s{t2}, s{sT}, 7
        """)
        g.e(f"v_mov_b32 v{vFl}, 0")
        g.e(f"""
        s_lshl_b32 s{t4}, s{sX}, 4
        s_add_u32 s{t4}, s{t4}, s{sHP}
        s_lshl_b32 s{t4}, s{t4}, 7
        s_lshl_b32 s{t5}, s{t2}, 2
        s_add_u32 s{t4}, s{t4}, s{t5}
        s_add_u32 s{t4}, s{t4}, {FA_L}
        v_writelane_b32 v{vFl}, s{t4}, 0
        s_lshl_b32 s{t4}, s{sHP}, 3
        s_add_u32 s{t4}, s{t4}, s{sX}
        s_lshl_b32 s{t4}, s{t4}, 7
        s_add_u32 s{t4}, s{t4}, s{t5}
        s_add_u32 s{t4}, s{t4}, {FA_G}
        v_writelane_b32 v{vFl}, s{t4}, 1
        s_lshl_b32 s{t4}, s{sX}, 2
        s_add_u32 s{t4}, s{t4}, s{sW}
        s_lshl_b32 s{t4}, s{t4}, 2
        s_lshr_b32 s{t5}, s{sC}, 3
        s_add_u32 s{t4}, s{t4}, s{t5}
        s_lshl_b32 s{t4}, s{t4}, 7
        s_lshl_b32 s{t5}, s{sCB}, 2
        s_add_u32 s{t4}, s{t4}, s{t5}
        s_add_u32 s{t4}, s{t4}, {FB}
        v_writelane_b32 v{vFl}, s{t4}, 2
        s_lshl_b32 s{t4}, s{sTA}, 7
        s_lshl_b32 s{t5}, s{sCB}, 1
        s_add_u32 s{t5}, s{t5}, s{sNA}
        s_lshl_b32 s{t5}, s{t5}, 2
        s_add_u32 s{t4}, s{t4}, s{t5}
        s_add_u32 s{t5}, s{t4}, {FC}
        v_writelane_b32 v{vFl}, s{t5}, 3
        s_add_u32 s{t5}, s{t4}, {FE}
        v_writelane_b32 v{vFl}, s{t5}, 5
        s_lshr_b32 s{t4}, s{sT}, 1
        s_lshl_b32 s{t4}, s{t4}, 2
        s_lshr_b32 s{t5}, s{sHP}, 2
        s_add_u32 s{t4}, s{t4}, s{t5}
        s_lshl_b32 s{t4}, s{t4}, 7
        s_and_b32 s{t5}, s{sT}, 1
        s_lshl_b32 s{t5}, s{t5}, 2
        s_and_b32 s{t7}, s{sHP}, 3
        s_add_u32 s{t5}, s{t5}, s{t7}
        s_lshl_b32 s{t5}, s{t5}, 2
        s_add_u32 s{t4}, s{t4}, s{t5}
        s_add_u32 s{t4}, s{t4}, {FD}
        v_writelane_b32 v{vFl}, s{t4}, 4
        s_lshr_b32 s{t4}, s2, 2
        s_lshl_b32 s{t4}, s{t4}, 7
        s_and_b32 s{t5}, s2, 3
        s_lshl_b32 s{t5}, s{t5}, 2
        s_add_u32 s{t4}, s{t4}, s{t5}
        s_add_u32 s{t4}, s{t4}, {FR}
        v_writelane_b32 v{vFl}, s{t4}, 6
        s_lshl_b32 s{t4}, s{sX}, 5
        s_add_u32 s{t4}, s{t4}, s{sC}
        s_lshl_b32 s{t4}, s{t4}, 2
        s_add_u32 s{t4}, s{t4}, {FX}
        v_writelane_b32 v{vFl}, s{t4}, 7
        """)

    def zero_flags(self):
        g = self
        L = g.label("zf")
        g.e(f"s_cmp_lt_u32 s2, 8\ns_cbranch_scc0 {L}")
        g.e("v_mov_b32 v248, 0\nv_mov_b32 v249, 0\nv_mov_b32 v250, 0\nv_mov_b32 v251, 0")
        g.e(f"s_lshl_b32 s{t2}, s2, 2\ns_add_u32 s{t2}, s{t2}, s{sW}\ns_mul_i32 s{t2}, s{t2}, 3072")
        for i in range(3):
            g.e(g.st_text(vr(248, 4), vL16, sWS, t2, 1024 * i, "sc1"))
        g.e(f"{L}:")

    def code_prefetch(self):
        g = self
        g.e(f"""
        s_getpc_b64 s[4:5]
        L_pc:
        s_lshl_b32 s{t8}, s{sC}, 2
        s_add_u32 s{t8}, s{t8}, s{sW}
        s_and_b32 s{t8}, s{t8}, 15
        s_lshl_b32 s{t8}, s{t8}, 13
        v_lshlrev_b32 v{vt2}, 3, v{vL16}
        v_add_u32 v{vt2}, s{t8}, v{vt2}
        v_min_u32 v{vt2}, L_end-L_pc-4, v{vt2}
        """)
        g.vm(f"global_load_dword v255, v{vt2}, s[4:5]", "cpf")

    def code_touch(self, skip, nblk, va, vd):
        g = self
        L = g.label("pc")
        g.e(f"""
        s_getpc_b64 s[4:5]
        {L}:
        s_lshl_b32 s{sTO}, s{sC}, 2
        s_add_u32 s{sTO}, s{sTO}, s{sW}
        s_and_b32 s{sTO}, s{sTO}, {nblk - 1}
        s_lshl_b32 s{sTO}, s{sTO}, 11
        s_add_u32 s{sTO}, s{sTO}, {skip}
        v_and_b32 v{va}, 0x3c0, v{vL16}
        v_lshl_add_u32 v{va}, v{va}, 1, s{sTO}
        v_min_u32 v{va}, L_end-{L}-4, v{va}
        """)
        g.vm(f"global_load_dword v{vd}, v{va}, s[4:5]", "pf")

    def handshake_send(self):
        g = self
        L = g.label("hs")
        g.e(f"s_cmp_lt_u32 s2, 8\ns_cbranch_scc0 {L}")
        g.e(f"s_lshl_b32 s{t9}, s2, 2\ns_add_u32 s{t9}, s{t9}, s{sW}\ns_lshl_b32 s{t9}, s{t9}, 2")
        g.e(f"v_mov_b32 v{vt1}, 1\nv_mov_b32 v{vt2}, s{t9}\ns_mov_b64 exec, 1")
        g.e(f"buffer_store_dword v{vt1}, v{vt2}, {sr(sDBG, 4)}, 0 offen sc1\ns_mov_b64 exec, -1\n{L}:")

    def late_check(self, tag, ld_text, chk, sleep):
        g = self
        ls, lj, lp = g.label("lslow"), g.label("ljoin"), g.label("lp")
        g.vwait(tag)
        g.e(chk + f"\ns_nop 0\ns_cbranch_vccnz {ls}\n{lj}:")
        g.tail.append(f"""{ls}:
        s_mov_b32 s{sTO}, {TIMEOUT}
        {lp}:
        {"s_sleep " + str(sleep) if sleep else ""}
        {ld_text}
        s_sub_u32 s{sTO}, s{sTO}, 1
        s_cbranch_scc1 L_exit
        s_waitcnt vmcnt(0)
        {chk}
        s_nop 0
        s_cbranch_vccnz {lp}
        s_branch {lj}""")

    def handshake_load(self):
        self.e(f"v_and_b32 v254, 0x7c, v{vL4}")
        self.ld(vr(vt1), 254, sDBG, None, 0, tag="hs", w=1)

    def handshake_check(self):
        self.late_check("hs", f"v_and_b32 v254, 0x7c, v{vL4}\nbuffer_load_dword v{vt1}, v254, {sr(sDBG, 4)}, 0 offen sc1",
                        f"v_cmp_eq_u32 vcc, 0, v{vt1}", 8)

    def xcc_send(self):
        g = self
        L = g.label("xs")
        g.e(f"s_cmp_eq_u32 s{sW}, 0\ns_cbranch_scc0 {L}")
        g.e(f"s_getreg_b32 s{t11}, hwreg(HW_REG_XCC_ID, 0, 4)\ns_or_b32 s{t11}, s{t11}, 0x80\nv_mov_b32 v{vt1}, s{t11}")
        g.e(f"s_mov_b64 exec, 0x80\nbuffer_store_dword v{vt1}, v{vFl}, {sr(sWS, 4)}, 0 offen sc1\ns_mov_b64 exec, -1\n{L}:")

    def xcc_load(self, vd=vt2, va=vt3, st=t7):
        g = self
        g.e(f"v_and_b32 v{va}, 0x7c, v{vL4}\ns_lshl_b32 s{st}, s{sX}, 7\ns_add_u32 s{st}, s{st}, {FX}")
        g.ld(vr(vd), va, sWS, st, 0, tag="xcc", w=1)

    def xcc_check(self, vd=vt2, va=vt3, st=t7):
        g = self
        g.late_check("xcc", f"s_lshl_b32 s{st}, s{sX}, 7\ns_add_u32 s{st}, s{st}, {FX}\nbuffer_load_dword v{vd}, v{va}, {sr(sWS, 4)}, s{st} offen sc1",
                     f"v_cmp_eq_u32 vcc, 0, v{vd}", 8)
        g.e(f"""
        v_readfirstlane_b32 s{st}, v{vd}
        s_nop 1
        v_cmp_ne_u32 vcc, s{st}, v{vd}
        s_nop 1
        s_cmp_lg_u64 vcc, 0
        s_cselect_b32 s{sMode}, 1, 0
        """)
        if g.cfg.force_slow:
            g.e(f"s_mov_b32 s{sMode}, 1")

    def stats_tail(self, s1, s2, rs, cden, BX):
        def rnd(r):
            return [f"v_cvt_pk_bf16_f32 v{r}, v{r}, v{r}", f"v_lshlrev_b32 v{r}, 16, v{r}"]
        return [
            f"v_mul_f32 v{s1}, {f2u(-1 / 512):#x}, v{s1}",
            f"v_mul_f32 v{s2}, {f2u(1 / 512):#x}, v{s2}",
            f"v_fma_f32 v{s2}, -v{s1}, v{s1}, v{s2}",
            f"v_max_f32 v{s2}, 0, v{s2}"] + rnd(s2) + [
            f"v_add_f32 v{s2}, {f2u(1e-5):#x}, v{s2}"] + rnd(s2) + [
            f"v_sqrt_f32 v{s2}, v{s2}",
            f"v_cvt_pk_bf16_f32 v{BX}, v{s1}, v{s1}"] + rnd(s2) + [
            f"v_rcp_f32 v{rs}, v{s2}",
            f"v_mul_f32 v{cden}, v{s2}, v{s2}",
            f"v_mov_b32 v{BX + 1}, v{BX}",
            f"v_mov_b32 v{BX + 2}, v{BX}",
            f"v_mov_b32 v{BX + 3}, v{BX}",
        ]

    def stats_ops(self, SB, rs, cden, BX):
        ops = [("v", "stat")]
        n = 16
        while n > 1:
            n //= 2
            for i in range(n):
                ops.append(f"v_add_f32 v{SB + i}, v{SB + i}, v{SB + n + i}")
        ops += [f"v_mov_b32 v{SB + 1}, v{SB}", "s_nop 1", f"v_permlane32_swap_b32 v{SB}, v{SB + 1}"]
        return ops + self.stats_tail(SB, SB + 1, rs, cden, BX)

    def take(self, side, n, exact=False):
        while n > 0 and side:
            o = side.popleft()
            if o is None:
                n -= 1
            elif isinstance(o, tuple):
                (self.vwait if o[0] == "v" else self.lwait)(o[1])
            elif callable(o):
                o()
                n -= 1
            else:
                c = 2 if o.startswith(("v_exp", "v_rcp", "v_rsq", "v_sqrt")) else 1
                if exact and c > n:
                    side.appendleft(o)
                    break
                self.e(o)
                n -= c

    def load_x_stats(self, layer, which, xoff, X, SB, up):
        g = self
        g.e(f"s_lshl_b32 s{t0}, s{sT}, 12\ns_add_u32 s{t0}, s{t0}, {aST(layer, which)}")
        g.e(f"s_lshl_b32 s{t1}, s{sT}, 15\ns_add_u32 s{t1}, s{t1}, {xoff}")

        def pre():
            for ks in range(up):
                ldx(ks)

        def ldx(ks):
            if ks and ks % 4 == 0:
                g.e(f"s_add_u32 s{t1}, s{t1}, 4096")
            g.ld(vr(X + 4 * ks, 4), vL16, sWS, t1, (ks % 4) * 1024, tag=("x", ks))
        return (pre, [lambda ks=ks: ldx(ks) for ks in range(up, 32)],
                [lambda q=q: g.ld(vr(SB + 4 * q, 4), vL16, sWS, t0, q * 1024, tag="stat") for q in range(4)])

    def l2_prefetch(self, sbase, nbytes, vtmp):
        g = self
        ops = [lambda: g.e(f"v_and_b32 v{vtmp}, 0x3c0, v{vL16}\nv_lshlrev_b32 v{vtmp}, 1, v{vtmp}")]
        assert nbytes % 2048 == 0
        for i in range(nbytes // 2048):
            def op(i=i):
                if i and i % 2 == 0:
                    g.e(f"s_add_u32 s{sbase}, s{sbase}, 4096")
                g.ld(vr(vtmp + 1), vtmp, sWS, sbase, (i % 2) * 2048, mods="sc1", tag="pf", w=1)
            ops.append(op)
        return ops

    def touch_ops(self, salu, sreg, n, vadr, vdst):
        g = self
        ops = [lambda t=t: g.e(t) for t in salu]
        for i in range(n):
            def op(i=i):
                if i and i % 2 == 0:
                    g.e(f"s_add_u32 s{sreg}, s{sreg}, 4096")
                g.ld(vr(vdst), vadr, sWS, sreg, (i % 2) * 2048, mods="sc1", tag="pf", w=1)
            ops.append(op)
        return ops

    def h_addr(self, layer, a, b):
        return [f"s_mul_i32 s{a}, s{sT}, {112 * 1024}\ns_mul_i32 s{b}, s{sHP}, 7168", f"s_add_u32 s{a}, s{a}, s{b}\ns_add_u32 s{a}, s{a}, {aH(layer)}"]

    def x_addr(self, layer, which, a, b):
        x = [f"s_lshl_b32 s{a}, s{sTA}, 4\ns_lshl_b32 s{b}, s{sCB}, 1", f"s_add_u32 s{a}, s{a}, s{b}\ns_add_u32 s{a}, s{a}, s{sNA}",
             f"s_lshl_b32 s{a}, s{a}, 11\ns_add_u32 s{a}, s{a}, {aX(layer, which)}"]
        st = [f"s_lshl_b32 s{a}, s{sTA}, 2\ns_lshr_b32 s{b}, s{sCB}, 1", f"s_add_u32 s{a}, s{a}, s{b}\ns_lshl_b32 s{a}, s{a}, 10",
              f"s_add_u32 s{a}, s{a}, {aST(layer, which)}"]
        return x, st

    def dma_ops(self, first, count, gsoff_expr, lds_base, tag, ts):
        g = self
        a, b = ts
        ops = []
        uid = g.label("dma")

        def setup():
            g.e(f"s_mul_i32 s{a}, s{sW}, {count * 1024}")
            g.e(f"s_add_u32 s{b}, s{a}, s{gsoff_expr}")
        ops.append(SOp(setup))

        def setup2():
            g.e(f"s_add_u32 s{b}, s{b}, {first * 1024}\ns_add_u32 s{a}, s{a}, {lds_base}")
        ops.append(SOp(setup2))
        for i in range(count):
            if i % 4 == 0 and i:
                ops.append(SOp(lambda: g.e(f"s_add_u32 s{a}, s{a}, 4096\ns_add_u32 s{b}, s{b}, 4096")))

            def op(i=i):
                if g.m0_owner != (uid, i // 4):
                    g.e(f"s_mov_b32 m0, s{a}\ns_nop 0")
                    g.m0_owner = (uid, i // 4)
                g.dma(vL16, sWS, b, (i % 4) * 1024, mods=g.cfg.wmods, tag=tag)
            ops.append(op)
        return ops

    @property
    def D_AX(self):
        return [208, 212, 216, 220, 224, 244, 252] if self.cfg.passes[0] == (0, 4) else [208, 212, 216, 224, 228, 232, 236]

    @property
    def D_AXPRE(self):
        return (0, 1, 2, 6) if self.cfg.passes[0] == (0, 4) else (0, 1, 2)

    A_X, A_ACC = 16, {"q": 144, "k": 160, "v": 176}
    A_P, A_AX = 208, {"k": 208, "v": 212, "q": 232}
    A_RS, A_CD, A_KA, A_VA, A_BX, A_QM, A_RC = 240, 241, 242, 243, 220, 252, 192

    def a_addr(self, layer):
        g = self
        vK, vV = g.A_KA, g.A_VA
        g.e(f"""
        v_lshrrev_b32 v{vt0}, 4, v{vL16}
        v_and_b32 v{vt2}, 0x33, v{vt0}
        v_bfe_u32 v{vt3}, v{vt0}, 2, 1
        v_lshl_add_u32 v{vt2}, v{vt3}, 3, v{vt2}
        v_bfe_u32 v{vt3}, v{vt0}, 3, 1
        v_lshl_add_u32 v{vt2}, v{vt3}, 2, v{vt2}
        v_lshlrev_b32 v{vK}, 4, v{vt2}
        v_bfe_u32 v{vt2}, v{vt0}, 4, 1
        v_lshlrev_b32 v{vV}, 17, v{vt2}
        v_lshrrev_b32 v{vt2}, 5, v{vt0}
        v_lshl_add_u32 v{vV}, v{vt2}, 8, v{vV}
        v_and_b32 v{vt2}, 15, v{vt0}
        v_lshl_add_u32 v{vV}, v{vt2}, 4, v{vV}
        """)

    def a_saddr(self, layer):
        return [
            f"s_lshl_b32 s{t11}, s{sHP}, 7", f"s_add_u32 s{t11}, s{t11}, s{sT}",
            f"s_lshl_b32 s{t7}, s{t11}, 11", f"s_add_u32 s{t7}, s{t7}, {aKV(layer)}", f"s_add_u32 s{t8}, s{t7}, 0x20000",
            f"s_lshl_b32 s{t9}, s{sT}, 4", f"s_add_u32 s{t9}, s{t9}, s{sHP}", f"s_lshl_b32 s{t9}, s{t9}, 11",
            f"s_add_u32 s{t9}, s{t9}, {aQ(layer)}"]

    def a_rc_ops(self, sarea):
        g = self
        RC = g.A_RC
        ops = [f"v_and_b32 v{vt0}, 0x7c, v{vL4}", f"v_add_u32 v{vt0}, s{sarea}, v{vt0}",
               lambda: g.ds(f"ds_write_b32 v{vt0}, v{g.A_RS}", "rcw"),
               f"v_lshrrev_b32 v{vt0}, 9, v{vL16}", f"v_lshlrev_b32 v{vt0}, 4, v{vt0}", f"v_add_u32 v{vt0}, s{sarea}, v{vt0}",
               f"v_mul_f32 v{g.A_QM}, {f2u(0.25 * LOG2E):#x}, v{g.A_RS}"]
        for j in range(4):
            ops.append(lambda j=j: g.ds(f"ds_read_b128 {vr(RC + 4 * j, 4)}, v{vt0} offset:{32 * j}", "rc"))
        return ops

    def a_epi(self, n, qmods=''):
        g = self
        A = g.A_ACC[n]
        P = g.A_P + {"k": 0, "v": 8, "q": 16}[n]
        ops = [("l", "rc")] if n == "v" else []
        for h in range(2):
            for i in range(8 * h, 8 * h + 8):
                m = {"k": g.A_RS, "q": g.A_QM, "v": g.A_RC + i}[n]
                ops.append(f"v_mul_f32 v{A + i}, v{m}, v{A + i}")
            for i in range(4 * h, 4 * h + 4):
                ops.append(f"v_cvt_pk_bf16_f32 v{P + i}, v{A + 2 * i}, v{A + 2 * i + 1}")
            if n == "k":
                ops.append(lambda h=h: g.st(vr(P + 4 * h, 4), g.A_KA, sWS, (t7, t8)[h], 0, "sc1"))
            elif n == "v":
                ops.append(lambda h=h: g.st(vr(P + 4 * h, 4), g.A_VA, sWS, t7, 1024 + 512 * h, "sc1"))
            else:
                ops.append(lambda h=h: g.st(vr(P + 4 * h, 4), vL16, sWS, t9, 1024 * h, qmods))
        return ops

    def a_mfma(self, n, w, x, first):
        acc = vr(self.A_ACC[n], 16)
        a_, b_ = (x, w) if n == "v" else (w, x)
        self.e(f"v_mfma_f32_32x32x16_bf16 {acc}, {a_}, {b_}, {'0' if first else acc}")

    def phaseA0(self):
        g = self
        X, S1, S2 = g.A_X, 192, 208
        vo0, vo1, vRd, vRs, vWd, vTr = 224, 225, 226, 230, 232, 236
        CS, ONE = 0, 48
        LW = 65536
        g.e(f"""
        v_lshrrev_b32 v{vt0}, 4, v{vL16}
        v_lshrrev_b32 v{vt2}, 3, v{vt0}
        v_lshlrev_b32 v{vo0}, 10, v{vt2}
        v_lshrrev_b32 v{vt2}, 1, v{vt2}
        v_and_b32 v{vt3}, 7, v{vt0}
        v_xor_b32 v{vt2}, v{vt2}, v{vt3}
        v_lshl_add_u32 v{vo0}, v{vt2}, 4, v{vo0}
        v_xor_b32 v{vo1}, 64, v{vo0}
        s_lshl_b32 s{t0}, s{sT}, 15
        {g.cfg.rot.format(t1=t1, sHP=sHP, sC=sC, sX=sX)}
        s_lshl_b32 s{t6}, s{sW}, 14
        s_lshl_b32 s6, s{sHP}, 6
        s_mul_i32 s7, s{sW}, 3072
        s_add_u32 s7, s7, {LW}
        """)
        for i in range(3):
            r = vWd + i
            g.e(f"""
            v_add_u32 v{vt2}, {64 * i}, v{vt0}
            v_mul_u32_u24 v{vt3}, 0x1556, v{vt2}
            v_lshrrev_b32 v{vt3}, 16, v{vt3}
            v_mul_u32_u24 v{r}, 12, v{vt3}
            v_sub_u32 v{vt2}, v{vt2}, v{r}
            v_mul_u32_u24 v{r}, 3072, v{vt3}
            v_lshrrev_b32 v{vt3}, 2, v{vt2}
            v_lshl_add_u32 v{r}, v{vt3}, 10, v{r}
            v_and_b32 v{vt2}, 3, v{vt2}
            v_lshl_add_u32 v{r}, v{vt2}, 4, v{r}
            """)
        g.e("s_waitcnt lgkmcnt(0)")
        g.srd(sXIN, pX, 2048 * 1024)
        g.srd(sWQ, pWQ, 512 * 3072)
        g.stamp("start")

        def grp_ops(c):
            ops = []
            for j in range(4):
                def op(j=j):
                    if j == 0:
                        g.e(f"s_add_u32 s{t2}, s{t1}, {c}\ns_and_b32 s{t2}, s{t2}, 7\ns_lshl_b32 s3, s{t2}, 7\ns_add_u32 s3, s3, s{t0}")
                    g.e(f"s_add_u32 s{t5}, s{t6}, {(c % 4) * 4096 + j * 1024}\ns_mov_b32 m0, s{t5}")
                    g.e("s_add_u32 s3, s3, 8192" if j else "s_nop 0")
                    g.dma((vo0, vo1)[j % 2], sXIN, 3, 0, mods="", tag=("xc", c))
                ops.append(op)
            for i in range(3):
                def op(i=i):
                    if i == 0:
                        g.e(f"s_add_u32 s{t2}, s{t1}, {c}\ns_and_b32 s{t2}, s{t2}, 7\ns_lshl_b32 s{t2}, s{t2}, 2")
                        g.e(f"s_add_u32 s{t2}, s{t2}, s{sW}\ns_mul_i32 s3, s{t2}, 49152\ns_add_u32 s3, s3, s6")
                    g.e(f"s_add_u32 s{t5}, s7, {(c % 5) * 4 * 3072 + i * 1024}\ns_mov_b32 m0, s{t5}\ns_nop 0")
                    g.dma(vWd + i, sWQ, 3, 0, mods="", tag=("w", c))
                ops.append(op)
            return ops
        if g.cfg.warm:
            g.e(f"""
            s_lshl_b32 s{t2}, s{sC}, 2
            s_add_u32 s{t2}, s{t2}, s{sW}
            s_mul_i32 s{t3}, s{t2}, 12288
            s_lshl_b32 s{t2}, s{t2}, 11
            s_lshl_b32 s{t4}, s{sX}, 18
            s_add_u32 s{t2}, s{t2}, s{t4}
            v_lshlrev_b32 v254, 3, v{vL16}
            v_and_b32 v253, 0x780, v254
            """)
            if g.cfg.warm == 2:
                for op in grp_ops(0):
                    op()
            g.ld("v255", 253, sXIN, t2, 0, mods="", w=1)
            if g.cfg.warm == 5:
                g.e(f"v_lshrrev_b32 v252, 6, v{vL16}\nv_min_u32 v252, 11, v252\nv_lshlrev_b32 v252, 10, v252")
                g.ld("v255", 252, sWQ, t3, 384, mods="", w=1)
            if g.cfg.warm >= 3:
                g.e(f"s_lshl_b32 s{t3}, s2, 2\ns_add_u32 s{t3}, s{t3}, s{sW}\ns_mul_i32 s{t3}, s{t3}, 1536")
                g.ld("v255", 253, sWQ, t3, 0, mods="", w=1)
            else:
                g.ld("v255", 254, sWQ, t3, 0, mods="", w=1)
                g.e(f"v_and_b32 v254, 0xf80, v254\ns_add_u32 s{t3}, s{t3}, 8192")
                g.ld("v255", 254, sWQ, t3, 0, mods="", w=1)
        if g.cfg.warm != 2:
            for op in grp_ops(0):
                op()
        g.srd(sWS, pWS, WS_BYTES - g.cfg.ws_off)
        if g.cfg.ws_off:
            g.e(f"s_add_u32 s{sWS}, s{sWS}, {g.cfg.ws_off}\ns_addc_u32 s{sWS + 1}, s{sWS + 1}, 0")
        g.srd(sDBG, pDBG, 256)
        g.zero_flags()
        if not g.cfg.defer:
            g.prologue2()
        g.e(f"""
        v_and_b32 v{vt2}, 31, v{vt0}
        v_lshrrev_b32 v{vt3}, 5, v{vt0}
        v_bfe_u32 v{vt1}, v{vt0}, 1, 3
        v_xor_b32 v{vt1}, v{vt1}, v{vt3}
        v_lshlrev_b32 v{vt1}, 4, v{vt1}
        v_lshl_add_u32 v{vt1}, v{vt2}, 7, v{vt1}
        v_add_u32 v{vt1}, s{t6}, v{vt1}
        """)
        for i in range(4):
            g.e(f"s_add_u32 s{t2}, s{sW}, {i}\ns_and_b32 s{t2}, s{t2}, 3\ns_lshl_b32 s{t2}, s{t2}, 5\nv_xor_b32 v{vRd + i}, s{t2}, v{vt1}")
        g.e(f"""
        v_lshrrev_b32 v{vt2}, 5, v{vt0}
        v_lshlrev_b32 v{vt2}, 3, v{vt2}
        v_bfe_u32 v{vt3}, v{vt0}, 2, 2
        v_add_u32 v{vt2}, v{vt2}, v{vt3}
        v_mul_u32_u24 v{vt1}, 192, v{vt2}
        v_bfe_u32 v{vt3}, v{vt0}, 4, 1
        v_lshl_add_u32 v{vt1}, v{vt3}, 5, v{vt1}
        v_and_b32 v{vt3}, 1, v{vt0}
        v_lshl_add_u32 v{vt1}, v{vt3}, 4, v{vt1}
        v_bfe_u32 v{vt3}, v{vt0}, 1, 1
        v_lshl_add_u32 v{vt1}, v{vt3}, 3, v{vt1}
        """)
        for i in range(4):
            g.e(f"s_add_u32 s{t2}, s{sW}, {i}\ns_and_b32 s{t2}, s{t2}, 3\ns_mul_i32 s{t2}, s{t2}, 3072\ns_add_u32 s{t2}, s{t2}, {LW}\nv_add_u32 v{vTr + i}, s{t2}, v{vt1}")
        g.e(f"v_mov_b32 v{vt1}, 0x3f803f80")
        for i in range(4):
            g.e(f"v_accvgpr_write_b32 a{ONE + i}, v{vt1}")
        if not g.cfg.setup_first:
            for op in grp_ops(1):
                op()
        g.stamp("A0_d1")
        if not g.cfg.defer:
            g.a_addr(0)
            g.relayout_setup(0)
            g.relayout_setup(1)
        if g.cfg.setup_first:
            for op in grp_ops(1):
                op()
        if g.cfg.cpf == 1:
            g.code_prefetch()
        g.stamp("A0_i")
        if not g.cfg.g2_late:
            for op in grp_ops(2):
                op()
        if g.cfg.warm == 4:
            g.e(f"s_lshl_b32 s{t3}, s{sC}, 2\ns_add_u32 s{t3}, s{t3}, s{sW}\ns_mul_i32 s{t3}, s{t3}, 12288\nv_lshlrev_b32 v254, 3, v{vL16}")
            g.ld("v255", 254, sWQ, t3, 0, mods="", w=1)
            g.e(f"v_and_b32 v254, 0xf80, v254\ns_add_u32 s{t3}, s{t3}, 8192")
            g.ld("v255", 254, sWQ, t3, 0, mods="", w=1)

        def xread(c):
            return [("v", ("xc", c))] + [
                lambda i=i: g.ds(f"ds_read_b128 {vr(X + 4 * (4 * c + i), 4)}, v{vRd + i} offset:{(c % 4) * 4096}", ("x", c)) for i in range(4)]

        names = "kvq"
        seg = {"q": 0, "k": 1, "v": 2}

        def wread(f):
            st, n = divmod(f, 3)
            c, i = divmod(st, 4)
            if n == 0 and i == 0:
                g.vwait(("w", c))
                if g.cfg.rl_in_a and 0 <= c - g.cfg.rl_c1 < (1 if g.cfg.rl_split else 2):
                    assert ("rl", c - g.cfg.rl_c1) in g.vmq or ("rl", c - g.cfg.rl_c1) in g.waited
                    g.vwait(("rl", c - g.cfg.rl_c1))
                g.e("s_barrier")
            b = WB + 4 * (f % 8)
            off = (c % 5) * 12288 + seg[names[n]] * 64
            g.ds(f"ds_read_b64_tr_b16 {ar(b, 2)}, v{vTr + i} offset:{off}", ("w", f))
            g.ds(f"ds_read_b64_tr_b16 {ar(b + 2, 2)}, v{vTr + i} offset:{off + 768}", ("w", f))

        def mf4(d, a, b, first):
            g.e(f"v_mfma_f32_4x4x4_16b_bf16 {d}, {a}, {b}, {'0' if first else d}")

        def stat_mf(st):
            for hh in range(2):
                x = vr(X + 4 * st + 2 * hh, 2)
                mf4(vr(S1 + 4 * hh, 4), ar(ONE, 2), x, st == 0)
                mf4(vr(S2 + 4 * hh, 4), x, x, st == 0)
            g.take(side, 2)

        side = deque(xread(0))
        g.take(side, 99)
        g.stamp("A0_x0")
        LEAD = 5
        for f in range(LEAD):
            wread(f)
        rld = g.relayout_dma_ops()
        rlo = g.relayout_out_ops(216, 52, ONE, (g.RL_V + 2, g.RL_V + 3), 231)
        wwarm = [lambda: g.e(f"v_and_b32 v253, 0x3c0, v{vL16}\nv_lshlrev_b32 v253, 1, v253\ns_lshl_b32 s{t7}, s2, 2\ns_add_u32 s{t7}, s{t7}, s{sW}")]
        for ptr, share in ((pW1, 1792), (pW3, 1792), (pW2, 1792), (pWO, 512)):
            def op(ptr=ptr, share=share):
                g.srd(sWQ, ptr, share * 1024)
                g.e(f"s_mul_i32 s{t8}, s{t7}, {share}")
                if share < 1792:
                    g.e("v_and_b32 v253, 0x180, v253")
                g.ld("v255", 253, sWQ, t8, 0, mods="", w=1)
            wwarm.append(op)
        XA = 8192
        for c in range(8):
            if c == 0 and g.cfg.g2_late:
                side.extend(grp_ops(2))
            if c + 3 < 8:
                side.extend(grp_ops(c + 3))
            if c == 0 and g.cfg.g2_late:
                side.extend(xread(1) + [g.handshake_send])
            elif c == 0:
                side.extendleft(reversed(xread(1) + [g.handshake_send]))
            elif c + 1 < 8:
                side.extend(xread(c + 1))
            if g.cfg.defer:
                for cc, fn in zip(g.cfg.defer, (lambda: g.relayout_setup(0), lambda: g.relayout_setup(1), g.prologue2, lambda: g.a_addr(0))):
                    if cc == c:
                        side.appendleft(fn)
            if c == 3:
                side.appendleft(g.handshake_load)
            if g.cfg.rl_in_a:
                if c == g.cfg.rl_c0:
                    side.extend(rld[:4])
                if c == g.cfg.rl_c0 + 1 and not g.cfg.rl_split:
                    side.extend(rld[4:])
                u = c - g.cfg.rl_c1
                if 0 <= u < (1 if g.cfg.rl_split else 2):
                    oo = [o for o, _ in rlo[13 * u:13 * u + 13]]
                    for k in range(4):
                        side.extend([oo[3 * k], None, None, oo[3 * k + 1], oo[3 * k + 2]])
                    side.extend([None] * 4 + [oo[12]])
            if c == 6 and g.cfg.xcc_early:
                side.append(lambda: g.xcc_load(250, 251, t4))
            if c == 4:
                side.append(g.handshake_check)
                if g.cfg.xcc_early:
                    side.append(g.xcc_send)
                if not g.cfg.rl_in_b and not g.cfg.rl_in_a:
                    side.extend(rld)
            if c == g.cfg.warm_w:
                side.extend(wwarm)
            if c == 6:
                side.extend(g.a_saddr(0))
            g.lwait(("x", c))
            if c == 7:
                for i in range(4):
                    stat_mf(28 + i)
                sel = [f"v_add_f32 v{S1}, v{S1}, v{S1 + 4}"] + [f"v_add_f32 v{S2 + r}, v{S2 + r}, v{S2 + 4 + r}" for r in range(4)]
                for m, stp in ((0xaaaaaaaa, 1), (0xcccccccc, 2)):
                    sel += [f"s_mov_b32 s{t2}, {m:#x}", f"s_mov_b32 s{t3}, {m:#x}"]
                    sel += [f"v_cndmask_b32 v{S2 + r}, v{S2 + r}, v{S2 + r + stp}, s[{t2}:{t3}]" for r in range(0, 4, 2 * stp)]
                sel += ["s_nop 1", f"v_permlane32_swap_b32 v{S1}, v{S2}", f"v_add_f32 v{S1}, v{S1}, v{S2}",
                        f"v_mov_b32 v{S2}, v{S1}", "s_nop 1", f"v_permlane32_swap_b32 v{S1}, v{S2}"]
                sel += g.stats_tail(S1, S2, g.A_RS, g.A_CD, g.A_BX)
                sel += [f"s_add_u32 s{t2}, s{t6}, 12288"] + g.a_rc_ops(t2)
            for i in range(4):
                st = 4 * c + i
                g.lwait(("w", 3 * st + 2))
                for n in range(3):
                    f = 3 * st + n
                    wb = ar(WB + 4 * (f % 8), 4)
                    g.a_mfma(names[n], wb, vr(X + 4 * st, 4), st == 0)
                    if i == 0:
                        for hh in range(2):
                            mf4(ar(CS + 8 * n + 4 * hh, 4), ar(ONE, 2), ar(WB + 4 * (f % 8) + 2 * hh, 2), c == 0)
                    if f + LEAD < 96:
                        wread(f + LEAD)
                    g.take(side, 2 if c < 7 else 5)
                    if c == 7 and i == 0 and n == 1:
                        side.extend(sel)
                if c == 7 and i == 1:
                    g.e(f"s_lshl_b32 s{t4}, s{sW}, 2\ns_add_u32 s{t4}, s{t4}, {XA}\nv_add_u32 v253, s{t4}, v{vL16}")
                    for n in range(3):
                        g.e(f"""
                        v_accvgpr_read_b32 v{vt2}, a{CS + 8 * n}
                        v_accvgpr_read_b32 v254, a{CS + 8 * n + 4}
                        v_add_f32 v{vt2}, v{vt2}, v254
                        v_cvt_pk_bf16_f32 v254, v{vt2}, v{vt2}
                        v_lshlrev_b32 v254, 16, v254
                        v_sub_f32 v254, v{vt2}, v254
                        v_cvt_pk_bf16_f32 v254, v{vt2}, v254
                        """)
                        g.ds(f"ds_write_b32 v253, v254 offset:{1024 * n}", "csw")
                if c < 7:
                    stat_mf(st)
            g.take(side, 99)
            g.stamp(f"A0_g{c}")
        g.lwait0()
        g.e("s_barrier")
        for n in range(3):
            g.ds(f"ds_read_b128 {vr(g.A_AX[names[n]], 4)}, v{vL16} offset:{XA + 1024 * n}", ("ax", n))
        for n in range(3):
            g.lwait(("ax", n))
            g.a_mfma(names[n], vr(g.A_AX[names[n]], 4), vr(g.A_BX, 4), False)
        side = deque(g.a_epi("k") + g.a_epi("v") + g.a_epi("q", "sc1"))
        g.take(side, 999)
        if g.cfg.xcc_early:
            g.xcc_check(250, 251, 4)
        g.stamp("A0st")

    def phaseA1(self, layer):
        g = self
        cfg = g.cfg
        X, SB = g.A_X, 192
        g.A_BX = 236
        vA0, vA1 = 224, 225
        LW = 65536
        g.e(f"v_add_u32 v{vA0}, {LW}, v{vL16}\nv_add_u32 v{vA1}, {LW + 49152}, v{vL16}")
        g.a_addr(layer)
        g.e("\n".join(g.a_saddr(layer)))
        g.e(f"s_lshl_b32 s{t4}, s{sHP}, 10\ns_add_u32 s{t4}, s{t4}, {WXQ}\ns_lshl_b32 s{t6}, s{sW}, 8\ns_add_u32 s{t6}, s{t6}, {48 * 1024}")
        g.e(f"v_and_b32 v{vt0}, 60, v{vL4}\ns_lshl_b32 s{t2}, s{sT}, 7\ns_add_u32 s{t2}, s{t2}, {FE}")
        pre, xrest, stl = g.load_x_stats(layer - 1, 1, aX(layer - 1, 1), X, SB, cfg.up_a)
        seg = {"q": 0, "k": 1, "v": 2}
        LAG = cfg.lag_a
        seq = []
        for ks in range(32):
            if cfg.lag_end:
                seq += [("k", ks), ("v", ks)] + ([("q", ks)] if ks < 32 - LAG else [])
            else:
                seq += [("k", ks), ("v", ks)] + ([("q", ks - LAG)] if ks >= LAG else [])
        nmain = len(seq)
        seq += [("q", ks) for ks in range(32 - LAG, 32)]

        def wread(f):
            n, ks = seq[f]
            off = ((ks % 16) * 3 + seg[n]) * 1024
            g.ds(f"ds_read_b128 {ar(WB + 4 * (f % 8), 4)}, v{vA0 if ks < 16 else vA1} offset:{off}", ("w", f))
        LEAD = 7
        for f in range(LEAD):
            wread(f)
        g.poll(vt0, t2, layer, True)
        g.stamp(f"A{layer}go")
        pre()

        def axld(n):
            g.ld(vr(g.A_AX[n], 4), vL16, sWS, t4, 0, tag="ax")
            g.e(f"s_add_u32 s{t4}, s{t4}, 16384")
        xrest = deque(xrest)
        mem = deque(stl + [lambda n=n: axld(n) for n in "qkv"])
        if "A" in cfg.touch:
            xrest.extend([lambda: g.e(f"v_and_b32 v254, 0x3c0, v{vL16}\nv_lshlrev_b32 v254, 1, v254")] + g.touch_ops([], t9, 1, 254, 255))
        side = deque()
        for f, (n, ks) in enumerate(seq):
            if f == nmain:
                g.stamp(f"Z{layer}:Amain")
                g.take(side, 999)
                g.vwait("ax")
                for m in "kv":
                    g.a_mfma(m, vr(g.A_AX[m], 4), vr(g.A_BX, 4), False)
                side.extend([None] * 8 + g.a_epi("k") + g.a_epi("v"))
            if n == "k":
                g.vwait(("x", ks))
                if ks == 0:
                    g.stamp(f"Z{layer}:Afirst")
            if f % 4 == 0:
                g.lwait(("w", min(f + 3, 95)))
            g.a_mfma(n, ar(WB + 4 * (f % 8), 4), vr(X + 4 * ks, 4), ks == 0)
            if f + LEAD < 96:
                wread(f + LEAD)
            if (n == "k" or (n == "q" and ks < cfg.x2_a)) and xrest:
                xrest.popleft()()
            elif n == "v" and ks >= cfg.st_a and mem:
                mem.popleft()()
                if not mem:
                    side.extend([None] * 30 + g.stats_ops(SB, g.A_RS, g.A_CD, g.A_BX) + g.a_rc_ops(t6))
            g.take(side, 3 if f < nmain else 7)
            if n == "k" and ks % 8 == 7:
                g.stamp(f"A{layer}_{ks}")
        g.a_mfma("q", vr(g.A_AX["q"], 4), vr(g.A_BX, 4), False)
        g.e("s_barrier")
        g.stamp(f"A{layer}_m")
        side.extend(g.a_epi("q"))
        g.take(side, 999)
        g.stamp(f"A{layer}st")

    RL_SRD = ((28, 32), (80, 16))
    RL_DO = (64, 70)
    RL_XO = (62, 63)
    RL_V = 244
    RL_LDS = 131072

    def relayout_setup(self, ui):
        g = self
        passes = g.cfg.passes
        RA, RB = g.RL_SRD[ui]
        sDO, sDS = g.RL_DO[ui], g.RL_DO[ui] + 1
        sXO = g.RL_XO[ui]
        u, sRS, sSO, sMH, sWO = t7, t9, t10, t8, t11
        a0, a1, a2, a3 = t2, t3, t4, t5
        vS, vT = g.RL_V + ui, g.RL_V + 2 + ui
        L = [g.label("rl") for _ in range(5)]
        if ui == 0:
            g.e(f"s_mov_b32 s{u}, s2\ns_cmp_ge_u32 s{u}, 224\ns_cbranch_scc1 {L[0]}")
            g.srd(RA, pW1, 512 * 3584)
            g.srd(RB, pW3, 512 * 3584)
            g.e(f"""
            s_mov_b32 s{sRS}, 3584
            s_lshr_b32 s{a0}, s{u}, 3
            s_and_b32 s{a1}, s{u}, 7
            s_lshl_b32 s{a2}, s{a1}, 2
            s_add_u32 s{a2}, s{a2}, s{sW}
            s_mul_i32 s{sSO}, s{a2}, {16 * 3584}
            s_lshl_b32 s{a2}, s{a0}, 7
            s_add_u32 s{sSO}, s{sSO}, s{a2}
            s_lshl_b32 s{a0}, s{a0}, 2
            s_add_u32 s{a0}, s{a0}, s{sW}
            s_lshl_b32 s{sXO}, s{a0}, 10
            s_add_u32 s{sXO}, s{sXO}, {WX13}
            s_mul_i32 s{a2}, s{a0}, 9363
            s_lshr_b32 s{a2}, s{a2}, 16
            s_mul_i32 s{a3}, s{a2}, 7
            s_sub_u32 s{a3}, s{a0}, s{a3}
            s_mul_i32 s{sDO}, s{a2}, 229376
            s_add_u32 s{sDO}, s{sDO}, {W13}
            s_mov_b32 s{a2}, {passes[0][0]}
            s_mov_b32 s{sDS}, {(passes[0][1] - passes[0][0]) * 1024}
            """)
            for a, b in passes[1:]:
                g.e(f"s_cmp_ge_u32 s{a3}, {a}\ns_cselect_b32 s{a2}, {a}, s{a2}\ns_cselect_b32 s{sDS}, {(b - a) * 1024}, s{sDS}")
            g.e(f"""
            s_mul_i32 s{a0}, s{a2}, 31
            s_add_u32 s{a0}, s{a0}, s{a3}
            s_lshl_b32 s{a0}, s{a0}, 10
            s_add_u32 s{sDO}, s{sDO}, s{a0}
            s_mov_b32 s{sMH}, 8192
            s_lshl_b32 s{sWO}, s{sW}, 5
            """)
            other, nks, wdst, first, ptr = "wo", 32, WO, 224, pWO
        else:
            if g.cfg.spare:
                g.e(f"s_mov_b32 s{a0}, s{sC}")
                for v in g.cfg.spare:
                    g.e(f"s_cmp_gt_u32 s{sC}, {v}\ns_subb_u32 s{a0}, s{a0}, 0")
                g.e(f"s_lshl_b32 s{u}, s{a0}, 3\ns_add_u32 s{u}, s{u}, s{sX}\ns_min_u32 s{u}, s{u}, 207\ns_cmp_lt_u32 s{u}, 112\ns_cbranch_scc1 {L[0]}")
            else:
                g.e(f"s_sub_u32 s{a0}, s2, 208\ns_cmp_ge_u32 s2, 208\ns_cselect_b32 s{u}, s{a0}, s2\ns_cmp_lt_u32 s{u}, 112\ns_cbranch_scc1 {L[0]}")
            g.srd(RA, pWQ, 512 * 3072)
            g.srd(RB, pWQ, 512 * 3072 - 128)
            g.e(f"""
            s_add_u32 s{RB}, s{RB}, 128
            s_addc_u32 s{RB + 1}, s{RB + 1}, 0
            s_mov_b32 s{sRS}, 3072
            s_sub_u32 s{a0}, s{u}, 112
            s_and_b32 s{a1}, s{a0}, 7
            s_lshr_b32 s{a0}, s{a0}, 3
            s_lshl_b32 s{a2}, s{a1}, 2
            s_add_u32 s{a2}, s{a2}, s{sW}
            s_mul_i32 s{sSO}, s{a2}, {16 * 3072}
            s_lshl_b32 s{a2}, s{a0}, 8
            s_add_u32 s{sSO}, s{sSO}, s{a2}
            s_lshl_b32 s{a0}, s{a0}, 2
            s_add_u32 s{a0}, s{a0}, s{sW}
            s_lshl_b32 s{sXO}, s{a0}, 10
            s_add_u32 s{sXO}, s{sXO}, {WXQ}
            s_and_b32 s{a2}, s{a0}, 15
            s_mul_i32 s{sDO}, s{a2}, {32 * 3072}
            s_lshr_b32 s{a2}, s{a0}, 4
            s_lshl_b32 s{a2}, s{a2}, 10
            s_add_u32 s{sDO}, s{sDO}, s{a2}
            s_add_u32 s{sDO}, s{sDO}, {WQ}
            s_mov_b32 s{sDS}, 3072
            s_mov_b32 s{sMH}, 32
            s_lshr_b32 s{sWO}, s{sW}, 1
            s_lshl_b32 s{sWO}, s{sWO}, 13
            s_and_b32 s{a2}, s{sW}, 1
            s_lshl_b32 s{a2}, s{a2}, 6
            s_add_u32 s{sWO}, s{sWO}, s{a2}
            """)
            other, nks, wdst, first, ptr = "w2", 112, W2, 0, pW2
        g.e(f"""
        s_lshl_b32 s{a0}, s{sDS}, 2
        s_mul_i32 s{a0}, s{a0}, s{a1}
        s_add_u32 s{sDO}, s{sDO}, s{a0}
        s_and_b32 s{a0}, s{a1}, 4
        s_lshl_b32 s{a0}, s{a0}, 7
        s_add_u32 s{sXO}, s{sXO}, s{a0}
        s_and_b32 s{a0}, s{a1}, 3
        s_lshl_b32 s{a0}, s{a0}, 2
        s_add_u32 s{sXO}, s{sXO}, s{a0}
        s_mov_b32 s{a0}, 0
        s_mov_b32 s{a1}, 0
        s_branch {L[1]}
        {L[0]}:
        """)
        g.srd(RA, ptr, nks * 16 * 1024)
        g.srd(RB, ptr, nks * 16 * 1024 - 512)
        g.e(f"""
        s_add_u32 s{RB}, s{RB}, 512
        s_addc_u32 s{RB + 1}, s{RB + 1}, 0
        s_mov_b32 s{sRS}, 1024
        s_sub_u32 s{a0}, s{u}, {first}
        s_lshl_b32 s{sSO}, s{a0}, 14
        s_lshr_b32 s{a1}, s{sW}, 1
        s_lshl_b32 s{sWO}, s{a1}, 13
        s_mul_i32 s{a1}, s{a1}, {4 * nks}
        s_add_u32 s{a1}, s{a1}, s{a0}
        s_lshl_b32 s{sDO}, s{a1}, 11
        s_and_b32 s{a1}, s{sW}, 1
        s_lshl_b32 s{a2}, s{a1}, 10
        s_add_u32 s{sDO}, s{sDO}, s{a2}
        s_add_u32 s{sDO}, s{sDO}, {wdst}
        s_mov_b32 s{sDS}, {nks * 2048}
        s_lshl_b32 s{a2}, s{a1}, 6
        s_add_u32 s{sWO}, s{sWO}, s{a2}
        s_mov_b32 s{sMH}, 32
        s_lshl_b32 s{sXO}, s{u}, 2
        s_add_u32 s{sXO}, s{sXO}, s{sW}
        s_and_b32 s{sXO}, s{sXO}, 63
        s_lshl_b32 s{sXO}, s{sXO}, 10
        s_add_u32 s{sXO}, s{sXO}, {WXD}
        s_mov_b32 s{a0}, 3
        s_mov_b32 s{a1}, s{sW}
        {L[1]}:
        v_lshrrev_b32 v{vS}, 7, v{vL16}
        v_and_b32 v{vt2}, s{a0}, v{vS}
        v_xor_b32 v{vt2}, s{a1}, v{vt2}
        v_mul_lo_u32 v{vS}, v{vS}, s{sRS}
        v_lshl_add_u32 v{vS}, v{vt2}, 7, v{vS}
        v_and_b32 v{vT}, 0x70, v{vL16}
        v_add3_u32 v{vS}, v{vS}, v{vT}, s{sSO}
        s_lshl_b32 s{4 + ui}, s{sRS}, 3
        s_add_u32 s{sWO}, s{sWO}, {g.RL_LDS + ui * 16384}
        v_bfe_u32 v{vT}, v{vL16}, 8, 1
        v_mul_lo_u32 v{vT}, v{vT}, s{sMH}
        v_add_u32 v{vT}, s{sWO}, v{vT}
        v_lshrrev_b32 v{vt2}, 9, v{vL16}
        v_lshl_add_u32 v{vT}, v{vt2}, 10, v{vT}
        v_bfe_u32 v{vt2}, v{vL16}, 6, 2
        v_lshl_add_u32 v{vT}, v{vt2}, 7, v{vT}
        v_and_b32 v{vt2}, s{a0}, v{vt2}
        v_lshl_add_u32 v{vT}, v{vt2}, 11, v{vT}
        v_and_b32 v{vt2}, 16, v{vL16}
        v_add_u32 v{vT}, v{vt2}, v{vT}
        v_bfe_u32 v{vt2}, v{vL16}, 5, 1
        v_lshl_add_u32 v{vT}, v{vt2}, 3, v{vT}
        v_add_u32 v{g.RL_V + 4 + ui}, s{4 + ui}, v{vS}
        """)
        if ui == 1 and g.cfg.spare:
            mask = sum(1 << v for v in g.cfg.spare)
            g.e(f"""
            s_lshr_b32 s{a0}, {mask:#x}, s{sC}
            s_and_b32 s{a0}, s{a0}, 1
            s_cselect_b32 s{RA + 2}, 0, s{RA + 2}
            s_cselect_b32 s{RB + 2}, 0, s{RB + 2}
            s_cselect_b32 s{sDO}, {WS_BYTES:#x}, s{sDO}
            s_cselect_b32 s{sXO}, {WS_BYTES:#x}, s{sXO}
            """)

    def relayout_dma_ops(self, regs=None):
        g = self
        ops = []
        for ui in range(2):
            for i in range(4):
                def op(ui=ui, i=i):
                    g.e(f"s_lshl_b32 s{t5}, s{sW}, 11\ns_add_u32 s{t5}, s{t5}, {g.RL_LDS + ui * 16384 + (i // 2) * 8192 + (i % 2) * 1024}")
                    g.e(f"s_mov_b32 m0, s{t5}\ns_nop 0")
                    g.m0_owner = None
                    g.dma(regs[i % 2] if regs else g.RL_V + ui + 4 * (i % 2), g.RL_SRD[ui][i // 2], None, 0, mods="", tag=("rl", ui))
                ops.append(op)
        return ops

    def relayout_out_ops(self, d=244, CS=224, ONE=240, vS=(vt2, vt3), ta=vt0):
        g = self
        ops = []
        for ui in range(2):
            sDO, sDS = g.RL_DO[ui], g.RL_DO[ui] + 1
            for i in range(4):
                def rd(ui=ui, i=i):
                    if i:
                        g.e(f"v_xor_b32 v{vS[ui]}, {(i ^ (i - 1)) << 11}, v{vS[ui]}")
                    g.ds(f"ds_read_b64_tr_b16 {vr(d, 2)}, v{vS[ui]}", ("rl", i))
                    g.ds(f"ds_read_b64_tr_b16 {vr(d + 2, 2)}, v{vS[ui]} offset:512", ("rl", i))

                def wr(i=i, sDO=sDO, sDS=sDS):
                    g.lwait(("rl", i))
                    g.st(vr(d, 4), vL16, sWS, sDO, 0, "sc1", tag="rlst")
                    g.e(f"s_add_u32 s{sDO}, s{sDO}, s{sDS}")

                def cs(i=i):
                    g.e(f"v_mfma_f32_32x32x16_bf16 {ar(CS, 16)}, {ar(ONE, 4)}, {vr(d, 4)}, {ar(CS, 16) if i else '0'}")
                ops += [(rd, "A"), (wr, "C"), (cs, "D")]

            def xo(ui=ui):
                g.e(f"""
                v_accvgpr_read_b32 v254, a{CS}
                v_and_b32 v{ta}, 0x1f0, v{vL16}
                v_cvt_pk_bf16_f32 v255, v254, v254
                v_lshlrev_b32 v255, 16, v255
                v_sub_f32 v255, v254, v255
                v_cvt_pk_bf16_f32 v255, v254, v255
                """)
                g.st(vr(255), ta, sWS, g.RL_XO[ui], 0, "sc1", tag="rlst", w=1)
            ops.append((xo, "X"))
        return ops

    def ew_ops(self, lo, hi, ts):
        g = self
        a, b = ts
        ops = []

        def setup():
            g.e(f"s_mul_i32 s{a}, s{sCB}, {112 * 2048}\ns_mul_i32 s{b}, s{sW}, {28 * 2048}")
        def setup2():
            g.e(f"s_add_u32 s{a}, s{a}, s{b}\ns_add_u32 s{a}, s{a}, {W2 + (lo // 4) * 4096}")
        def setup3():
            g.e(f"s_lshl_b32 s{b}, s{sNA}, 10\ns_add_u32 s{a}, s{a}, s{b}")
        def setup4():
            g.e(f"s_xor_b32 s{b}, s{a}, 1024")
        ops += [setup, setup2, setup3, setup4]
        assert lo % 4 == 0
        for idx in range(lo, hi):
            def op(idx=idx):
                i, n = divmod(idx, 2)
                if idx > lo and idx % 4 == 0:
                    g.e(f"s_add_u32 s{a}, s{a}, 4096\ns_add_u32 s{b}, s{b}, 4096")
                g.ld(ar(4 * idx, 4), vL16, sWS, (a, b)[n], (i % 2) * 2048, mods=g.cfg.wmods, tag="ew")
            ops.append(op)
        return ops

    def phaseB(self, layer):
        g = self
        cfg = g.cfg
        O, Q, S, KV = 16, 144, 176, 208
        vV = 252
        CW = [R("a", 224 + 4 * i) for i in range(8)] + [R("v", 220 + 4 * i) for i in range(8)]
        if cfg.b_tail:
            CW[11:] = [R("v", b) for b in (244, 248, 144, 148, 152)]
        SBo, SBl = 104 * 1024, 152 * 1024
        sKV, sG = 6, 7
        g.e(f"v_mov_b32 v{vt0}, 0x3f803f80\ns_mov_b32 s{t0}, 0x00110000\ns_mov_b32 s{t1}, 0x00110000")
        if layer == 0 and not cfg.rl_in_a:
            for i in range(4):
                g.e(f"v_accvgpr_write_b32 a{240 + i}, v{vt0}")
            g.e(f"v_mov_b32 v{vt2}, v{g.RL_V + 2}\nv_mov_b32 v{vt3}, v{g.RL_V + 3}")
        g.e(f"v_cndmask_b32 v{vIdx}, 0, v{vt0}, s[{t0}:{t1}]")
        for r in range(4, 12):
            g.e(f"v_mov_b32 v{KV + r}, v{vIdx}")

        def late_setup():
            for e in range(1, 3):
                for r in range(4, 12):
                    g.e(f"v_mov_b32 v{KV + 12 * e + r}, v{vIdx}")
            g.e(f"v_mov_b32 v{vIdx}, 0xdddddddd")
            for j in range(8):
                for r in range(9):
                    g.e(f"v_mov_b32 v{O + 16 * j + r}, 0")
            g.e(f"""
            v_bfe_u32 v{vt0}, v{vL16}, 5, 3
            v_add_u32 v{vt0}, s{sX}, v{vt0}
            v_and_b32 v{vt0}, 7, v{vt0}
            v_lshlrev_b32 v253, 7, v{vt0}
            v_bfe_u32 v{vt0}, v{vL16}, 4, 1
            v_lshl_add_u32 v253, v{vt0}, 2, v253
            """)
            if layer == 0 and cfg.rl_split:
                g.e(f"v_mov_b32 v{vt0}, 0x3f803f80")
                for i in range(4):
                    g.e(f"v_accvgpr_write_b32 a{240 + i}, v{vt0}")
                g.e(f"v_mov_b32 v{vt0}, v{g.RL_V + 3}\nv_mov_b32 v{vt2}, v{g.RL_V + 1}\nv_mov_b32 v{vt3}, v{g.RL_V + 5}")
        g.e(f"""
        v_lshrrev_b32 v{vt0}, 9, v{vL16}
        v_lshlrev_b32 v{vV}, 8, v{vt0}
        v_and_b32 v{vt0}, 0xf0, v{vL16}
        v_add_u32 v{vV}, v{vV}, v{vt0}
        v_and_b32 v{vt0}, 28, v{vL4}
        s_lshl_b32 s{t0}, s{sX}, 4
        s_lshr_b32 s{t1}, s{sC}, 1
        s_add_u32 s{t0}, s{t0}, s{t1}
        s_lshl_b32 s{t0}, s{t0}, 7
        s_add_u32 s{t0}, s{t0}, {FA_L}
        s_lshl_b32 s{sG}, s{t1}, 10
        s_lshl_b32 s{t2}, s{sW}, 3
        s_add_u32 s{sG}, s{sG}, s{t2}
        s_add_u32 s{sG}, s{sG}, {FA_G}
        s_lshl_b32 s{t2}, s{sW}, 1
        s_lshl_b32 s{sKV}, s{sC}, 6
        s_add_u32 s{sKV}, s{sKV}, s{t2}
        s_lshl_b32 s{sKV}, s{sKV}, 11
        s_add_u32 s{sKV}, s{sKV}, {aKV(layer)}
        s_lshl_b32 s{t3}, s{sX}, 8
        s_add_u32 s{t3}, s{t3}, s{sC}
        s_lshl_b32 s{t3}, s{t3}, 10
        s_add_u32 s{t3}, s{t3}, {aQ(layer)}
        """)
        for j in range(8):
            g.e(f"s_add_u32 s{t4 + j}, s{t2}, {2 + j}\ns_and_b32 s{t4 + j}, s{t4 + j}, 7\ns_lshl_b32 s{t4 + j}, s{t4 + j}, 15\ns_add_u32 s{t4 + j}, s{t4 + j}, s{t3}")
        g.e(f"s_lshl_b32 s3, s{sX}, 14\ns_add_u32 s3, s3, s{sKV}")
        g.vwait0()
        g.stamp(f"B{layer}:ack")
        if layer == 0 and cfg.b0_g:
            g.e(f"s_and_b32 s{t0}, s{sG}, 0xfffffc00\ns_lshl_b32 s4, s{sX}, 7\ns_add_u32 s{t0}, s{t0}, s4")
        else:
            g.signal(0, layer + 1, layer > 0 or cfg.xcc_early)
        if cfg.b_opt == 2 and layer > 0:
            g.poll(vt0, t0, layer + 1, True)
        else:
            l3, l0 = g.label("b3"), g.label("b0")
            g.e(f"s_barrier\ns_cmp_eq_u32 s{sW}, 3\ns_cbranch_scc0 {l3}")
            g.e(f"v_readlane_b32 s{t1}, v{vFl}, 1\nv_mov_b32 v{vt1}, {layer + 1}\ns_mov_b64 exec, 15\ns_sub_u32 s{t1}, s{t1}, 12\ns_nop 1")
            g.e(f"buffer_store_dword v{vt1}, v{vL4}, {sr(sWS, 4)}, s{t1} offen sc1\ns_mov_b64 exec, -1\n{l3}:")
            if layer == 0 and cfg.rl_in_a:
                l2 = g.label("b2")
                g.e(f"s_cmp_eq_u32 s{sW}, 2\ns_cbranch_scc0 {l2}\nv_mov_b32 v{vt1}, 1\ns_mov_b64 exec, 64")
                g.e(f"buffer_store_dword v{vt1}, v{vFl}, {sr(sWS, 4)}, 0 offen sc1\ns_mov_b64 exec, -1\n{l2}:")
            if cfg.kv_touch:
                lt = g.label("bt")
                g.e(f"""
                s_sub_u32 s4, s{sW}, 1
                s_cmp_lt_u32 s4, 2
                s_cbranch_scc0 {lt}
                s_lshl_b32 s5, s{sHP}, 1
                s_add_u32 s4, s4, s5
                s_lshl_b32 s4, s4, 6
                s_and_b32 s5, s{sT}, 0xfc
                s_add_u32 s4, s4, s5
                s_lshl_b32 s4, s4, 11
                s_add_u32 s4, s4, {aKV(layer)}
                v_lshlrev_b32 v254, 3, v{vL16}
                buffer_load_dword v255, v254, {sr(sWS, 4)}, s4 offen sc1
                {lt}:
                """)
            g.e(f"s_cmp_eq_u32 s{sW}, 0\ns_cbranch_scc0 {l0}")
            keep = list(g.vmq)
            p2, cfg.poll2 = cfg.poll2, 0
            g.poll(vt0, t0, layer + 1, False, sleep=0 if layer or cfg.xcc_early else cfg.b0_sleep)
            cfg.poll2 = p2
            g.vmq = keep
            g.e(f"{l0}:\ns_barrier")
            if layer > 0:
                g.dual("", "buffer_inv sc1\ns_waitcnt vmcnt(0)", 0)
        g.stamp(f"B{layer}go")

        def kv_addr1(kt):
            g.e(f"s_add_u32 s3, s{sX}, {kt // 2}\ns_and_b32 s3, s3, 7")

        def kv_addr2(kt):
            g.e(f"s_lshl_b32 s3, s3, 14\ns_add_u32 s3, s3, s{sKV}")

        def ldK(kt):
            g.ld(vr(KV + 12 * (kt % 3), 4), vL16, sWS, 3, (kt % 2) * 2048, mods=cfg.kvmods, tag=("K", kt))

        def ldV(kt, halves=(0, 1)):
            e = KV + 12 * (kt % 3)
            g.e(f"s_mov_b64 exec, s[{sVM}:{sVM + 1}]")
            for h in halves:
                g.ld(vr(e + 4 + 4 * h, 4), vV, sWS, 3, (kt % 2) * 2048 + 1024 + 512 * h, mods=cfg.kvmods, tag=("V", kt))
            g.e("s_mov_b64 exec, -1")

        def ldQ(j):
            g.ld(vr(Q + 4 * j, 4), vL16, sWS, t4 + j, 0, tag=("Q", j))
        ldK(0)
        ldQ(0)
        ldQ(1)
        ldV(0)
        for j in range(2, cfg.q_up):
            ldQ(j)
        if cfg.b_opt == 2 and layer > 0:
            for j in range(cfg.q_up, 8):
                ldQ(j)
            ldK(1)
        late_setup()
        if cfg.b_opt == 2 and layer > 0:
            ldV(1)
            g.signal(1, layer + 1, False)

        gaps = {}

        def at(n, gap, fn):
            gaps.setdefault((n, gap), []).append(fn)

        def place(ops, n0, gap0="A", allowed="AC", step=0):
            pos = 3 * n0 + "ABC".index(gap0)
            for op in ops:
                while "ABC"[pos % 3] not in allowed or (pos // 3, "ABC"[pos % 3]) in gaps:
                    pos += 1
                at(pos // 3, "ABC"[pos % 3], op)
                pos += 1 + step
            return pos // 3 + 1

        def spread(ops, n0, per_tile=3, gapset="ABC"):
            return place(ops, n0, gapset[0], gapset, 0 if per_tile > 1 else 2)

        for j in range(1, 8):
            at(j - 1, "a", lambda j=j: g.vwait(("Q", j)))
        at(0, "B", lambda: g.vwait(("V", 0)))
        for kt in range(1, 16):
            at(112 if kt == 15 and cfg.b_tail else 8 * kt - 1, "A", lambda kt=kt: g.vwait(("V", kt)))
        if not (cfg.b_opt == 2 and layer > 0):
            place([lambda j=j: ldQ(j) for j in range(cfg.q_up, 8)] + [lambda: ldK(1), lambda: ldV(1)], 0, "A", "AC")

        def red_addr(d):
            g.e(f"s_add_u32 s{t0}, s{sW}, {1 + d}\ns_and_b32 s{t0}, s{t0}, 3")
        def red_addr2(d):
            g.e(f"s_mul_i32 s{t0}, s{t0}, 6\ns_add_u32 s{t0}, s{t0}, {2 * d}")
        def red_addr3(d):
            g.e(f"s_lshl_b32 s{t1}, s{t0}, 11\ns_add_u32 s{t1}, s{t1}, {SBo}\nv_add_u32 v{(vt0, vt1)[d % 2]}, s{t1}, v{vL16}")
        def red_addr4(d):
            g.e(f"s_lshl_b32 s{t1}, s{t0}, 8\ns_add_u32 s{t1}, s{t1}, {SBl}\nv_add_u32 v{(vt2, vt3)[d % 2]}, s{t1}, v{vL4}")

        def red_wr(j, part):
            b = O + 16 * j
            s_ = j % 2
            va, vb = (vt0, vt1)[(j // 2) % 2], (vt2, vt3)[(j // 2) % 2]
            if part == 0:
                g.ds(f"ds_write_b128 v{va}, {vr(b, 4)} offset:{s_ * 2048}")
            elif part == 1:
                g.ds(f"ds_write_b128 v{va}, {vr(b + 4, 4)} offset:{s_ * 2048 + 1024}")
            else:
                g.ds(f"ds_write_b32 v{vb}, v{b + 8} offset:{s_ * 256}")
        order = [divmod(n, 8) for n in range(128)]
        if cfg.b_tail:
            order[112:] = [(14 + k, j) for j in range(6) for k in range(2)] + [(14, 6), (14, 7), (15, 6), (15, 7)]
            for j in range(6):
                for part in range(3):
                    at(115 + 2 * j, "ABC"[part], lambda j=j, part=part: red_wr(j, (0, 2, 1)[part]))
            for d, n in enumerate((112, 116, 120)):
                at(n, "B", lambda d=d: red_addr(d))
                at(n, "C", lambda d=d: red_addr2(d))
                at(n + 2, "A", lambda d=d: red_addr3(d))
                at(n + 2, "C", lambda d=d: red_addr4(d))
        else:
            for j in range(6):
                at(121 + j, "D", lambda j=j: red_wr(j, 2))
                at(121 + j, "D", lambda j=j: red_wr(j, 0))
                at(122 + j, "A", lambda j=j: red_wr(j, 1))
            for d, n in enumerate((117, 119, 124)):
                at(n, "B", lambda d=d: red_addr(d))
                at(n, "C", lambda d=d: red_addr2(d))
                at(n + 1, "B", lambda d=d: red_addr3(d))
                at(n + 1, "C", lambda d=d: red_addr4(d))
        PB = 16

        def own_addr():
            g.e(f"""
            s_mul_i32 s{t0}, s{sW}, 6
            s_lshl_b32 s{t1}, s{t0}, 11
            s_add_u32 s{t1}, s{t1}, {SBo}
            v_add_u32 v{vt1}, s{t1}, v{vL16}
            s_lshl_b32 s{t1}, s{t0}, 8
            s_add_u32 s{t1}, s{t1}, {SBl}
            v_add_u32 v{vt3}, s{t1}, v{vL4}
            """)

        def own_bar():
            g.vwait("w13a")
            g.lwait0()
            g.e("s_barrier")

        def own_rd(s_, ds_=(0, 1, 2)):
            for d in ds_:
                b = PB + 10 * (3 * s_ + d)
                g.ds(f"ds_read_b128 {vr(b, 4)}, v{vt1} offset:{(2 * d + s_) * 2048}", ("p", s_))
                g.ds(f"ds_read_b128 {vr(b + 4, 4)}, v{vt1} offset:{(2 * d + s_) * 2048 + 1024}", ("p", s_))
                g.ds(f"ds_read_b32 v{b + 8}, v{vt3} offset:{(2 * d + s_) * 256}", ("p", s_))

        def o_addr():
            g.e(f"""
            s_lshl_b32 s{t0}, s{sX}, 3
            s_lshl_b32 s{t1}, s{sW}, 1
            s_add_u32 s{t0}, s{t0}, s{t1}
            s_lshl_b32 s{t0}, s{t0}, 5
            s_add_u32 s{t0}, s{t0}, s{sC}
            s_lshl_b32 s{t0}, s{t0}, 10
            s_add_u32 s{t0}, s{t0}, {aO(layer)}
            s_add_u32 s{t1}, s{t0}, 32768
            """)
        if cfg.b_tail:
            at(124, "A", own_addr)
            at(124, "C", o_addr)
            at(126, "A", own_bar)
            at(126, "B", lambda: own_rd(0, (0,)))
            at(126, "C", lambda: own_rd(0, (1, 2)))
            at(127, "A", lambda: own_rd(1, (0, 1)))
            at(127, "B", lambda: own_rd(1, (2,)))
        else:
            at(126, "C", own_addr)
            at(127, "B", own_bar)
            at(127, "C", lambda: own_rd(0))
            at(127, "D", lambda: own_rd(1))

        vG, vGd = 253, 249

        def gpoll_ld():
            g.ld(vr(vGd), vG, sWS, sG, 0, tag="gf", w=1)

        def gpoll_snap():
            g.vwait("gf")
            g.e(f"v_cmp_gt_u32 s[{sSN2}:{sSN2 + 1}], {layer + 1}, v{vGd}")

        def gcheck(kt):
            ls, lj, lp = g.label("gslow"), g.label("gjoin"), g.label("gp")
            m = 3 << kt
            g.e(f"s_and_b32 s{sTO}, s{sSN2}, {m}\ns_cbranch_scc1 {ls}\n{lj}:")
            g.tail.append(f"""{ls}:
            s_mov_b32 s{sTO}, {TIMEOUT}
            {lp}:
            buffer_load_dword v{vGd}, v{vG}, {sr(sWS, 4)}, s{sG} offen sc1
            s_sub_u32 s{sTO}, s{sTO}, 1
            s_cbranch_scc1 L_exit
            s_waitcnt vmcnt(0)
            v_cmp_gt_u32 s[{sSN2}:{sSN2 + 1}], {layer + 1}, v{vGd}
            s_nop 1
            s_and_b32 s4, s{sSN2}, {m}
            s_cbranch_scc0 {lj}
            s_sleep {cfg.g_sleep}
            s_branch {lp}""")
        gp = cfg.gp[layer]
        place([gpoll_ld], gp, "C")
        n = place([gpoll_snap, lambda: gcheck(2), lambda: kv_addr1(2), lambda: kv_addr2(2), lambda: ldK(2), lambda: ldV(2)], gp + 3, "B", "ABC")
        for kt in range(3, 16):
            n = max(8 * (kt - 2), n)
            if kt % 2 == 0:
                place([lambda kt=kt: gcheck(kt), lambda kt=kt: kv_addr1(kt), lambda kt=kt: kv_addr2(kt)], n - 2, "A", "AC")
            if cfg.v_split:
                n = place([lambda kt=kt: ldK(kt), lambda kt=kt: ldV(kt, (0,)), lambda kt=kt: ldV(kt, (1,))], n, "A", "AC")
            else:
                n = place([lambda kt=kt: ldK(kt), lambda kt=kt: ldV(kt)], n, "A", "AC")

        def w13base():
            g.e(f"s_mul_i32 s{t11 - 1}, s{sHP}, 229376\ns_add_u32 s{t11 - 1}, s{t11 - 1}, {W13}")
        if layer == 0:
            n = cfg.rl0
            if cfg.rl_in_b:
                def rl_bar():
                    g.vwait(("rl", 1))
                    g.e("s_barrier")
                n = spread(g.relayout_dma_ops(), cfg.rl0, 3, "ABC") + cfg.rl_lat
                at(n - 1, "C", rl_bar)
            if cfg.cold_touch:
                ct = [lambda: g.e(f"v_and_b32 v250, 0x3c0, v{vL16}\nv_lshlrev_b32 v250, 1, v250")]
                xa, sa = g.x_addr(layer, 0, t4, t5)
                groups = [g.touch_ops(xa, t4, 1, 250, 251) + g.touch_ops(sa, t4, 1, 250, 251)]
                if cfg.cold_touch > 1:
                    hh = g.touch_ops(g.h_addr(layer, t4, t5), t4, 4, 250, 251)
                    groups += [hh[:3], hh[3:4], hh[4:5], hh[5:]] if cfg.cold_touch == 3 else [hh[:4], hh[4:]]
                at(cfg.ct0, "A", ct[0])
                for gi, grp in enumerate(groups):
                    spread(grp, cfg.ct0 + 1 + 8 * gi, 3, "ABC")
            place([lambda: g.e(f"v_bfe_u32 v250, v{vL16}, 4, 5\nv_lshlrev_b32 v250, 10, v250"),
                   lambda: g.e(f"v_lshrrev_b32 v251, 9, v{vL16}\nv_lshl_add_u32 v250, v251, 4, v250"),
                   lambda: g.e(f"s_lshl_b32 s{t0}, s{sCB}, 1\ns_add_u32 s{t0}, s{t0}, s{sNA}"),
                   lambda: g.e(f"s_lshl_b32 s{t0}, s{t0}, 6\ns_lshl_b32 s{t1}, s{sTA}, 15"),
                   lambda: g.e(f"s_add_u32 s{t0}, s{t0}, s{t1}"),
                   lambda: g.ld(vr(vRes, 4), 250, sXIN, t0, 0, mods="", tag="res"),
                   lambda: g.ld(vr(vRes + 4, 4), 250, sXIN, t0, 32, mods="", tag="res")], 9, "A", "AC")
            if not cfg.xcc_early:
                at(8, "A", g.xcc_send)
                at(100, "B", g.xcc_load)
                at(105, "B", g.xcc_check)
            if not cfg.rl_in_a:
                for op, gap in g.relayout_out_ops():
                    if gap == "X":
                        at(n, "C", op)
                        n += 1
                    else:
                        at(n, gap, op)
                        n += gap == "D"

                def rl_sig():
                    g.vwait("rlst")
                    g.e("s_barrier")
                    L = g.label("rls")
                    g.e(f"v_mov_b32 v{vt1}, 1\ns_cmp_eq_u32 s{sW}, 0\ns_cbranch_scc0 {L}\ns_mov_b64 exec, 64")
                    g.e(f"buffer_store_dword v{vt1}, v{vFl}, {sr(sWS, 4)}, 0 offen sc1\ns_mov_b64 exec, -1\n{L}:")
                    g.stamp("R_sig")
                n += cfg.rl_ack
                at(n, "A", rl_sig)

            def rl_ld():
                g.e(f"s_mov_b32 s{t10}, {FR}\nv_lshlrev_b32 v248, 3, v{vL16}")
                g.ld(vr(244, 4), 248, sWS, t10, 0, tag="rf")

            def rl_check():
                g.stamp("R_pre")
                g.late_check("rf", f"buffer_load_dwordx4 v[244:247], v248, {sr(sWS, 4)}, s{t10} offen sc1",
                             "v_min_u32 v244, v244, v245\nv_min3_u32 v244, v244, v246, v247\nv_cmp_gt_u32 vcc, 1, v244", cfg.rl_sleep)
                g.stamp("R_chk")
            n = cfg.rl_ld if cfg.rl_in_a else n + cfg.rl_gap
            at(n, "A", rl_ld)
            n += 5
            at(n, "A", rl_check)
            n0 = n + 1
            if cfg.rl_split:
                place(g.relayout_dma_ops((vt2, vt3))[4:], cfg.rs_dma, "A", "AC")

                def rl_bar():
                    g.vwait(("rl", 1))
                    g.e("s_barrier")
                n = max(cfg.rs_out, n0)
                at(n - 1, "C", rl_bar)
                for op, gap in g.relayout_out_ops(244, 224, 240, (vt0, vt0), 250)[13:]:
                    if gap == "X":
                        at(n, "C", op)
                        n += 1
                    else:
                        at(n, gap, op)
                        n += gap == "D"

                def rl_sig2():
                    g.vwait("rlst")
                    g.e("s_barrier")
                    L = g.label("rls")
                    g.e(f"v_mov_b32 v{vt1}, 2\ns_cmp_eq_u32 s{sW}, 0\ns_cbranch_scc0 {L}\ns_mov_b64 exec, 64")
                    g.e(f"buffer_store_dword v{vt1}, v{vFl}, {sr(sWS, 4)}, 0 offen sc1\ns_mov_b64 exec, -1\n{L}:")
                at(n + cfg.rl_ack, "A", rl_sig2)

                def rl_ld2():
                    g.e(f"s_mov_b32 s{t7}, {FR}")
                    g.ld(vr(244, 4), 248, sWS, t7, 0, tag="rf2")

                def rl_check2():
                    g.late_check("rf2", f"buffer_load_dwordx4 v[244:247], v248, {sr(sWS, 4)}, s{t7} offen sc1",
                                 "v_min_u32 v244, v244, v245\nv_min3_u32 v244, v244, v246, v247\nv_cmp_gt_u32 vcc, 2, v244", cfg.rl_sleep)
        else:
            n0 = 10
        at(n0, "A", w13base)

        def costed(ops, nsetup, c):
            return [(op, 0.0) for op in ops[:nsetup]] + [(op, 0.0 if isinstance(op, SOp) else c) for op in ops[nsetup:]]
        pops = costed(g.dma_ops(0, 26, t11 - 1, 0, "w13a", (t8, t9)), 2, 0.5)
        if layer == 0 and cfg.rl_split:
            pops += [(rl_ld2, 2.0), (rl_check2, 0.0)]
        if layer == 0 and cfg.ew_in_b:
            pops += costed(g.ew_ops(0, cfg.ew_in_b, (t8, t9)), 4, 0.25)
        p16 = lambda: g.e(f"v_and_b32 v254, 0x3c0, v{vL16}\nv_lshlrev_b32 v254, 1, v254")
        pops.append((p16, 0.0))
        npf = cfg.pf_w13[layer]
        if npf:
            pa = [f"s_lshr_b32 s{t4}, s{sC}, 4\ns_lshl_b32 s{t4}, s{t4}, 2", f"s_add_u32 s{t4}, s{t4}, s{sW}\ns_mul_i32 s{t4}, s{t4}, {npf * 2048}",
                  f"s_add_u32 s{t4}, s{t4}, s{t11 - 1}\ns_add_u32 s{t4}, s{t4}, {104 * 1024}"]
            pops += costed(g.touch_ops(pa, t4, npf, 254, 255), 3, 2.0)
        pa = [f"s_mul_i32 s{t4}, s{sHP}, 7168\ns_lshl_b32 s{t5}, s{sW}, 11", f"s_add_u32 s{t4}, s{t4}, s{t5}\ns_add_u32 s{t4}, s{t4}, {WX13}"]
        pops += costed(g.touch_ops(pa, t4, 1, 254, 255), 2, 1.0)
        if "B" in cfg.touch:
            xa, sa = g.x_addr(layer, 0, t4, t5)
            oa = [f"s_lshl_b32 s{t4}, s{sX}, 2\ns_add_u32 s{t4}, s{t4}, s{sW}", f"s_lshl_b32 s{t4}, s{t4}, 6\ns_add_u32 s{t4}, s{t4}, s{sC}",
                  f"s_lshl_b32 s{t4}, s{t4}, 10\ns_add_u32 s{t4}, s{t4}, {aO(layer)}"]
            if "H" in cfg.touch and cfg.h_in_b[layer]:
                pops += costed(g.touch_ops(g.h_addr(layer, t4, t5), t4, 4, 254, 255), 2, 1.75)
            pops += costed(g.touch_ops(xa, t4, 1, 254, 255), 3, 2.0) + costed(g.touch_ops(sa, t4, 1, 254, 255), 3, 0.3)
            pops += costed(g.touch_ops(oa, t4, 1, 254, 255), 3, 1.0)
            pops += costed(g.touch_ops([f"s_add_u32 s{t4}, s{t4}, 32768"], t4, 1, 254, 255), 1, 1.0)

        cws = [f"s_lshl_b32 s{t8}, s{sCB}, 16\ns_lshl_b32 s{t9}, s{sW}, 14", f"s_add_u32 s{t8}, s{t8}, s{t9}\ns_lshl_b32 s{t9}, s{sNA}, 10",
               f"s_add_u32 s{t8}, s{t8}, s{t9}\ns_add_u32 s{t8}, s{t8}, {WO}", f"s_xor_b32 s{t9}, s{t8}, 1024"]
        cw = []
        for idx in range(16):
            def op(idx=idx):
                i, n_ = divmod(idx, 2)
                if idx and idx % 4 == 0:
                    g.e(f"s_add_u32 s{t8}, s{t8}, 4096\ns_add_u32 s{t9}, s{t9}, 4096")
                g.ld(CW[idx](0, 4), vL16, sWS, (t8, t9)[n_], (i % 2) * 2048, mods=g.cfg.wmods, tag="cw")
            cw.append(op)
        pops += costed([lambda t=t: g.e(t) for t in cws] + cw[:8], 4, 0.25)
        if "n" in cfg.dbg and layer == 1:
            pops = [(op, c) for op, c in pops if c == 0.0]
        if cfg.keep is not None and layer == 1:
            pops = [(op if c == 0.0 or c in cfg.keep else (lambda: None), c) for op, c in pops]
        tot = sum(c + 0.05 for _, c in pops)
        span = cfg.bg_end - (n0 + 1)
        acc, nxt = 0.0, 0
        for op, c in pops:
            pos = max(3 * (n0 + 1) + int(3 * acc / tot * span), nxt)
            allowed = "AC" if cfg.bg_ac and layer else "ABC"
            while "ABC"[pos % 3] not in allowed or (pos // 3, "ABC"[pos % 3]) in gaps:
                pos += 1
            at(pos // 3, "ABC"[pos % 3], op)
            nxt = pos + 1
            acc += c + 0.05
        assert nxt // 3 < (113 if cfg.b_tail else 116), (n0, nxt)
        if cfg.b_tail:
            n = place(cw[8:13], 113, "A", "ABC")
            place(cw[13:], max(n, 118), "A", "ABC")
        else:
            place(cw[8:11], 116, "A", "AC")
            place(cw[11:], 121, "B", "BC")

        for n_, skip, nblk in cfg.ct_b:
            place([lambda skip=skip, nblk=nblk: g.code_touch(skip, nblk, vt2, 255)], n_, "A", "AC")

        def run(n, gap):
            for fn in gaps.pop((n, gap), []):
                if "k" in cfg.dbg and layer == 1 and 16 <= n < 112:
                    continue
                fn()

        def qk(n):
            kt, j = order[n]
            g.e(f"v_mfma_f32_32x32x16_bf16 {vr(S + 16 * (n % 2), 16)}, {vr(KV + 12 * (kt % 3), 4)}, {vr(Q + 4 * j, 4)}, 0")

        def pv(n, half):
            kt, j = order[n]
            g.e(f"v_smfmac_f32_32x32x32_bf16 {vr(O + 16 * j, 16)}, {vr(KV + 12 * (kt % 3) + 4 + 4 * half, 4)}, {vr(S + 16 * (n % 2) + 8 * half, 8)}, v{vIdx}")

        g.stamp(f"B{layer}:ld")
        g.vwait(("Q", 0))
        g.stamp(f"B{layer}:q0")
        qk(0)
        for n in range(128):
            if cfg.b_align and n % cfg.b_align == 0:
                g.e(".p2align 3, , 4" if False else "")
            sb = S + 16 * (n % 2)
            ex = [f"v_exp_f32 v{sb + i}, v{sb + i}" for i in range(16)]
            g.e("\n".join(ex[0:2]))
            if n:
                pv(n - 1, 1)
            run(n, "A")
            run(n, "a")
            g.e("\n".join(ex[2:5]))
            if n < 127:
                qk(n + 1)
            run(n, "B")
            g.e("\n".join(ex[5:10]))
            pv(n, 0)
            run(n, "C")
            g.e("\n".join(ex[10:16]))
            run(n, "D")
            if n % 8 == 7:
                g.stamp(f"B{layer}_{n // 8}")
            if n in (0, 2, 5, 7, 15, 119, 123, 127):
                g.stamp(f"B{layer}:t{n}")
        assert not gaps, gaps.keys()
        pv(127, 1)
        if not cfg.b_tail:
            o_addr()
        for s_ in range(2):
            ob = O + 16 * (6 + s_)
            g.lwait(("p", s_))
            b0 = PB + 30 * s_
            if s_ == 1:
                for d in (1, 2):
                    g.e(f"v_add_f32 v{b0 + 8}, v{b0 + 8}, v{b0 + 10 * d + 8}")
                    for i in range(0, 8, 2):
                        g.e(f"v_pk_add_f32 {vr(b0 + i, 2)}, {vr(b0 + i, 2)}, {vr(b0 + 10 * d + i, 2)}")
            for d in range(3 if s_ == 0 else 1):
                b = b0 + 10 * d
                g.e(f"v_add_f32 v{ob + 8}, v{ob + 8}, v{b + 8}")
                for i in range(0, 8, 2):
                    g.e(f"v_pk_add_f32 {vr(ob + i, 2)}, {vr(ob + i, 2)}, {vr(b + i, 2)}")
        g.stamp(f"B{layer}:sum")
        g.softmax_guard(layer, O + 96, O + 112)
        for s_ in range(2):
            ob = O + 16 * (6 + s_)
            g.e(f"v_rcp_f32 v{ob + 10}, v{ob + 8}\ns_nop 0")
            for i in range(0, 8, 2):
                g.e(f"v_pk_mul_f32 {vr(ob + i, 2)}, {vr(ob + i, 2)}, {vr(ob + 10, 2)} op_sel_hi:[1,0]")
            for i in range(4):
                g.e(f"v_cvt_pk_bf16_f32 v{ob + 12 + i}, v{ob + 2 * i}, v{ob + 2 * i + 1}")
            g.st(vr(ob + 12, 4), vL16, sWS, (t0, t1)[s_], 0, tag="ost")
        g.stamp(f"B{layer}st")
        self.CW = CW

    def softmax_guard(self, layer, o0, o1):
        g = self
        Q, S, KV, vV = 144, 176, 208, 252
        M, T = 16, 18
        ls, lj, l1, l2 = g.label("fb"), g.label("fbj"), g.label("fb1"), g.label("fb2")
        for k, o in enumerate((o0, o1)):
            g.e(f"v_maximum3_f32 v{T + k}, abs(v{o}), abs(v{o + 1}), abs(v{o + 2})")
            g.e(f"v_maximum3_f32 v{T + k}, abs(v{o + 3}), abs(v{o + 4}), v{T + k}")
            g.e(f"v_maximum3_f32 v{T + k}, abs(v{o + 5}), abs(v{o + 6}), v{T + k}")
        g.e(f"""
        v_maximum3_f32 v{T}, abs(v{o0 + 7}), abs(v{o1 + 7}), v{T}
        v_minimum3_f32 v{M}, v{o0 + 8}, v{o1 + 8}, v{o1 + 8}
        v_maximum3_f32 v{M + 1}, v{o0 + 8}, v{o1 + 8}, v{o1 + 8}
        v_maximum3_f32 v{T}, v{T}, v{T + 1}, v{T + 1}
        s_mov_b32 s{t2}, {f2u(2.0 ** -64):#x}
        s_mov_b32 s{t3}, {f2u(2.0 ** 120):#x}
        s_mov_b32 s{t4}, 0x7f7fffff
        v_cmp_nle_f32 vcc, s{t2}, v{M}
        v_cmp_nge_f32 s[{t6}:{t7}], s{t3}, v{M + 1}
        v_cmp_nge_f32 s[{t10}:{t11}], s{t4}, v{T}
        s_nop 0
        s_or_b64 vcc, vcc, s[{t6}:{t7}]
        s_or_b64 vcc, vcc, s[{t10}:{t11}]
        s_cbranch_{'scc0' if g.cfg.force_fallback else 'scc1'} {ls}
        {lj}:
        """)
        fb = [f"{ls}:", f"s_lshl_b32 s{t2}, s{sC}, 17", f"s_add_u32 s{t2}, s{t2}, {aKV(layer)}", f"s_mov_b32 s{t3}, s{t2}",
              f"s_add_u32 s{t4}, s{t2}, 0x20000", f"v_mov_b32 v{M}, 0xff800000", f"v_mov_b32 v{M + 1}, 0xff800000", f"{l1}:",
              f"buffer_load_dwordx4 {vr(KV, 4)}, v{vL16}, {sr(sWS, 4)}, s{t3} offen sc1", "s_waitcnt vmcnt(0)"]
        for k in range(2):
            fb.append(f"v_mfma_f32_32x32x16_bf16 {vr(S + 16 * k, 16)}, {vr(KV, 4)}, {vr(Q + 24 + 4 * k, 4)}, 0")
        fb.append("s_nop 15")
        for k in range(2):
            for i in range(0, 16, 2):
                fb.append(f"v_max3_f32 v{M + k}, v{S + 16 * k + i}, v{S + 16 * k + i + 1}, v{M + k}")
        fb += [f"s_add_u32 s{t3}, s{t3}, 2048", f"s_cmp_lt_u32 s{t3}, s{t4}", f"s_cbranch_scc1 {l1}"]
        for k in range(2):
            fb += [f"v_mov_b32 v{T}, v{M + k}", "s_nop 1", f"v_permlane32_swap_b32 v{M + k}, v{T}", f"v_max_f32 v{M + k}, v{M + k}, v{T}"]
        for o in (o0, o1):
            fb += [f"v_mov_b32 v{o + r}, 0" for r in range(16)]
        fb += [f"s_mov_b32 s{t3}, s{t2}", f"{l2}:",
               f"buffer_load_dwordx4 {vr(KV, 4)}, v{vL16}, {sr(sWS, 4)}, s{t3} offen sc1",
               f"s_mov_b64 exec, s[{sVM}:{sVM + 1}]",
               f"buffer_load_dwordx4 {vr(KV + 4, 4)}, v{vV}, {sr(sWS, 4)}, s{t3} offen offset:1024 sc1",
               f"buffer_load_dwordx4 {vr(KV + 8, 4)}, v{vV}, {sr(sWS, 4)}, s{t3} offen offset:1536 sc1",
               "s_mov_b64 exec, -1", "s_waitcnt vmcnt(0)"]
        for k in range(2):
            fb.append(f"v_mfma_f32_32x32x16_bf16 {vr(S + 16 * k, 16)}, {vr(KV, 4)}, {vr(Q + 24 + 4 * k, 4)}, 0")
        fb.append("s_nop 15")
        for k in range(2):
            fb += [f"v_sub_f32 v{S + 16 * k + i}, v{S + 16 * k + i}, v{M + k}" for i in range(16)]
            fb += [f"v_exp_f32 v{S + 16 * k + i}, v{S + 16 * k + i}" for i in range(16)]
        fb.append("s_nop 1")
        for k, o in enumerate((o0, o1)):
            for h in range(2):
                fb.append(f"v_smfmac_f32_32x32x32_bf16 {vr(o, 16)}, {vr(KV + 4 + 4 * h, 4)}, {vr(S + 16 * k + 8 * h, 8)}, v{vIdx}")
        fb += [f"s_add_u32 s{t3}, s{t3}, 2048", f"s_cmp_lt_u32 s{t3}, s{t4}", "s_nop 7", f"s_cbranch_scc1 {l2}", "s_nop 15", f"s_branch {lj}"]
        g.tail.append("\n".join(fb))

    def reduce_write(self, acc, d, base):
        g = self
        ops = []

        def addr():
            g.e(f"s_xor_b32 s{t6}, s{sW}, {d}\ns_mul_i32 s{t6}, s{t6}, 12288")
        def addr2():
            g.e(f"s_add_u32 s{t6}, s{t6}, {base + (d - 1) * 4096}\nv_add_u32 v{vt0}, s{t6}, v{vL16}")
        ops += [addr, addr2]
        for q in range(4):
            ops.append(lambda q=q: g.ds(f"ds_write_b128 v{vt0}, {vr(acc + 4 * q, 4)} offset:{q * 1024}"))
        return ops

    def reduce_pre_ops(self, layer, which, base, Z, final):
        g = self
        ops = [f"s_mul_i32 s{t6}, s{sW}, 12288\ns_add_u32 s{t6}, s{t6}, {base}", f"v_add_u32 v{vt2}, s{t6}, v{vL16}"]
        for i in range(8):
            ops += [f"v_lshlrev_b32 v{Z + 2 * i}, 16, v{vRes + i}", f"v_and_b32 v{Z + 2 * i + 1}, s{sMask}, v{vRes + i}"]
        ops.append(f"s_lshl_b32 s{t0}, s{sCB}, 1\ns_add_u32 s{t0}, s{t0}, s{sNA}")
        if final:
            ops.append(lambda: g.srd(sOUT, pOUT, 2048 * 1024))
            ops += [f"v_bfe_u32 v{vt3}, v{vL16}, 4, 5", f"v_lshlrev_b32 v{vt3}, 10, v{vt3}", f"v_lshrrev_b32 v{vIdx}, 9, v{vL16}",
                    f"v_lshl_add_u32 v{vt3}, v{vIdx}, 4, v{vt3}",
                    f"s_lshl_b32 s{t7}, s{sTA}, 15\ns_lshl_b32 s{t8}, s{t0}, 6", f"s_add_u32 s{t7}, s{t7}, s{t8}"]
        else:
            ops += [f"v_mov_b32 v{vt3}, 0x3f803f80",
                    f"s_lshl_b32 s{t7}, s{sTA}, 15\ns_lshl_b32 s{t8}, s{t0}, 11",
                    f"s_add_u32 s{t7}, s{t7}, s{t8}\ns_add_u32 s{t7}, s{t7}, {aX(layer, which)}",
                    f"s_lshl_b32 s{t8}, s{sTA}, 12\ns_lshr_b32 s{t9}, s{t0}, 2",
                    f"s_lshl_b32 s{t9}, s{t9}, 10\ns_add_u32 s{t8}, s{t8}, s{t9}",
                    f"s_and_b32 s{t9}, s{t0}, 3\ns_lshl_b32 s{t9}, s{t9}, 2",
                    f"s_add_u32 s{t8}, s{t8}, s{t9}\ns_add_u32 s{t8}, s{t8}, {aST(layer, which)}"]
        return ops

    def reduce_pre(self, layer, which, base, Z, final):
        self.take(deque(self.reduce_pre_ops(layer, which, base, Z, final)), 999)

    def reduce_read_ops(self, ds_, PB, Z, pk=False):
        g = self
        ops = []

        def bar():
            g.lwait0()
            g.e("s_barrier")
        ops.append(bar)
        for k, d in enumerate(ds_):
            for q in range(4):
                ops.append(lambda k=k, d=d, q=q: g.ds(
                    f"ds_read_b128 {vr(PB + 16 * k + 4 * q, 4)}, v{vt2} offset:{(d - 1) * 4096 + q * 1024}", ("p", d, q)))
        for k, d in enumerate(ds_):
            for q in range(4):
                def add(k=k, d=d, q=q):
                    g.lwait(("p", d, q))
                    if pk:
                        for i in range(4 * q, 4 * q + 4, 2):
                            g.e(f"v_pk_add_f32 {vr(Z + i, 2)}, {vr(Z + i, 2)}, {vr(PB + 16 * k + i, 2)}")
                        return
                    for i in range(4 * q, 4 * q + 4):
                        g.e(f"v_add_f32 v{Z + i}, v{Z + i}, v{PB + 16 * k + i}")
                ops.append(add)
        return ops

    def reduce_finish(self, layer, which, acc, Z, final):
        g = self
        g.stamp(f"{'CE'[which]}{layer}_r0")
        for h in range(2):
            for i in range(8 * h, 8 * h + 8, 2):
                g.e(f"v_pk_add_f32 {vr(acc + i, 2)}, {vr(acc + i, 2)}, {vr(Z + i, 2)}")
            for i in range(4 * h, 4 * h + 4):
                g.e(f"v_cvt_pk_bf16_f32 v{vRes + i}, v{acc + 2 * i}, v{acc + 2 * i + 1}")
            if final:
                g.st(vr(vRes + 4 * h, 4), vt3, sOUT, t7, 32 * h, g.cfg.out_mods)
            else:
                g.st(vr(vRes + 4 * h, 4), vL16, sWS, t7, 1024 * h)
        if final:
            return
        for i in range(4):
            g.e(f"v_mov_b32 v{Z + i}, 0")
        for i in range(8):
            g.e(f"v_dot2c_f32_bf16 v{Z + i % 2}, v{vRes + i}, v{vt3}")
            g.e(f"v_dot2c_f32_bf16 v{Z + 2 + i % 2}, v{vRes + i}, v{vRes + i}")
        g.e(f"s_nop 1\nv_add_f32 v{Z}, v{Z}, v{Z + 1}\nv_add_f32 v{Z + 2}, v{Z + 2}, v{Z + 3}\ns_nop 1")
        g.e(f"v_permlane32_swap_b32 v{Z}, v{Z + 2}\nv_add_f32 v{Z}, v{Z}, v{Z + 2}")
        g.dual(g.st_text(vr(Z), vL16, sWS, t8, 0, "", 1), g.st_text(vr(Z), vL16, sWS, t8, 0, "sc1", 1), 1)
        g.vmq[-1] = "stst"

    def splitk_body(self, nks, wreg, hreg, ldh, nup, AC, PB, Z, SC, SK, name, extra=(), after=()):
        g = self
        nxt = [nup]
        after = deque(after)
        for m in range(nup):
            ldh(m)

        def more():
            if nxt[0] < 2 * nks and nxt[0] - self.ring < self.consumed:
                ldh(nxt[0])
                nxt[0] += 1
            elif nxt[0] == 2 * nks and after:
                after.popleft()()

        def mf(tk, n, i):
            m = i if tk else nks + i
            acc = AC[2 * tk + n]
            c = vr(acc, 16) if i else "0"
            g.e(f"v_mfma_f32_32x32x16_bf16 {vr(acc, 16)}, {wreg(2 * i + n)}, {hreg(m)}, {c}")
        side = deque()

        def pop(k=1):
            for _ in range(k):
                if side:
                    o = side.popleft()
                    if o:
                        o()
        self.consumed = 0
        for i in range(nks):
            g.vwait(("h", i))
            if i == 0:
                g.stamp(f"Z{name[1]}:Cfirst")
            mf(1, 1, i)
            mf(1, 0, i)
            self.consumed = i + 1
            more()
            if i % 8 == 7:
                g.stamp(f"{name}_{i}")
        w3 = g.reduce_write(AC[3], 3, SC)
        w2 = g.reduce_write(AC[2], 2, SC)
        w1 = g.reduce_write(AC[1], 1, SC)
        side.extend(w3[:2] + [None] * 2 + w3[2:] + w2)
        early = nks >= 16 or g.cfg.early_c
        if early:
            side.extend([None] * 2 + g.reduce_read_ops((3, 2), PB, Z))
        side.extend(extra)
        per = 1 if nks >= 16 else (4 if early else 2)
        for i in range(nks + SK):
            if i < nks:
                g.vwait(("h", nks + i))
                mf(0, 1, i)
                more()
                pop(per)
            if i == nks:
                g.stamp(f"Z{name[1]}:CAB")
                pop(len(side))
                side.extend(w1[:2] + [None] * 3 + w1[2:])
                rr = g.reduce_read_ops((1,) if early else (3, 2, 1), PB, Z, pk=g.cfg.c_pk)
                side.extend(rr)
                per = -(-(len(side) - (len(rr) // 2 if g.cfg.c_pk else 0)) // SK)
            if i >= SK:
                mf(0, 0, i - SK)
                pop(per)
            if i % 8 == 7:
                g.stamp(f"{name}_a{i}")
        pop(len(side))
        while after:
            after.popleft()()

    def phaseC(self, layer):
        g = self
        CW = g.CW
        OF = 144
        AC = [16, 32, 48, 64]
        PB, Z = 80, 128
        SC = 104 * 1024
        g.e(f"""
        v_and_b32 v{vt0}, 28, v{vL4}
        s_lshl_b32 s{t2}, s{sX}, 2
        s_lshr_b32 s{t3}, s{sC}, 3
        s_add_u32 s{t2}, s{t2}, s{t3}
        s_lshl_b32 s{t2}, s{t2}, 2
        s_add_u32 s{t2}, s{t2}, s{sW}
        s_lshl_b32 s{t2}, s{t2}, 7
        s_add_u32 s{t2}, s{t2}, {FB}
        s_lshl_b32 s{t3}, s{sTB}, 15
        s_lshl_b32 s{t4}, s{sW}, 13
        s_add_u32 s{t3}, s{t3}, s{t4}
        s_add_u32 s{t3}, s{t3}, {aO(layer)}
        s_xor_b32 s{t4}, s{t3}, 32768
        """)
        g.vwait("ost")
        g.stamp(f"Z{layer}:Back")
        g.signal(2, layer + 1, True)
        g.e("s_barrier")
        g.reduce_pre(layer, 0, SC, Z, False)
        g.poll(vt0, t2, layer + 1, True)
        g.stamp(f"C{layer}go")

        def ofr(m):
            return 208 + 4 * m if m < 3 and g.cfg.b_tail else OF + 4 * m

        def ldo(m):
            tk, i = (1, m) if m < 8 else (0, m - 8)
            so = t3 if tk else t4
            if i == 4:
                g.e(f"s_add_u32 s{so}, s{so}, 4096")
            g.ld(vr(ofr(m), 4), vL16, sWS, so, (i % 4) * 1024, tag=("h", m))
        self.ring = 16
        after = []
        if "C" in g.cfg.touch:
            after = [lambda: g.e(f"v_and_b32 v{vt1}, 0x3c0, v{vL16}\nv_lshlrev_b32 v{vt1}, 1, v{vt1}")]
            after += g.touch_ops(g.h_addr(layer, t9, t10), t9, 4, vt1, vIdx)
        if g.cfg.c_pre:
            after += [lambda: g.e(f"s_mul_i32 s{t9}, s{sHP}, 7168\ns_add_u32 s{t9}, s{t9}, {WX13}\ns_add_u32 s{t10}, s{t9}, 4096")]
            after += [lambda n=n: g.ld(vr(g.D_AX[n], 4), vL16, sWS, (t9, t10)[n // 4], (n % 4) * 1024, tag=("ax", n)) for n in g.D_AXPRE]
            after += [lambda: g.e(f"s_mul_i32 s{t11}, s{sHP}, 229376\ns_add_u32 s{t11}, s{t11}, {W13}")]
            after += g.dma_ops(152, 2, t11, 152 * 1024, "w13e", (t9, t10))
        g.splitk_body(8, lambda i: CW[i](0, 4), lambda m: vr(ofr(m), 4), ldo, g.cfg.up_c, AC, PB, Z, SC, 8, f"C{layer}", after=after)
        g.reduce_finish(layer, 0, AC[0], Z, False)
        g.stamp(f"C{layer}st")

    def phaseD(self, layer):
        g = self
        cfg = g.cfg
        p421 = cfg.passes == [(0, 4), (4, 6), (6, 7)]
        assert p421 or cfg.passes[:2] in ([(0, 3), (3, 5)], [(0, 2), (2, 4)])
        X = 16
        ACC = [144 + 16 * i for i in range(6)] + [144] if p421 else [144, 160, 176, 192, 208, 144, 160]
        vB = [vL16, 240, 241]
        kexp, cden = 242, 243
        ET = 244
        BX = 248
        AX = g.D_AX
        SB = 224
        g.e(f"v_and_b32 v{vt0}, 60, v{vL4}\ns_lshl_b32 s{t2}, s{sT}, 7\ns_add_u32 s{t2}, s{t2}, {FC}")
        g.e(f"v_add_u32 v{vB[1]}, 0x10000, v{vL16}\nv_add_u32 v{vB[2]}, 0x20000, v{vL16}")
        g.e(f"s_mul_i32 s{t11}, s{sHP}, 229376\ns_add_u32 s{t11}, s{t11}, {W13}")
        g.e(f"s_mul_i32 s{t3}, s{sHP}, 7168\ns_mul_i32 s6, s{sT}, {112 * 1024}\ns_add_u32 s6, s6, s{t3}\ns_add_u32 s6, s6, {aH(layer)}\ns_add_u32 s7, s6, 4096")
        g.e(f"s_add_u32 s{t3}, s{t3}, {WX13}\ns_add_u32 s3, s{t3}, 4096")
        g.vwait("stst")
        g.stamp(f"Z{layer}:Cack")
        g.signal(3, layer + 1, True)
        g.e("s_barrier")

        def wread(f):
            slot = f % 160
            g.ds(f"ds_read_b128 {ar(WB + 4 * (f % 8), 4)}, v{vB[slot // 64]} offset:{(slot % 64) * 1024}", ("w", f))
        LEAD = 7
        for f in range(LEAD):
            wread(f)
        pre, xrest, stl = g.load_x_stats(layer, 0, aX(layer, 0), X, SB, cfg.up_d)
        xrest = deque(xrest)
        g.poll(vt0, t2, layer + 1, True)
        g.stamp(f"D{layer}go")
        pre()
        side = deque()
        mem = deque()

        def epi_ops(n):
            a = ACC[n]
            ops = []
            for half in range(2):
                r0 = a + 4 * half
                for i in range(4):
                    ops.append(f"v_mul_f32 v{ET + i}, v{kexp}, v{r0 + i}")
                for i in range(4):
                    ops.append(f"v_exp_f32 v{ET + i}, v{ET + i}")
                for i in range(4):
                    ops.append(f"v_mul_f32 v{r0 + i}, v{r0 + i}, v{r0 + 8 + i}")
                for i in range(4):
                    ops.append(f"v_fma_f32 v{ET + i}, v{ET + i}, v{cden}, v{cden}")
                for i in range(4):
                    ops.append(f"v_rcp_f32 v{ET + i}, v{ET + i}")
                for i in range(4):
                    ops.append(f"v_mul_f32 v{r0 + i}, v{r0 + i}, v{ET + i}")
            for i in range(4):
                ops.append(f"v_cvt_pk_bf16_f32 v{a + 8 + i}, v{a + 2 * i}, v{a + 2 * i + 1}")
            if "h" in cfg.dbg and n < 3:
                ops.append(lambda: g.vmq.append(("hst", n)) or g.e("s_nop 0") or g.vmq.pop())
            else:
                ops.append(lambda: g.st(vr(a + 8, 4), vL16, sWS, (6, 7)[n // 4], (n % 4) * 1024, cfg.hmods[layer], tag="hst" if n == 6 else ("hst", n)))
            return ops

        def xmf(n, first):
            acc = vr(ACC[n], 16)
            assert g.vmq.count(("ax", n)) + g.waited.get(("ax", n), 0) == layer + 1, n
            g.vwait(("ax", n))
            g.e(f"v_mfma_f32_32x32x16_bf16 {acc}, {vr(AX[n], 4)}, {vr(BX, 4)}, {'0' if first else acc}")

        def stats_go():
            side.extend([None] * cfg.st_pad + g.stats_ops(SB, kexp, cden, BX) + ["s_nop 0", f"v_mul_f32 v{kexp}, {f2u(-LOG2E):#x}, v{kexp}",
                                                                                           lambda: state.update(done=True)])
        def axld(n):
            assert not 224 <= AX[n] < 240 or state.get("done")
            g.ld(vr(AX[n], 4), vL16, sWS, (t3, 3)[n // 4], (n % 4) * 1024, tag=("ax", n))
        state = {"stats": False}

        def stats_mark():
            state["stats"] = True
            stats_go()
        xr = list(xrest)
        k = cfg.st_d
        mem.extend(xr[:k] + stl + [SOp(stats_mark)] + xr[k:])
        nb2 = (152 - 132) // 4 if cfg.c_pre else 7
        axs = [lambda n=n: axld(n) for n in range(7) if not (cfg.c_pre and n in g.D_AXPRE)]
        mem.extend(axs[:cfg.ax_first])
        mem.extend(g.dma_ops(104, 7, t11, 104 * 1024, "w13b", (t8, t9)))
        mem.extend(axs[cfg.ax_first:])
        mem.extend(g.dma_ops(132, nb2, t11, 132 * 1024, "w13b2", (t8, t9)))
        batches = {104: ("w13b", 7), 132: ("w13b2", nb2), 160: ("w13c", 8), 192: ("w13d", 8)}
        g.e_plan(layer)
        esetup = g.e_setup(layer)
        f = 0
        for pi, (a, b) in enumerate(cfg.passes):
            wdt = b - a
            nm = 32 * wdt
            tot = sum(0 if isinstance(o, tuple) else (2 if isinstance(o, str) and o.startswith(("v_exp", "v_rcp")) else 1) for o in side)
            done = 0
            for ks in range(32):
                for n in range(a, b):
                    if pi == 0 and n == a:
                        assert ("x", ks) in g.vmq or ("x", ks) in g.waited
                        g.vwait(("x", ks))
                        if ks == 0:
                            g.stamp(f"Z{layer}:Dfirst")
                    if f % 4 == 0:
                        g.lwait(("w", min(f + 3, 223)))
                    c = vr(ACC[n], 16) if ks or pi else "0"
                    g.e(f"v_mfma_f32_32x32x16_bf16 {vr(ACC[n], 16)}, {ar(WB + 4 * (f % 8), 4)}, {vr(X + 4 * ks, 4)}, {c}")
                    fn = f + LEAD
                    if fn in batches:
                        tag, cnt = batches[fn]
                        assert g.vmq.count(tag) + self.waited.get(tag, 0) == cnt * (layer + 1), (fn, tag)
                        g.vwait(tag)
                        if fn == 160 and layer == 0:
                            g.lwait0()
                        g.e("s_barrier")
                    if fn == cfg.bar_c:
                        if fn not in batches:
                            g.e("s_barrier")
                        if "c" in cfg.dbg:
                            batches[160] = batches[192] = ("none", 0)
                        elif "l" in cfg.dbg:
                            mem.extend(g.dma_ops(0, 8, t11, 0, "w13c", (t8, t9)))
                            mem.extend(g.dma_ops(0, 8, t11, 32 * 1024, "w13d", (t8, t9)))
                        else:
                            mem.extend(g.dma_ops(160, 8, t11, 0, "w13c", (t8, t9)))
                            mem.extend(g.dma_ops(192, 8, t11, 32 * 1024, "w13d", (t8, t9)))
                        if layer == 0 and cfg.ew_in_b < 56:
                            mem.extend(g.ew_ops(cfg.ew_in_b, 56, (t4, t5)))
                    if cfg.ct_d and f == cfg.ct_d[0] and layer in cfg.ct_d[3]:
                        mem.append(lambda: g.code_touch(cfg.ct_d[1], cfg.ct_d[2], vt2, vt3))
                    if f == cfg.d_touch[layer]:
                        if cfg.d_t1:
                            tt = [SOp(lambda: g.e(f"v_lshlrev_b32 v{vt2}, 3, v{vL16}\nv_min_u32 v{vt2}, {55 * 128}, v{vt2}")),
                                  lambda: g.ld(vr(vt3), vt2, sWS, 6, 0, tag="pf", w=1)]
                            if cfg.d_t1 == 2:
                                mem.extendleft(reversed(tt))
                            else:
                                mem.extend(tt)
                        else:
                            mem.append(SOp(lambda: g.e(f"v_and_b32 v{vt2}, 0x3c0, v{vL16}\nv_lshlrev_b32 v{vt2}, 1, v{vt2}\ns_mov_b32 s{t10}, s6")))
                            mem.extend(g.touch_ops([], t10, 4, vt2, vt3))
                    if fn == 160 and layer == 0:
                        mem.append(SOp(lambda: g.e(f"s_mul_i32 s64, s{sHP}, {96 * 1024}\ns_add_u32 s64, s64, {WQ}")))
                        wq = g.dma_ops(0, 24, 64, 65536, "wq", (62, 63))
                        cut = [i for i, o in enumerate(wq) if not isinstance(o, SOp)][cfg.wq_d - 1] + 1 if cfg.wq_d else 2
                        mem.extend(wq[:cut])
                        g.wq_rest = wq[cut:]
                    if fn < 224:
                        wread(fn)
                    m = ks * wdt + (n - a) + 1
                    if pi == 0:
                        g.take(side, cfg.st_cap)
                    else:
                        if cfg.d_cap:
                            g.take(side, 0 if m <= 2 else cfg.d_cap - (f % 4 == 3), exact=True)
                        else:
                            want = 0 if m <= 2 else min(-(-tot * m // nm) - done, 6)
                            g.take(side, want)
                            done += want
                    if mem and isinstance(mem[0], SOp):
                        mem.popleft()()
                    elif mem and f % 2 == 0:
                        mem.popleft()()
                    if f == cfg.d_sig:
                        assert g.vmq.count(("hst", cfg.ne - 1)) + g.waited.get(("hst", cfg.ne - 1), 0) == layer + 1
                        g.vwait(("hst", cfg.ne - 1))
                        g.signal(4, g.e_nst * layer + 1, True)
                    if cfg.d_sig < f <= cfg.d_sig + len(esetup):
                        g.e(esetup[f - cfg.d_sig - 1])
                    if f == cfg.d_pl:
                        g.flag_load("fd1")
                    if f == cfg.d_ck:
                        g.flag_check("fd1", g.e_nst * layer + 1)
                        g.stamp(f"D{layer}_chk")
                    if f >= cfg.d_ck:
                        for _ in range(cfg.d_nl):
                            if g.e_next < cfg.e_pre and g.e_next < f - 192 and (f - cfg.d_ck) % cfg.d_step == 0:
                                g.e_load()
                    f += 1
                    if f % 32 == 0:
                        g.stamp(f"D{layer}_{f}")
                    g.stamp(f"Dx{layer}:{f}.")
            g.take(side, 9999)
            if pi == 0:
                assert state["stats"]
                for n in range(a, b):
                    xmf(n, False)
            if pi + 1 < len(cfg.passes):
                for n in range(*cfg.passes[pi + 1]):
                    xmf(n, True)
            for n in range(a, b):
                side.extend(epi_ops(n))
        g.e("s_barrier")
        while mem:
            mem.popleft()()
        g.stamp(f"D{layer}st")
        return side

    E_HR, E_NR = 16, 32

    def e_plan(self, layer):
        NE = self.cfg.ne
        if self.cfg.e3:
            st = [[7 * f + n for f in range(4) for n in rng] for rng in (range(NE), range(NE, 6), range(6, 7))]
            order = [(1, 0), (0, 0), (1, 1), (1, 2), (0, 1), (0, 2)]
        else:
            st = [[7 * f + n for f in range(4) for n in rng] for rng in (range(NE), range(NE, 7))]
            order = [(1, 0), (0, 0), (1, 1), (0, 1)]
        self.e_seq = [(tk, i) for tk, s_ in order for i in st[s_]]
        self.e_stage = [s_ for tk, s_ in order for i in st[s_]]
        self.e_nst = len(st)
        self.e_next = 0
        self.e_base = None

    def e_setup(self, layer):
        return [f"v_and_b32 v{vt0}, 28, v{vL4}",
                f"s_lshr_b32 s{t2}, s{sTA}, 1\ns_lshl_b32 s{t2}, s{t2}, 2", f"s_add_u32 s{t2}, s{t2}, s{sW}\ns_lshl_b32 s{t2}, s{t2}, 7",
                f"s_add_u32 s{t2}, s{t2}, {FD}\ns_mul_i32 s{t5}, s{sW}, {28 * 1024}", f"s_add_u32 s{t5}, s{t5}, {aH(layer)}\ns_mul_i32 s{t3}, s{sTB}, {112 * 1024}",
                f"s_add_u32 s{t3}, s{t3}, s{t5}\ns_mul_i32 s{t4}, s{sTA}, {112 * 1024}", f"s_add_u32 s{t4}, s{t4}, s{t5}"]

    def e_load(self):
        g = self
        m = g.e_next
        tk, i = g.e_seq[m]
        key = (tk, i // 7, (i % 7) // 4)
        if g.e_base != key:
            g.e(f"s_add_u32 s{t5}, s{(t4, t3)[tk]}, {(i // 7) * 7168 + ((i % 7) // 4) * 4096}")
            g.e_base = key
        g.ld(vr(g.E_HR + 4 * (m % g.E_NR), 4), vL16, sWS, t5, ((i % 7) % 4) * 1024, mods=g.cfg.hlmods, tag=("h", m))
        g.e_next += 1

    def flag_load(self, tag):
        self.ld(vr(vt1), vt0, sWS, t2, 0, tag=tag, w=1)

    def flag_check(self, tag, val):
        g = self
        g.late_check(tag, f"buffer_load_dword v{vt1}, v{vt0}, {sr(sWS, 4)}, s{t2} offen sc1", f"v_cmp_gt_u32 vcc, {val}, v{vt1}", 0)
        g.dual("", "buffer_inv sc1\ns_waitcnt vmcnt(0)", 0)

    def phaseE(self, layer, final, side):
        g = self
        cfg = g.cfg
        HR, NR = g.E_HR, g.E_NR
        PB, Z = 144, 176
        AC = [240, 224, 208, 192]
        SC = 0
        seq, stage, nst = g.e_seq, g.e_stage, g.e_nst
        N = len(seq)
        seen = set()
        consumed = [0]

        def more(k=1):
            for _ in range(k):
                if g.e_next < N and g.e_next - NR < consumed[0] and stage[g.e_next] <= state["ok"]:
                    g.e_load()

        def mf(m, n):
            tk, i = seq[m]
            acc = vr(AC[2 * tk + n], 16)
            g.e(f"v_mfma_f32_32x32x16_bf16 {acc}, {ar(4 * (2 * i + n), 4)}, {vr(HR + 4 * (m % NR), 4)}, {acc if (tk, n) in seen else '0'}")
            seen.add((tk, n))
        state = {"ok": 0, "st": None}
        nB = max(m for m in range(N) if seq[m][0] == 1) + 1
        w3 = g.reduce_write(AC[3], 3, SC)
        w2 = g.reduce_write(AC[2], 2, SC)
        w1 = g.reduce_write(AC[1], 1, SC)
        for m in range(nB):
            assert g.e_next > m, m
            g.vwait(("h", m))
            for n in (1, 0):
                mf(m, n)
                g.take(side, 5 if state["st"] is None else 2, exact=True)
            consumed[0] = m + 1
            g.stamp(f"Ex{layer}:{m}.")
            if nst == 3:
                if m == cfg.e2_sig:
                    g.vwait(("hst", 5))
                    g.signal(4, 3 * layer + 2, True)
                if m == cfg.e2_pl:
                    g.flag_load("fd2")
                if m == cfg.e2_ck:
                    g.flag_check("fd2", 3 * layer + 2)
                    state["ok"] = 1
            if state["st"] is None:
                if not side:
                    state["st"] = m
                else:
                    more(2 if g.e_next - m < cfg.e_pre else 1)
            if state["st"] is not None:
                d = m - state["st"]
                if d == cfg.e_sig:
                    assert nst == 2 or m > cfg.e2_ck
                    g.vwait("hst")
                    g.signal(4, nst * layer + nst, True)
                    g.stamp(f"E{layer}_sig")
                if d == 0:
                    side.extend(g.reduce_pre_ops(layer, 1, SC, Z, final))
                if d == cfg.e_sig + cfg.e_pl:
                    g.flag_load("fd3")
                if d == cfg.e_sig + cfg.e_pl + cfg.e_ck:
                    g.flag_check("fd3", nst * layer + nst)
                    g.stamp(f"E{layer}_chk")
                    state["ok"] = nst - 1
                more(2 if g.e_next - m < cfg.up_e else 1)
        assert state["ok"] == nst - 1
        if cfg.e_single:
            PB = 128
            assert all(not 28 <= m % NR for m in range(nB, N))
            side.extend(w3[:2] + [None] * 2 + w3[2:] + w2)
        else:
            side.extend(w3[:2] + [None] * 2 + w3[2:] + w2 + [None] + g.reduce_read_ops((3, 2), PB, Z))
        tailq = deque(g.wq_rest if layer == 0 else [])
        if "E" in cfg.touch and not final:
            tq = [SOp(lambda: g.e(f"v_and_b32 v{vt1}, 0x3c0, v{vL16}\nv_lshlrev_b32 v{vt1}, 1, v{vt1}\ns_and_b32 s{t9}, s{t8}, 0xfffffc00"))]
            tailq.extendleft(reversed(tq + g.touch_ops([], t7, 1, vt1, vIdx) + g.touch_ops([], t9, 1, vt1, vIdx)))
        if final and cfg.wb:
            def wb():
                L = g.label("wb")
                g.e(f"s_lshl_b32 s{t5}, s{sC}, 2\ns_add_u32 s{t5}, s{t5}, s{sW}\ns_cmp_lt_u32 s{t5}, {cfg.wb}\ns_cbranch_scc0 {L}\nbuffer_wbl2 sc1\n{L}:")
            tailq.append(wb)
        nA, SK = N - nB, cfg.sk_e
        per = -(-len(side) // (nA + max(nA - SK, 0)))
        for i in range(nA + SK):
            if i < nA:
                g.vwait(("h", nB + i))
                mf(nB + i, 1)
                more()
                g.take(side, per)
            if g.e_next == N and tailq:
                while isinstance(tailq[0], SOp):
                    tailq.popleft()()
                tailq.popleft()()
            if i == nA:
                g.stamp(f"Ex{layer}:AB.")
                g.take(side, 999)
                rr = g.reduce_read_ops((3, 2, 1) if cfg.e_single else (1,), PB, Z, pk=cfg.e_pk)
                side.extend(w1[:2] + [None] * 3 + w1[2:] + rr)
                per = -(-(len(side) - (len(rr) // 2 if cfg.e_pk else 0)) // SK)
            if i >= SK:
                mf(nB + i - SK, 0)
                g.take(side, per)
        g.take(side, 999)
        while tailq:
            tailq.popleft()()
        g.reduce_finish(layer, 1, AC[0], Z, final)
        g.stamp(f"E{layer}st")
        if not final:
            g.vwait0()
            g.stamp(f"Z{layer}:Eack")
            g.signal(5, layer + 1, True)
            g.e("s_barrier")

    def build(self):
        g = self
        cfg = g.cfg
        g.prologue()
        done = False
        for layer in range(2):
            for ph in "ABCDE":
                mark = len(g.lines)
                if ph == "A":
                    g.phaseA1(layer) if layer else g.phaseA0()
                elif ph == "B":
                    g.phaseB(layer)
                elif ph == "C":
                    g.phaseC(layer)
                elif ph == "D":
                    rest = g.phaseD(layer)
                else:
                    g.phaseE(layer, layer == 1, rest)
                if ph in cfg.hack16 and layer == 1:
                    import re
                    out, k, pend, cnt = [], 0, None, 0
                    for ln in g.lines[mark:]:
                        m = re.match(r"v_mfma_f32_32x32x16_bf16 v\[(\d+):\d+\], (\S+), (\S+), (\S+)$", ln)
                        brk = m or ln.endswith(":") or ln.startswith(("s_cbranch", "s_barrier", "s_waitcnt vm", "ds_write", "buffer_store"))
                        if pend and (brk or cnt >= cfg.hack_gap):
                            out.append(pend)
                            pend = None
                        if m:
                            b = int(m.group(1))
                            two = []
                            for h in range(2):
                                o = b + 4 * ((2 * k + h) % 4)
                                c = "0" if m.group(4) == "0" else f"v[{o}:{o + 3}]"
                                two.append(f"v_mfma_f32_16x16x32_bf16 v[{o}:{o + 3}], {m.group(2)}, {m.group(3)}, {c}")
                            out.append(two[0])
                            pend, cnt = two[1], 0
                            k += 1
                        else:
                            out.append(ln)
                            cnt += 1
                    if pend:
                        out.append(pend)
                    g.lines[mark:] = out
                if cfg.stop == f"{ph}{layer}":
                    done = True
                    break
            if done:
                break
        if cfg.ts:
            g.vwait0()
            g.stamp("end") if g.nts < 16 else None
            g.e(f"s_lshl_b32 s{t0}, s2, 2\ns_add_u32 s{t0}, s{t0}, s{sW}\ns_lshl_b32 s{t0}, s{t0}, 7\ns_add_u32 s{t0}, s{t0}, {TS}")
            g.e(f"v_mov_b32 v{vt0}, 0")
            for i in range(g.nts):
                g.e(f"v_writelane_b32 v{vt0}, s{sTS + i}, {i}")
            g.e(f"v_writelane_b32 v{vt0}, s{sMode}, 31")
            g.e("s_mov_b32 exec_hi, 0")
            g.st(vr(vt0), vL4, sWS, t0, 0, w=1)
            if cfg.ts_dbg is not None:
                g.e(f"s_cmp_eq_u32 s2, {cfg.ts_dbg}\ns_cbranch_scc0 L_exit\ns_cmp_eq_u32 s{sW}, 0\ns_cbranch_scc0 L_exit")
                g.e(f"v_subrev_u32 v{vt0}, s{sTS}, v{vt0}")
                g.st(vr(vt0), vL4, sDBG, None, 0, w=1)
        g.e("L_exit:\ns_endpgm")
        for t in g.tail:
            g.e(t)
        g.e("L_end:")
        lines, rep = fix_hazards(g.lines)
        return lines, rep


HEADER = """; Fused two-layer transformer block (LN+QKV, attention, WO, LN+W1/W3+SwiGLU, W2), one persistent launch.
; @launch grid=(256,1,1) block=(256,1,1) lds=163840
.amdgcn_target "amdgcn-amd-amdhsa--gfx950"
.text
.globl {name}_kernel
.p2align 8
.type {name}_kernel,@function
{name}_kernel:
"""
FOOTER = """
.section .rodata,"a"
.p2align 6
.amdhsa_kernel {name}_kernel
  .amdhsa_next_free_vgpr 512
  .amdhsa_next_free_sgpr 102
  .amdhsa_accum_offset 256
  .amdhsa_group_segment_fixed_size 0
  .amdhsa_kernarg_size 80
  .amdhsa_user_sgpr_count 2
  .amdhsa_user_sgpr_kernarg_segment_ptr 1
  .amdhsa_system_sgpr_workgroup_id_x 1
  .amdhsa_float_denorm_mode_32 3
.end_amdhsa_kernel
"""


def generate(path, **kw):
    cfg = Cfg()
    for k, v in kw.items():
        setattr(cfg, k, v)
    set_alias(cfg.alias)
    g = Gen(cfg)
    lines, rep = g.build()
    txt = HEADER.format(name=NAME) + "\n".join(("" if l.endswith(":") else "  ") + l for l in lines) + FOOTER.format(name=NAME)
    open(path, "w").write(txt)
    return g, rep


if __name__ == "__main__":
    import argparse
    ap = argparse.ArgumentParser()
    ap.add_argument("-o", default=f"cdna_kernels/{NAME}.s")
    ap.add_argument("--stop")
    ap.add_argument("--ts", action="store_true")
    ap.add_argument("--slow", action="store_true")
    ap.add_argument("-v", action="store_true")
    a = ap.parse_args()
    g, rep = generate(a.o, stop=a.stop, ts=a.ts, force_slow=a.slow)
    print("lines", len(g.lines), "nops inserted", len(rep), "stamps", g.tsnames)
    if a.v:
        for r in rep:
            print(r)
```

```python
import os
import sys
from collections import deque

sys.path.insert(0, os.path.dirname(os.path.abspath(__file__)))
from asmlib import Asm, R, ar, fix_hazards, sr, vr

NAME = "interleave_layers__mha_block__glu_gated_swiglu__prompt"

FA_L, FB, FD, FC, FE, FA_G, FR, FX = 0x0000, 0x4000, 0x8000, 0xC000, 0xE000, 0x10000, 0x14000, 0x16000
TS = 0x80000
ST = 0x100000
WQ, WO, W13, W2 = 0x200000, 0x380000, 0x400000, 0x780000
WX13, WXQ, WXD = 0x940000, 0x960000, 0x970000
LB0, LBS = 0xA00000, 0x1400000
oQ, oKV, oO, oX1, oX2, oH = 0x0, 0x200000, 0x600000, 0x800000, 0xA00000, 0xC00000
WS_BYTES = 0x10000000
ALIAS = True


def set_alias(v):
    global ALIAS
    ALIAS = v


def aQ(l):
    return 0xA00000 if ALIAS else LB0 + l * LBS + oQ


def aO(l):
    return 0xA00000 if ALIAS else LB0 + l * LBS + oO


def aX(l, which):
    return 0xC00000 if ALIAS else LB0 + l * LBS + (oX1, oX2)[which]


def aH(l):
    return 0xE00000 if ALIAS else LB0 + l * LBS + oH


def aKV(l):
    return 0x1600000 + l * 0x400000 if ALIAS else LB0 + l * LBS + oKV


def aST(l, which):
    return ST if ALIAS else ST + (2 * l + which) * 0x40000

sWS, sXIN, sOUT, sDBG, sWQ, sRA, sRB = 8, 12, 16, 20, 24, 28, 32
sX, sC, sW, sT, sHP, sTA, sTB, sNA, sCB, sMode, sTO, sMask = range(36, 48)
t0, t1, t2, t3, t4, t5, t6, t7, t8, t9, t10, t11 = range(48, 60)
sVM = 60
pX, pWQ, pWO, pBX, pW1, pW3, pW2, pOUT, pDBG, pWS = range(64, 84, 2)
sTS = 84
sSN2 = 100
vL16, vL4, vIdx, vFl = 0, 1, 2, 3
vt0, vt1, vt2, vt3 = 4, 5, 6, 7
vRes = 8
WB = 224

LOG2E = 1.4426950408889634
TIMEOUT = 0x200000


def f2u(x):
    import struct
    return struct.unpack("<I", struct.pack("<f", x))[0]


class SOp:
    def __init__(self, fn):
        self.fn = fn

    def __call__(self):
        self.fn()


class Cfg:
    passes = [(0, 4), (4, 6), (6, 7)]
    stop = None
    ts = False
    ts_skip = ('start', 'C1st', 'E1st', 'A1st', 'C0st')
    ts_only = None
    force_slow = False
    force_fallback = False
    pf_w13 = (0, 0)
    bg_end = 108
    b_tail = True
    gp = (4, 4)
    a0b = False
    a0_up = 3
    tlb = None
    tlb_out = 0
    mf4_late = True
    a0_take = 2
    st_take = 0
    guard_late = True
    zero16 = True
    one_row = False
    ct_b = ((10, 1024, 8), (110, 512, 8))
    ct_d = (78, 4096, 4, (0, 1))
    hmods = ('', '')
    hlmods = 'sc1'
    poll2 = 0
    hack16 = ''
    hack_gap = 2
    b_opt = 3
    wb = 0
    keep = None
    b_align = 0
    q_up = 4
    v_split = False
    bg_ac = True
    ne = 4
    e3 = False
    e2_sig = 2
    e2_pl = 7
    e2_ck = 11
    d_step = 1
    d_sig = 196
    d_pl = 206
    d_ck = 214
    d_nl = 1
    e_pre = 10
    e_sig = 6
    e_pl = 5
    e_ck = 5
    spin = None
    ws_off = 0
    kvpf = (None, None)
    warm_w = 9
    rl_in_b = False
    rl_in_a = True
    rl_ack = 7
    g_sleep = 2
    rl_split = False
    rs_dma = 14
    rs_out = 28
    spare = (0, 6, 7, 16, 22, 23)
    b0_sleep = 1
    b0_g = True
    kv_touch = False
    g2_late = False
    xcc_early = False
    rl_c0 = 1
    rl_c1 = 4
    setup_first = True
    rl_ld = 16
    cold_touch = 0
    ct0 = 24
    x2_d = True
    bar_c = 76
    d_cap = 5
    alias = True
    touch = 'BHEA'
    d_touch = (None, 80)
    h_in_b = (True, False)
    d_t1 = 1
    tb0 = 97
    kvmods = 'sc1'
    ts_dbg = None
    hpx = 0
    wmods = 'sc1'
    early_c = False
    warm = 5
    dbg = ''
    rot = 's_lshr_b32 s{t1}, s{sHP}, 1'
    rl_sleep = 16
    lag_a = 12
    lag_end = True
    x2_a = 8
    st_a = 12
    st_d = 6
    c_pre = True
    c_pk = True
    e_single = False
    e_pk = True
    ax_first = 0
    st_cap = 2
    st_pad = 16
    wq_d = 12
    cpf = 2
    defer = None
    sk_e = 8
    out_mods = ''
    rl0 = 9
    rl_lat = 7
    rl_gap = 20
    up_a = 8
    up_d = 6
    up_e = 10
    up_c = 10
    ew_in_b = 56


class Gen(Asm):
    def __init__(self, cfg):
        super().__init__()
        self.cfg = cfg
        self.nts = 0
        self.m0_owner = None
        self.tsnames = []

    def srd(self, s, ptr, size):
        self.e(f"s_mov_b32 s{s}, s{ptr}\ns_mov_b32 s{s + 1}, s{ptr + 1}\ns_mov_b32 s{s + 2}, {size}\ns_mov_b32 s{s + 3}, 0x20000")

    def ld(self, dst, voff, srd, soff, imm=0, mods="sc1", tag=None, w=4):
        op = {1: "dword", 2: "dwordx2", 4: "dwordx4"}[w]
        so = f"s{soff}" if soff is not None else "0"
        o = f" offset:{imm}" if imm else ""
        self.vm(f"buffer_load_{op} {dst}, v{voff}, {sr(srd, 4)}, {so} offen{o} {mods}".rstrip(), tag)

    def st_text(self, src, voff, srd, soff, imm=0, mods="", w=4):
        op = {1: "dword", 2: "dwordx2", 4: "dwordx4"}[w]
        so = f"s{soff}" if soff is not None else "0"
        o = f" offset:{imm}" if imm else ""
        return f"buffer_store_{op} {src}, v{voff}, {sr(srd, 4)}, {so} offen{o} {mods}".rstrip()

    def st(self, src, voff, srd, soff, imm=0, mods="", tag=None, w=4):
        self.vm(self.st_text(src, voff, srd, soff, imm, mods, w), tag)

    def dma(self, voff, srd, soff, imm=0, mods="sc1", tag=None):
        so = f"s{soff}" if soff is not None else "0"
        o = f" offset:{imm}" if imm else ""
        m = (mods + " lds").strip()
        self.vm(f"buffer_load_dwordx4 v{voff}, {sr(srd, 4)}, {so} offen{o} {m}", tag)

    def stamp(self, name):
        if self.cfg.spin:
            if name == "entry":
                self.e("s_memrealtime s[98:99]\ns_waitcnt lgkmcnt(0)")
            if name == self.cfg.spin[0]:
                L = self.label("spin")
                if len(self.cfg.spin) > 2:
                    self.e(self.cfg.spin[2])
                self.e(f"{L}:\ns_memrealtime s[4:5]\ns_waitcnt lgkmcnt(0)\ns_sub_u32 s4, s4, s98\ns_cmp_lt_u32 s4, {self.cfg.spin[1]}\ns_cbranch_scc1 {L}")
                self.lq = []
        if not self.cfg.ts:
            return
        if self.cfg.ts_only:
            if not name.startswith(self.cfg.ts_only):
                return
        elif name in self.cfg.ts_skip or "_" in name or ":" in name:
            return
        if self.nts >= 16:
            return
        self.e(f"{'s_memtime' if self.cfg.ts == 'cyc' else 's_memrealtime'} s[4:5]\ns_waitcnt lgkmcnt(0)\ns_mov_b32 s{sTS + self.nts}, s4")
        self.lq = []
        self.tsnames.append(name)
        self.nts += 1

    def dual(self, fast, slow, nvm):
        ls, lj = self.label("slow"), self.label("join")
        self.e(f"s_cmp_lg_u32 s{sMode}, 0\ns_cbranch_scc1 {ls}")
        self.e(fast)
        self.e(f"{lj}:")
        self.tail.append(f"{ls}:\n{slow}\ns_branch {lj}")
        self.vmq += [None] * nvm

    def signal(self, ftype, val, local):
        self.e(f"v_mov_b32 v{vt1}, {val}")
        st = f"s_mov_b64 exec, {1 << ftype}\nbuffer_store_dword v{vt1}, v{vFl}, {sr(sWS, 4)}, 0 offen%s\ns_mov_b64 exec, -1"
        if local:
            self.dual(st % "", "buffer_wbl2 sc1\ns_waitcnt vmcnt(0)\n" + st % " sc1", 1)
        else:
            self.e(st % " sc1")
            self.vmq.append(None)

    def poll(self, voff, soff, val, local, sleep=0):
        L = self.label("poll")
        ld = f"buffer_load_dword v%d, v{voff}, {sr(sWS, 4)}, s{soff} offen sc1"
        if self.cfg.poll2 and not sleep:
            Ld = self.label("polld")
            self.e(f"s_mov_b32 s{sTO}, {TIMEOUT}")
            self.e(ld % vt1)
            self.e(f"s_nop {self.cfg.poll2}\n{L}:")
            self.e(ld % vIdx)
            self.e(f"s_sub_u32 s{sTO}, s{sTO}, 1\ns_cbranch_scc1 L_exit\ns_waitcnt vmcnt(1)")
            self.e(f"v_cmp_gt_u32 vcc, {val}, v{vt1}\ns_nop 0\ns_cbranch_vccz {Ld}")
            self.e(ld % vt1)
            self.e("s_waitcnt vmcnt(1)")
            self.e(f"v_cmp_gt_u32 vcc, {val}, v{vIdx}\ns_nop 0\ns_cbranch_vccnz {L}\n{Ld}:")
            for t in self.vmq:
                self.waited[t] = self.waited.get(t, 0) + 1
            self.vmq = [None]
        else:
            self.e(f"s_mov_b32 s{sTO}, {TIMEOUT}\n{L}:")
            self.e(ld % vt1)
            self.e(f"s_sub_u32 s{sTO}, s{sTO}, 1\ns_cbranch_scc1 L_exit")
            if sleep:
                self.e(f"s_sleep {sleep}")
            self.vwait0()
            self.e(f"v_cmp_gt_u32 vcc, {val}, v{vt1}\ns_nop 0\ns_cbranch_vccnz {L}")
        if local:
            self.dual("", "buffer_inv sc1\ns_waitcnt vmcnt(0)", 0)

    def salu(self, text):
        self.e(text)

    def prologue(self):
        g = self
        g.e("s_cmp_ge_u32 s2, 256\ns_cbranch_scc1 L_exit")
        g.stamp("entry")
        g.e("s_load_dwordx16 s[64:79], s[0:1], 0\ns_load_dwordx4 s[80:83], s[0:1], 64")
        g.e(f"v_lshrrev_b32 v{vt0}, 6, v0\nv_and_b32 v{vt1}, 63, v0")
        g.e(f"v_readfirstlane_b32 s{sW}, v{vt0}")
        g.e(f"v_lshlrev_b32 v{vL4}, 2, v{vt1}\nv_lshlrev_b32 v{vL16}, 4, v{vt1}")
        g.e(f"""
        s_and_b32 s{sX}, s2, 7
        s_lshr_b32 s{sC}, s2, 3
        s_and_b32 s{sHP}, s{sC}, 15
        s_xor_b32 s{sHP}, s{sHP}, {g.cfg.hpx}
        s_lshr_b32 s{t0}, s{sC}, 4
        s_lshl_b32 s{t0}, s{t0}, 2
        s_add_u32 s{t0}, s{t0}, s{sW}
        s_lshl_b32 s{t1}, s{sX}, 3
        s_add_u32 s{sT}, s{t1}, s{t0}
        """)
        if g.cfg.cpf == 2:
            g.code_prefetch()

    def prologue2(self):
        g = self
        g.e(f"""
        s_and_b32 s{sCB}, s{sC}, 7
        s_lshr_b32 s{t2}, s{sC}, 3
        s_lshl_b32 s{t2}, s{t2}, 1
        s_lshl_b32 s{t3}, s{sX}, 3
        s_add_u32 s{t2}, s{t2}, s{t3}
        s_lshr_b32 s{t3}, s{sW}, 1
        s_add_u32 s{sTA}, s{t2}, s{t3}
        s_xor_b32 s{sTB}, s{sTA}, 1
        s_and_b32 s{sNA}, s{sW}, 1
        s_mov_b32 s{sMask}, 0xffff0000
        s_mov_b32 s{sVM}, 0x0000ffff
        s_mov_b32 s{sVM + 1}, 0x0000ffff
        s_mov_b32 s{sMode}, 1
        s_and_b32 s{t2}, s{sT}, 7
        """)
        g.e(f"v_mov_b32 v{vFl}, 0")
        g.e(f"""
        s_lshl_b32 s{t4}, s{sX}, 4
        s_add_u32 s{t4}, s{t4}, s{sHP}
        s_lshl_b32 s{t4}, s{t4}, 7
        s_lshl_b32 s{t5}, s{t2}, 2
        s_add_u32 s{t4}, s{t4}, s{t5}
        s_add_u32 s{t4}, s{t4}, {FA_L}
        v_writelane_b32 v{vFl}, s{t4}, 0
        s_lshl_b32 s{t4}, s{sHP}, 3
        s_add_u32 s{t4}, s{t4}, s{sX}
        s_lshl_b32 s{t4}, s{t4}, 7
        s_add_u32 s{t4}, s{t4}, s{t5}
        s_add_u32 s{t4}, s{t4}, {FA_G}
        v_writelane_b32 v{vFl}, s{t4}, 1
        s_lshl_b32 s{t4}, s{sX}, 2
        s_add_u32 s{t4}, s{t4}, s{sW}
        s_lshl_b32 s{t4}, s{t4}, 2
        s_lshr_b32 s{t5}, s{sC}, 3
        s_add_u32 s{t4}, s{t4}, s{t5}
        s_lshl_b32 s{t4}, s{t4}, 7
        s_lshl_b32 s{t5}, s{sCB}, 2
        s_add_u32 s{t4}, s{t4}, s{t5}
        s_add_u32 s{t4}, s{t4}, {FB}
        v_writelane_b32 v{vFl}, s{t4}, 2
        s_lshl_b32 s{t4}, s{sTA}, 7
        s_lshl_b32 s{t5}, s{sCB}, 1
        s_add_u32 s{t5}, s{t5}, s{sNA}
        s_lshl_b32 s{t5}, s{t5}, 2
        s_add_u32 s{t4}, s{t4}, s{t5}
        s_add_u32 s{t5}, s{t4}, {FC}
        v_writelane_b32 v{vFl}, s{t5}, 3
        s_add_u32 s{t5}, s{t4}, {FE}
        v_writelane_b32 v{vFl}, s{t5}, 5
        s_lshr_b32 s{t4}, s{sT}, 1
        s_lshl_b32 s{t4}, s{t4}, 2
        s_lshr_b32 s{t5}, s{sHP}, 2
        s_add_u32 s{t4}, s{t4}, s{t5}
        s_lshl_b32 s{t4}, s{t4}, 7
        s_and_b32 s{t5}, s{sT}, 1
        s_lshl_b32 s{t5}, s{t5}, 2
        s_and_b32 s{t7}, s{sHP}, 3
        s_add_u32 s{t5}, s{t5}, s{t7}
        s_lshl_b32 s{t5}, s{t5}, 2
        s_add_u32 s{t4}, s{t4}, s{t5}
        s_add_u32 s{t4}, s{t4}, {FD}
        v_writelane_b32 v{vFl}, s{t4}, 4
        s_lshr_b32 s{t4}, s2, 2
        s_lshl_b32 s{t4}, s{t4}, 7
        s_and_b32 s{t5}, s2, 3
        s_lshl_b32 s{t5}, s{t5}, 2
        s_add_u32 s{t4}, s{t4}, s{t5}
        s_add_u32 s{t4}, s{t4}, {FR}
        v_writelane_b32 v{vFl}, s{t4}, 6
        s_lshl_b32 s{t4}, s{sX}, 5
        s_add_u32 s{t4}, s{t4}, s{sC}
        s_lshl_b32 s{t4}, s{t4}, 2
        s_add_u32 s{t4}, s{t4}, {FX}
        v_writelane_b32 v{vFl}, s{t4}, 7
        """)

    def zero_flags(self):
        g = self
        L = g.label("zf")
        g.e(f"s_cmp_lt_u32 s2, 8\ns_cbranch_scc0 {L}")
        g.e("v_mov_b32 v248, 0\nv_mov_b32 v249, 0\nv_mov_b32 v250, 0\nv_mov_b32 v251, 0")
        g.e(f"s_lshl_b32 s{t2}, s2, 2\ns_add_u32 s{t2}, s{t2}, s{sW}\ns_mul_i32 s{t2}, s{t2}, 3072")
        for i in range(3):
            g.e(g.st_text(vr(248, 4), vL16, sWS, t2, 1024 * i, "sc1"))
        g.e(f"{L}:")

    def code_prefetch(self):
        g = self
        g.e(f"""
        s_getpc_b64 s[4:5]
        L_pc:
        s_lshl_b32 s{t8}, s{sC}, 2
        s_add_u32 s{t8}, s{t8}, s{sW}
        s_and_b32 s{t8}, s{t8}, 15
        s_lshl_b32 s{t8}, s{t8}, 13
        v_lshlrev_b32 v{vt2}, 3, v{vL16}
        v_add_u32 v{vt2}, s{t8}, v{vt2}
        v_min_u32 v{vt2}, L_end-L_pc-4, v{vt2}
        """)
        g.vm(f"global_load_dword v255, v{vt2}, s[4:5]", "cpf")

    def code_touch(self, skip, nblk, va, vd):
        g = self
        L = g.label("pc")
        g.e(f"""
        s_getpc_b64 s[4:5]
        {L}:
        s_lshl_b32 s{sTO}, s{sC}, 2
        s_add_u32 s{sTO}, s{sTO}, s{sW}
        s_and_b32 s{sTO}, s{sTO}, {nblk - 1}
        s_lshl_b32 s{sTO}, s{sTO}, 11
        s_add_u32 s{sTO}, s{sTO}, {skip}
        v_and_b32 v{va}, 0x3c0, v{vL16}
        v_lshl_add_u32 v{va}, v{va}, 1, s{sTO}
        v_min_u32 v{va}, L_end-{L}-4, v{va}
        """)
        g.vm(f"global_load_dword v{vd}, v{va}, s[4:5]", "pf")

    def handshake_send(self):
        g = self
        L = g.label("hs")
        g.e(f"s_cmp_lt_u32 s2, 8\ns_cbranch_scc0 {L}")
        g.e(f"s_lshl_b32 s{t9}, s2, 2\ns_add_u32 s{t9}, s{t9}, s{sW}\ns_lshl_b32 s{t9}, s{t9}, 2")
        g.e(f"v_mov_b32 v{vt1}, 1\nv_mov_b32 v{vt2}, s{t9}\ns_mov_b64 exec, 1")
        g.e(f"buffer_store_dword v{vt1}, v{vt2}, {sr(sDBG, 4)}, 0 offen sc1\ns_mov_b64 exec, -1\n{L}:")

    def late_check(self, tag, ld_text, chk, sleep):
        g = self
        ls, lj, lp = g.label("lslow"), g.label("ljoin"), g.label("lp")
        g.vwait(tag)
        g.e(chk + f"\ns_nop 0\ns_cbranch_vccnz {ls}\n{lj}:")
        g.tail.append(f"""{ls}:
        s_mov_b32 s{sTO}, {TIMEOUT}
        {lp}:
        {"s_sleep " + str(sleep) if sleep else ""}
        {ld_text}
        s_sub_u32 s{sTO}, s{sTO}, 1
        s_cbranch_scc1 L_exit
        s_waitcnt vmcnt(0)
        {chk}
        s_nop 0
        s_cbranch_vccnz {lp}
        s_branch {lj}""")

    def handshake_load(self):
        self.e(f"v_and_b32 v254, 0x7c, v{vL4}")
        self.ld(vr(vt1), 254, sDBG, None, 0, tag="hs", w=1)

    def handshake_check(self):
        self.late_check("hs", f"v_and_b32 v254, 0x7c, v{vL4}\nbuffer_load_dword v{vt1}, v254, {sr(sDBG, 4)}, 0 offen sc1",
                        f"v_cmp_eq_u32 vcc, 0, v{vt1}", 8)

    def xcc_send(self):
        g = self
        L = g.label("xs")
        g.e(f"s_cmp_eq_u32 s{sW}, 0\ns_cbranch_scc0 {L}")
        g.e(f"s_getreg_b32 s{t11}, hwreg(HW_REG_XCC_ID, 0, 4)\ns_or_b32 s{t11}, s{t11}, 0x80\nv_mov_b32 v{vt1}, s{t11}")
        g.e(f"s_mov_b64 exec, 0x80\nbuffer_store_dword v{vt1}, v{vFl}, {sr(sWS, 4)}, 0 offen sc1\ns_mov_b64 exec, -1\n{L}:")

    def xcc_load(self, vd=vt2, va=vt3, st=t7):
        g = self
        g.e(f"v_and_b32 v{va}, 0x7c, v{vL4}\ns_lshl_b32 s{st}, s{sX}, 7\ns_add_u32 s{st}, s{st}, {FX}")
        g.ld(vr(vd), va, sWS, st, 0, tag="xcc", w=1)

    def xcc_check(self, vd=vt2, va=vt3, st=t7):
        g = self
        g.late_check("xcc", f"s_lshl_b32 s{st}, s{sX}, 7\ns_add_u32 s{st}, s{st}, {FX}\nbuffer_load_dword v{vd}, v{va}, {sr(sWS, 4)}, s{st} offen sc1",
                     f"v_cmp_eq_u32 vcc, 0, v{vd}", 8)
        g.e(f"""
        v_readfirstlane_b32 s{st}, v{vd}
        s_nop 1
        v_cmp_ne_u32 vcc, s{st}, v{vd}
        s_nop 1
        s_cmp_lg_u64 vcc, 0
        s_cselect_b32 s{sMode}, 1, 0
        """)
        if g.cfg.force_slow:
            g.e(f"s_mov_b32 s{sMode}, 1")

    def stats_tail(self, s1, s2, rs, cden, BX):
        def rnd(r):
            return [f"v_cvt_pk_bf16_f32 v{r}, v{r}, v{r}", f"v_lshlrev_b32 v{r}, 16, v{r}"]
        return [
            f"v_mul_f32 v{s1}, {f2u(-1 / 512):#x}, v{s1}",
            f"v_mul_f32 v{s2}, {f2u(1 / 512):#x}, v{s2}",
            f"v_fma_f32 v{s2}, -v{s1}, v{s1}, v{s2}",
            f"v_max_f32 v{s2}, 0, v{s2}"] + rnd(s2) + [
            f"v_add_f32 v{s2}, {f2u(1e-5):#x}, v{s2}"] + rnd(s2) + [
            f"v_sqrt_f32 v{s2}, v{s2}",
            f"v_cvt_pk_bf16_f32 v{BX}, v{s1}, v{s1}"] + rnd(s2) + [
            f"v_rcp_f32 v{rs}, v{s2}",
            f"v_mul_f32 v{cden}, v{s2}, v{s2}",
            f"v_mov_b32 v{BX + 1}, v{BX}",
            f"v_mov_b32 v{BX + 2}, v{BX}",
            f"v_mov_b32 v{BX + 3}, v{BX}",
        ]

    def stats_ops(self, SB, rs, cden, BX):
        ops = [("v", "stat")]
        n = 16
        while n > 1:
            n //= 2
            for i in range(n):
                ops.append(f"v_add_f32 v{SB + i}, v{SB + i}, v{SB + n + i}")
        ops += [f"v_mov_b32 v{SB + 1}, v{SB}", "s_nop 1", f"v_permlane32_swap_b32 v{SB}, v{SB + 1}"]
        return ops + self.stats_tail(SB, SB + 1, rs, cden, BX)

    def take(self, side, n, exact=False):
        while n > 0 and side:
            o = side.popleft()
            if o is None:
                n -= 1
            elif isinstance(o, tuple):
                (self.vwait if o[0] == "v" else self.lwait)(o[1])
            elif callable(o):
                o()
                n -= 1
            else:
                c = 2 if o.startswith(("v_exp", "v_rcp", "v_rsq", "v_sqrt")) else 1
                if exact and c > n:
                    side.appendleft(o)
                    break
                self.e(o)
                n -= c

    def load_x_stats(self, layer, which, xoff, X, SB, up):
        g = self
        g.e(f"s_lshl_b32 s{t0}, s{sT}, 12\ns_add_u32 s{t0}, s{t0}, {aST(layer, which)}")
        g.e(f"s_lshl_b32 s{t1}, s{sT}, 15\ns_add_u32 s{t1}, s{t1}, {xoff}")

        def pre():
            for ks in range(up):
                ldx(ks)

        def ldx(ks):
            if ks and ks % 4 == 0:
                g.e(f"s_add_u32 s{t1}, s{t1}, 4096")
            g.ld(vr(X + 4 * ks, 4), vL16, sWS, t1, (ks % 4) * 1024, tag=("x", ks))
        return (pre, [lambda ks=ks: ldx(ks) for ks in range(up, 32)],
                [lambda q=q: g.ld(vr(SB + 4 * q, 4), vL16, sWS, t0, q * 1024, tag="stat") for q in range(4)])

    def l2_prefetch(self, sbase, nbytes, vtmp):
        g = self
        ops = [lambda: g.e(f"v_and_b32 v{vtmp}, 0x3c0, v{vL16}\nv_lshlrev_b32 v{vtmp}, 1, v{vtmp}")]
        assert nbytes % 2048 == 0
        for i in range(nbytes // 2048):
            def op(i=i):
                if i and i % 2 == 0:
                    g.e(f"s_add_u32 s{sbase}, s{sbase}, 4096")
                g.ld(vr(vtmp + 1), vtmp, sWS, sbase, (i % 2) * 2048, mods="sc1", tag="pf", w=1)
            ops.append(op)
        return ops

    def touch_ops(self, salu, sreg, n, vadr, vdst):
        g = self
        ops = [lambda t=t: g.e(t) for t in salu]
        for i in range(n):
            def op(i=i):
                if i and i % 2 == 0:
                    g.e(f"s_add_u32 s{sreg}, s{sreg}, 4096")
                g.ld(vr(vdst), vadr, sWS, sreg, (i % 2) * 2048, mods="sc1", tag="pf", w=1)
            ops.append(op)
        return ops

    def h_addr(self, layer, a, b):
        return [f"s_mul_i32 s{a}, s{sT}, {112 * 1024}\ns_mul_i32 s{b}, s{sHP}, 7168", f"s_add_u32 s{a}, s{a}, s{b}\ns_add_u32 s{a}, s{a}, {aH(layer)}"]

    def x_addr(self, layer, which, a, b):
        x = [f"s_lshl_b32 s{a}, s{sTA}, 4\ns_lshl_b32 s{b}, s{sCB}, 1", f"s_add_u32 s{a}, s{a}, s{b}\ns_add_u32 s{a}, s{a}, s{sNA}",
             f"s_lshl_b32 s{a}, s{a}, 11\ns_add_u32 s{a}, s{a}, {aX(layer, which)}"]
        st = [f"s_lshl_b32 s{a}, s{sTA}, 2\ns_lshr_b32 s{b}, s{sCB}, 1", f"s_add_u32 s{a}, s{a}, s{b}\ns_lshl_b32 s{a}, s{a}, 10",
              f"s_add_u32 s{a}, s{a}, {aST(layer, which)}"]
        return x, st

    def dma_ops(self, first, count, gsoff_expr, lds_base, tag, ts):
        g = self
        a, b = ts
        ops = []
        uid = g.label("dma")

        def setup():
            g.e(f"s_mul_i32 s{a}, s{sW}, {count * 1024}")
            g.e(f"s_add_u32 s{b}, s{a}, s{gsoff_expr}")
        ops.append(SOp(setup))

        def setup2():
            g.e(f"s_add_u32 s{b}, s{b}, {first * 1024}\ns_add_u32 s{a}, s{a}, {lds_base}")
        ops.append(SOp(setup2))
        for i in range(count):
            if i % 4 == 0 and i:
                ops.append(SOp(lambda: g.e(f"s_add_u32 s{a}, s{a}, 4096\ns_add_u32 s{b}, s{b}, 4096")))

            def op(i=i):
                if g.m0_owner != (uid, i // 4):
                    g.e(f"s_mov_b32 m0, s{a}\ns_nop 0")
                    g.m0_owner = (uid, i // 4)
                g.dma(vL16, sWS, b, (i % 4) * 1024, mods=g.cfg.wmods, tag=tag)
            ops.append(op)
        return ops

    @property
    def D_AX(self):
        return [208, 212, 216, 220, 224, 244, 252] if self.cfg.passes[0] == (0, 4) else [208, 212, 216, 224, 228, 232, 236]

    @property
    def D_AXPRE(self):
        return (0, 1, 2, 6) if self.cfg.passes[0] == (0, 4) else (0, 1, 2)

    A_X, A_ACC = 16, {"q": 144, "k": 160, "v": 176}
    A_P, A_AX = 208, {"k": 208, "v": 212, "q": 232}
    A_RS, A_CD, A_KA, A_VA, A_BX, A_QM, A_RC = 240, 241, 242, 243, 220, 252, 192

    def a_addr(self, layer):
        g = self
        vK, vV = g.A_KA, g.A_VA
        g.e(f"""
        v_lshrrev_b32 v{vt0}, 4, v{vL16}
        v_and_b32 v{vt2}, 0x33, v{vt0}
        v_bfe_u32 v{vt3}, v{vt0}, 2, 1
        v_lshl_add_u32 v{vt2}, v{vt3}, 3, v{vt2}
        v_bfe_u32 v{vt3}, v{vt0}, 3, 1
        v_lshl_add_u32 v{vt2}, v{vt3}, 2, v{vt2}
        v_lshlrev_b32 v{vK}, 4, v{vt2}
        v_bfe_u32 v{vt2}, v{vt0}, 4, 1
        v_lshlrev_b32 v{vV}, 17, v{vt2}
        v_lshrrev_b32 v{vt2}, 5, v{vt0}
        v_lshl_add_u32 v{vV}, v{vt2}, 8, v{vV}
        v_and_b32 v{vt2}, 15, v{vt0}
        v_lshl_add_u32 v{vV}, v{vt2}, 4, v{vV}
        """)

    def a_saddr(self, layer, hp=sHP, tt=sT):
        return [
            f"s_lshl_b32 s{t11}, s{hp}, 7", f"s_add_u32 s{t11}, s{t11}, s{tt}",
            f"s_lshl_b32 s{t7}, s{t11}, 11", f"s_add_u32 s{t7}, s{t7}, {aKV(layer)}", f"s_add_u32 s{t8}, s{t7}, 0x20000",
            f"s_lshl_b32 s{t9}, s{tt}, 4", f"s_add_u32 s{t9}, s{t9}, s{hp}", f"s_lshl_b32 s{t9}, s{t9}, 11",
            f"s_add_u32 s{t9}, s{t9}, {aQ(layer)}"]

    def a_rc_ops(self, sarea):
        g = self
        RC = g.A_RC
        ops = [f"v_and_b32 v{vt0}, 0x7c, v{vL4}", f"v_add_u32 v{vt0}, s{sarea}, v{vt0}",
               lambda: g.ds(f"ds_write_b32 v{vt0}, v{g.A_RS}", "rcw"),
               f"v_lshrrev_b32 v{vt0}, 9, v{vL16}", f"v_lshlrev_b32 v{vt0}, 4, v{vt0}", f"v_add_u32 v{vt0}, s{sarea}, v{vt0}",
               f"v_mul_f32 v{g.A_QM}, {f2u(0.25 * LOG2E):#x}, v{g.A_RS}"]
        for j in range(4):
            ops.append(lambda j=j: g.ds(f"ds_read_b128 {vr(RC + 4 * j, 4)}, v{vt0} offset:{32 * j}", "rc"))
        return ops

    def a_epi(self, n, qmods=''):
        g = self
        A = g.A_ACC[n]
        P = g.A_P + {"k": 0, "v": 8, "q": 16}[n]
        ops = [("l", "rc")] if n == "v" else []
        for h in range(2):
            for i in range(8 * h, 8 * h + 8):
                m = {"k": g.A_RS, "q": g.A_QM, "v": g.A_RC + i}[n]
                ops.append(f"v_mul_f32 v{A + i}, v{m}, v{A + i}")
            for i in range(4 * h, 4 * h + 4):
                ops.append(f"v_cvt_pk_bf16_f32 v{P + i}, v{A + 2 * i}, v{A + 2 * i + 1}")
            if n == "k":
                ops.append(lambda h=h: g.st(vr(P + 4 * h, 4), g.A_KA, sWS, (t7, t8)[h], 0, "sc1"))
            elif n == "v":
                ops.append(lambda h=h: g.st(vr(P + 4 * h, 4), g.A_VA, sWS, t7, 1024 + 512 * h, "sc1"))
            else:
                ops.append(lambda h=h: g.st(vr(P + 4 * h, 4), vL16, sWS, t9, 1024 * h, qmods))
        return ops

    def a_mfma(self, n, w, x, first):
        acc = vr(self.A_ACC[n], 16)
        a_, b_ = (x, w) if n == "v" else (w, x)
        self.e(f"v_mfma_f32_32x32x16_bf16 {acc}, {a_}, {b_}, {'0' if first else acc}")

    def phaseA0(self):
        g = self
        X, S1, S2 = g.A_X, 192, 208
        vo0, vo1, vRd, vRs, vWd, vTr = 224, 225, 226, 230, 232, 236
        CS, ONE = 0, 48
        LW = 65536
        g.e(f"""
        v_lshrrev_b32 v{vt0}, 4, v{vL16}
        v_lshrrev_b32 v{vt2}, 3, v{vt0}
        v_lshlrev_b32 v{vo0}, 10, v{vt2}
        v_lshrrev_b32 v{vt2}, 1, v{vt2}
        v_and_b32 v{vt3}, 7, v{vt0}
        v_xor_b32 v{vt2}, v{vt2}, v{vt3}
        v_lshl_add_u32 v{vo0}, v{vt2}, 4, v{vo0}
        v_xor_b32 v{vo1}, 64, v{vo0}
        s_lshl_b32 s{t0}, s{sT}, 15
        {g.cfg.rot.format(t1=t1, sHP=sHP, sC=sC, sX=sX)}
        s_lshl_b32 s{t6}, s{sW}, 14
        s_lshl_b32 s6, s{sHP}, 6
        s_mul_i32 s7, s{sW}, 3072
        s_add_u32 s7, s7, {LW}
        """)
        for i in range(3):
            r = vWd + i
            g.e(f"""
            v_add_u32 v{vt2}, {64 * i}, v{vt0}
            v_mul_u32_u24 v{vt3}, 0x1556, v{vt2}
            v_lshrrev_b32 v{vt3}, 16, v{vt3}
            v_mul_u32_u24 v{r}, 12, v{vt3}
            v_sub_u32 v{vt2}, v{vt2}, v{r}
            v_mul_u32_u24 v{r}, 3072, v{vt3}
            v_lshrrev_b32 v{vt3}, 2, v{vt2}
            v_lshl_add_u32 v{r}, v{vt3}, 10, v{r}
            v_and_b32 v{vt2}, 3, v{vt2}
            v_lshl_add_u32 v{r}, v{vt2}, 4, v{r}
            """)
        g.e("s_waitcnt lgkmcnt(0)")
        g.srd(sXIN, pX, 2048 * 1024)
        g.srd(sWQ, pWQ, 512 * 3072)
        g.stamp("start")

        def grp_ops(c):
            ops = []
            for j in range(4):
                def op(j=j):
                    if j == 0:
                        g.e(f"s_add_u32 s{t2}, s{t1}, {c}\ns_and_b32 s{t2}, s{t2}, 7\ns_lshl_b32 s3, s{t2}, 7\ns_add_u32 s3, s3, s{t0}")
                    g.e(f"s_add_u32 s{t5}, s{t6}, {(c % 4) * 4096 + j * 1024}\ns_mov_b32 m0, s{t5}")
                    g.e("s_add_u32 s3, s3, 8192" if j else "s_nop 0")
                    g.dma((vo0, vo1)[j % 2], sXIN, 3, 0, mods="", tag=("xc", c))
                ops.append(op)
            for i in range(3):
                def op(i=i):
                    if i == 0:
                        g.e(f"s_add_u32 s{t2}, s{t1}, {c}\ns_and_b32 s{t2}, s{t2}, 7\ns_lshl_b32 s{t2}, s{t2}, 2")
                        g.e(f"s_add_u32 s{t2}, s{t2}, s{sW}\ns_mul_i32 s3, s{t2}, 49152\ns_add_u32 s3, s3, s6")
                    g.e(f"s_add_u32 s{t5}, s7, {(c % 5) * 4 * 3072 + i * 1024}\ns_mov_b32 m0, s{t5}\ns_nop 0")
                    g.dma(vWd + i, sWQ, 3, 0, mods="", tag=("w", c))
                ops.append(op)
            return ops
        if g.cfg.warm:
            g.e(f"""
            s_lshl_b32 s{t2}, s{sC}, 2
            s_add_u32 s{t2}, s{t2}, s{sW}
            s_mul_i32 s{t3}, s{t2}, 12288
            s_lshl_b32 s{t2}, s{t2}, 11
            s_lshl_b32 s{t4}, s{sX}, 18
            s_add_u32 s{t2}, s{t2}, s{t4}
            v_lshlrev_b32 v254, 3, v{vL16}
            v_and_b32 v253, 0x780, v254
            """)
            if g.cfg.warm == 2:
                for op in grp_ops(0):
                    op()
            g.ld("v255", 253, sXIN, t2, 0, mods="", w=1)
            if g.cfg.warm == 5:
                g.e(f"v_lshrrev_b32 v252, 6, v{vL16}\nv_min_u32 v252, 11, v252\nv_lshlrev_b32 v252, 10, v252")
                g.ld("v255", 252, sWQ, t3, 384, mods="", w=1)
            if g.cfg.warm >= 3:
                g.e(f"s_lshl_b32 s{t3}, s2, 2\ns_add_u32 s{t3}, s{t3}, s{sW}\ns_mul_i32 s{t3}, s{t3}, 1536")
                g.ld("v255", 253, sWQ, t3, 0, mods="", w=1)
            else:
                g.ld("v255", 254, sWQ, t3, 0, mods="", w=1)
                g.e(f"v_and_b32 v254, 0xf80, v254\ns_add_u32 s{t3}, s{t3}, 8192")
                g.ld("v255", 254, sWQ, t3, 0, mods="", w=1)
        if g.cfg.warm != 2:
            for op in grp_ops(0):
                op()
        g.srd(sWS, pWS, WS_BYTES - g.cfg.ws_off)
        if g.cfg.ws_off:
            g.e(f"s_add_u32 s{sWS}, s{sWS}, {g.cfg.ws_off}\ns_addc_u32 s{sWS + 1}, s{sWS + 1}, 0")
        g.srd(sDBG, pDBG, 256)
        g.zero_flags()
        if not g.cfg.defer:
            g.prologue2()
        g.e(f"""
        v_and_b32 v{vt2}, 31, v{vt0}
        v_lshrrev_b32 v{vt3}, 5, v{vt0}
        v_bfe_u32 v{vt1}, v{vt0}, 1, 3
        v_xor_b32 v{vt1}, v{vt1}, v{vt3}
        v_lshlrev_b32 v{vt1}, 4, v{vt1}
        v_lshl_add_u32 v{vt1}, v{vt2}, 7, v{vt1}
        v_add_u32 v{vt1}, s{t6}, v{vt1}
        """)
        for i in range(4):
            g.e(f"s_add_u32 s{t2}, s{sW}, {i}\ns_and_b32 s{t2}, s{t2}, 3\ns_lshl_b32 s{t2}, s{t2}, 5\nv_xor_b32 v{vRd + i}, s{t2}, v{vt1}")
        g.e(f"""
        v_lshrrev_b32 v{vt2}, 5, v{vt0}
        v_lshlrev_b32 v{vt2}, 3, v{vt2}
        v_bfe_u32 v{vt3}, v{vt0}, 2, 2
        v_add_u32 v{vt2}, v{vt2}, v{vt3}
        v_mul_u32_u24 v{vt1}, 192, v{vt2}
        v_bfe_u32 v{vt3}, v{vt0}, 4, 1
        v_lshl_add_u32 v{vt1}, v{vt3}, 5, v{vt1}
        v_and_b32 v{vt3}, 1, v{vt0}
        v_lshl_add_u32 v{vt1}, v{vt3}, 4, v{vt1}
        v_bfe_u32 v{vt3}, v{vt0}, 1, 1
        v_lshl_add_u32 v{vt1}, v{vt3}, 3, v{vt1}
        """)
        for i in range(4):
            g.e(f"s_add_u32 s{t2}, s{sW}, {i}\ns_and_b32 s{t2}, s{t2}, 3\ns_mul_i32 s{t2}, s{t2}, 3072\ns_add_u32 s{t2}, s{t2}, {LW}\nv_add_u32 v{vTr + i}, s{t2}, v{vt1}")
        g.e(f"v_mov_b32 v{vt1}, 0x3f803f80")
        for i in range(4):
            g.e(f"v_accvgpr_write_b32 a{ONE + i}, v{vt1}")
        if not g.cfg.setup_first:
            for op in grp_ops(1):
                op()
        g.stamp("A0_d1")
        if not g.cfg.defer:
            g.a_addr(0)
            g.relayout_setup(0)
            g.relayout_setup(1)
        if g.cfg.setup_first:
            for op in grp_ops(1):
                op()
        if g.cfg.cpf == 1:
            g.code_prefetch()
        g.stamp("A0_i")
        if not g.cfg.g2_late:
            for op in grp_ops(2):
                op()
        if g.cfg.warm == 4:
            g.e(f"s_lshl_b32 s{t3}, s{sC}, 2\ns_add_u32 s{t3}, s{t3}, s{sW}\ns_mul_i32 s{t3}, s{t3}, 12288\nv_lshlrev_b32 v254, 3, v{vL16}")
            g.ld("v255", 254, sWQ, t3, 0, mods="", w=1)
            g.e(f"v_and_b32 v254, 0xf80, v254\ns_add_u32 s{t3}, s{t3}, 8192")
            g.ld("v255", 254, sWQ, t3, 0, mods="", w=1)

        def xread(c):
            return [("v", ("xc", c))] + [
                lambda i=i: g.ds(f"ds_read_b128 {vr(X + 4 * (4 * c + i), 4)}, v{vRd + i} offset:{(c % 4) * 4096}", ("x", c)) for i in range(4)]

        names = "kvq"
        seg = {"q": 0, "k": 1, "v": 2}

        def wread(f):
            st, n = divmod(f, 3)
            c, i = divmod(st, 4)
            if n == 0 and i == 0:
                g.vwait(("w", c))
                if g.cfg.rl_in_a and 0 <= c - g.cfg.rl_c1 < (1 if g.cfg.rl_split else 2):
                    assert ("rl", c - g.cfg.rl_c1) in g.vmq or ("rl", c - g.cfg.rl_c1) in g.waited
                    g.vwait(("rl", c - g.cfg.rl_c1))
                g.e("s_barrier")
            b = WB + 4 * (f % 8)
            off = (c % 5) * 12288 + seg[names[n]] * 64
            g.ds(f"ds_read_b64_tr_b16 {ar(b, 2)}, v{vTr + i} offset:{off}", ("w", f))
            g.ds(f"ds_read_b64_tr_b16 {ar(b + 2, 2)}, v{vTr + i} offset:{off + 768}", ("w", f))

        def mf4(d, a, b, first):
            g.e(f"v_mfma_f32_4x4x4_16b_bf16 {d}, {a}, {b}, {'0' if first else d}")

        def stat_mf(st):
            for hh in range(2):
                x = vr(X + 4 * st + 2 * hh, 2)
                mf4(vr(S1 + 4 * hh, 4), ar(ONE, 2), x, st == 0)
                mf4(vr(S2 + 4 * hh, 4), x, x, st == 0)
            g.take(side, g.cfg.st_take)

        side = deque(xread(0))
        g.take(side, 99)
        g.stamp("A0_x0")
        LEAD = 5
        for f in range(LEAD):
            wread(f)
        rld = g.relayout_dma_ops()
        rlo = g.relayout_out_ops(216, 52, ONE, (g.RL_V + 2, g.RL_V + 3), 231)
        wwarm = [lambda: g.e(f"v_and_b32 v253, 0x3c0, v{vL16}\nv_lshlrev_b32 v253, 1, v253\ns_lshl_b32 s{t7}, s2, 2\ns_add_u32 s{t7}, s{t7}, s{sW}")]
        for ptr, share in ((pW1, 1792), (pW3, 1792), (pW2, 1792), (pWO, 512)):
            def op(ptr=ptr, share=share):
                g.srd(sWQ, ptr, share * 1024)
                g.e(f"s_mul_i32 s{t8}, s{t7}, {share}")
                if share < 1792:
                    g.e("v_and_b32 v253, 0x180, v253")
                g.ld("v255", 253, sWQ, t8, 0, mods="", w=1)
            wwarm.append(op)
        XA = 8192
        for c in range(8):
            if c == 0 and g.cfg.g2_late:
                side.extend(grp_ops(2))
            if c + 3 < 8:
                side.extend(grp_ops(c + 3))
            if c == 0 and g.cfg.g2_late:
                side.extend(xread(1) + [g.handshake_send])
            elif c == 0:
                side.extendleft(reversed(xread(1) + [g.handshake_send]))
            elif c + 1 < 8:
                side.extend(xread(c + 1))
            if g.cfg.defer:
                for cc, fn in zip(g.cfg.defer, (lambda: g.relayout_setup(0), lambda: g.relayout_setup(1), g.prologue2, lambda: g.a_addr(0))):
                    if cc == c:
                        side.appendleft(fn)
            if c == 3:
                side.appendleft(g.handshake_load)
            if g.cfg.rl_in_a:
                if c == g.cfg.rl_c0:
                    side.extend(rld[:4])
                if c == g.cfg.rl_c0 + 1 and not g.cfg.rl_split:
                    side.extend(rld[4:])
                u = c - g.cfg.rl_c1
                if 0 <= u < (1 if g.cfg.rl_split else 2):
                    oo = [o for o, _ in rlo[13 * u:13 * u + 13]]
                    for k in range(4):
                        side.extend([oo[3 * k], None, None, oo[3 * k + 1], oo[3 * k + 2]])
                    side.extend([None] * 4 + [oo[12]])
            if c == 6 and g.cfg.xcc_early:
                side.append(lambda: g.xcc_load(250, 251, t4))
            if c == 4:
                side.append(g.handshake_check)
                if g.cfg.xcc_early:
                    side.append(g.xcc_send)
                if not g.cfg.rl_in_b and not g.cfg.rl_in_a:
                    side.extend(rld)
            if g.cfg.tlb and c == g.cfg.tlb[0]:
                def tlb():
                    g.e(f"v_lshlrev_b32 v253, {g.cfg.tlb[1] - 4}, v{vL16}\nv_min_u32 v253, 0x1dfff80, v253")
                    g.ld("v250", 253, sWS, None, 0, mods="", w=1)
                side.append(tlb)
            if c == g.cfg.warm_w:
                side.extend(wwarm)
            if c == 6:
                side.extend(g.a_saddr(0))
            g.lwait(("x", c))
            if c == 7:
                for i in range(4):
                    stat_mf(28 + i)
                sel = [f"v_add_f32 v{S1}, v{S1}, v{S1 + 4}"] + [f"v_add_f32 v{S2 + r}, v{S2 + r}, v{S2 + 4 + r}" for r in range(4)]
                for m, stp in ((0xaaaaaaaa, 1), (0xcccccccc, 2)):
                    sel += [f"s_mov_b32 s{t2}, {m:#x}", f"s_mov_b32 s{t3}, {m:#x}"]
                    sel += [f"v_cndmask_b32 v{S2 + r}, v{S2 + r}, v{S2 + r + stp}, s[{t2}:{t3}]" for r in range(0, 4, 2 * stp)]
                sel += ["s_nop 1", f"v_permlane32_swap_b32 v{S1}, v{S2}", f"v_add_f32 v{S1}, v{S1}, v{S2}",
                        f"v_mov_b32 v{S2}, v{S1}", "s_nop 1", f"v_permlane32_swap_b32 v{S1}, v{S2}"]
                sel += g.stats_tail(S1, S2, g.A_RS, g.A_CD, g.A_BX)
                sel += [f"s_add_u32 s{t2}, s{t6}, 12288"] + g.a_rc_ops(t2)
            for i in range(4):
                st = 4 * c + i
                g.lwait(("w", 3 * st + 2))
                for n in range(3):
                    f = 3 * st + n
                    wb = ar(WB + 4 * (f % 8), 4)
                    g.a_mfma(names[n], wb, vr(X + 4 * st, 4), st == 0)
                    if i == 0 and not g.cfg.mf4_late:
                        for hh in range(2):
                            mf4(ar(CS + 8 * n + 4 * hh, 4), ar(ONE, 2), ar(WB + 4 * (f % 8) + 2 * hh, 2), c == 0)
                    if f + LEAD < 96:
                        wread(f + LEAD)
                    g.take(side, g.cfg.a0_take if c < 7 else 5)
                    if i == 0 and g.cfg.mf4_late:
                        for hh in range(2):
                            mf4(ar(CS + 8 * n + 4 * hh, 4), ar(ONE, 2), ar(WB + 4 * (f % 8) + 2 * hh, 2), c == 0)
                    if c == 7 and i == 0 and n == 1:
                        side.extend(sel)
                if c == 7 and i == 1:
                    g.e(f"s_lshl_b32 s{t4}, s{sW}, 2\ns_add_u32 s{t4}, s{t4}, {XA}\nv_add_u32 v253, s{t4}, v{vL16}")
                    for n in range(3):
                        g.e(f"""
                        v_accvgpr_read_b32 v{vt2}, a{CS + 8 * n}
                        v_accvgpr_read_b32 v254, a{CS + 8 * n + 4}
                        v_add_f32 v{vt2}, v{vt2}, v254
                        v_cvt_pk_bf16_f32 v254, v{vt2}, v{vt2}
                        v_lshlrev_b32 v254, 16, v254
                        v_sub_f32 v254, v{vt2}, v254
                        v_cvt_pk_bf16_f32 v254, v{vt2}, v254
                        """)
                        g.ds(f"ds_write_b32 v253, v254 offset:{1024 * n}", "csw")
                if c < 7:
                    stat_mf(st)
            g.take(side, 99)
            g.stamp(f"A0_g{c}")
        g.lwait0()
        g.e("s_barrier")
        for n in range(3):
            g.ds(f"ds_read_b128 {vr(g.A_AX[names[n]], 4)}, v{vL16} offset:{XA + 1024 * n}", ("ax", n))
        for n in range(3):
            g.lwait(("ax", n))
            g.a_mfma(names[n], vr(g.A_AX[names[n]], 4), vr(g.A_BX, 4), False)
        side = deque(g.a_epi("k") + g.a_epi("v") + g.a_epi("q", "sc1"))
        g.take(side, 999)
        if g.cfg.xcc_early:
            g.xcc_check(250, 251, 4)
        g.stamp("A0st")

    def phaseA0b(self):
        g = self
        cfg = g.cfg
        X, S1, S2 = g.A_X, 192, 208
        vo0, vo1, vRd, vWd, vTr = 224, 225, 226, 232, 236
        CS, ONE = 0, 48
        LW = 32768
        g.e(f"""
        s_and_b32 s{sCB}, s{sC}, 7
        s_lshr_b32 s{t2}, s{sC}, 3
        s_lshl_b32 s{t2}, s{t2}, 1
        s_lshl_b32 s{t3}, s{sX}, 3
        s_add_u32 s{t2}, s{t2}, s{t3}
        s_lshr_b32 s{t3}, s{sW}, 1
        s_add_u32 s{sTA}, s{t2}, s{t3}
        s_and_b32 s{sNA}, s{sW}, 1
        v_lshrrev_b32 v{vt0}, 4, v{vL16}
        v_lshrrev_b32 v{vt2}, 3, v{vt0}
        v_lshlrev_b32 v{vo0}, 10, v{vt2}
        v_lshrrev_b32 v{vt2}, 1, v{vt2}
        v_and_b32 v{vt3}, 7, v{vt0}
        v_xor_b32 v{vt2}, v{vt2}, v{vt3}
        v_lshl_add_u32 v{vo0}, v{vt2}, 4, v{vo0}
        v_xor_b32 v{vo1}, 64, v{vo0}
        v_add_u32 v{vo1}, 7168, v{vo1}
        s_lshl_b32 s{t0}, s{sTA}, 15
        s_lshl_b32 s{t3}, s{sNA}, 14
        s_add_u32 s{t0}, s{t0}, s{t3}
        s_mov_b32 s{t1}, s{sCB}
        s_lshl_b32 s{t6}, s{sW}, 11
        s_lshl_b32 s6, s{sCB}, 7
        s_mul_i32 s7, s{sW}, 6144
        s_add_u32 s7, s7, {LW}
        """)
        for i in range(3):
            r = vWd + i
            g.e(f"""
            v_add_u32 v{vt2}, {64 * i}, v{vt0}
            v_mul_u32_u24 v{vt3}, 2731, v{vt2}
            v_lshrrev_b32 v{vt3}, 16, v{vt3}
            v_mul_u32_u24 v{r}, 24, v{vt3}
            v_sub_u32 v{vt2}, v{vt2}, v{r}
            v_mul_u32_u24 v{r}, 3072, v{vt3}
            v_and_b32 v{vt3}, 2, v{vt3}
            v_lshlrev_b32 v{vt3}, 1, v{vt3}
            v_xor_b32 v{vt2}, v{vt2}, v{vt3}
            v_lshrrev_b32 v{vt3}, 3, v{vt2}
            v_lshl_add_u32 v{r}, v{vt3}, 10, v{r}
            v_and_b32 v{vt2}, 7, v{vt2}
            v_lshl_add_u32 v{r}, v{vt2}, 4, v{r}
            """)
            if i:
                g.e(f"v_subrev_u32 v{r}, {1024 * i}, v{r}")
        g.e("s_waitcnt lgkmcnt(0)")
        g.srd(sXIN, pX, 2048 * 1024)
        g.srd(sWQ, pWQ, 512 * 3072)
        g.stamp("start")

        def grp_ops(c):
            ops = []
            for j in range(2):
                def op(j=j):
                    if j == 0:
                        g.e(f"s_add_u32 s{t2}, s{t1}, {c}\ns_and_b32 s{t2}, s{t2}, 7\ns_lshl_b32 s3, s{t2}, 7\ns_add_u32 s3, s3, s{t0}")
                        g.e(f"s_add_u32 s{t5}, s{t6}, {(c % 4) * 8192}\ns_mov_b32 m0, s{t5}\ns_nop 0")
                    g.dma((vo0, vo1)[j], sXIN, 3, 1024 * j, mods="", tag=("g", c))
                ops.append(op)
            for k in range(6):
                def op(k=k):
                    if k == 0:
                        g.e(f"s_add_u32 s{t2}, s{t1}, {c}\ns_and_b32 s{t2}, s{t2}, 7\ns_lshl_b32 s{t2}, s{t2}, 2")
                        g.e(f"s_add_u32 s{t2}, s{t2}, s{sW}\ns_mul_i32 s3, s{t2}, 49152\ns_add_u32 s3, s3, s6")
                    if k % 3 == 0:
                        g.e(f"s_add_u32 s{t5}, s7, {(c % 4) * 24576 + (k // 3) * 3072}\ns_mov_b32 m0, s{t5}")
                        g.e("s_add_u32 s3, s3, 24576" if k else "s_nop 0")
                    g.dma(vWd + k % 3, sWQ, 3, 1024 * (k % 3), mods="", tag=("g", c))
                ops.append(op)
            return ops
        g.e(f"""
        s_lshl_b32 s{t2}, s{sC}, 2
        s_add_u32 s{t2}, s{t2}, s{sW}
        s_mul_i32 s{t3}, s{t2}, 12288
        s_lshl_b32 s{t2}, s{t2}, 11
        s_lshl_b32 s{t4}, s{sX}, 18
        s_add_u32 s{t2}, s{t2}, s{t4}
        v_lshlrev_b32 v254, 3, v{vL16}
        v_and_b32 v253, 0x780, v254
        """)
        g.ld("v255", 253, sXIN, t2, 0, mods="", w=1)
        if cfg.warm == 5:
            g.e(f"v_lshrrev_b32 v252, 6, v{vL16}\nv_min_u32 v252, 11, v252\nv_lshlrev_b32 v252, 10, v252")
            g.ld("v255", 252, sWQ, t3, 384, mods="", w=1)
        g.e(f"s_lshl_b32 s{t3}, s2, 2\ns_add_u32 s{t3}, s{t3}, s{sW}\ns_mul_i32 s{t3}, s{t3}, 1536")
        g.ld("v255", 253, sWQ, t3, 0, mods="", w=1)
        for op in grp_ops(0):
            op()
        g.srd(sWS, pWS, WS_BYTES)
        g.srd(sDBG, pDBG, 256)
        g.zero_flags()
        g.prologue2()
        g.e(f"""
        v_and_b32 v{vt2}, 31, v{vt0}
        v_lshrrev_b32 v{vt3}, 5, v{vt0}
        v_bfe_u32 v{vt1}, v{vt0}, 1, 3
        v_xor_b32 v{vt1}, v{vt1}, v{vt3}
        v_lshlrev_b32 v{vt1}, 4, v{vt1}
        v_lshl_add_u32 v{vt1}, v{vt2}, 7, v{vt1}
        s_and_b32 s{t3}, s{sW}, 2
        s_lshl_b32 s{t2}, s{t3}, 11
        v_add_u32 v{vt1}, s{t2}, v{vt1}
        """)
        for i in range(4):
            g.e(f"s_add_u32 s{t2}, s{t3}, {i}\ns_and_b32 s{t2}, s{t2}, 3\ns_lshl_b32 s{t2}, s{t2}, 5\nv_xor_b32 v{vRd + i}, s{t2}, v{vt1}")
        g.e(f"""
        v_lshrrev_b32 v{vt2}, 5, v{vt0}
        v_lshlrev_b32 v{vt2}, 3, v{vt2}
        v_bfe_u32 v{vt3}, v{vt0}, 2, 2
        v_add_u32 v{vt2}, v{vt2}, v{vt3}
        v_mul_u32_u24 v{vt1}, 384, v{vt2}
        v_lshrrev_b32 v{vt3}, 1, v{vt3}
        v_xor_b32 v{vt3}, s{sNA}, v{vt3}
        v_lshl_add_u32 v{vt1}, v{vt3}, 6, v{vt1}
        v_bfe_u32 v{vt3}, v{vt0}, 4, 1
        v_lshl_add_u32 v{vt1}, v{vt3}, 5, v{vt1}
        v_and_b32 v{vt3}, 1, v{vt0}
        v_lshl_add_u32 v{vt1}, v{vt3}, 4, v{vt1}
        v_bfe_u32 v{vt3}, v{vt0}, 1, 1
        v_lshl_add_u32 v{vt1}, v{vt3}, 3, v{vt1}
        """)
        for i in range(4):
            g.e(f"s_add_u32 s{t2}, s{t3}, {i}\ns_and_b32 s{t2}, s{t2}, 3\ns_mul_i32 s{t2}, s{t2}, 6144\ns_add_u32 s{t2}, s{t2}, {LW}\nv_add_u32 v{vTr + i}, s{t2}, v{vt1}")
        g.e(f"v_mov_b32 v{vt1}, 0x3f803f80")
        for i in range(4):
            g.e(f"v_accvgpr_write_b32 a{ONE + i}, v{vt1}")
        g.stamp("A0_d1")
        g.a_addr(0)
        g.relayout_setup(0)
        g.relayout_setup(1)
        for c in range(1, cfg.a0_up):
            for op in grp_ops(c):
                op()
        g.stamp("A0_i")

        names = "kvq"
        seg = {"q": 0, "k": 1, "v": 2}
        side = deque()

        def wread(f):
            st, n = divmod(f, 3)
            c, i = divmod(st, 4)
            if n == 0 and i == 0:
                assert g.vmq.count(("g", c)) + g.waited.get(("g", c), 0) == 8
                g.vwait(("g", c))
                if 0 <= c - cfg.rl_c1 < 2:
                    assert g.vmq.count(("rl", c - cfg.rl_c1)) + g.waited.get(("rl", c - cfg.rl_c1), 0) == 4
                    g.vwait(("rl", c - cfg.rl_c1))
                g.e("s_barrier")
                for k in range(4):
                    g.ds(f"ds_read_b128 {vr(X + 4 * (4 * c + k), 4)}, v{vRd + k} offset:{(c % 4) * 8192}", ("x", c))
                if cfg.a0_up <= c + 2 < 8:
                    side.extendleft(reversed(grp_ops(c + 2)))
            if n == 0 and c in (2, 4, 6):
                g.e(f"v_add_u32 v{vTr + i}, 49152, v{vTr + i}" if c != 4 else f"v_subrev_u32 v{vTr + i}, 49152, v{vTr + i}")
            b = WB + 4 * (f % 8)
            off = (c % 2) * 24576 + seg[names[n]] * 128
            g.ds(f"ds_read_b64_tr_b16 {ar(b, 2)}, v{vTr + i} offset:{off}", ("w", f))
            g.ds(f"ds_read_b64_tr_b16 {ar(b + 2, 2)}, v{vTr + i} offset:{off + 1536}", ("w", f))

        def mf4(d, a, b, first):
            g.e(f"v_mfma_f32_4x4x4_16b_bf16 {d}, {a}, {b}, {'0' if first else d}")

        def stat_mf(st):
            for hh in range(2):
                x = vr(X + 4 * st + 2 * hh, 2)
                mf4(vr(S1 + 4 * hh, 4), ar(ONE, 2), x, st == 0)
                mf4(vr(S2 + 4 * hh, 4), x, x, st == 0)
            g.take(side, g.cfg.st_take)

        LEAD = 5
        for f in range(LEAD):
            wread(f)
        g.stamp("A0_x0")
        rld = g.relayout_dma_ops()
        rlo = g.relayout_out_ops(216, 52, ONE, (g.RL_V + 2, g.RL_V + 3), 231)
        XA = 0
        for c in range(8):
            if c == 1:
                side.append(g.handshake_send)
            if c == 3:
                side.append(g.handshake_load)
            if c == cfg.rl_c0:
                side.extend(rld[:4])
            if c == cfg.rl_c0 + 1:
                side.extend(rld[4:])
            u = c - cfg.rl_c1
            if 0 <= u < 2:
                oo = [o for o, _ in rlo[13 * u:13 * u + 13]]
                for k in range(4):
                    side.extend([oo[3 * k], None, None, oo[3 * k + 1], oo[3 * k + 2]])
                side.extend([None] * 4 + [oo[12]])
            if c == 5:
                side.append(g.handshake_check)
            if c == 6:
                side.extend([f"s_lshl_b32 s{t4}, s{sCB}, 1", f"s_add_u32 s{t4}, s{t4}, s{sNA}"] + g.a_saddr(0, t4, sTA))
            g.lwait(("x", c))
            if c == 7:
                for i in range(4):
                    stat_mf(28 + i)
                sel = [f"v_add_f32 v{S1}, v{S1}, v{S1 + 4}"] + [f"v_add_f32 v{S2 + r}, v{S2 + r}, v{S2 + 4 + r}" for r in range(4)]
                for m, stp in ((0xaaaaaaaa, 1), (0xcccccccc, 2)):
                    sel += [f"s_mov_b32 s{t2}, {m:#x}", f"s_mov_b32 s{t3}, {m:#x}"]
                    sel += [f"v_cndmask_b32 v{S2 + r}, v{S2 + r}, v{S2 + r + stp}, s[{t2}:{t3}]" for r in range(0, 4, 2 * stp)]
                sel += ["s_nop 1", f"v_permlane32_swap_b32 v{S1}, v{S2}", f"v_add_f32 v{S1}, v{S1}, v{S2}",
                        f"v_mov_b32 v{S2}, v{S1}", "s_nop 1", f"v_permlane32_swap_b32 v{S1}, v{S2}"]
                sel += g.stats_tail(S1, S2, g.A_RS, g.A_CD, g.A_BX)
                sel += [f"s_lshl_b32 s{t2}, s{sW}, 8", f"s_add_u32 s{t2}, s{t2}, 8192"] + g.a_rc_ops(t2)
            for i in range(4):
                st = 4 * c + i
                g.lwait(("w", 3 * st + 2))
                for n in range(3):
                    f = 3 * st + n
                    wb = ar(WB + 4 * (f % 8), 4)
                    g.a_mfma(names[n], wb, vr(X + 4 * st, 4), st == 0)
                    if f + LEAD < 96:
                        wread(f + LEAD)
                    g.take(side, g.cfg.a0_take if c < 7 else 5)
                    if i < 2:
                        for hh in range(2):
                            mf4(ar(CS + 8 * n + 4 * hh, 4), ar(ONE, 2), ar(WB + 4 * (f % 8) + 2 * hh, 2), st == 0)
                    if c == 7 and i == 0 and n == 1:
                        side.extend(sel)
                if c == 7 and i == 2:
                    g.e(f"""
                    s_mul_i32 s{t4}, s{sNA}, 3072
                    s_add_u32 s{t4}, s{t4}, {XA}
                    v_add_u32 v{vt3}, s{t4}, v{vL16}
                    s_and_b32 s{t4}, s{sW}, 2
                    s_lshl_b32 s{t4}, s{t4}, 2
                    v_add_u32 v253, s{t4}, v{vt3}
                    v_mov_b32 v255, 0
                    """)
                    for n in range(3):
                        g.e(f"""
                        v_accvgpr_read_b32 v{vt2}, a{CS + 8 * n}
                        v_accvgpr_read_b32 v254, a{CS + 8 * n + 4}
                        v_add_f32 v{vt2}, v{vt2}, v254
                        v_cvt_pk_bf16_f32 v254, v{vt2}, v{vt2}
                        v_lshlrev_b32 v254, 16, v254
                        v_sub_f32 v254, v{vt2}, v254
                        v_cvt_pk_bf16_f32 v254, v{vt2}, v254
                        """)
                        g.ds(f"ds_write_b64 v253, v[254:255] offset:{1024 * n}", "csw")
                if c < 7:
                    stat_mf(st)
            if c == 7:
                g.take(side, 999)
            g.stamp(f"A0_g{c}")
        g.lwait0()
        g.e("s_barrier")
        for n in range(3):
            g.ds(f"ds_read_b128 {vr(g.A_AX[names[n]], 4)}, v{vt3} offset:{1024 * n}", ("ax", n))
        for n in range(3):
            g.lwait(("ax", n))
            g.a_mfma(names[n], vr(g.A_AX[names[n]], 4), vr(g.A_BX, 4), False)
        side = deque(g.a_epi("k") + g.a_epi("v") + g.a_epi("q", "sc1"))
        g.take(side, 999)
        g.stamp("A0st")

    def phaseA1(self, layer):
        g = self
        cfg = g.cfg
        X, SB = g.A_X, 192
        g.A_BX = 236
        vA0, vA1 = 224, 225
        LW = 65536
        g.e(f"v_add_u32 v{vA0}, {LW}, v{vL16}\nv_add_u32 v{vA1}, {LW + 49152}, v{vL16}")
        g.a_addr(layer)
        g.e("\n".join(g.a_saddr(layer)))
        g.e(f"s_lshl_b32 s{t4}, s{sHP}, 10\ns_add_u32 s{t4}, s{t4}, {WXQ}\ns_lshl_b32 s{t6}, s{sW}, 8\ns_add_u32 s{t6}, s{t6}, {48 * 1024}")
        g.e(f"v_and_b32 v{vt0}, 60, v{vL4}\ns_lshl_b32 s{t2}, s{sT}, 7\ns_add_u32 s{t2}, s{t2}, {FE}")
        pre, xrest, stl = g.load_x_stats(layer - 1, 1, aX(layer - 1, 1), X, SB, cfg.up_a)
        seg = {"q": 0, "k": 1, "v": 2}
        LAG = cfg.lag_a
        seq = []
        for ks in range(32):
            if cfg.lag_end:
                seq += [("k", ks), ("v", ks)] + ([("q", ks)] if ks < 32 - LAG else [])
            else:
                seq += [("k", ks), ("v", ks)] + ([("q", ks - LAG)] if ks >= LAG else [])
        nmain = len(seq)
        seq += [("q", ks) for ks in range(32 - LAG, 32)]

        def wread(f):
            n, ks = seq[f]
            off = ((ks % 16) * 3 + seg[n]) * 1024
            g.ds(f"ds_read_b128 {ar(WB + 4 * (f % 8), 4)}, v{vA0 if ks < 16 else vA1} offset:{off}", ("w", f))
        LEAD = 7
        for f in range(LEAD):
            wread(f)
        g.poll(vt0, t2, layer, True)
        g.stamp(f"A{layer}go")
        pre()

        def axld(n):
            g.ld(vr(g.A_AX[n], 4), vL16, sWS, t4, 0, tag="ax")
            g.e(f"s_add_u32 s{t4}, s{t4}, 16384")
        xrest = deque(xrest)
        mem = deque(stl + [lambda n=n: axld(n) for n in "qkv"])
        if "A" in cfg.touch:
            xrest.extend([lambda: g.e(f"v_and_b32 v254, 0x3c0, v{vL16}\nv_lshlrev_b32 v254, 1, v254")] + g.touch_ops([], t9, 1, 254, 255))
        side = deque()
        for f, (n, ks) in enumerate(seq):
            if f == nmain:
                g.stamp(f"Z{layer}:Amain")
                g.take(side, 999)
                g.vwait("ax")
                for m in "kv":
                    g.a_mfma(m, vr(g.A_AX[m], 4), vr(g.A_BX, 4), False)
                side.extend([None] * 8 + g.a_epi("k") + g.a_epi("v"))
            if n == "k":
                g.vwait(("x", ks))
                if ks == 0:
                    g.stamp(f"Z{layer}:Afirst")
            if f % 4 == 0:
                g.lwait(("w", min(f + 3, 95)))
            g.a_mfma(n, ar(WB + 4 * (f % 8), 4), vr(X + 4 * ks, 4), ks == 0)
            if f + LEAD < 96:
                wread(f + LEAD)
            if (n == "k" or (n == "q" and ks < cfg.x2_a)) and xrest:
                xrest.popleft()()
            elif n == "v" and ks >= cfg.st_a and mem:
                mem.popleft()()
                if not mem:
                    side.extend([None] * 30 + g.stats_ops(SB, g.A_RS, g.A_CD, g.A_BX) + g.a_rc_ops(t6))
            g.take(side, 3 if f < nmain else 7)
            if n == "k" and ks % 8 == 7:
                g.stamp(f"A{layer}_{ks}")
        g.a_mfma("q", vr(g.A_AX["q"], 4), vr(g.A_BX, 4), False)
        g.e("s_barrier")
        g.stamp(f"A{layer}_m")
        side.extend(g.a_epi("q"))
        g.take(side, 999)
        g.stamp(f"A{layer}st")

    RL_SRD = ((28, 32), (80, 16))
    RL_DO = (64, 70)
    RL_XO = (62, 63)
    RL_V = 244
    RL_LDS = 131072

    def relayout_setup(self, ui):
        g = self
        passes = g.cfg.passes
        RA, RB = g.RL_SRD[ui]
        sDO, sDS = g.RL_DO[ui], g.RL_DO[ui] + 1
        sXO = g.RL_XO[ui]
        u, sRS, sSO, sMH, sWO = t7, t9, t10, t8, t11
        a0, a1, a2, a3 = t2, t3, t4, t5
        vS, vT = g.RL_V + ui, g.RL_V + 2 + ui
        L = [g.label("rl") for _ in range(5)]
        if ui == 0:
            g.e(f"s_mov_b32 s{u}, s2\ns_cmp_ge_u32 s{u}, 224\ns_cbranch_scc1 {L[0]}")
            g.srd(RA, pW1, 512 * 3584)
            g.srd(RB, pW3, 512 * 3584)
            g.e(f"""
            s_mov_b32 s{sRS}, 3584
            s_lshr_b32 s{a0}, s{u}, 3
            s_and_b32 s{a1}, s{u}, 7
            s_lshl_b32 s{a2}, s{a1}, 2
            s_add_u32 s{a2}, s{a2}, s{sW}
            s_mul_i32 s{sSO}, s{a2}, {16 * 3584}
            s_lshl_b32 s{a2}, s{a0}, 7
            s_add_u32 s{sSO}, s{sSO}, s{a2}
            s_lshl_b32 s{a0}, s{a0}, 2
            s_add_u32 s{a0}, s{a0}, s{sW}
            s_lshl_b32 s{sXO}, s{a0}, 10
            s_add_u32 s{sXO}, s{sXO}, {WX13}
            s_mul_i32 s{a2}, s{a0}, 9363
            s_lshr_b32 s{a2}, s{a2}, 16
            s_mul_i32 s{a3}, s{a2}, 7
            s_sub_u32 s{a3}, s{a0}, s{a3}
            s_mul_i32 s{sDO}, s{a2}, 229376
            s_add_u32 s{sDO}, s{sDO}, {W13}
            s_mov_b32 s{a2}, {passes[0][0]}
            s_mov_b32 s{sDS}, {(passes[0][1] - passes[0][0]) * 1024}
            """)
            for a, b in passes[1:]:
                g.e(f"s_cmp_ge_u32 s{a3}, {a}\ns_cselect_b32 s{a2}, {a}, s{a2}\ns_cselect_b32 s{sDS}, {(b - a) * 1024}, s{sDS}")
            g.e(f"""
            s_mul_i32 s{a0}, s{a2}, 31
            s_add_u32 s{a0}, s{a0}, s{a3}
            s_lshl_b32 s{a0}, s{a0}, 10
            s_add_u32 s{sDO}, s{sDO}, s{a0}
            s_mov_b32 s{sMH}, 8192
            s_lshl_b32 s{sWO}, s{sW}, 5
            """)
            other, nks, wdst, first, ptr = "wo", 32, WO, 224, pWO
        else:
            if g.cfg.spare:
                g.e(f"s_mov_b32 s{a0}, s{sC}")
                for v in g.cfg.spare:
                    g.e(f"s_cmp_gt_u32 s{sC}, {v}\ns_subb_u32 s{a0}, s{a0}, 0")
                g.e(f"s_lshl_b32 s{u}, s{a0}, 3\ns_add_u32 s{u}, s{u}, s{sX}\ns_min_u32 s{u}, s{u}, 207\ns_cmp_lt_u32 s{u}, 112\ns_cbranch_scc1 {L[0]}")
            else:
                g.e(f"s_sub_u32 s{a0}, s2, 208\ns_cmp_ge_u32 s2, 208\ns_cselect_b32 s{u}, s{a0}, s2\ns_cmp_lt_u32 s{u}, 112\ns_cbranch_scc1 {L[0]}")
            g.srd(RA, pWQ, 512 * 3072)
            g.srd(RB, pWQ, 512 * 3072 - 128)
            g.e(f"""
            s_add_u32 s{RB}, s{RB}, 128
            s_addc_u32 s{RB + 1}, s{RB + 1}, 0
            s_mov_b32 s{sRS}, 3072
            s_sub_u32 s{a0}, s{u}, 112
            s_and_b32 s{a1}, s{a0}, 7
            s_lshr_b32 s{a0}, s{a0}, 3
            s_lshl_b32 s{a2}, s{a1}, 2
            s_add_u32 s{a2}, s{a2}, s{sW}
            s_mul_i32 s{sSO}, s{a2}, {16 * 3072}
            s_lshl_b32 s{a2}, s{a0}, 8
            s_add_u32 s{sSO}, s{sSO}, s{a2}
            s_lshl_b32 s{a0}, s{a0}, 2
            s_add_u32 s{a0}, s{a0}, s{sW}
            s_lshl_b32 s{sXO}, s{a0}, 10
            s_add_u32 s{sXO}, s{sXO}, {WXQ}
            s_and_b32 s{a2}, s{a0}, 15
            s_mul_i32 s{sDO}, s{a2}, {32 * 3072}
            s_lshr_b32 s{a2}, s{a0}, 4
            s_lshl_b32 s{a2}, s{a2}, 10
            s_add_u32 s{sDO}, s{sDO}, s{a2}
            s_add_u32 s{sDO}, s{sDO}, {WQ}
            s_mov_b32 s{sDS}, 3072
            s_mov_b32 s{sMH}, 32
            s_lshr_b32 s{sWO}, s{sW}, 1
            s_lshl_b32 s{sWO}, s{sWO}, 13
            s_and_b32 s{a2}, s{sW}, 1
            s_lshl_b32 s{a2}, s{a2}, 6
            s_add_u32 s{sWO}, s{sWO}, s{a2}
            """)
            other, nks, wdst, first, ptr = "w2", 112, W2, 0, pW2
        g.e(f"""
        s_lshl_b32 s{a0}, s{sDS}, 2
        s_mul_i32 s{a0}, s{a0}, s{a1}
        s_add_u32 s{sDO}, s{sDO}, s{a0}
        s_and_b32 s{a0}, s{a1}, 4
        s_lshl_b32 s{a0}, s{a0}, 7
        s_add_u32 s{sXO}, s{sXO}, s{a0}
        s_and_b32 s{a0}, s{a1}, 3
        s_lshl_b32 s{a0}, s{a0}, 2
        s_add_u32 s{sXO}, s{sXO}, s{a0}
        s_mov_b32 s{a0}, 0
        s_mov_b32 s{a1}, 0
        s_branch {L[1]}
        {L[0]}:
        """)
        g.srd(RA, ptr, nks * 16 * 1024)
        g.srd(RB, ptr, nks * 16 * 1024 - 512)
        g.e(f"""
        s_add_u32 s{RB}, s{RB}, 512
        s_addc_u32 s{RB + 1}, s{RB + 1}, 0
        s_mov_b32 s{sRS}, 1024
        s_sub_u32 s{a0}, s{u}, {first}
        s_lshl_b32 s{sSO}, s{a0}, 14
        s_lshr_b32 s{a1}, s{sW}, 1
        s_lshl_b32 s{sWO}, s{a1}, 13
        s_mul_i32 s{a1}, s{a1}, {4 * nks}
        s_add_u32 s{a1}, s{a1}, s{a0}
        s_lshl_b32 s{sDO}, s{a1}, 11
        s_and_b32 s{a1}, s{sW}, 1
        s_lshl_b32 s{a2}, s{a1}, 10
        s_add_u32 s{sDO}, s{sDO}, s{a2}
        s_add_u32 s{sDO}, s{sDO}, {wdst}
        s_mov_b32 s{sDS}, {nks * 2048}
        s_lshl_b32 s{a2}, s{a1}, 6
        s_add_u32 s{sWO}, s{sWO}, s{a2}
        s_mov_b32 s{sMH}, 32
        s_lshl_b32 s{sXO}, s{u}, 2
        s_add_u32 s{sXO}, s{sXO}, s{sW}
        s_and_b32 s{sXO}, s{sXO}, 63
        s_lshl_b32 s{sXO}, s{sXO}, 10
        s_add_u32 s{sXO}, s{sXO}, {WXD}
        s_mov_b32 s{a0}, 3
        s_mov_b32 s{a1}, s{sW}
        {L[1]}:
        v_lshrrev_b32 v{vS}, 7, v{vL16}
        v_and_b32 v{vt2}, s{a0}, v{vS}
        v_xor_b32 v{vt2}, s{a1}, v{vt2}
        v_mul_lo_u32 v{vS}, v{vS}, s{sRS}
        v_lshl_add_u32 v{vS}, v{vt2}, 7, v{vS}
        v_and_b32 v{vT}, 0x70, v{vL16}
        v_add3_u32 v{vS}, v{vS}, v{vT}, s{sSO}
        s_lshl_b32 s{4 + ui}, s{sRS}, 3
        s_add_u32 s{sWO}, s{sWO}, {g.RL_LDS + ui * 16384}
        v_bfe_u32 v{vT}, v{vL16}, 8, 1
        v_mul_lo_u32 v{vT}, v{vT}, s{sMH}
        v_add_u32 v{vT}, s{sWO}, v{vT}
        v_lshrrev_b32 v{vt2}, 9, v{vL16}
        v_lshl_add_u32 v{vT}, v{vt2}, 10, v{vT}
        v_bfe_u32 v{vt2}, v{vL16}, 6, 2
        v_lshl_add_u32 v{vT}, v{vt2}, 7, v{vT}
        v_and_b32 v{vt2}, s{a0}, v{vt2}
        v_lshl_add_u32 v{vT}, v{vt2}, 11, v{vT}
        v_and_b32 v{vt2}, 16, v{vL16}
        v_add_u32 v{vT}, v{vt2}, v{vT}
        v_bfe_u32 v{vt2}, v{vL16}, 5, 1
        v_lshl_add_u32 v{vT}, v{vt2}, 3, v{vT}
        v_add_u32 v{g.RL_V + 4 + ui}, s{4 + ui}, v{vS}
        """)
        if ui == 1 and g.cfg.spare:
            mask = sum(1 << v for v in g.cfg.spare)
            g.e(f"""
            s_lshr_b32 s{a0}, {mask:#x}, s{sC}
            s_and_b32 s{a0}, s{a0}, 1
            s_cselect_b32 s{RA + 2}, 0, s{RA + 2}
            s_cselect_b32 s{RB + 2}, 0, s{RB + 2}
            s_cselect_b32 s{sDO}, {WS_BYTES:#x}, s{sDO}
            s_cselect_b32 s{sXO}, {WS_BYTES:#x}, s{sXO}
            """)

    def relayout_dma_ops(self, regs=None):
        g = self
        ops = []
        for ui in range(2):
            for i in range(4):
                def op(ui=ui, i=i):
                    g.e(f"s_lshl_b32 s{t5}, s{sW}, 11\ns_add_u32 s{t5}, s{t5}, {g.RL_LDS + ui * 16384 + (i // 2) * 8192 + (i % 2) * 1024}")
                    g.e(f"s_mov_b32 m0, s{t5}\ns_nop 0")
                    g.m0_owner = None
                    g.dma(regs[i % 2] if regs else g.RL_V + ui + 4 * (i % 2), g.RL_SRD[ui][i // 2], None, 0, mods="", tag=("rl", ui))
                ops.append(op)
        return ops

    def relayout_out_ops(self, d=244, CS=224, ONE=240, vS=(vt2, vt3), ta=vt0):
        g = self
        ops = []
        for ui in range(2):
            sDO, sDS = g.RL_DO[ui], g.RL_DO[ui] + 1
            for i in range(4):
                def rd(ui=ui, i=i):
                    if i:
                        g.e(f"v_xor_b32 v{vS[ui]}, {(i ^ (i - 1)) << 11}, v{vS[ui]}")
                    g.ds(f"ds_read_b64_tr_b16 {vr(d, 2)}, v{vS[ui]}", ("rl", i))
                    g.ds(f"ds_read_b64_tr_b16 {vr(d + 2, 2)}, v{vS[ui]} offset:512", ("rl", i))

                def wr(i=i, sDO=sDO, sDS=sDS):
                    g.lwait(("rl", i))
                    g.st(vr(d, 4), vL16, sWS, sDO, 0, "sc1", tag="rlst")
                    g.e(f"s_add_u32 s{sDO}, s{sDO}, s{sDS}")

                def cs(i=i):
                    g.e(f"v_mfma_f32_32x32x16_bf16 {ar(CS, 16)}, {ar(ONE, 4)}, {vr(d, 4)}, {ar(CS, 16) if i else '0'}")
                ops += [(rd, "A"), (wr, "C"), (cs, "D")]

            def xo(ui=ui):
                g.e(f"""
                v_accvgpr_read_b32 v254, a{CS}
                v_and_b32 v{ta}, 0x1f0, v{vL16}
                v_cvt_pk_bf16_f32 v255, v254, v254
                v_lshlrev_b32 v255, 16, v255
                v_sub_f32 v255, v254, v255
                v_cvt_pk_bf16_f32 v255, v254, v255
                """)
                g.st(vr(255), ta, sWS, g.RL_XO[ui], 0, "sc1", tag="rlst", w=1)
            ops.append((xo, "X"))
        return ops

    def ew_ops(self, lo, hi, ts):
        g = self
        a, b = ts
        ops = []

        def setup():
            g.e(f"s_mul_i32 s{a}, s{sCB}, {112 * 2048}\ns_mul_i32 s{b}, s{sW}, {28 * 2048}")
        def setup2():
            g.e(f"s_add_u32 s{a}, s{a}, s{b}\ns_add_u32 s{a}, s{a}, {W2 + (lo // 4) * 4096}")
        def setup3():
            g.e(f"s_lshl_b32 s{b}, s{sNA}, 10\ns_add_u32 s{a}, s{a}, s{b}")
        def setup4():
            g.e(f"s_xor_b32 s{b}, s{a}, 1024")
        ops += [setup, setup2, setup3, setup4]
        assert lo % 4 == 0
        for idx in range(lo, hi):
            def op(idx=idx):
                i, n = divmod(idx, 2)
                if idx > lo and idx % 4 == 0:
                    g.e(f"s_add_u32 s{a}, s{a}, 4096\ns_add_u32 s{b}, s{b}, 4096")
                g.ld(ar(4 * idx, 4), vL16, sWS, (a, b)[n], (i % 2) * 2048, mods=g.cfg.wmods, tag="ew")
            ops.append(op)
        return ops

    def phaseB(self, layer):
        g = self
        cfg = g.cfg
        O, Q, S, KV = 16, 144, 176, 208
        vV = 252
        CW = [R("a", 224 + 4 * i) for i in range(8)] + [R("v", 220 + 4 * i) for i in range(8)]
        if cfg.b_tail:
            CW[11:] = [R("v", b) for b in (244, 248, 144, 148, 152)]
        SBo, SBl = 104 * 1024, 152 * 1024
        sKV, sG = 6, 7
        g.e(f"v_mov_b32 v{vt0}, 0x3f803f80\ns_mov_b32 s{t0}, {0x00010000 if cfg.one_row else 0x00110000:#x}\ns_mov_b32 s{t1}, {0x00010000 if cfg.one_row else 0x00110000:#x}")
        if layer == 0 and not cfg.rl_in_a:
            for i in range(4):
                g.e(f"v_accvgpr_write_b32 a{240 + i}, v{vt0}")
            g.e(f"v_mov_b32 v{vt2}, v{g.RL_V + 2}\nv_mov_b32 v{vt3}, v{g.RL_V + 3}")
        g.e(f"v_cndmask_b32 v{vIdx}, 0, v{vt0}, s[{t0}:{t1}]")
        for r in range(4, 12):
            g.e(f"v_mov_b32 v{KV + r}, v{vIdx}")

        def late_setup():
            for e in range(1, 3):
                for r in range(4, 12):
                    g.e(f"v_mov_b32 v{KV + 12 * e + r}, v{vIdx}")
            g.e(f"v_mov_b32 v{vIdx}, 0xdddddddd")
            for j in range(8):
                if cfg.zero16:
                    for r in range(0, 16, 2):
                        g.e(f"v_pk_mov_b32 {vr(O + 16 * j + r, 2)}, 0, 0")
                else:
                    for r in range(9):
                        g.e(f"v_mov_b32 v{O + 16 * j + r}, 0")
            g.e(f"""
            v_bfe_u32 v{vt0}, v{vL16}, 5, 3
            v_add_u32 v{vt0}, s{sX}, v{vt0}
            v_and_b32 v{vt0}, 7, v{vt0}
            v_lshlrev_b32 v253, 7, v{vt0}
            v_bfe_u32 v{vt0}, v{vL16}, 4, 1
            v_lshl_add_u32 v253, v{vt0}, 2, v253
            """)
            if layer == 0 and cfg.rl_split:
                g.e(f"v_mov_b32 v{vt0}, 0x3f803f80")
                for i in range(4):
                    g.e(f"v_accvgpr_write_b32 a{240 + i}, v{vt0}")
                g.e(f"v_mov_b32 v{vt0}, v{g.RL_V + 3}\nv_mov_b32 v{vt2}, v{g.RL_V + 1}\nv_mov_b32 v{vt3}, v{g.RL_V + 5}")
        g.e(f"""
        v_lshrrev_b32 v{vt0}, 9, v{vL16}
        v_lshlrev_b32 v{vV}, 8, v{vt0}
        v_and_b32 v{vt0}, 0xf0, v{vL16}
        v_add_u32 v{vV}, v{vV}, v{vt0}
        v_and_b32 v{vt0}, 28, v{vL4}
        s_lshl_b32 s{t0}, s{sX}, 4
        s_lshr_b32 s{t1}, s{sC}, 1
        s_add_u32 s{t0}, s{t0}, s{t1}
        s_lshl_b32 s{t0}, s{t0}, 7
        s_add_u32 s{t0}, s{t0}, {FA_L}
        s_lshl_b32 s{sG}, s{t1}, 10
        s_lshl_b32 s{t2}, s{sW}, 3
        s_add_u32 s{sG}, s{sG}, s{t2}
        s_add_u32 s{sG}, s{sG}, {FA_G}
        s_lshl_b32 s{t2}, s{sW}, 1
        s_lshl_b32 s{sKV}, s{sC}, 6
        s_add_u32 s{sKV}, s{sKV}, s{t2}
        s_lshl_b32 s{sKV}, s{sKV}, 11
        s_add_u32 s{sKV}, s{sKV}, {aKV(layer)}
        s_lshl_b32 s{t3}, s{sX}, 8
        s_add_u32 s{t3}, s{t3}, s{sC}
        s_lshl_b32 s{t3}, s{t3}, 10
        s_add_u32 s{t3}, s{t3}, {aQ(layer)}
        """)
        for j in range(8):
            g.e(f"s_add_u32 s{t4 + j}, s{t2}, {2 + j}\ns_and_b32 s{t4 + j}, s{t4 + j}, 7\ns_lshl_b32 s{t4 + j}, s{t4 + j}, 15\ns_add_u32 s{t4 + j}, s{t4 + j}, s{t3}")
        g.e(f"s_lshl_b32 s3, s{sX}, 14\ns_add_u32 s3, s3, s{sKV}")
        g.vwait0()
        g.stamp(f"B{layer}:ack")
        if layer == 0 and cfg.b0_g:
            g.e(f"s_and_b32 s{t0}, s{sG}, 0xfffffc00\ns_lshl_b32 s4, s{sX}, 7\ns_add_u32 s{t0}, s{t0}, s4")
        else:
            g.signal(0, layer + 1, layer > 0 or cfg.xcc_early)
        if cfg.b_opt == 2 and layer > 0:
            g.poll(vt0, t0, layer + 1, True)
        else:
            l3, l0 = g.label("b3"), g.label("b0")
            g.e(f"s_barrier\ns_cmp_eq_u32 s{sW}, 3\ns_cbranch_scc0 {l3}")
            if layer == 0 and cfg.a0b:
                assert cfg.b0_g
                g.e(f"""
                s_lshl_b32 s{t1}, s{sCB}, 4
                s_add_u32 s{t1}, s{t1}, s{sX}
                s_lshl_b32 s{t1}, s{t1}, 7
                s_and_b32 s4, s{sTA}, 6
                s_lshl_b32 s4, s4, 2
                s_add_u32 s{t1}, s{t1}, s4
                s_add_u32 s{t1}, s{t1}, {FA_G}
                v_and_b32 v254, 4, v{vL4}
                v_lshlrev_b32 v254, 8, v254
                v_bfe_u32 v{vt1}, v{vL4}, 3, 1
                v_lshl_add_u32 v254, v{vt1}, 2, v254
                v_mov_b32 v{vt1}, 1
                s_mov_b64 exec, 15
                buffer_store_dword v{vt1}, v254, {sr(sWS, 4)}, s{t1} offen sc1
                s_mov_b64 exec, -1
                {l3}:
                """)
            else:
                g.e(f"v_readlane_b32 s{t1}, v{vFl}, 1\nv_mov_b32 v{vt1}, {layer + 1}\ns_mov_b64 exec, 15\ns_sub_u32 s{t1}, s{t1}, 12\ns_nop 1")
                g.e(f"buffer_store_dword v{vt1}, v{vL4}, {sr(sWS, 4)}, s{t1} offen sc1\ns_mov_b64 exec, -1\n{l3}:")
            if layer == 0 and cfg.rl_in_a:
                l2 = g.label("b2")
                g.e(f"s_cmp_eq_u32 s{sW}, 2\ns_cbranch_scc0 {l2}\nv_mov_b32 v{vt1}, 1\ns_mov_b64 exec, 64")
                g.e(f"buffer_store_dword v{vt1}, v{vFl}, {sr(sWS, 4)}, 0 offen sc1\ns_mov_b64 exec, -1\n{l2}:")
            if cfg.kv_touch:
                lt = g.label("bt")
                g.e(f"""
                s_sub_u32 s4, s{sW}, 1
                s_cmp_lt_u32 s4, 2
                s_cbranch_scc0 {lt}
                s_lshl_b32 s5, s{sHP}, 1
                s_add_u32 s4, s4, s5
                s_lshl_b32 s4, s4, 6
                s_and_b32 s5, s{sT}, 0xfc
                s_add_u32 s4, s4, s5
                s_lshl_b32 s4, s4, 11
                s_add_u32 s4, s4, {aKV(layer)}
                v_lshlrev_b32 v254, 3, v{vL16}
                buffer_load_dword v255, v254, {sr(sWS, 4)}, s4 offen sc1
                {lt}:
                """)
            g.e(f"s_cmp_eq_u32 s{sW}, 0\ns_cbranch_scc0 {l0}")
            keep = list(g.vmq)
            p2, cfg.poll2 = cfg.poll2, 0
            g.poll(vt0, t0, layer + 1, False, sleep=0 if layer or cfg.xcc_early else cfg.b0_sleep)
            cfg.poll2 = p2
            g.vmq = keep
            g.e(f"{l0}:\ns_barrier")
            if layer > 0:
                g.dual("", "buffer_inv sc1\ns_waitcnt vmcnt(0)", 0)
        g.stamp(f"B{layer}go")

        def kv_addr1(kt):
            g.e(f"s_add_u32 s3, s{sX}, {kt // 2}\ns_and_b32 s3, s3, 7")

        def kv_addr2(kt):
            g.e(f"s_lshl_b32 s3, s3, 14\ns_add_u32 s3, s3, s{sKV}")

        def ldK(kt):
            g.ld(vr(KV + 12 * (kt % 3), 4), vL16, sWS, 3, (kt % 2) * 2048, mods=cfg.kvmods, tag=("K", kt))

        def ldV(kt, halves=(0, 1)):
            e = KV + 12 * (kt % 3)
            g.e(f"s_mov_b64 exec, s[{sVM}:{sVM + 1}]")
            for h in halves:
                g.ld(vr(e + 4 + 4 * h, 4), vV, sWS, 3, (kt % 2) * 2048 + 1024 + 512 * h, mods=cfg.kvmods, tag=("V", kt))
            g.e("s_mov_b64 exec, -1")

        def ldQ(j):
            g.ld(vr(Q + 4 * j, 4), vL16, sWS, t4 + j, 0, tag=("Q", j))
        ldK(0)
        ldQ(0)
        ldQ(1)
        ldV(0)
        for j in range(2, cfg.q_up):
            ldQ(j)
        if cfg.b_opt == 2 and layer > 0:
            for j in range(cfg.q_up, 8):
                ldQ(j)
            ldK(1)
        late_setup()
        if cfg.b_opt == 2 and layer > 0:
            ldV(1)
            g.signal(1, layer + 1, False)

        gaps = {}

        def at(n, gap, fn):
            gaps.setdefault((n, gap), []).append(fn)

        def place(ops, n0, gap0="A", allowed="AC", step=0):
            pos = 3 * n0 + "ABC".index(gap0)
            for op in ops:
                while "ABC"[pos % 3] not in allowed or (pos // 3, "ABC"[pos % 3]) in gaps:
                    pos += 1
                at(pos // 3, "ABC"[pos % 3], op)
                pos += 1 + step
            return pos // 3 + 1

        def spread(ops, n0, per_tile=3, gapset="ABC"):
            return place(ops, n0, gapset[0], gapset, 0 if per_tile > 1 else 2)

        for j in range(1, 8):
            at(j - 1, "a", lambda j=j: g.vwait(("Q", j)))
        at(0, "B", lambda: g.vwait(("V", 0)))
        for kt in range(1, 16):
            at(112 if kt == 15 and cfg.b_tail else 8 * kt - 1, "A", lambda kt=kt: g.vwait(("V", kt)))
        if not (cfg.b_opt == 2 and layer > 0):
            place([lambda j=j: ldQ(j) for j in range(cfg.q_up, 8)] + [lambda: ldK(1), lambda: ldV(1)], 0, "A", "AC")

        def red_addr(d):
            g.e(f"s_add_u32 s{t0}, s{sW}, {1 + d}\ns_and_b32 s{t0}, s{t0}, 3")
        def red_addr2(d):
            g.e(f"s_mul_i32 s{t0}, s{t0}, 6\ns_add_u32 s{t0}, s{t0}, {2 * d}")
        def red_addr3(d):
            g.e(f"s_lshl_b32 s{t1}, s{t0}, 11\ns_add_u32 s{t1}, s{t1}, {SBo}\nv_add_u32 v{(vt0, vt1)[d % 2]}, s{t1}, v{vL16}")
        def red_addr4(d):
            g.e(f"s_lshl_b32 s{t1}, s{t0}, 8\ns_add_u32 s{t1}, s{t1}, {SBl}\nv_add_u32 v{(vt2, vt3)[d % 2]}, s{t1}, v{vL4}")

        def red_wr(j, part):
            b = O + 16 * j
            s_ = j % 2
            va, vb = (vt0, vt1)[(j // 2) % 2], (vt2, vt3)[(j // 2) % 2]
            if part == 0:
                g.ds(f"ds_write_b128 v{va}, {vr(b, 4)} offset:{s_ * 2048}")
            elif part == 1:
                g.ds(f"ds_write_b128 v{va}, {vr(b + 4, 4)} offset:{s_ * 2048 + 1024}")
            else:
                g.ds(f"ds_write_b32 v{vb}, v{b + 8} offset:{s_ * 256}")
        order = [divmod(n, 8) for n in range(128)]
        if cfg.b_tail:
            order[112:] = [(14 + k, j) for j in range(6) for k in range(2)] + [(14, 6), (14, 7), (15, 6), (15, 7)]
            for j in range(6):
                for part in range(3):
                    at(115 + 2 * j, "ABC"[part], lambda j=j, part=part: red_wr(j, (0, 2, 1)[part]))
            for d, n in enumerate((112, 116, 120)):
                at(n, "B", lambda d=d: red_addr(d))
                at(n, "C", lambda d=d: red_addr2(d))
                at(n + 2, "A", lambda d=d: red_addr3(d))
                at(n + 2, "C", lambda d=d: red_addr4(d))
        else:
            for j in range(6):
                at(121 + j, "D", lambda j=j: red_wr(j, 2))
                at(121 + j, "D", lambda j=j: red_wr(j, 0))
                at(122 + j, "A", lambda j=j: red_wr(j, 1))
            for d, n in enumerate((117, 119, 124)):
                at(n, "B", lambda d=d: red_addr(d))
                at(n, "C", lambda d=d: red_addr2(d))
                at(n + 1, "B", lambda d=d: red_addr3(d))
                at(n + 1, "C", lambda d=d: red_addr4(d))
        PB = 16

        def own_addr():
            g.e(f"""
            s_mul_i32 s{t0}, s{sW}, 6
            s_lshl_b32 s{t1}, s{t0}, 11
            s_add_u32 s{t1}, s{t1}, {SBo}
            v_add_u32 v{vt1}, s{t1}, v{vL16}
            s_lshl_b32 s{t1}, s{t0}, 8
            s_add_u32 s{t1}, s{t1}, {SBl}
            v_add_u32 v{vt3}, s{t1}, v{vL4}
            """)

        def own_bar():
            g.vwait("w13a")
            g.lwait0()
            g.e("s_barrier")

        def own_rd(s_, ds_=(0, 1, 2)):
            for d in ds_:
                b = PB + 10 * (3 * s_ + d)
                g.ds(f"ds_read_b128 {vr(b, 4)}, v{vt1} offset:{(2 * d + s_) * 2048}", ("p", s_))
                g.ds(f"ds_read_b128 {vr(b + 4, 4)}, v{vt1} offset:{(2 * d + s_) * 2048 + 1024}", ("p", s_))
                g.ds(f"ds_read_b32 v{b + 8}, v{vt3} offset:{(2 * d + s_) * 256}", ("p", s_))

        def o_addr():
            g.e(f"""
            s_lshl_b32 s{t0}, s{sX}, 3
            s_lshl_b32 s{t1}, s{sW}, 1
            s_add_u32 s{t0}, s{t0}, s{t1}
            s_lshl_b32 s{t0}, s{t0}, 5
            s_add_u32 s{t0}, s{t0}, s{sC}
            s_lshl_b32 s{t0}, s{t0}, 10
            s_add_u32 s{t0}, s{t0}, {aO(layer)}
            s_add_u32 s{t1}, s{t0}, 32768
            """)
        if cfg.b_tail:
            at(124, "A", own_addr)
            at(124, "C", o_addr)
            at(126, "A", own_bar)
            at(126, "B", lambda: own_rd(0, (0,)))
            at(126, "C", lambda: own_rd(0, (1, 2)))
            at(127, "A", lambda: own_rd(1, (0, 1)))
            at(127, "B", lambda: own_rd(1, (2,)))
        else:
            at(126, "C", own_addr)
            at(127, "B", own_bar)
            at(127, "C", lambda: own_rd(0))
            at(127, "D", lambda: own_rd(1))

        vG, vGd = 253, 249

        def gpoll_ld():
            g.ld(vr(vGd), vG, sWS, sG, 0, tag="gf", w=1)

        def gpoll_snap():
            g.vwait("gf")
            g.e(f"v_cmp_gt_u32 s[{sSN2}:{sSN2 + 1}], {layer + 1}, v{vGd}")

        def gcheck(kt):
            ls, lj, lp = g.label("gslow"), g.label("gjoin"), g.label("gp")
            m = 3 << kt
            g.e(f"s_and_b32 s{sTO}, s{sSN2}, {m}\ns_cbranch_scc1 {ls}\n{lj}:")
            g.tail.append(f"""{ls}:
            s_mov_b32 s{sTO}, {TIMEOUT}
            {lp}:
            buffer_load_dword v{vGd}, v{vG}, {sr(sWS, 4)}, s{sG} offen sc1
            s_sub_u32 s{sTO}, s{sTO}, 1
            s_cbranch_scc1 L_exit
            s_waitcnt vmcnt(0)
            v_cmp_gt_u32 s[{sSN2}:{sSN2 + 1}], {layer + 1}, v{vGd}
            s_nop 1
            s_and_b32 s4, s{sSN2}, {m}
            s_cbranch_scc0 {lj}
            s_sleep {cfg.g_sleep}
            s_branch {lp}""")
        gp = cfg.gp[layer]
        place([gpoll_ld], gp, "C")
        n = place([gpoll_snap, lambda: gcheck(2), lambda: kv_addr1(2), lambda: kv_addr2(2), lambda: ldK(2), lambda: ldV(2)], gp + 3, "B", "ABC")
        for kt in range(3, 16):
            n = max(8 * (kt - 2), n)
            if kt % 2 == 0:
                place([lambda kt=kt: gcheck(kt), lambda kt=kt: kv_addr1(kt), lambda kt=kt: kv_addr2(kt)], n - 2, "A", "AC")
            if cfg.v_split:
                n = place([lambda kt=kt: ldK(kt), lambda kt=kt: ldV(kt, (0,)), lambda kt=kt: ldV(kt, (1,))], n, "A", "AC")
            else:
                n = place([lambda kt=kt: ldK(kt), lambda kt=kt: ldV(kt)], n, "A", "AC")

        def w13base():
            g.e(f"s_mul_i32 s{t11 - 1}, s{sHP}, 229376\ns_add_u32 s{t11 - 1}, s{t11 - 1}, {W13}")
        if layer == 0:
            n = cfg.rl0
            if cfg.rl_in_b:
                def rl_bar():
                    g.vwait(("rl", 1))
                    g.e("s_barrier")
                n = spread(g.relayout_dma_ops(), cfg.rl0, 3, "ABC") + cfg.rl_lat
                at(n - 1, "C", rl_bar)
            if cfg.cold_touch:
                ct = [lambda: g.e(f"v_and_b32 v250, 0x3c0, v{vL16}\nv_lshlrev_b32 v250, 1, v250")]
                xa, sa = g.x_addr(layer, 0, t4, t5)
                groups = [g.touch_ops(xa, t4, 1, 250, 251) + g.touch_ops(sa, t4, 1, 250, 251)]
                if cfg.cold_touch > 1:
                    hh = g.touch_ops(g.h_addr(layer, t4, t5), t4, 4, 250, 251)
                    groups += [hh[:3], hh[3:4], hh[4:5], hh[5:]] if cfg.cold_touch == 3 else [hh[:4], hh[4:]]
                at(cfg.ct0, "A", ct[0])
                for gi, grp in enumerate(groups):
                    spread(grp, cfg.ct0 + 1 + 8 * gi, 3, "ABC")
            place([lambda: g.e(f"v_bfe_u32 v250, v{vL16}, 4, 5\nv_lshlrev_b32 v250, 10, v250"),
                   lambda: g.e(f"v_lshrrev_b32 v251, 9, v{vL16}\nv_lshl_add_u32 v250, v251, 4, v250"),
                   lambda: g.e(f"s_lshl_b32 s{t0}, s{sCB}, 1\ns_add_u32 s{t0}, s{t0}, s{sNA}"),
                   lambda: g.e(f"s_lshl_b32 s{t0}, s{t0}, 6\ns_lshl_b32 s{t1}, s{sTA}, 15"),
                   lambda: g.e(f"s_add_u32 s{t0}, s{t0}, s{t1}"),
                   lambda: g.ld(vr(vRes, 4), 250, sXIN, t0, 0, mods="", tag="res"),
                   lambda: g.ld(vr(vRes + 4, 4), 250, sXIN, t0, 32, mods="", tag="res")], 9, "A", "AC")
            if not cfg.xcc_early:
                at(8, "A", g.xcc_send)
                at(100, "B", g.xcc_load)
                at(105, "B", g.xcc_check)
            if not cfg.rl_in_a:
                for op, gap in g.relayout_out_ops():
                    if gap == "X":
                        at(n, "C", op)
                        n += 1
                    else:
                        at(n, gap, op)
                        n += gap == "D"

                def rl_sig():
                    g.vwait("rlst")
                    g.e("s_barrier")
                    L = g.label("rls")
                    g.e(f"v_mov_b32 v{vt1}, 1\ns_cmp_eq_u32 s{sW}, 0\ns_cbranch_scc0 {L}\ns_mov_b64 exec, 64")
                    g.e(f"buffer_store_dword v{vt1}, v{vFl}, {sr(sWS, 4)}, 0 offen sc1\ns_mov_b64 exec, -1\n{L}:")
                    g.stamp("R_sig")
                n += cfg.rl_ack
                at(n, "A", rl_sig)

            def rl_ld():
                g.e(f"s_mov_b32 s{t10}, {FR}\nv_lshlrev_b32 v248, 3, v{vL16}")
                g.ld(vr(244, 4), 248, sWS, t10, 0, tag="rf")

            def rl_check():
                g.stamp("R_pre")
                g.late_check("rf", f"buffer_load_dwordx4 v[244:247], v248, {sr(sWS, 4)}, s{t10} offen sc1",
                             "v_min_u32 v244, v244, v245\nv_min3_u32 v244, v244, v246, v247\nv_cmp_gt_u32 vcc, 1, v244", cfg.rl_sleep)
                g.stamp("R_chk")
            n = cfg.rl_ld if cfg.rl_in_a else n + cfg.rl_gap
            at(n, "A", rl_ld)
            n += 5
            at(n, "A", rl_check)
            n0 = n + 1
            if cfg.rl_split:
                place(g.relayout_dma_ops((vt2, vt3))[4:], cfg.rs_dma, "A", "AC")

                def rl_bar():
                    g.vwait(("rl", 1))
                    g.e("s_barrier")
                n = max(cfg.rs_out, n0)
                at(n - 1, "C", rl_bar)
                for op, gap in g.relayout_out_ops(244, 224, 240, (vt0, vt0), 250)[13:]:
                    if gap == "X":
                        at(n, "C", op)
                        n += 1
                    else:
                        at(n, gap, op)
                        n += gap == "D"

                def rl_sig2():
                    g.vwait("rlst")
                    g.e("s_barrier")
                    L = g.label("rls")
                    g.e(f"v_mov_b32 v{vt1}, 2\ns_cmp_eq_u32 s{sW}, 0\ns_cbranch_scc0 {L}\ns_mov_b64 exec, 64")
                    g.e(f"buffer_store_dword v{vt1}, v{vFl}, {sr(sWS, 4)}, 0 offen sc1\ns_mov_b64 exec, -1\n{L}:")
                at(n + cfg.rl_ack, "A", rl_sig2)

                def rl_ld2():
                    g.e(f"s_mov_b32 s{t7}, {FR}")
                    g.ld(vr(244, 4), 248, sWS, t7, 0, tag="rf2")

                def rl_check2():
                    g.late_check("rf2", f"buffer_load_dwordx4 v[244:247], v248, {sr(sWS, 4)}, s{t7} offen sc1",
                                 "v_min_u32 v244, v244, v245\nv_min3_u32 v244, v244, v246, v247\nv_cmp_gt_u32 vcc, 2, v244", cfg.rl_sleep)
        else:
            n0 = 10
        at(n0, "A", w13base)

        def costed(ops, nsetup, c):
            return [(op, 0.0) for op in ops[:nsetup]] + [(op, 0.0 if isinstance(op, SOp) else c) for op in ops[nsetup:]]
        pops = costed(g.dma_ops(0, 26, t11 - 1, 0, "w13a", (t8, t9)), 2, 0.5)
        if layer == 0 and cfg.rl_split:
            pops += [(rl_ld2, 2.0), (rl_check2, 0.0)]
        if layer == 0 and cfg.ew_in_b:
            pops += costed(g.ew_ops(0, cfg.ew_in_b, (t8, t9)), 4, 0.25)
        p16 = lambda: g.e(f"v_and_b32 v254, 0x3c0, v{vL16}\nv_lshlrev_b32 v254, 1, v254")
        pops.append((p16, 0.0))
        npf = cfg.pf_w13[layer]
        if npf:
            pa = [f"s_lshr_b32 s{t4}, s{sC}, 4\ns_lshl_b32 s{t4}, s{t4}, 2", f"s_add_u32 s{t4}, s{t4}, s{sW}\ns_mul_i32 s{t4}, s{t4}, {npf * 2048}",
                  f"s_add_u32 s{t4}, s{t4}, s{t11 - 1}\ns_add_u32 s{t4}, s{t4}, {104 * 1024}"]
            pops += costed(g.touch_ops(pa, t4, npf, 254, 255), 3, 2.0)
        pa = [f"s_mul_i32 s{t4}, s{sHP}, 7168\ns_lshl_b32 s{t5}, s{sW}, 11", f"s_add_u32 s{t4}, s{t4}, s{t5}\ns_add_u32 s{t4}, s{t4}, {WX13}"]
        pops += costed(g.touch_ops(pa, t4, 1, 254, 255), 2, 1.0)
        if "B" in cfg.touch:
            xa, sa = g.x_addr(layer, 0, t4, t5)
            oa = [f"s_lshl_b32 s{t4}, s{sX}, 2\ns_add_u32 s{t4}, s{t4}, s{sW}", f"s_lshl_b32 s{t4}, s{t4}, 6\ns_add_u32 s{t4}, s{t4}, s{sC}",
                  f"s_lshl_b32 s{t4}, s{t4}, 10\ns_add_u32 s{t4}, s{t4}, {aO(layer)}"]
            if "H" in cfg.touch and cfg.h_in_b[layer]:
                pops += costed(g.touch_ops(g.h_addr(layer, t4, t5), t4, 4, 254, 255), 2, 1.75)
            pops += costed(g.touch_ops(xa, t4, 1, 254, 255), 3, 2.0) + costed(g.touch_ops(sa, t4, 1, 254, 255), 3, 0.3)
            pops += costed(g.touch_ops(oa, t4, 1, 254, 255), 3, 1.0)
            pops += costed(g.touch_ops([f"s_add_u32 s{t4}, s{t4}, 32768"], t4, 1, 254, 255), 1, 1.0)

        cws = [f"s_lshl_b32 s{t8}, s{sCB}, 16\ns_lshl_b32 s{t9}, s{sW}, 14", f"s_add_u32 s{t8}, s{t8}, s{t9}\ns_lshl_b32 s{t9}, s{sNA}, 10",
               f"s_add_u32 s{t8}, s{t8}, s{t9}\ns_add_u32 s{t8}, s{t8}, {WO}", f"s_xor_b32 s{t9}, s{t8}, 1024"]
        cw = []
        for idx in range(16):
            def op(idx=idx):
                i, n_ = divmod(idx, 2)
                if idx and idx % 4 == 0:
                    g.e(f"s_add_u32 s{t8}, s{t8}, 4096\ns_add_u32 s{t9}, s{t9}, 4096")
                g.ld(CW[idx](0, 4), vL16, sWS, (t8, t9)[n_], (i % 2) * 2048, mods=g.cfg.wmods, tag="cw")
            cw.append(op)
        pops += costed([lambda t=t: g.e(t) for t in cws] + cw[:8], 4, 0.25)
        if "n" in cfg.dbg and layer == 1:
            pops = [(op, c) for op, c in pops if c == 0.0]
        if cfg.keep is not None and layer == 1:
            pops = [(op if c == 0.0 or c in cfg.keep else (lambda: None), c) for op, c in pops]
        tot = sum(c + 0.05 for _, c in pops)
        span = cfg.bg_end - (n0 + 1)
        acc, nxt = 0.0, 0
        for op, c in pops:
            pos = max(3 * (n0 + 1) + int(3 * acc / tot * span), nxt)
            allowed = "AC" if cfg.bg_ac and layer else "ABC"
            while "ABC"[pos % 3] not in allowed or (pos // 3, "ABC"[pos % 3]) in gaps:
                pos += 1
            at(pos // 3, "ABC"[pos % 3], op)
            nxt = pos + 1
            acc += c + 0.05
        assert nxt // 3 < (113 if cfg.b_tail else 116), (n0, nxt)
        if cfg.b_tail:
            n = place(cw[8:13], 113, "A", "ABC")
            place(cw[13:], max(n, 118), "A", "ABC")
        else:
            place(cw[8:11], 116, "A", "AC")
            place(cw[11:], 121, "B", "BC")

        if cfg.tlb_out and layer == 1:
            def tlbo():
                g.srd(sOUT, pOUT, 2048 * 1024)
                g.e(f"v_lshlrev_b32 v{vt2}, {cfg.tlb_out - 4}, v{vL16}")
                g.ld("v255", vt2, sOUT, None, 0, mods="", w=1)
            place([tlbo], 20, "A", "AC")
        for n_, skip, nblk in cfg.ct_b:
            place([lambda skip=skip, nblk=nblk: g.code_touch(skip, nblk, vt2, 255)], n_, "A", "AC")

        def run(n, gap):
            for fn in gaps.pop((n, gap), []):
                if "k" in cfg.dbg and layer == 1 and 16 <= n < 112:
                    continue
                fn()

        def qk(n):
            kt, j = order[n]
            g.e(f"v_mfma_f32_32x32x16_bf16 {vr(S + 16 * (n % 2), 16)}, {vr(KV + 12 * (kt % 3), 4)}, {vr(Q + 4 * j, 4)}, 0")

        def pv(n, half):
            kt, j = order[n]
            g.e(f"v_smfmac_f32_32x32x32_bf16 {vr(O + 16 * j, 16)}, {vr(KV + 12 * (kt % 3) + 4 + 4 * half, 4)}, {vr(S + 16 * (n % 2) + 8 * half, 8)}, v{vIdx}")

        g.stamp(f"B{layer}:ld")
        g.vwait(("Q", 0))
        g.stamp(f"B{layer}:q0")
        qk(0)
        for n in range(128):
            if cfg.b_align and n % cfg.b_align == 0:
                g.e(".p2align 3, , 4" if False else "")
            sb = S + 16 * (n % 2)
            ex = [f"v_exp_f32 v{sb + i}, v{sb + i}" for i in range(16)]
            g.e("\n".join(ex[0:2]))
            if n:
                pv(n - 1, 1)
            run(n, "A")
            run(n, "a")
            g.e("\n".join(ex[2:5]))
            if n < 127:
                qk(n + 1)
            run(n, "B")
            g.e("\n".join(ex[5:10]))
            pv(n, 0)
            run(n, "C")
            g.e("\n".join(ex[10:16]))
            run(n, "D")
            if n % 8 == 7:
                g.stamp(f"B{layer}_{n // 8}")
            if n in (0, 2, 5, 7, 15, 119, 123, 127):
                g.stamp(f"B{layer}:t{n}")
        assert not gaps, gaps.keys()
        pv(127, 1)
        if not cfg.b_tail:
            o_addr()
        def norm_text(s_):
            ob = O + 16 * (6 + s_)
            t = [f"v_rcp_f32 v{ob + 10}, v{ob + 8}", "s_nop 0"]
            t += [f"v_pk_mul_f32 {vr(ob + i, 2)}, {vr(ob + i, 2)}, {vr(ob + 10, 2)} op_sel_hi:[1,0]" for i in range(0, 8, 2)]
            t += [f"v_cvt_pk_bf16_f32 v{ob + 12 + i}, v{ob + 2 * i}, v{ob + 2 * i + 1}" for i in range(4)]
            return t + [g.st_text(vr(ob + 12, 4), vL16, sWS, (t0, t1)[s_], 0)]

        def norm(s_):
            t = norm_text(s_)
            g.e("\n".join(t[:-1]))
            g.vm(t[-1], "ost")
        for s_ in range(2):
            ob = O + 16 * (6 + s_)
            g.lwait(("p", s_))
            b0 = PB + 30 * s_
            if s_ == 1:
                for d in (1, 2):
                    g.e(f"v_add_f32 v{b0 + 8}, v{b0 + 8}, v{b0 + 10 * d + 8}")
                    for i in range(0, 8, 2):
                        g.e(f"v_pk_add_f32 {vr(b0 + i, 2)}, {vr(b0 + i, 2)}, {vr(b0 + 10 * d + i, 2)}")
            for d in range(3 if s_ == 0 else 1):
                b = b0 + 10 * d
                g.e(f"v_add_f32 v{ob + 8}, v{ob + 8}, v{b + 8}")
                for i in range(0, 8, 2):
                    g.e(f"v_pk_add_f32 {vr(ob + i, 2)}, {vr(ob + i, 2)}, {vr(b + i, 2)}")
            if cfg.guard_late:
                norm(s_)
        g.stamp(f"B{layer}:sum")
        if cfg.guard_late:
            assert not cfg.one_row
            g.softmax_guard(layer, O + 96, O + 112, norm_text(0) + norm_text(1))
        else:
            if cfg.one_row:
                g.e(g.bcast_l(O + 96, O + 112))
            g.softmax_guard(layer, O + 96, O + 112)
            for s_ in range(2):
                norm(s_)
        g.stamp(f"B{layer}st")
        self.CW = CW

    def bcast_l(self, o0, o1):
        return (f"v_mov_b32 v{o0 + 9}, v{o0 + 8}\nv_mov_b32 v{o1 + 9}, v{o1 + 8}\ns_nop 0\n"
                f"v_permlane32_swap_b32 v{o0 + 8}, v{o0 + 9}\nv_permlane32_swap_b32 v{o1 + 8}, v{o1 + 9}")

    def softmax_guard(self, layer, o0, o1, after=()):
        g = self
        Q, S, KV, vV = 144, 176, 208, 252
        M, T = 16, 18
        ls, lj, l1, l2 = g.label("fb"), g.label("fbj"), g.label("fb1"), g.label("fb2")
        for k, o in enumerate((o0, o1)):
            g.e(f"v_maximum3_f32 v{T + k}, abs(v{o}), abs(v{o + 1}), abs(v{o + 2})")
            g.e(f"v_maximum3_f32 v{T + k}, abs(v{o + 3}), abs(v{o + 4}), v{T + k}")
            g.e(f"v_maximum3_f32 v{T + k}, abs(v{o + 5}), abs(v{o + 6}), v{T + k}")
        g.e(f"""
        v_maximum3_f32 v{T}, abs(v{o0 + 7}), abs(v{o1 + 7}), v{T}
        v_minimum3_f32 v{M}, v{o0 + 8}, v{o1 + 8}, v{o1 + 8}
        v_maximum3_f32 v{M + 1}, v{o0 + 8}, v{o1 + 8}, v{o1 + 8}
        v_maximum3_f32 v{T}, v{T}, v{T + 1}, v{T + 1}
        s_mov_b32 s{t2}, {f2u(2.0 ** -64):#x}
        s_mov_b32 s{t3}, {f2u(2.0 ** 120):#x}
        s_mov_b32 s{t4}, 0x7f7fffff
        v_cmp_nle_f32 vcc, s{t2}, v{M}
        v_cmp_nge_f32 s[{t6}:{t7}], s{t3}, v{M + 1}
        v_cmp_nge_f32 s[{t10}:{t11}], s{t4}, v{T}
        s_nop 0
        s_or_b64 vcc, vcc, s[{t6}:{t7}]
        s_or_b64 vcc, vcc, s[{t10}:{t11}]
        s_cbranch_{'scc0' if g.cfg.force_fallback else 'scc1'} {ls}
        {lj}:
        """)
        fb = [f"{ls}:", f"s_lshl_b32 s{t2}, s{sC}, 17", f"s_add_u32 s{t2}, s{t2}, {aKV(layer)}", f"s_mov_b32 s{t3}, s{t2}",
              f"s_add_u32 s{t4}, s{t2}, 0x20000", f"v_mov_b32 v{M}, 0xff800000", f"v_mov_b32 v{M + 1}, 0xff800000", f"{l1}:",
              f"buffer_load_dwordx4 {vr(KV, 4)}, v{vL16}, {sr(sWS, 4)}, s{t3} offen sc1", "s_waitcnt vmcnt(0)"]
        for k in range(2):
            fb.append(f"v_mfma_f32_32x32x16_bf16 {vr(S + 16 * k, 16)}, {vr(KV, 4)}, {vr(Q + 24 + 4 * k, 4)}, 0")
        fb.append("s_nop 15")
        for k in range(2):
            for i in range(0, 16, 2):
                fb.append(f"v_max3_f32 v{M + k}, v{S + 16 * k + i}, v{S + 16 * k + i + 1}, v{M + k}")
        fb += [f"s_add_u32 s{t3}, s{t3}, 2048", f"s_cmp_lt_u32 s{t3}, s{t4}", f"s_cbranch_scc1 {l1}"]
        for k in range(2):
            fb += [f"v_mov_b32 v{T}, v{M + k}", "s_nop 1", f"v_permlane32_swap_b32 v{M + k}, v{T}", f"v_max_f32 v{M + k}, v{M + k}, v{T}"]
        for o in (o0, o1):
            fb += [f"v_mov_b32 v{o + r}, 0" for r in range(16)]
        fb += [f"s_mov_b32 s{t3}, s{t2}", f"{l2}:",
               f"buffer_load_dwordx4 {vr(KV, 4)}, v{vL16}, {sr(sWS, 4)}, s{t3} offen sc1",
               f"s_mov_b64 exec, s[{sVM}:{sVM + 1}]",
               f"buffer_load_dwordx4 {vr(KV + 4, 4)}, v{vV}, {sr(sWS, 4)}, s{t3} offen offset:1024 sc1",
               f"buffer_load_dwordx4 {vr(KV + 8, 4)}, v{vV}, {sr(sWS, 4)}, s{t3} offen offset:1536 sc1",
               "s_mov_b64 exec, -1", "s_waitcnt vmcnt(0)"]
        for k in range(2):
            fb.append(f"v_mfma_f32_32x32x16_bf16 {vr(S + 16 * k, 16)}, {vr(KV, 4)}, {vr(Q + 24 + 4 * k, 4)}, 0")
        fb.append("s_nop 15")
        for k in range(2):
            fb += [f"v_sub_f32 v{S + 16 * k + i}, v{S + 16 * k + i}, v{M + k}" for i in range(16)]
            fb += [f"v_exp_f32 v{S + 16 * k + i}, v{S + 16 * k + i}" for i in range(16)]
        fb.append("s_nop 1")
        for k, o in enumerate((o0, o1)):
            for h in range(2):
                fb.append(f"v_smfmac_f32_32x32x32_bf16 {vr(o, 16)}, {vr(KV + 4 + 4 * h, 4)}, {vr(S + 16 * k + 8 * h, 8)}, v{vIdx}")
        fb += [f"s_add_u32 s{t3}, s{t3}, 2048", f"s_cmp_lt_u32 s{t3}, s{t4}", "s_nop 7", f"s_cbranch_scc1 {l2}", "s_nop 15"]
        if g.cfg.one_row:
            fb += g.bcast_l(o0, o1).split("\n") + ["s_nop 1"]
        fb += list(after)
        fb.append(f"s_branch {lj}")
        g.tail.append("\n".join(fb))

    def reduce_write(self, acc, d, base):
        g = self
        ops = []

        def addr():
            g.e(f"s_xor_b32 s{t6}, s{sW}, {d}\ns_mul_i32 s{t6}, s{t6}, 12288")
        def addr2():
            g.e(f"s_add_u32 s{t6}, s{t6}, {base + (d - 1) * 4096}\nv_add_u32 v{vt0}, s{t6}, v{vL16}")
        ops += [addr, addr2]
        for q in range(4):
            ops.append(lambda q=q: g.ds(f"ds_write_b128 v{vt0}, {vr(acc + 4 * q, 4)} offset:{q * 1024}"))
        return ops

    def reduce_pre_ops(self, layer, which, base, Z, final):
        g = self
        ops = [f"s_mul_i32 s{t6}, s{sW}, 12288\ns_add_u32 s{t6}, s{t6}, {base}", f"v_add_u32 v{vt2}, s{t6}, v{vL16}"]
        for i in range(8):
            ops += [f"v_lshlrev_b32 v{Z + 2 * i}, 16, v{vRes + i}", f"v_and_b32 v{Z + 2 * i + 1}, s{sMask}, v{vRes + i}"]
        ops.append(f"s_lshl_b32 s{t0}, s{sCB}, 1\ns_add_u32 s{t0}, s{t0}, s{sNA}")
        if final:
            ops.append(lambda: g.srd(sOUT, pOUT, 2048 * 1024))
            ops += [f"v_bfe_u32 v{vt3}, v{vL16}, 4, 5", f"v_lshlrev_b32 v{vt3}, 10, v{vt3}", f"v_lshrrev_b32 v{vIdx}, 9, v{vL16}",
                    f"v_lshl_add_u32 v{vt3}, v{vIdx}, 4, v{vt3}",
                    f"s_lshl_b32 s{t7}, s{sTA}, 15\ns_lshl_b32 s{t8}, s{t0}, 6", f"s_add_u32 s{t7}, s{t7}, s{t8}"]
        else:
            ops += [f"v_mov_b32 v{vt3}, 0x3f803f80",
                    f"s_lshl_b32 s{t7}, s{sTA}, 15\ns_lshl_b32 s{t8}, s{t0}, 11",
                    f"s_add_u32 s{t7}, s{t7}, s{t8}\ns_add_u32 s{t7}, s{t7}, {aX(layer, which)}",
                    f"s_lshl_b32 s{t8}, s{sTA}, 12\ns_lshr_b32 s{t9}, s{t0}, 2",
                    f"s_lshl_b32 s{t9}, s{t9}, 10\ns_add_u32 s{t8}, s{t8}, s{t9}",
                    f"s_and_b32 s{t9}, s{t0}, 3\ns_lshl_b32 s{t9}, s{t9}, 2",
                    f"s_add_u32 s{t8}, s{t8}, s{t9}\ns_add_u32 s{t8}, s{t8}, {aST(layer, which)}"]
        return ops

    def reduce_pre(self, layer, which, base, Z, final):
        self.take(deque(self.reduce_pre_ops(layer, which, base, Z, final)), 999)

    def reduce_read_ops(self, ds_, PB, Z, pk=False):
        g = self
        ops = []

        def bar():
            g.lwait0()
            g.e("s_barrier")
        ops.append(bar)
        for k, d in enumerate(ds_):
            for q in range(4):
                ops.append(lambda k=k, d=d, q=q: g.ds(
                    f"ds_read_b128 {vr(PB + 16 * k + 4 * q, 4)}, v{vt2} offset:{(d - 1) * 4096 + q * 1024}", ("p", d, q)))
        for k, d in enumerate(ds_):
            for q in range(4):
                def add(k=k, d=d, q=q):
                    g.lwait(("p", d, q))
                    if pk:
                        for i in range(4 * q, 4 * q + 4, 2):
                            g.e(f"v_pk_add_f32 {vr(Z + i, 2)}, {vr(Z + i, 2)}, {vr(PB + 16 * k + i, 2)}")
                        return
                    for i in range(4 * q, 4 * q + 4):
                        g.e(f"v_add_f32 v{Z + i}, v{Z + i}, v{PB + 16 * k + i}")
                ops.append(add)
        return ops

    def reduce_finish(self, layer, which, acc, Z, final):
        g = self
        g.stamp(f"{'CE'[which]}{layer}_r0")
        for h in range(2):
            for i in range(8 * h, 8 * h + 8, 2):
                g.e(f"v_pk_add_f32 {vr(acc + i, 2)}, {vr(acc + i, 2)}, {vr(Z + i, 2)}")
            for i in range(4 * h, 4 * h + 4):
                g.e(f"v_cvt_pk_bf16_f32 v{vRes + i}, v{acc + 2 * i}, v{acc + 2 * i + 1}")
            if final:
                g.st(vr(vRes + 4 * h, 4), vt3, sOUT, t7, 32 * h, g.cfg.out_mods)
            else:
                g.st(vr(vRes + 4 * h, 4), vL16, sWS, t7, 1024 * h)
        if final:
            return
        for i in range(4):
            g.e(f"v_mov_b32 v{Z + i}, 0")
        for i in range(8):
            g.e(f"v_dot2c_f32_bf16 v{Z + i % 2}, v{vRes + i}, v{vt3}")
            g.e(f"v_dot2c_f32_bf16 v{Z + 2 + i % 2}, v{vRes + i}, v{vRes + i}")
        g.e(f"s_nop 1\nv_add_f32 v{Z}, v{Z}, v{Z + 1}\nv_add_f32 v{Z + 2}, v{Z + 2}, v{Z + 3}\ns_nop 1")
        g.e(f"v_permlane32_swap_b32 v{Z}, v{Z + 2}\nv_add_f32 v{Z}, v{Z}, v{Z + 2}")
        g.dual(g.st_text(vr(Z), vL16, sWS, t8, 0, "", 1), g.st_text(vr(Z), vL16, sWS, t8, 0, "sc1", 1), 1)
        g.vmq[-1] = "stst"

    def splitk_body(self, nks, wreg, hreg, ldh, nup, AC, PB, Z, SC, SK, name, extra=(), after=()):
        g = self
        nxt = [nup]
        after = deque(after)
        for m in range(nup):
            ldh(m)

        def more():
            if nxt[0] < 2 * nks and nxt[0] - self.ring < self.consumed:
                ldh(nxt[0])
                nxt[0] += 1
            elif nxt[0] == 2 * nks and after:
                after.popleft()()

        def mf(tk, n, i):
            m = i if tk else nks + i
            acc = AC[2 * tk + n]
            c = vr(acc, 16) if i else "0"
            g.e(f"v_mfma_f32_32x32x16_bf16 {vr(acc, 16)}, {wreg(2 * i + n)}, {hreg(m)}, {c}")
        side = deque()

        def pop(k=1):
            for _ in range(k):
                if side:
                    o = side.popleft()
                    if o:
                        o()
        self.consumed = 0
        for i in range(nks):
            g.vwait(("h", i))
            if i == 0:
                g.stamp(f"Z{name[1]}:Cfirst")
            mf(1, 1, i)
            mf(1, 0, i)
            self.consumed = i + 1
            more()
            if i % 8 == 7:
                g.stamp(f"{name}_{i}")
        w3 = g.reduce_write(AC[3], 3, SC)
        w2 = g.reduce_write(AC[2], 2, SC)
        w1 = g.reduce_write(AC[1], 1, SC)
        side.extend(w3[:2] + [None] * 2 + w3[2:] + w2)
        early = nks >= 16 or g.cfg.early_c
        if early:
            side.extend([None] * 2 + g.reduce_read_ops((3, 2), PB, Z))
        side.extend(extra)
        per = 1 if nks >= 16 else (4 if early else 2)
        for i in range(nks + SK):
            if i < nks:
                g.vwait(("h", nks + i))
                mf(0, 1, i)
                more()
                pop(per)
            if i == nks:
                g.stamp(f"Z{name[1]}:CAB")
                pop(len(side))
                side.extend(w1[:2] + [None] * 3 + w1[2:])
                rr = g.reduce_read_ops((1,) if early else (3, 2, 1), PB, Z, pk=g.cfg.c_pk)
                side.extend(rr)
                per = -(-(len(side) - (len(rr) // 2 if g.cfg.c_pk else 0)) // SK)
            if i >= SK:
                mf(0, 0, i - SK)
                pop(per)
            if i % 8 == 7:
                g.stamp(f"{name}_a{i}")
        pop(len(side))
        while after:
            after.popleft()()

    def phaseC(self, layer):
        g = self
        CW = g.CW
        OF = 144
        AC = [16, 32, 48, 64]
        PB, Z = 80, 128
        SC = 104 * 1024
        g.e(f"""
        v_and_b32 v{vt0}, 28, v{vL4}
        s_lshl_b32 s{t2}, s{sX}, 2
        s_lshr_b32 s{t3}, s{sC}, 3
        s_add_u32 s{t2}, s{t2}, s{t3}
        s_lshl_b32 s{t2}, s{t2}, 2
        s_add_u32 s{t2}, s{t2}, s{sW}
        s_lshl_b32 s{t2}, s{t2}, 7
        s_add_u32 s{t2}, s{t2}, {FB}
        s_lshl_b32 s{t3}, s{sTB}, 15
        s_lshl_b32 s{t4}, s{sW}, 13
        s_add_u32 s{t3}, s{t3}, s{t4}
        s_add_u32 s{t3}, s{t3}, {aO(layer)}
        s_xor_b32 s{t4}, s{t3}, 32768
        """)
        g.vwait("ost")
        g.stamp(f"Z{layer}:Back")
        g.signal(2, layer + 1, True)
        g.e("s_barrier")
        g.reduce_pre(layer, 0, SC, Z, False)
        g.poll(vt0, t2, layer + 1, True)
        g.stamp(f"C{layer}go")

        def ofr(m):
            return 208 + 4 * m if m < 3 and g.cfg.b_tail else OF + 4 * m

        def ldo(m):
            tk, i = (1, m) if m < 8 else (0, m - 8)
            so = t3 if tk else t4
            if i == 4:
                g.e(f"s_add_u32 s{so}, s{so}, 4096")
            g.ld(vr(ofr(m), 4), vL16, sWS, so, (i % 4) * 1024, tag=("h", m))
        self.ring = 16
        after = []
        if "C" in g.cfg.touch:
            after = [lambda: g.e(f"v_and_b32 v{vt1}, 0x3c0, v{vL16}\nv_lshlrev_b32 v{vt1}, 1, v{vt1}")]
            after += g.touch_ops(g.h_addr(layer, t9, t10), t9, 4, vt1, vIdx)
        if g.cfg.c_pre:
            after += [lambda: g.e(f"s_mul_i32 s{t9}, s{sHP}, 7168\ns_add_u32 s{t9}, s{t9}, {WX13}\ns_add_u32 s{t10}, s{t9}, 4096")]
            after += [lambda n=n: g.ld(vr(g.D_AX[n], 4), vL16, sWS, (t9, t10)[n // 4], (n % 4) * 1024, tag=("ax", n)) for n in g.D_AXPRE]
            after += [lambda: g.e(f"s_mul_i32 s{t11}, s{sHP}, 229376\ns_add_u32 s{t11}, s{t11}, {W13}")]
            after += g.dma_ops(152, 2, t11, 152 * 1024, "w13e", (t9, t10))
        g.splitk_body(8, lambda i: CW[i](0, 4), lambda m: vr(ofr(m), 4), ldo, g.cfg.up_c, AC, PB, Z, SC, 8, f"C{layer}", after=after)
        g.reduce_finish(layer, 0, AC[0], Z, False)
        g.stamp(f"C{layer}st")

    def phaseD(self, layer):
        g = self
        cfg = g.cfg
        p421 = cfg.passes == [(0, 4), (4, 6), (6, 7)]
        assert p421 or cfg.passes[:2] in ([(0, 3), (3, 5)], [(0, 2), (2, 4)])
        X = 16
        ACC = [144 + 16 * i for i in range(6)] + [144] if p421 else [144, 160, 176, 192, 208, 144, 160]
        vB = [vL16, 240, 241]
        kexp, cden = 242, 243
        ET = 244
        BX = 248
        AX = g.D_AX
        SB = 224
        g.e(f"v_and_b32 v{vt0}, 60, v{vL4}\ns_lshl_b32 s{t2}, s{sT}, 7\ns_add_u32 s{t2}, s{t2}, {FC}")
        g.e(f"v_add_u32 v{vB[1]}, 0x10000, v{vL16}\nv_add_u32 v{vB[2]}, 0x20000, v{vL16}")
        g.e(f"s_mul_i32 s{t11}, s{sHP}, 229376\ns_add_u32 s{t11}, s{t11}, {W13}")
        g.e(f"s_mul_i32 s{t3}, s{sHP}, 7168\ns_mul_i32 s6, s{sT}, {112 * 1024}\ns_add_u32 s6, s6, s{t3}\ns_add_u32 s6, s6, {aH(layer)}\ns_add_u32 s7, s6, 4096")
        g.e(f"s_add_u32 s{t3}, s{t3}, {WX13}\ns_add_u32 s3, s{t3}, 4096")
        g.vwait("stst")
        g.stamp(f"Z{layer}:Cack")
        g.signal(3, layer + 1, True)
        g.e("s_barrier")

        def wread(f):
            slot = f % 160
            g.ds(f"ds_read_b128 {ar(WB + 4 * (f % 8), 4)}, v{vB[slot // 64]} offset:{(slot % 64) * 1024}", ("w", f))
        LEAD = 7
        for f in range(LEAD):
            wread(f)
        pre, xrest, stl = g.load_x_stats(layer, 0, aX(layer, 0), X, SB, cfg.up_d)
        xrest = deque(xrest)
        g.poll(vt0, t2, layer + 1, True)
        g.stamp(f"D{layer}go")
        pre()
        side = deque()
        mem = deque()

        def epi_ops(n):
            a = ACC[n]
            ops = []
            for half in range(2):
                r0 = a + 4 * half
                for i in range(4):
                    ops.append(f"v_mul_f32 v{ET + i}, v{kexp}, v{r0 + i}")
                for i in range(4):
                    ops.append(f"v_exp_f32 v{ET + i}, v{ET + i}")
                for i in range(4):
                    ops.append(f"v_mul_f32 v{r0 + i}, v{r0 + i}, v{r0 + 8 + i}")
                for i in range(4):
                    ops.append(f"v_fma_f32 v{ET + i}, v{ET + i}, v{cden}, v{cden}")
                for i in range(4):
                    ops.append(f"v_rcp_f32 v{ET + i}, v{ET + i}")
                for i in range(4):
                    ops.append(f"v_mul_f32 v{r0 + i}, v{r0 + i}, v{ET + i}")
            for i in range(4):
                ops.append(f"v_cvt_pk_bf16_f32 v{a + 8 + i}, v{a + 2 * i}, v{a + 2 * i + 1}")
            if "h" in cfg.dbg and n < 3:
                ops.append(lambda: g.vmq.append(("hst", n)) or g.e("s_nop 0") or g.vmq.pop())
            else:
                ops.append(lambda: g.st(vr(a + 8, 4), vL16, sWS, (6, 7)[n // 4], (n % 4) * 1024, cfg.hmods[layer], tag="hst" if n == 6 else ("hst", n)))
            return ops

        def xmf(n, first):
            acc = vr(ACC[n], 16)
            assert g.vmq.count(("ax", n)) + g.waited.get(("ax", n), 0) == layer + 1, n
            g.vwait(("ax", n))
            g.e(f"v_mfma_f32_32x32x16_bf16 {acc}, {vr(AX[n], 4)}, {vr(BX, 4)}, {'0' if first else acc}")

        def stats_go():
            side.extend([None] * cfg.st_pad + g.stats_ops(SB, kexp, cden, BX) + ["s_nop 0", f"v_mul_f32 v{kexp}, {f2u(-LOG2E):#x}, v{kexp}",
                                                                                           lambda: state.update(done=True)])
        def axld(n):
            assert not 224 <= AX[n] < 240 or state.get("done")
            g.ld(vr(AX[n], 4), vL16, sWS, (t3, 3)[n // 4], (n % 4) * 1024, tag=("ax", n))
        state = {"stats": False}

        def stats_mark():
            state["stats"] = True
            stats_go()
        xr = list(xrest)
        k = cfg.st_d
        mem.extend(xr[:k] + stl + [SOp(stats_mark)] + xr[k:])
        nb2 = (152 - 132) // 4 if cfg.c_pre else 7
        axs = [lambda n=n: axld(n) for n in range(7) if not (cfg.c_pre and n in g.D_AXPRE)]
        mem.extend(axs[:cfg.ax_first])
        mem.extend(g.dma_ops(104, 7, t11, 104 * 1024, "w13b", (t8, t9)))
        mem.extend(axs[cfg.ax_first:])
        mem.extend(g.dma_ops(132, nb2, t11, 132 * 1024, "w13b2", (t8, t9)))
        batches = {104: ("w13b", 7), 132: ("w13b2", nb2), 160: ("w13c", 8), 192: ("w13d", 8)}
        g.e_plan(layer)
        esetup = g.e_setup(layer)
        f = 0
        for pi, (a, b) in enumerate(cfg.passes):
            wdt = b - a
            nm = 32 * wdt
            tot = sum(0 if isinstance(o, tuple) else (2 if isinstance(o, str) and o.startswith(("v_exp", "v_rcp")) else 1) for o in side)
            done = 0
            for ks in range(32):
                for n in range(a, b):
                    if pi == 0 and n == a:
                        assert ("x", ks) in g.vmq or ("x", ks) in g.waited
                        g.vwait(("x", ks))
                        if ks == 0:
                            g.stamp(f"Z{layer}:Dfirst")
                    if f % 4 == 0:
                        g.lwait(("w", min(f + 3, 223)))
                    c = vr(ACC[n], 16) if ks or pi else "0"
                    g.e(f"v_mfma_f32_32x32x16_bf16 {vr(ACC[n], 16)}, {ar(WB + 4 * (f % 8), 4)}, {vr(X + 4 * ks, 4)}, {c}")
                    fn = f + LEAD
                    if fn in batches:
                        tag, cnt = batches[fn]
                        assert g.vmq.count(tag) + self.waited.get(tag, 0) == cnt * (layer + 1), (fn, tag)
                        g.vwait(tag)
                        if fn == 160 and layer == 0:
                            g.lwait0()
                        g.e("s_barrier")
                    if fn == cfg.bar_c:
                        if fn not in batches:
                            g.e("s_barrier")
                        if "c" in cfg.dbg:
                            batches[160] = batches[192] = ("none", 0)
                        elif "l" in cfg.dbg:
                            mem.extend(g.dma_ops(0, 8, t11, 0, "w13c", (t8, t9)))
                            mem.extend(g.dma_ops(0, 8, t11, 32 * 1024, "w13d", (t8, t9)))
                        else:
                            mem.extend(g.dma_ops(160, 8, t11, 0, "w13c", (t8, t9)))
                            mem.extend(g.dma_ops(192, 8, t11, 32 * 1024, "w13d", (t8, t9)))
                        if layer == 0 and cfg.ew_in_b < 56:
                            mem.extend(g.ew_ops(cfg.ew_in_b, 56, (t4, t5)))
                    if cfg.ct_d and f == cfg.ct_d[0] and layer in cfg.ct_d[3]:
                        mem.append(lambda: g.code_touch(cfg.ct_d[1], cfg.ct_d[2], vt2, vt3))
                    if f == cfg.d_touch[layer]:
                        if cfg.d_t1:
                            tt = [SOp(lambda: g.e(f"v_lshlrev_b32 v{vt2}, 3, v{vL16}\nv_min_u32 v{vt2}, {55 * 128}, v{vt2}")),
                                  lambda: g.ld(vr(vt3), vt2, sWS, 6, 0, tag="pf", w=1)]
                            if cfg.d_t1 == 2:
                                mem.extendleft(reversed(tt))
                            else:
                                mem.extend(tt)
                        else:
                            mem.append(SOp(lambda: g.e(f"v_and_b32 v{vt2}, 0x3c0, v{vL16}\nv_lshlrev_b32 v{vt2}, 1, v{vt2}\ns_mov_b32 s{t10}, s6")))
                            mem.extend(g.touch_ops([], t10, 4, vt2, vt3))
                    if fn == 160 and layer == 0:
                        mem.append(SOp(lambda: g.e(f"s_mul_i32 s64, s{sHP}, {96 * 1024}\ns_add_u32 s64, s64, {WQ}")))
                        wq = g.dma_ops(0, 24, 64, 65536, "wq", (62, 63))
                        cut = [i for i, o in enumerate(wq) if not isinstance(o, SOp)][cfg.wq_d - 1] + 1 if cfg.wq_d else 2
                        mem.extend(wq[:cut])
                        g.wq_rest = wq[cut:]
                    if fn < 224:
                        wread(fn)
                    m = ks * wdt + (n - a) + 1
                    if pi == 0:
                        g.take(side, cfg.st_cap)
                    else:
                        if cfg.d_cap:
                            g.take(side, 0 if m <= 2 else cfg.d_cap - (f % 4 == 3), exact=True)
                        else:
                            want = 0 if m <= 2 else min(-(-tot * m // nm) - done, 6)
                            g.take(side, want)
                            done += want
                    if mem and isinstance(mem[0], SOp):
                        mem.popleft()()
                    elif mem and f % 2 == 0:
                        mem.popleft()()
                    if f == cfg.d_sig:
                        assert g.vmq.count(("hst", cfg.ne - 1)) + g.waited.get(("hst", cfg.ne - 1), 0) == layer + 1
                        g.vwait(("hst", cfg.ne - 1))
                        g.signal(4, g.e_nst * layer + 1, True)
                    if cfg.d_sig < f <= cfg.d_sig + len(esetup):
                        g.e(esetup[f - cfg.d_sig - 1])
                    if f == cfg.d_pl:
                        g.flag_load("fd1")
                    if f == cfg.d_ck:
                        g.flag_check("fd1", g.e_nst * layer + 1)
                        g.stamp(f"D{layer}_chk")
                    if f >= cfg.d_ck:
                        for _ in range(cfg.d_nl):
                            if g.e_next < cfg.e_pre and g.e_next < f - 192 and (f - cfg.d_ck) % cfg.d_step == 0:
                                g.e_load()
                    f += 1
                    if f % 32 == 0:
                        g.stamp(f"D{layer}_{f}")
                    g.stamp(f"Dx{layer}:{f}.")
            g.take(side, 9999)
            if pi == 0:
                assert state["stats"]
                for n in range(a, b):
                    xmf(n, False)
            if pi + 1 < len(cfg.passes):
                for n in range(*cfg.passes[pi + 1]):
                    xmf(n, True)
            for n in range(a, b):
                side.extend(epi_ops(n))
        g.e("s_barrier")
        while mem:
            mem.popleft()()
        g.stamp(f"D{layer}st")
        return side

    E_HR, E_NR = 16, 32

    def e_plan(self, layer):
        NE = self.cfg.ne
        if self.cfg.e3:
            st = [[7 * f + n for f in range(4) for n in rng] for rng in (range(NE), range(NE, 6), range(6, 7))]
            order = [(1, 0), (0, 0), (1, 1), (1, 2), (0, 1), (0, 2)]
        else:
            st = [[7 * f + n for f in range(4) for n in rng] for rng in (range(NE), range(NE, 7))]
            order = [(1, 0), (0, 0), (1, 1), (0, 1)]
        self.e_seq = [(tk, i) for tk, s_ in order for i in st[s_]]
        self.e_stage = [s_ for tk, s_ in order for i in st[s_]]
        self.e_nst = len(st)
        self.e_next = 0
        self.e_base = None

    def e_setup(self, layer):
        return [f"v_and_b32 v{vt0}, 28, v{vL4}",
                f"s_lshr_b32 s{t2}, s{sTA}, 1\ns_lshl_b32 s{t2}, s{t2}, 2", f"s_add_u32 s{t2}, s{t2}, s{sW}\ns_lshl_b32 s{t2}, s{t2}, 7",
                f"s_add_u32 s{t2}, s{t2}, {FD}\ns_mul_i32 s{t5}, s{sW}, {28 * 1024}", f"s_add_u32 s{t5}, s{t5}, {aH(layer)}\ns_mul_i32 s{t3}, s{sTB}, {112 * 1024}",
                f"s_add_u32 s{t3}, s{t3}, s{t5}\ns_mul_i32 s{t4}, s{sTA}, {112 * 1024}", f"s_add_u32 s{t4}, s{t4}, s{t5}"]

    def e_load(self):
        g = self
        m = g.e_next
        tk, i = g.e_seq[m]
        key = (tk, i // 7, (i % 7) // 4)
        if g.e_base != key:
            g.e(f"s_add_u32 s{t5}, s{(t4, t3)[tk]}, {(i // 7) * 7168 + ((i % 7) // 4) * 4096}")
            g.e_base = key
        g.ld(vr(g.E_HR + 4 * (m % g.E_NR), 4), vL16, sWS, t5, ((i % 7) % 4) * 1024, mods=g.cfg.hlmods, tag=("h", m))
        g.e_next += 1

    def flag_load(self, tag):
        self.ld(vr(vt1), vt0, sWS, t2, 0, tag=tag, w=1)

    def flag_check(self, tag, val):
        g = self
        g.late_check(tag, f"buffer_load_dword v{vt1}, v{vt0}, {sr(sWS, 4)}, s{t2} offen sc1", f"v_cmp_gt_u32 vcc, {val}, v{vt1}", 0)
        g.dual("", "buffer_inv sc1\ns_waitcnt vmcnt(0)", 0)

    def phaseE(self, layer, final, side):
        g = self
        cfg = g.cfg
        HR, NR = g.E_HR, g.E_NR
        PB, Z = 144, 176
        AC = [240, 224, 208, 192]
        SC = 0
        seq, stage, nst = g.e_seq, g.e_stage, g.e_nst
        N = len(seq)
        seen = set()
        consumed = [0]

        def more(k=1):
            for _ in range(k):
                if g.e_next < N and g.e_next - NR < consumed[0] and stage[g.e_next] <= state["ok"]:
                    g.e_load()

        def mf(m, n):
            tk, i = seq[m]
            acc = vr(AC[2 * tk + n], 16)
            g.e(f"v_mfma_f32_32x32x16_bf16 {acc}, {ar(4 * (2 * i + n), 4)}, {vr(HR + 4 * (m % NR), 4)}, {acc if (tk, n) in seen else '0'}")
            seen.add((tk, n))
        state = {"ok": 0, "st": None}
        nB = max(m for m in range(N) if seq[m][0] == 1) + 1
        w3 = g.reduce_write(AC[3], 3, SC)
        w2 = g.reduce_write(AC[2], 2, SC)
        w1 = g.reduce_write(AC[1], 1, SC)
        for m in range(nB):
            assert g.e_next > m, m
            g.vwait(("h", m))
            for n in (1, 0):
                mf(m, n)
                g.take(side, 5 if state["st"] is None else 2, exact=True)
            consumed[0] = m + 1
            g.stamp(f"Ex{layer}:{m}.")
            if nst == 3:
                if m == cfg.e2_sig:
                    g.vwait(("hst", 5))
                    g.signal(4, 3 * layer + 2, True)
                if m == cfg.e2_pl:
                    g.flag_load("fd2")
                if m == cfg.e2_ck:
                    g.flag_check("fd2", 3 * layer + 2)
                    state["ok"] = 1
            if state["st"] is None:
                if not side:
                    state["st"] = m
                else:
                    more(2 if g.e_next - m < cfg.e_pre else 1)
            if state["st"] is not None:
                d = m - state["st"]
                if d == cfg.e_sig:
                    assert nst == 2 or m > cfg.e2_ck
                    g.vwait("hst")
                    g.signal(4, nst * layer + nst, True)
                    g.stamp(f"E{layer}_sig")
                if d == 0:
                    side.extend(g.reduce_pre_ops(layer, 1, SC, Z, final))
                if d == cfg.e_sig + cfg.e_pl:
                    g.flag_load("fd3")
                if d == cfg.e_sig + cfg.e_pl + cfg.e_ck:
                    g.flag_check("fd3", nst * layer + nst)
                    g.stamp(f"E{layer}_chk")
                    state["ok"] = nst - 1
                more(2 if g.e_next - m < cfg.up_e else 1)
        assert state["ok"] == nst - 1
        if cfg.e_single:
            PB = 128
            assert all(not 28 <= m % NR for m in range(nB, N))
            side.extend(w3[:2] + [None] * 2 + w3[2:] + w2)
        else:
            side.extend(w3[:2] + [None] * 2 + w3[2:] + w2 + [None] + g.reduce_read_ops((3, 2), PB, Z))
        tailq = deque(g.wq_rest if layer == 0 else [])
        if "E" in cfg.touch and not final:
            tq = [SOp(lambda: g.e(f"v_and_b32 v{vt1}, 0x3c0, v{vL16}\nv_lshlrev_b32 v{vt1}, 1, v{vt1}\ns_and_b32 s{t9}, s{t8}, 0xfffffc00"))]
            tailq.extendleft(reversed(tq + g.touch_ops([], t7, 1, vt1, vIdx) + g.touch_ops([], t9, 1, vt1, vIdx)))
        if final and cfg.wb:
            def wb():
                L = g.label("wb")
                g.e(f"s_lshl_b32 s{t5}, s{sC}, 2\ns_add_u32 s{t5}, s{t5}, s{sW}\ns_cmp_lt_u32 s{t5}, {cfg.wb}\ns_cbranch_scc0 {L}\nbuffer_wbl2 sc1\n{L}:")
            tailq.append(wb)
        nA, SK = N - nB, cfg.sk_e
        per = -(-len(side) // (nA + max(nA - SK, 0)))
        for i in range(nA + SK):
            if i < nA:
                g.vwait(("h", nB + i))
                mf(nB + i, 1)
                more()
                g.take(side, per)
            if g.e_next == N and tailq:
                while isinstance(tailq[0], SOp):
                    tailq.popleft()()
                tailq.popleft()()
            if i == nA:
                g.stamp(f"Ex{layer}:AB.")
                g.take(side, 999)
                rr = g.reduce_read_ops((3, 2, 1) if cfg.e_single else (1,), PB, Z, pk=cfg.e_pk)
                side.extend(w1[:2] + [None] * 3 + w1[2:] + rr)
                per = -(-(len(side) - (len(rr) // 2 if cfg.e_pk else 0)) // SK)
            if i >= SK:
                mf(nB + i - SK, 0)
                g.take(side, per)
        g.take(side, 999)
        while tailq:
            tailq.popleft()()
        g.reduce_finish(layer, 1, AC[0], Z, final)
        g.stamp(f"E{layer}st")
        if not final:
            g.vwait0()
            g.stamp(f"Z{layer}:Eack")
            g.signal(5, layer + 1, True)
            g.e("s_barrier")

    def build(self):
        g = self
        cfg = g.cfg
        g.prologue()
        done = False
        for layer in range(2):
            for ph in "ABCDE":
                mark = len(g.lines)
                if ph == "A":
                    g.phaseA1(layer) if layer else (g.phaseA0b() if cfg.a0b else g.phaseA0())
                elif ph == "B":
                    g.phaseB(layer)
                elif ph == "C":
                    g.phaseC(layer)
                elif ph == "D":
                    rest = g.phaseD(layer)
                else:
                    g.phaseE(layer, layer == 1, rest)
                if ph in cfg.hack16 and layer == 1:
                    import re
                    out, k, pend, cnt = [], 0, None, 0
                    for ln in g.lines[mark:]:
                        m = re.match(r"v_mfma_f32_32x32x16_bf16 v\[(\d+):\d+\], (\S+), (\S+), (\S+)$", ln)
                        brk = m or ln.endswith(":") or ln.startswith(("s_cbranch", "s_barrier", "s_waitcnt vm", "ds_write", "buffer_store"))
                        if pend and (brk or cnt >= cfg.hack_gap):
                            out.append(pend)
                            pend = None
                        if m:
                            b = int(m.group(1))
                            two = []
                            for h in range(2):
                                o = b + 4 * ((2 * k + h) % 4)
                                c = "0" if m.group(4) == "0" else f"v[{o}:{o + 3}]"
                                two.append(f"v_mfma_f32_16x16x32_bf16 v[{o}:{o + 3}], {m.group(2)}, {m.group(3)}, {c}")
                            out.append(two[0])
                            pend, cnt = two[1], 0
                            k += 1
                        else:
                            out.append(ln)
                            cnt += 1
                    if pend:
                        out.append(pend)
                    g.lines[mark:] = out
                if cfg.stop == f"{ph}{layer}":
                    done = True
                    break
            if done:
                break
        if cfg.ts:
            g.vwait0()
            g.stamp("end") if g.nts < 16 else None
            g.e(f"s_lshl_b32 s{t0}, s2, 2\ns_add_u32 s{t0}, s{t0}, s{sW}\ns_lshl_b32 s{t0}, s{t0}, 7\ns_add_u32 s{t0}, s{t0}, {TS}")
            g.e(f"v_mov_b32 v{vt0}, 0")
            for i in range(g.nts):
                g.e(f"v_writelane_b32 v{vt0}, s{sTS + i}, {i}")
            g.e(f"v_writelane_b32 v{vt0}, s{sMode}, 31")
            g.e("s_mov_b32 exec_hi, 0")
            g.st(vr(vt0), vL4, sWS, t0, 0, w=1)
            if cfg.ts_dbg is not None:
                g.e(f"s_cmp_eq_u32 s2, {cfg.ts_dbg}\ns_cbranch_scc0 L_exit\ns_cmp_eq_u32 s{sW}, 0\ns_cbranch_scc0 L_exit")
                g.e(f"v_subrev_u32 v{vt0}, s{sTS}, v{vt0}")
                g.st(vr(vt0), vL4, sDBG, None, 0, w=1)
        g.e("L_exit:\ns_endpgm")
        for t in g.tail:
            g.e(t)
        g.e("L_end:")
        lines, rep = fix_hazards(g.lines)
        return lines, rep


HEADER = """; Fused two-layer transformer block (LN+QKV, attention, WO, LN+W1/W3+SwiGLU, W2), one persistent launch.
; @launch grid=(256,1,1) block=(256,1,1) lds=163840
.amdgcn_target "amdgcn-amd-amdhsa--gfx950"
.text
.globl {name}_kernel
.p2align 8
.type {name}_kernel,@function
{name}_kernel:
"""
FOOTER = """
.section .rodata,"a"
.p2align 6
.amdhsa_kernel {name}_kernel
  .amdhsa_next_free_vgpr 512
  .amdhsa_next_free_sgpr 102
  .amdhsa_accum_offset 256
  .amdhsa_group_segment_fixed_size 0
  .amdhsa_kernarg_size 80
  .amdhsa_user_sgpr_count 2
  .amdhsa_user_sgpr_kernarg_segment_ptr 1
  .amdhsa_system_sgpr_workgroup_id_x 1
  .amdhsa_float_denorm_mode_32 3
.end_amdhsa_kernel
"""


def generate(path, **kw):
    cfg = Cfg()
    for k, v in kw.items():
        setattr(cfg, k, v)
    set_alias(cfg.alias)
    g = Gen(cfg)
    lines, rep = g.build()
    txt = HEADER.format(name=NAME) + "\n".join(("" if l.endswith(":") else "  ") + l for l in lines) + FOOTER.format(name=NAME)
    open(path, "w").write(txt)
    return g, rep


if __name__ == "__main__":
    import argparse
    ap = argparse.ArgumentParser()
    ap.add_argument("-o", default=f"cdna_kernels/{NAME}.s")
    ap.add_argument("--stop")
    ap.add_argument("--ts", action="store_true")
    ap.add_argument("--slow", action="store_true")
    ap.add_argument("-v", action="store_true")
    a = ap.parse_args()
    g, rep = generate(a.o, stop=a.stop, ts=a.ts, force_slow=a.slow)
    print("lines", len(g.lines), "nops inserted", len(rep), "stamps", g.tsnames)
    if a.v:
        for r in rep:
            print(r)
```

```python
import os
import sys
from collections import deque

sys.path.insert(0, os.path.dirname(os.path.abspath(__file__)))
from asmlib import Asm, R, ar, fix_hazards, sr, vr

NAME = "interleave_layers__mha_block__glu_gated_swiglu__prompt"

FA_L, FB, FD, FC, FE, FA_G, FR, FX = 0x0000, 0x4000, 0x8000, 0xC000, 0xE000, 0x10000, 0x14000, 0x16000
TS = 0x80000
ST = 0x100000
WQ, WO, W13, W2 = 0x200000, 0x380000, 0x400000, 0x780000
WX13, WXQ, WXD = 0x940000, 0x960000, 0x970000
LB0, LBS = 0xA00000, 0x1400000
oQ, oKV, oO, oX1, oX2, oH = 0x0, 0x200000, 0x600000, 0x800000, 0xA00000, 0xC00000
WS_BYTES = 0x10000000
ALIAS = True


def set_alias(v):
    global ALIAS
    ALIAS = v


def aQ(l):
    return 0xA00000 if ALIAS else LB0 + l * LBS + oQ


def aO(l):
    return 0xA00000 if ALIAS else LB0 + l * LBS + oO


def aX(l, which):
    return 0xC00000 if ALIAS else LB0 + l * LBS + (oX1, oX2)[which]


def aH(l):
    return 0xE00000 if ALIAS else LB0 + l * LBS + oH


def aKV(l):
    return 0x1600000 + l * 0x400000 if ALIAS else LB0 + l * LBS + oKV


def aST(l, which):
    return ST if ALIAS else ST + (2 * l + which) * 0x40000

sWS, sXIN, sOUT, sDBG, sWQ, sRA, sRB = 8, 12, 16, 20, 24, 28, 32
sX, sC, sW, sT, sHP, sTA, sTB, sNA, sCB, sMode, sTO, sMask = range(36, 48)
t0, t1, t2, t3, t4, t5, t6, t7, t8, t9, t10, t11 = range(48, 60)
sVM = 60
pX, pWQ, pWO, pBX, pW1, pW3, pW2, pOUT, pDBG, pWS = range(64, 84, 2)
sTS = 84
sSN2 = 100
vL16, vL4, vIdx, vFl = 0, 1, 2, 3
vt0, vt1, vt2, vt3 = 4, 5, 6, 7
vRes = 8
WB = 224

LOG2E = 1.4426950408889634
TIMEOUT = 0x200000


def f2u(x):
    import struct
    return struct.unpack("<I", struct.pack("<f", x))[0]


class SOp:
    def __init__(self, fn):
        self.fn = fn

    def __call__(self):
        self.fn()


class Cfg:
    passes = [(0, 4), (4, 6), (6, 7)]
    stop = None
    ts = False
    ts_skip = ('start', 'C1st', 'E1st', 'A1st', 'C0st')
    ts_only = None
    force_slow = False
    force_fallback = False
    pf_w13 = (0, 0)
    bg_end = 108
    b_tail = True
    gp = (4, 4)
    a0b = False
    a0_up = 3
    tlb = None
    tlb_out = 0
    mf4_late = True
    a0_take = 2
    st_take = 0
    guard_late = True
    zero16 = True
    one_row = False
    ct_b = ((10, 1024, 8), (110, 512, 8))
    ct_d = (78, 4096, 4, (0, 1))
    hmods = ('', '')
    hlmods = 'sc1'
    poll2 = 0
    hack16 = ''
    hack_gap = 2
    b_opt = 3
    wb = 0
    keep = None
    b_align = 0
    q_up = 4
    v_split = False
    bg_ac = True
    ne = 4
    e3 = False
    e2_sig = 2
    e2_pl = 7
    e2_ck = 11
    d_step = 1
    d_sig = 196
    d_pl = 206
    d_ck = 214
    d_nl = 1
    e_pre = 10
    e_sig = 6
    e_pl = 5
    e_ck = 5
    spin = None
    ws_off = 0
    kvpf = (None, None)
    warm_w = 9
    rl_in_b = False
    rl_in_a = True
    rl_ack = 7
    g_sleep = 2
    rl_split = False
    rs_dma = 14
    rs_out = 28
    spare = (0, 6, 7, 16, 22, 23)
    b0_sleep = 0
    b0_g = True
    kv_touch = False
    g2_late = False
    xcc_early = False
    rl_c0 = 1
    rl_c1 = 4
    setup_first = True
    rl_ld = 16
    cold_touch = 0
    ct0 = 24
    x2_d = True
    bar_c = 76
    d_cap = 5
    alias = True
    touch = 'BHEA'
    d_touch = (None, 80)
    h_in_b = (True, False)
    d_t1 = 1
    tb0 = 97
    kvmods = 'sc1'
    ts_dbg = None
    hpx = 0
    wmods = 'sc1'
    early_c = False
    warm = 5
    dbg = ''
    rot = 's_lshr_b32 s{t1}, s{sHP}, 1'
    rl_sleep = 16
    lag_a = 12
    lag_end = True
    x2_a = 8
    st_a = 12
    st_d = 6
    c_pre = True
    c_pk = True
    e_single = False
    e_pk = True
    ax_first = 0
    st_cap = 2
    st_pad = 16
    wq_d = 12
    cpf = 2
    defer = None
    sk_e = 8
    out_mods = ''
    rl0 = 9
    rl_lat = 7
    rl_gap = 20
    up_a = 8
    up_d = 6
    up_e = 10
    up_c = 10
    ew_in_b = 56


class Gen(Asm):
    def __init__(self, cfg):
        super().__init__()
        self.cfg = cfg
        self.nts = 0
        self.m0_owner = None
        self.tsnames = []

    def srd(self, s, ptr, size):
        self.e(f"s_mov_b32 s{s}, s{ptr}\ns_mov_b32 s{s + 1}, s{ptr + 1}\ns_mov_b32 s{s + 2}, {size}\ns_mov_b32 s{s + 3}, 0x20000")

    def ld(self, dst, voff, srd, soff, imm=0, mods="sc1", tag=None, w=4):
        op = {1: "dword", 2: "dwordx2", 4: "dwordx4"}[w]
        so = f"s{soff}" if soff is not None else "0"
        o = f" offset:{imm}" if imm else ""
        self.vm(f"buffer_load_{op} {dst}, v{voff}, {sr(srd, 4)}, {so} offen{o} {mods}".rstrip(), tag)

    def st_text(self, src, voff, srd, soff, imm=0, mods="", w=4):
        op = {1: "dword", 2: "dwordx2", 4: "dwordx4"}[w]
        so = f"s{soff}" if soff is not None else "0"
        o = f" offset:{imm}" if imm else ""
        return f"buffer_store_{op} {src}, v{voff}, {sr(srd, 4)}, {so} offen{o} {mods}".rstrip()

    def st(self, src, voff, srd, soff, imm=0, mods="", tag=None, w=4):
        self.vm(self.st_text(src, voff, srd, soff, imm, mods, w), tag)

    def dma(self, voff, srd, soff, imm=0, mods="sc1", tag=None):
        so = f"s{soff}" if soff is not None else "0"
        o = f" offset:{imm}" if imm else ""
        m = (mods + " lds").strip()
        self.vm(f"buffer_load_dwordx4 v{voff}, {sr(srd, 4)}, {so} offen{o} {m}", tag)

    def stamp(self, name):
        if self.cfg.spin:
            if name == "entry":
                self.e("s_memrealtime s[98:99]\ns_waitcnt lgkmcnt(0)")
            if name == self.cfg.spin[0]:
                L = self.label("spin")
                if len(self.cfg.spin) > 2:
                    self.e(self.cfg.spin[2])
                self.e(f"{L}:\ns_memrealtime s[4:5]\ns_waitcnt lgkmcnt(0)\ns_sub_u32 s4, s4, s98\ns_cmp_lt_u32 s4, {self.cfg.spin[1]}\ns_cbranch_scc1 {L}")
                self.lq = []
        if not self.cfg.ts:
            return
        if self.cfg.ts_only:
            if not name.startswith(self.cfg.ts_only):
                return
        elif name in self.cfg.ts_skip or "_" in name or ":" in name:
            return
        if self.nts >= 16:
            return
        self.e(f"{'s_memtime' if self.cfg.ts == 'cyc' else 's_memrealtime'} s[4:5]\ns_waitcnt lgkmcnt(0)\ns_mov_b32 s{sTS + self.nts}, s4")
        self.lq = []
        self.tsnames.append(name)
        self.nts += 1

    def dual(self, fast, slow, nvm):
        ls, lj = self.label("slow"), self.label("join")
        self.e(f"s_cmp_lg_u32 s{sMode}, 0\ns_cbranch_scc1 {ls}")
        self.e(fast)
        self.e(f"{lj}:")
        self.tail.append(f"{ls}:\n{slow}\ns_branch {lj}")
        self.vmq += [None] * nvm

    def signal(self, ftype, val, local):
        self.e(f"v_mov_b32 v{vt1}, {val}")
        st = f"s_mov_b64 exec, {1 << ftype}\nbuffer_store_dword v{vt1}, v{vFl}, {sr(sWS, 4)}, 0 offen%s\ns_mov_b64 exec, -1"
        if local:
            self.dual(st % "", "buffer_wbl2 sc1\ns_waitcnt vmcnt(0)\n" + st % " sc1", 1)
        else:
            self.e(st % " sc1")
            self.vmq.append(None)

    def poll(self, voff, soff, val, local, sleep=0):
        L = self.label("poll")
        ld = f"buffer_load_dword v%d, v{voff}, {sr(sWS, 4)}, s{soff} offen sc1"
        if self.cfg.poll2 and not sleep:
            Ld = self.label("polld")
            self.e(f"s_mov_b32 s{sTO}, {TIMEOUT}")
            self.e(ld % vt1)
            self.e(f"s_nop {self.cfg.poll2}\n{L}:")
            self.e(ld % vIdx)
            self.e(f"s_sub_u32 s{sTO}, s{sTO}, 1\ns_cbranch_scc1 L_exit\ns_waitcnt vmcnt(1)")
            self.e(f"v_cmp_gt_u32 vcc, {val}, v{vt1}\ns_nop 0\ns_cbranch_vccz {Ld}")
            self.e(ld % vt1)
            self.e("s_waitcnt vmcnt(1)")
            self.e(f"v_cmp_gt_u32 vcc, {val}, v{vIdx}\ns_nop 0\ns_cbranch_vccnz {L}\n{Ld}:")
            for t in self.vmq:
                self.waited[t] = self.waited.get(t, 0) + 1
            self.vmq = [None]
        else:
            self.e(f"s_mov_b32 s{sTO}, {TIMEOUT}\n{L}:")
            self.e(ld % vt1)
            self.e(f"s_sub_u32 s{sTO}, s{sTO}, 1\ns_cbranch_scc1 L_exit")
            if sleep:
                self.e(f"s_sleep {sleep}")
            self.vwait0()
            self.e(f"v_cmp_gt_u32 vcc, {val}, v{vt1}\ns_nop 0\ns_cbranch_vccnz {L}")
        if local:
            self.dual("", "buffer_inv sc1\ns_waitcnt vmcnt(0)", 0)

    def salu(self, text):
        self.e(text)

    def prologue(self):
        g = self
        g.e("s_cmp_ge_u32 s2, 256\ns_cbranch_scc1 L_exit")
        g.stamp("entry")
        g.e("s_load_dwordx16 s[64:79], s[0:1], 0\ns_load_dwordx4 s[80:83], s[0:1], 64")
        g.e(f"v_lshrrev_b32 v{vt0}, 6, v0\nv_and_b32 v{vt1}, 63, v0")
        g.e(f"v_readfirstlane_b32 s{sW}, v{vt0}")
        g.e(f"v_lshlrev_b32 v{vL4}, 2, v{vt1}\nv_lshlrev_b32 v{vL16}, 4, v{vt1}")
        g.e(f"""
        s_and_b32 s{sX}, s2, 7
        s_lshr_b32 s{sC}, s2, 3
        s_and_b32 s{sHP}, s{sC}, 15
        s_xor_b32 s{sHP}, s{sHP}, {g.cfg.hpx}
        s_lshr_b32 s{t0}, s{sC}, 4
        s_lshl_b32 s{t0}, s{t0}, 2
        s_add_u32 s{t0}, s{t0}, s{sW}
        s_lshl_b32 s{t1}, s{sX}, 3
        s_add_u32 s{sT}, s{t1}, s{t0}
        """)
        if g.cfg.cpf == 2:
            g.code_prefetch()

    def prologue2(self):
        g = self
        g.e(f"""
        s_and_b32 s{sCB}, s{sC}, 7
        s_lshr_b32 s{t2}, s{sC}, 3
        s_lshl_b32 s{t2}, s{t2}, 1
        s_lshl_b32 s{t3}, s{sX}, 3
        s_add_u32 s{t2}, s{t2}, s{t3}
        s_lshr_b32 s{t3}, s{sW}, 1
        s_add_u32 s{sTA}, s{t2}, s{t3}
        s_xor_b32 s{sTB}, s{sTA}, 1
        s_and_b32 s{sNA}, s{sW}, 1
        s_mov_b32 s{sMask}, 0xffff0000
        s_mov_b32 s{sVM}, 0x0000ffff
        s_mov_b32 s{sVM + 1}, 0x0000ffff
        s_mov_b32 s{sMode}, 1
        s_and_b32 s{t2}, s{sT}, 7
        """)
        g.e(f"v_mov_b32 v{vFl}, 0")
        g.e(f"""
        s_lshl_b32 s{t4}, s{sX}, 4
        s_add_u32 s{t4}, s{t4}, s{sHP}
        s_lshl_b32 s{t4}, s{t4}, 7
        s_lshl_b32 s{t5}, s{t2}, 2
        s_add_u32 s{t4}, s{t4}, s{t5}
        s_add_u32 s{t4}, s{t4}, {FA_L}
        v_writelane_b32 v{vFl}, s{t4}, 0
        s_lshl_b32 s{t4}, s{sHP}, 3
        s_add_u32 s{t4}, s{t4}, s{sX}
        s_lshl_b32 s{t4}, s{t4}, 7
        s_add_u32 s{t4}, s{t4}, s{t5}
        s_add_u32 s{t4}, s{t4}, {FA_G}
        v_writelane_b32 v{vFl}, s{t4}, 1
        s_lshl_b32 s{t4}, s{sX}, 2
        s_add_u32 s{t4}, s{t4}, s{sW}
        s_lshl_b32 s{t4}, s{t4}, 2
        s_lshr_b32 s{t5}, s{sC}, 3
        s_add_u32 s{t4}, s{t4}, s{t5}
        s_lshl_b32 s{t4}, s{t4}, 7
        s_lshl_b32 s{t5}, s{sCB}, 2
        s_add_u32 s{t4}, s{t4}, s{t5}
        s_add_u32 s{t4}, s{t4}, {FB}
        v_writelane_b32 v{vFl}, s{t4}, 2
        s_lshl_b32 s{t4}, s{sTA}, 7
        s_lshl_b32 s{t5}, s{sCB}, 1
        s_add_u32 s{t5}, s{t5}, s{sNA}
        s_lshl_b32 s{t5}, s{t5}, 2
        s_add_u32 s{t4}, s{t4}, s{t5}
        s_add_u32 s{t5}, s{t4}, {FC}
        v_writelane_b32 v{vFl}, s{t5}, 3
        s_add_u32 s{t5}, s{t4}, {FE}
        v_writelane_b32 v{vFl}, s{t5}, 5
        s_lshr_b32 s{t4}, s{sT}, 1
        s_lshl_b32 s{t4}, s{t4}, 2
        s_lshr_b32 s{t5}, s{sHP}, 2
        s_add_u32 s{t4}, s{t4}, s{t5}
        s_lshl_b32 s{t4}, s{t4}, 7
        s_and_b32 s{t5}, s{sT}, 1
        s_lshl_b32 s{t5}, s{t5}, 2
        s_and_b32 s{t7}, s{sHP}, 3
        s_add_u32 s{t5}, s{t5}, s{t7}
        s_lshl_b32 s{t5}, s{t5}, 2
        s_add_u32 s{t4}, s{t4}, s{t5}
        s_add_u32 s{t4}, s{t4}, {FD}
        v_writelane_b32 v{vFl}, s{t4}, 4
        s_lshr_b32 s{t4}, s2, 2
        s_lshl_b32 s{t4}, s{t4}, 7
        s_and_b32 s{t5}, s2, 3
        s_lshl_b32 s{t5}, s{t5}, 2
        s_add_u32 s{t4}, s{t4}, s{t5}
        s_add_u32 s{t4}, s{t4}, {FR}
        v_writelane_b32 v{vFl}, s{t4}, 6
        s_lshl_b32 s{t4}, s{sX}, 5
        s_add_u32 s{t4}, s{t4}, s{sC}
        s_lshl_b32 s{t4}, s{t4}, 2
        s_add_u32 s{t4}, s{t4}, {FX}
        v_writelane_b32 v{vFl}, s{t4}, 7
        """)

    def zero_flags(self):
        g = self
        L = g.label("zf")
        g.e(f"s_cmp_lt_u32 s2, 8\ns_cbranch_scc0 {L}")
        g.e("v_mov_b32 v248, 0\nv_mov_b32 v249, 0\nv_mov_b32 v250, 0\nv_mov_b32 v251, 0")
        g.e(f"s_lshl_b32 s{t2}, s2, 2\ns_add_u32 s{t2}, s{t2}, s{sW}\ns_mul_i32 s{t2}, s{t2}, 3072")
        for i in range(3):
            g.e(g.st_text(vr(248, 4), vL16, sWS, t2, 1024 * i, "sc1"))
        g.e(f"{L}:")

    def code_prefetch(self):
        g = self
        g.e(f"""
        s_getpc_b64 s[4:5]
        L_pc:
        s_lshl_b32 s{t8}, s{sC}, 2
        s_add_u32 s{t8}, s{t8}, s{sW}
        s_and_b32 s{t8}, s{t8}, 15
        s_lshl_b32 s{t8}, s{t8}, 13
        v_lshlrev_b32 v{vt2}, 3, v{vL16}
        v_add_u32 v{vt2}, s{t8}, v{vt2}
        v_min_u32 v{vt2}, L_end-L_pc-4, v{vt2}
        """)
        g.vm(f"global_load_dword v255, v{vt2}, s[4:5]", "cpf")

    def code_touch(self, skip, nblk, va, vd):
        g = self
        L = g.label("pc")
        g.e(f"""
        s_getpc_b64 s[4:5]
        {L}:
        s_lshl_b32 s{sTO}, s{sC}, 2
        s_add_u32 s{sTO}, s{sTO}, s{sW}
        s_and_b32 s{sTO}, s{sTO}, {nblk - 1}
        s_lshl_b32 s{sTO}, s{sTO}, 11
        s_add_u32 s{sTO}, s{sTO}, {skip}
        v_and_b32 v{va}, 0x3c0, v{vL16}
        v_lshl_add_u32 v{va}, v{va}, 1, s{sTO}
        v_min_u32 v{va}, L_end-{L}-4, v{va}
        """)
        g.vm(f"global_load_dword v{vd}, v{va}, s[4:5]", "pf")

    def handshake_send(self):
        g = self
        L = g.label("hs")
        g.e(f"s_cmp_lt_u32 s2, 8\ns_cbranch_scc0 {L}")
        g.e(f"s_lshl_b32 s{t9}, s2, 2\ns_add_u32 s{t9}, s{t9}, s{sW}\ns_lshl_b32 s{t9}, s{t9}, 2")
        g.e(f"v_mov_b32 v{vt1}, 1\nv_mov_b32 v{vt2}, s{t9}\ns_mov_b64 exec, 1")
        g.e(f"buffer_store_dword v{vt1}, v{vt2}, {sr(sDBG, 4)}, 0 offen sc1\ns_mov_b64 exec, -1\n{L}:")

    def late_check(self, tag, ld_text, chk, sleep):
        g = self
        ls, lj, lp = g.label("lslow"), g.label("ljoin"), g.label("lp")
        g.vwait(tag)
        g.e(chk + f"\ns_nop 0\ns_cbranch_vccnz {ls}\n{lj}:")
        g.tail.append(f"""{ls}:
        s_mov_b32 s{sTO}, {TIMEOUT}
        {lp}:
        {"s_sleep " + str(sleep) if sleep else ""}
        {ld_text}
        s_sub_u32 s{sTO}, s{sTO}, 1
        s_cbranch_scc1 L_exit
        s_waitcnt vmcnt(0)
        {chk}
        s_nop 0
        s_cbranch_vccnz {lp}
        s_branch {lj}""")

    def handshake_load(self):
        self.e(f"v_and_b32 v254, 0x7c, v{vL4}")
        self.ld(vr(vt1), 254, sDBG, None, 0, tag="hs", w=1)

    def handshake_check(self):
        self.late_check("hs", f"v_and_b32 v254, 0x7c, v{vL4}\nbuffer_load_dword v{vt1}, v254, {sr(sDBG, 4)}, 0 offen sc1",
                        f"v_cmp_eq_u32 vcc, 0, v{vt1}", 8)

    def xcc_send(self):
        g = self
        L = g.label("xs")
        g.e(f"s_cmp_eq_u32 s{sW}, 0\ns_cbranch_scc0 {L}")
        g.e(f"s_getreg_b32 s{t11}, hwreg(HW_REG_XCC_ID, 0, 4)\ns_or_b32 s{t11}, s{t11}, 0x80\nv_mov_b32 v{vt1}, s{t11}")
        g.e(f"s_mov_b64 exec, 0x80\nbuffer_store_dword v{vt1}, v{vFl}, {sr(sWS, 4)}, 0 offen sc1\ns_mov_b64 exec, -1\n{L}:")

    def xcc_load(self, vd=vt2, va=vt3, st=t7):
        g = self
        g.e(f"v_and_b32 v{va}, 0x7c, v{vL4}\ns_lshl_b32 s{st}, s{sX}, 7\ns_add_u32 s{st}, s{st}, {FX}")
        g.ld(vr(vd), va, sWS, st, 0, tag="xcc", w=1)

    def xcc_check(self, vd=vt2, va=vt3, st=t7):
        g = self
        g.late_check("xcc", f"s_lshl_b32 s{st}, s{sX}, 7\ns_add_u32 s{st}, s{st}, {FX}\nbuffer_load_dword v{vd}, v{va}, {sr(sWS, 4)}, s{st} offen sc1",
                     f"v_cmp_eq_u32 vcc, 0, v{vd}", 8)
        g.e(f"""
        v_readfirstlane_b32 s{st}, v{vd}
        s_nop 1
        v_cmp_ne_u32 vcc, s{st}, v{vd}
        s_nop 1
        s_cmp_lg_u64 vcc, 0
        s_cselect_b32 s{sMode}, 1, 0
        """)
        if g.cfg.force_slow:
            g.e(f"s_mov_b32 s{sMode}, 1")

    def stats_tail(self, s1, s2, rs, cden, BX):
        def rnd(r):
            return [f"v_cvt_pk_bf16_f32 v{r}, v{r}, v{r}", f"v_lshlrev_b32 v{r}, 16, v{r}"]
        return [
            f"v_mul_f32 v{s1}, {f2u(-1 / 512):#x}, v{s1}",
            f"v_mul_f32 v{s2}, {f2u(1 / 512):#x}, v{s2}",
            f"v_fma_f32 v{s2}, -v{s1}, v{s1}, v{s2}",
            f"v_max_f32 v{s2}, 0, v{s2}"] + rnd(s2) + [
            f"v_add_f32 v{s2}, {f2u(1e-5):#x}, v{s2}"] + rnd(s2) + [
            f"v_sqrt_f32 v{s2}, v{s2}",
            f"v_cvt_pk_bf16_f32 v{BX}, v{s1}, v{s1}"] + rnd(s2) + [
            f"v_rcp_f32 v{rs}, v{s2}",
            f"v_mul_f32 v{cden}, v{s2}, v{s2}",
            f"v_mov_b32 v{BX + 1}, v{BX}",
            f"v_mov_b32 v{BX + 2}, v{BX}",
            f"v_mov_b32 v{BX + 3}, v{BX}",
        ]

    def stats_ops(self, SB, rs, cden, BX):
        ops = [("v", "stat")]
        n = 16
        while n > 1:
            n //= 2
            for i in range(n):
                ops.append(f"v_add_f32 v{SB + i}, v{SB + i}, v{SB + n + i}")
        ops += [f"v_mov_b32 v{SB + 1}, v{SB}", "s_nop 1", f"v_permlane32_swap_b32 v{SB}, v{SB + 1}"]
        return ops + self.stats_tail(SB, SB + 1, rs, cden, BX)

    def take(self, side, n, exact=False):
        while n > 0 and side:
            o = side.popleft()
            if o is None:
                n -= 1
            elif isinstance(o, tuple):
                (self.vwait if o[0] == "v" else self.lwait)(o[1])
            elif callable(o):
                o()
                n -= 1
            else:
                c = 2 if o.startswith(("v_exp", "v_rcp", "v_rsq", "v_sqrt")) else 1
                if exact and c > n:
                    side.appendleft(o)
                    break
                self.e(o)
                n -= c

    def load_x_stats(self, layer, which, xoff, X, SB, up):
        g = self
        g.e(f"s_lshl_b32 s{t0}, s{sT}, 12\ns_add_u32 s{t0}, s{t0}, {aST(layer, which)}")
        g.e(f"s_lshl_b32 s{t1}, s{sT}, 15\ns_add_u32 s{t1}, s{t1}, {xoff}")

        def pre():
            for ks in range(up):
                ldx(ks)

        def ldx(ks):
            if ks and ks % 4 == 0:
                g.e(f"s_add_u32 s{t1}, s{t1}, 4096")
            g.ld(vr(X + 4 * ks, 4), vL16, sWS, t1, (ks % 4) * 1024, tag=("x", ks))
        return (pre, [lambda ks=ks: ldx(ks) for ks in range(up, 32)],
                [lambda q=q: g.ld(vr(SB + 4 * q, 4), vL16, sWS, t0, q * 1024, tag="stat") for q in range(4)])

    def l2_prefetch(self, sbase, nbytes, vtmp):
        g = self
        ops = [lambda: g.e(f"v_and_b32 v{vtmp}, 0x3c0, v{vL16}\nv_lshlrev_b32 v{vtmp}, 1, v{vtmp}")]
        assert nbytes % 2048 == 0
        for i in range(nbytes // 2048):
            def op(i=i):
                if i and i % 2 == 0:
                    g.e(f"s_add_u32 s{sbase}, s{sbase}, 4096")
                g.ld(vr(vtmp + 1), vtmp, sWS, sbase, (i % 2) * 2048, mods="sc1", tag="pf", w=1)
            ops.append(op)
        return ops

    def touch_ops(self, salu, sreg, n, vadr, vdst):
        g = self
        ops = [lambda t=t: g.e(t) for t in salu]
        for i in range(n):
            def op(i=i):
                if i and i % 2 == 0:
                    g.e(f"s_add_u32 s{sreg}, s{sreg}, 4096")
                g.ld(vr(vdst), vadr, sWS, sreg, (i % 2) * 2048, mods="sc1", tag="pf", w=1)
            ops.append(op)
        return ops

    def h_addr(self, layer, a, b):
        return [f"s_mul_i32 s{a}, s{sT}, {112 * 1024}\ns_mul_i32 s{b}, s{sHP}, 7168", f"s_add_u32 s{a}, s{a}, s{b}\ns_add_u32 s{a}, s{a}, {aH(layer)}"]

    def x_addr(self, layer, which, a, b):
        x = [f"s_lshl_b32 s{a}, s{sTA}, 4\ns_lshl_b32 s{b}, s{sCB}, 1", f"s_add_u32 s{a}, s{a}, s{b}\ns_add_u32 s{a}, s{a}, s{sNA}",
             f"s_lshl_b32 s{a}, s{a}, 11\ns_add_u32 s{a}, s{a}, {aX(layer, which)}"]
        st = [f"s_lshl_b32 s{a}, s{sTA}, 2\ns_lshr_b32 s{b}, s{sCB}, 1", f"s_add_u32 s{a}, s{a}, s{b}\ns_lshl_b32 s{a}, s{a}, 10",
              f"s_add_u32 s{a}, s{a}, {aST(layer, which)}"]
        return x, st

    def dma_ops(self, first, count, gsoff_expr, lds_base, tag, ts):
        g = self
        a, b = ts
        ops = []
        uid = g.label("dma")

        def setup():
            g.e(f"s_mul_i32 s{a}, s{sW}, {count * 1024}")
            g.e(f"s_add_u32 s{b}, s{a}, s{gsoff_expr}")
        ops.append(SOp(setup))

        def setup2():
            g.e(f"s_add_u32 s{b}, s{b}, {first * 1024}\ns_add_u32 s{a}, s{a}, {lds_base}")
        ops.append(SOp(setup2))
        for i in range(count):
            if i % 4 == 0 and i:
                ops.append(SOp(lambda: g.e(f"s_add_u32 s{a}, s{a}, 4096\ns_add_u32 s{b}, s{b}, 4096")))

            def op(i=i):
                if g.m0_owner != (uid, i // 4):
                    g.e(f"s_mov_b32 m0, s{a}\ns_nop 0")
                    g.m0_owner = (uid, i // 4)
                g.dma(vL16, sWS, b, (i % 4) * 1024, mods=g.cfg.wmods, tag=tag)
            ops.append(op)
        return ops

    @property
    def D_AX(self):
        return [208, 212, 216, 220, 224, 244, 252] if self.cfg.passes[0] == (0, 4) else [208, 212, 216, 224, 228, 232, 236]

    @property
    def D_AXPRE(self):
        return (0, 1, 2, 6) if self.cfg.passes[0] == (0, 4) else (0, 1, 2)

    A_X, A_ACC = 16, {"q": 144, "k": 160, "v": 176}
    A_P, A_AX = 208, {"k": 208, "v": 212, "q": 232}
    A_RS, A_CD, A_KA, A_VA, A_BX, A_QM, A_RC = 240, 241, 242, 243, 220, 252, 192

    def a_addr(self, layer):
        g = self
        vK, vV = g.A_KA, g.A_VA
        g.e(f"""
        v_lshrrev_b32 v{vt0}, 4, v{vL16}
        v_and_b32 v{vt2}, 0x33, v{vt0}
        v_bfe_u32 v{vt3}, v{vt0}, 2, 1
        v_lshl_add_u32 v{vt2}, v{vt3}, 3, v{vt2}
        v_bfe_u32 v{vt3}, v{vt0}, 3, 1
        v_lshl_add_u32 v{vt2}, v{vt3}, 2, v{vt2}
        v_lshlrev_b32 v{vK}, 4, v{vt2}
        v_bfe_u32 v{vt2}, v{vt0}, 4, 1
        v_lshlrev_b32 v{vV}, 17, v{vt2}
        v_lshrrev_b32 v{vt2}, 5, v{vt0}
        v_lshl_add_u32 v{vV}, v{vt2}, 8, v{vV}
        v_and_b32 v{vt2}, 15, v{vt0}
        v_lshl_add_u32 v{vV}, v{vt2}, 4, v{vV}
        """)

    def a_saddr(self, layer, hp=sHP, tt=sT):
        return [
            f"s_lshl_b32 s{t11}, s{hp}, 7", f"s_add_u32 s{t11}, s{t11}, s{tt}",
            f"s_lshl_b32 s{t7}, s{t11}, 11", f"s_add_u32 s{t7}, s{t7}, {aKV(layer)}", f"s_add_u32 s{t8}, s{t7}, 0x20000",
            f"s_lshl_b32 s{t9}, s{tt}, 4", f"s_add_u32 s{t9}, s{t9}, s{hp}", f"s_lshl_b32 s{t9}, s{t9}, 11",
            f"s_add_u32 s{t9}, s{t9}, {aQ(layer)}"]

    def a_rc_ops(self, sarea):
        g = self
        RC = g.A_RC
        ops = [f"v_and_b32 v{vt0}, 0x7c, v{vL4}", f"v_add_u32 v{vt0}, s{sarea}, v{vt0}",
               lambda: g.ds(f"ds_write_b32 v{vt0}, v{g.A_RS}", "rcw"),
               f"v_lshrrev_b32 v{vt0}, 9, v{vL16}", f"v_lshlrev_b32 v{vt0}, 4, v{vt0}", f"v_add_u32 v{vt0}, s{sarea}, v{vt0}",
               f"v_mul_f32 v{g.A_QM}, {f2u(0.25 * LOG2E):#x}, v{g.A_RS}"]
        for j in range(4):
            ops.append(lambda j=j: g.ds(f"ds_read_b128 {vr(RC + 4 * j, 4)}, v{vt0} offset:{32 * j}", "rc"))
        return ops

    def a_epi(self, n, qmods=''):
        g = self
        A = g.A_ACC[n]
        P = g.A_P + {"k": 0, "v": 8, "q": 16}[n]
        ops = [("l", "rc")] if n == "v" else []
        for h in range(2):
            for i in range(8 * h, 8 * h + 8):
                m = {"k": g.A_RS, "q": g.A_QM, "v": g.A_RC + i}[n]
                ops.append(f"v_mul_f32 v{A + i}, v{m}, v{A + i}")
            for i in range(4 * h, 4 * h + 4):
                ops.append(f"v_cvt_pk_bf16_f32 v{P + i}, v{A + 2 * i}, v{A + 2 * i + 1}")
            if n == "k":
                ops.append(lambda h=h: g.st(vr(P + 4 * h, 4), g.A_KA, sWS, (t7, t8)[h], 0, "sc1"))
            elif n == "v":
                ops.append(lambda h=h: g.st(vr(P + 4 * h, 4), g.A_VA, sWS, t7, 1024 + 512 * h, "sc1"))
            else:
                ops.append(lambda h=h: g.st(vr(P + 4 * h, 4), vL16, sWS, t9, 1024 * h, qmods))
        return ops

    def a_mfma(self, n, w, x, first):
        acc = vr(self.A_ACC[n], 16)
        a_, b_ = (x, w) if n == "v" else (w, x)
        self.e(f"v_mfma_f32_32x32x16_bf16 {acc}, {a_}, {b_}, {'0' if first else acc}")

    def phaseA0(self):
        g = self
        X, S1, S2 = g.A_X, 192, 208
        vo0, vo1, vRd, vRs, vWd, vTr = 224, 225, 226, 230, 232, 236
        CS, ONE = 0, 48
        LW = 65536
        g.e(f"""
        v_lshrrev_b32 v{vt0}, 4, v{vL16}
        v_lshrrev_b32 v{vt2}, 3, v{vt0}
        v_lshlrev_b32 v{vo0}, 10, v{vt2}
        v_lshrrev_b32 v{vt2}, 1, v{vt2}
        v_and_b32 v{vt3}, 7, v{vt0}
        v_xor_b32 v{vt2}, v{vt2}, v{vt3}
        v_lshl_add_u32 v{vo0}, v{vt2}, 4, v{vo0}
        v_xor_b32 v{vo1}, 64, v{vo0}
        s_lshl_b32 s{t0}, s{sT}, 15
        {g.cfg.rot.format(t1=t1, sHP=sHP, sC=sC, sX=sX)}
        s_lshl_b32 s{t6}, s{sW}, 14
        s_lshl_b32 s6, s{sHP}, 6
        s_mul_i32 s7, s{sW}, 3072
        s_add_u32 s7, s7, {LW}
        """)
        for i in range(3):
            r = vWd + i
            g.e(f"""
            v_add_u32 v{vt2}, {64 * i}, v{vt0}
            v_mul_u32_u24 v{vt3}, 0x1556, v{vt2}
            v_lshrrev_b32 v{vt3}, 16, v{vt3}
            v_mul_u32_u24 v{r}, 12, v{vt3}
            v_sub_u32 v{vt2}, v{vt2}, v{r}
            v_mul_u32_u24 v{r}, 3072, v{vt3}
            v_lshrrev_b32 v{vt3}, 2, v{vt2}
            v_lshl_add_u32 v{r}, v{vt3}, 10, v{r}
            v_and_b32 v{vt2}, 3, v{vt2}
            v_lshl_add_u32 v{r}, v{vt2}, 4, v{r}
            """)
        g.e("s_waitcnt lgkmcnt(0)")
        g.srd(sXIN, pX, 2048 * 1024)
        g.srd(sWQ, pWQ, 512 * 3072)
        g.stamp("start")

        def grp_ops(c):
            ops = []
            for j in range(4):
                def op(j=j):
                    if j == 0:
                        g.e(f"s_add_u32 s{t2}, s{t1}, {c}\ns_and_b32 s{t2}, s{t2}, 7\ns_lshl_b32 s3, s{t2}, 7\ns_add_u32 s3, s3, s{t0}")
                    g.e(f"s_add_u32 s{t5}, s{t6}, {(c % 4) * 4096 + j * 1024}\ns_mov_b32 m0, s{t5}")
                    g.e("s_add_u32 s3, s3, 8192" if j else "s_nop 0")
                    g.dma((vo0, vo1)[j % 2], sXIN, 3, 0, mods="", tag=("xc", c))
                ops.append(op)
            for i in range(3):
                def op(i=i):
                    if i == 0:
                        g.e(f"s_add_u32 s{t2}, s{t1}, {c}\ns_and_b32 s{t2}, s{t2}, 7\ns_lshl_b32 s{t2}, s{t2}, 2")
                        g.e(f"s_add_u32 s{t2}, s{t2}, s{sW}\ns_mul_i32 s3, s{t2}, 49152\ns_add_u32 s3, s3, s6")
                    g.e(f"s_add_u32 s{t5}, s7, {(c % 5) * 4 * 3072 + i * 1024}\ns_mov_b32 m0, s{t5}\ns_nop 0")
                    g.dma(vWd + i, sWQ, 3, 0, mods="", tag=("w", c))
                ops.append(op)
            return ops
        if g.cfg.warm:
            g.e(f"""
            s_lshl_b32 s{t2}, s{sC}, 2
            s_add_u32 s{t2}, s{t2}, s{sW}
            s_mul_i32 s{t3}, s{t2}, 12288
            s_lshl_b32 s{t2}, s{t2}, 11
            s_lshl_b32 s{t4}, s{sX}, 18
            s_add_u32 s{t2}, s{t2}, s{t4}
            v_lshlrev_b32 v254, 3, v{vL16}
            v_and_b32 v253, 0x780, v254
            """)
            if g.cfg.warm == 2:
                for op in grp_ops(0):
                    op()
            g.ld("v255", 253, sXIN, t2, 0, mods="", w=1)
            if g.cfg.warm == 5:
                g.e(f"v_lshrrev_b32 v252, 6, v{vL16}\nv_min_u32 v252, 11, v252\nv_lshlrev_b32 v252, 10, v252")
                g.ld("v255", 252, sWQ, t3, 384, mods="", w=1)
            if g.cfg.warm >= 3:
                g.e(f"s_lshl_b32 s{t3}, s2, 2\ns_add_u32 s{t3}, s{t3}, s{sW}\ns_mul_i32 s{t3}, s{t3}, 1536")
                g.ld("v255", 253, sWQ, t3, 0, mods="", w=1)
            else:
                g.ld("v255", 254, sWQ, t3, 0, mods="", w=1)
                g.e(f"v_and_b32 v254, 0xf80, v254\ns_add_u32 s{t3}, s{t3}, 8192")
                g.ld("v255", 254, sWQ, t3, 0, mods="", w=1)
        if g.cfg.warm != 2:
            for op in grp_ops(0):
                op()
        g.srd(sWS, pWS, WS_BYTES - g.cfg.ws_off)
        if g.cfg.ws_off:
            g.e(f"s_add_u32 s{sWS}, s{sWS}, {g.cfg.ws_off}\ns_addc_u32 s{sWS + 1}, s{sWS + 1}, 0")
        g.srd(sDBG, pDBG, 256)
        g.zero_flags()
        if not g.cfg.defer:
            g.prologue2()
        g.e(f"""
        v_and_b32 v{vt2}, 31, v{vt0}
        v_lshrrev_b32 v{vt3}, 5, v{vt0}
        v_bfe_u32 v{vt1}, v{vt0}, 1, 3
        v_xor_b32 v{vt1}, v{vt1}, v{vt3}
        v_lshlrev_b32 v{vt1}, 4, v{vt1}
        v_lshl_add_u32 v{vt1}, v{vt2}, 7, v{vt1}
        v_add_u32 v{vt1}, s{t6}, v{vt1}
        """)
        for i in range(4):
            g.e(f"s_add_u32 s{t2}, s{sW}, {i}\ns_and_b32 s{t2}, s{t2}, 3\ns_lshl_b32 s{t2}, s{t2}, 5\nv_xor_b32 v{vRd + i}, s{t2}, v{vt1}")
        g.e(f"""
        v_lshrrev_b32 v{vt2}, 5, v{vt0}
        v_lshlrev_b32 v{vt2}, 3, v{vt2}
        v_bfe_u32 v{vt3}, v{vt0}, 2, 2
        v_add_u32 v{vt2}, v{vt2}, v{vt3}
        v_mul_u32_u24 v{vt1}, 192, v{vt2}
        v_bfe_u32 v{vt3}, v{vt0}, 4, 1
        v_lshl_add_u32 v{vt1}, v{vt3}, 5, v{vt1}
        v_and_b32 v{vt3}, 1, v{vt0}
        v_lshl_add_u32 v{vt1}, v{vt3}, 4, v{vt1}
        v_bfe_u32 v{vt3}, v{vt0}, 1, 1
        v_lshl_add_u32 v{vt1}, v{vt3}, 3, v{vt1}
        """)
        for i in range(4):
            g.e(f"s_add_u32 s{t2}, s{sW}, {i}\ns_and_b32 s{t2}, s{t2}, 3\ns_mul_i32 s{t2}, s{t2}, 3072\ns_add_u32 s{t2}, s{t2}, {LW}\nv_add_u32 v{vTr + i}, s{t2}, v{vt1}")
        g.e(f"v_mov_b32 v{vt1}, 0x3f803f80")
        for i in range(4):
            g.e(f"v_accvgpr_write_b32 a{ONE + i}, v{vt1}")
        if not g.cfg.setup_first:
            for op in grp_ops(1):
                op()
        g.stamp("A0_d1")
        if not g.cfg.defer:
            g.a_addr(0)
            g.relayout_setup(0)
            g.relayout_setup(1)
        if g.cfg.setup_first:
            for op in grp_ops(1):
                op()
        if g.cfg.cpf == 1:
            g.code_prefetch()
        g.stamp("A0_i")
        if not g.cfg.g2_late:
            for op in grp_ops(2):
                op()
        if g.cfg.warm == 4:
            g.e(f"s_lshl_b32 s{t3}, s{sC}, 2\ns_add_u32 s{t3}, s{t3}, s{sW}\ns_mul_i32 s{t3}, s{t3}, 12288\nv_lshlrev_b32 v254, 3, v{vL16}")
            g.ld("v255", 254, sWQ, t3, 0, mods="", w=1)
            g.e(f"v_and_b32 v254, 0xf80, v254\ns_add_u32 s{t3}, s{t3}, 8192")
            g.ld("v255", 254, sWQ, t3, 0, mods="", w=1)

        def xread(c):
            return [("v", ("xc", c))] + [
                lambda i=i: g.ds(f"ds_read_b128 {vr(X + 4 * (4 * c + i), 4)}, v{vRd + i} offset:{(c % 4) * 4096}", ("x", c)) for i in range(4)]

        names = "kvq"
        seg = {"q": 0, "k": 1, "v": 2}

        def wread(f):
            st, n = divmod(f, 3)
            c, i = divmod(st, 4)
            if n == 0 and i == 0:
                g.vwait(("w", c))
                if g.cfg.rl_in_a and 0 <= c - g.cfg.rl_c1 < (1 if g.cfg.rl_split else 2):
                    assert ("rl", c - g.cfg.rl_c1) in g.vmq or ("rl", c - g.cfg.rl_c1) in g.waited
                    g.vwait(("rl", c - g.cfg.rl_c1))
                g.e("s_barrier")
            b = WB + 4 * (f % 8)
            off = (c % 5) * 12288 + seg[names[n]] * 64
            g.ds(f"ds_read_b64_tr_b16 {ar(b, 2)}, v{vTr + i} offset:{off}", ("w", f))
            g.ds(f"ds_read_b64_tr_b16 {ar(b + 2, 2)}, v{vTr + i} offset:{off + 768}", ("w", f))

        def mf4(d, a, b, first):
            g.e(f"v_mfma_f32_4x4x4_16b_bf16 {d}, {a}, {b}, {'0' if first else d}")

        def stat_mf(st):
            for hh in range(2):
                x = vr(X + 4 * st + 2 * hh, 2)
                mf4(vr(S1 + 4 * hh, 4), ar(ONE, 2), x, st == 0)
                mf4(vr(S2 + 4 * hh, 4), x, x, st == 0)
            g.take(side, g.cfg.st_take)

        side = deque(xread(0))
        g.take(side, 99)
        g.stamp("A0_x0")
        LEAD = 5
        for f in range(LEAD):
            wread(f)
        rld = g.relayout_dma_ops()
        rlo = g.relayout_out_ops(216, 52, ONE, (g.RL_V + 2, g.RL_V + 3), 231)
        wwarm = [lambda: g.e(f"v_and_b32 v253, 0x3c0, v{vL16}\nv_lshlrev_b32 v253, 1, v253\ns_lshl_b32 s{t7}, s2, 2\ns_add_u32 s{t7}, s{t7}, s{sW}")]
        for ptr, share in ((pW1, 1792), (pW3, 1792), (pW2, 1792), (pWO, 512)):
            def op(ptr=ptr, share=share):
                g.srd(sWQ, ptr, share * 1024)
                g.e(f"s_mul_i32 s{t8}, s{t7}, {share}")
                if share < 1792:
                    g.e("v_and_b32 v253, 0x180, v253")
                g.ld("v255", 253, sWQ, t8, 0, mods="", w=1)
            wwarm.append(op)
        XA = 8192
        for c in range(8):
            if c == 0 and g.cfg.g2_late:
                side.extend(grp_ops(2))
            if c + 3 < 8:
                side.extend(grp_ops(c + 3))
            if c == 0 and g.cfg.g2_late:
                side.extend(xread(1) + [g.handshake_send])
            elif c == 0:
                side.extendleft(reversed(xread(1) + [g.handshake_send]))
            elif c + 1 < 8:
                side.extend(xread(c + 1))
            if g.cfg.defer:
                for cc, fn in zip(g.cfg.defer, (lambda: g.relayout_setup(0), lambda: g.relayout_setup(1), g.prologue2, lambda: g.a_addr(0))):
                    if cc == c:
                        side.appendleft(fn)
            if c == 3:
                side.appendleft(g.handshake_load)
            if g.cfg.rl_in_a:
                if c == g.cfg.rl_c0:
                    side.extend(rld[:4])
                if c == g.cfg.rl_c0 + 1 and not g.cfg.rl_split:
                    side.extend(rld[4:])
                u = c - g.cfg.rl_c1
                if 0 <= u < (1 if g.cfg.rl_split else 2):
                    oo = [o for o, _ in rlo[13 * u:13 * u + 13]]
                    for k in range(4):
                        side.extend([oo[3 * k], None, None, oo[3 * k + 1], oo[3 * k + 2]])
                    side.extend([None] * 4 + [oo[12]])
            if c == 6 and g.cfg.xcc_early:
                side.append(lambda: g.xcc_load(250, 251, t4))
            if c == 4:
                side.append(g.handshake_check)
                if g.cfg.xcc_early:
                    side.append(g.xcc_send)
                if not g.cfg.rl_in_b and not g.cfg.rl_in_a:
                    side.extend(rld)
            if g.cfg.tlb and c == g.cfg.tlb[0]:
                def tlb():
                    g.e(f"v_lshlrev_b32 v253, {g.cfg.tlb[1] - 4}, v{vL16}\nv_min_u32 v253, 0x1dfff80, v253")
                    g.ld("v250", 253, sWS, None, 0, mods="", w=1)
                side.append(tlb)
            if c == g.cfg.warm_w:
                side.extend(wwarm)
            if c == 6:
                side.extend(g.a_saddr(0))
            g.lwait(("x", c))
            if c == 7:
                for i in range(4):
                    stat_mf(28 + i)
                sel = [f"v_add_f32 v{S1}, v{S1}, v{S1 + 4}"] + [f"v_add_f32 v{S2 + r}, v{S2 + r}, v{S2 + 4 + r}" for r in range(4)]
                for m, stp in ((0xaaaaaaaa, 1), (0xcccccccc, 2)):
                    sel += [f"s_mov_b32 s{t2}, {m:#x}", f"s_mov_b32 s{t3}, {m:#x}"]
                    sel += [f"v_cndmask_b32 v{S2 + r}, v{S2 + r}, v{S2 + r + stp}, s[{t2}:{t3}]" for r in range(0, 4, 2 * stp)]
                sel += ["s_nop 1", f"v_permlane32_swap_b32 v{S1}, v{S2}", f"v_add_f32 v{S1}, v{S1}, v{S2}",
                        f"v_mov_b32 v{S2}, v{S1}", "s_nop 1", f"v_permlane32_swap_b32 v{S1}, v{S2}"]
                sel += g.stats_tail(S1, S2, g.A_RS, g.A_CD, g.A_BX)
                sel += [f"s_add_u32 s{t2}, s{t6}, 12288"] + g.a_rc_ops(t2)
            for i in range(4):
                st = 4 * c + i
                g.lwait(("w", 3 * st + 2))
                for n in range(3):
                    f = 3 * st + n
                    wb = ar(WB + 4 * (f % 8), 4)
                    g.a_mfma(names[n], wb, vr(X + 4 * st, 4), st == 0)
                    if i == 0 and not g.cfg.mf4_late:
                        for hh in range(2):
                            mf4(ar(CS + 8 * n + 4 * hh, 4), ar(ONE, 2), ar(WB + 4 * (f % 8) + 2 * hh, 2), c == 0)
                    if f + LEAD < 96:
                        wread(f + LEAD)
                    g.take(side, g.cfg.a0_take if c < 7 else 5)
                    if i == 0 and g.cfg.mf4_late:
                        for hh in range(2):
                            mf4(ar(CS + 8 * n + 4 * hh, 4), ar(ONE, 2), ar(WB + 4 * (f % 8) + 2 * hh, 2), c == 0)
                    if c == 7 and i == 0 and n == 1:
                        side.extend(sel)
                if c == 7 and i == 1:
                    g.e(f"s_lshl_b32 s{t4}, s{sW}, 2\ns_add_u32 s{t4}, s{t4}, {XA}\nv_add_u32 v253, s{t4}, v{vL16}")
                    for n in range(3):
                        g.e(f"""
                        v_accvgpr_read_b32 v{vt2}, a{CS + 8 * n}
                        v_accvgpr_read_b32 v254, a{CS + 8 * n + 4}
                        v_add_f32 v{vt2}, v{vt2}, v254
                        v_cvt_pk_bf16_f32 v254, v{vt2}, v{vt2}
                        v_lshlrev_b32 v254, 16, v254
                        v_sub_f32 v254, v{vt2}, v254
                        v_cvt_pk_bf16_f32 v254, v{vt2}, v254
                        """)
                        g.ds(f"ds_write_b32 v253, v254 offset:{1024 * n}", "csw")
                if c < 7:
                    stat_mf(st)
            g.take(side, 99)
            g.stamp(f"A0_g{c}")
        g.lwait0()
        g.e("s_barrier")
        for n in range(3):
            g.ds(f"ds_read_b128 {vr(g.A_AX[names[n]], 4)}, v{vL16} offset:{XA + 1024 * n}", ("ax", n))
        for n in range(3):
            g.lwait(("ax", n))
            g.a_mfma(names[n], vr(g.A_AX[names[n]], 4), vr(g.A_BX, 4), False)
        side = deque(g.a_epi("k") + g.a_epi("v") + g.a_epi("q", "sc1"))
        g.take(side, 999)
        if g.cfg.xcc_early:
            g.xcc_check(250, 251, 4)
        g.stamp("A0st")

    def phaseA0b(self):
        g = self
        cfg = g.cfg
        X, S1, S2 = g.A_X, 192, 208
        vo0, vo1, vRd, vWd, vTr = 224, 225, 226, 232, 236
        CS, ONE = 0, 48
        LW = 32768
        g.e(f"""
        s_and_b32 s{sCB}, s{sC}, 7
        s_lshr_b32 s{t2}, s{sC}, 3
        s_lshl_b32 s{t2}, s{t2}, 1
        s_lshl_b32 s{t3}, s{sX}, 3
        s_add_u32 s{t2}, s{t2}, s{t3}
        s_lshr_b32 s{t3}, s{sW}, 1
        s_add_u32 s{sTA}, s{t2}, s{t3}
        s_and_b32 s{sNA}, s{sW}, 1
        v_lshrrev_b32 v{vt0}, 4, v{vL16}
        v_lshrrev_b32 v{vt2}, 3, v{vt0}
        v_lshlrev_b32 v{vo0}, 10, v{vt2}
        v_lshrrev_b32 v{vt2}, 1, v{vt2}
        v_and_b32 v{vt3}, 7, v{vt0}
        v_xor_b32 v{vt2}, v{vt2}, v{vt3}
        v_lshl_add_u32 v{vo0}, v{vt2}, 4, v{vo0}
        v_xor_b32 v{vo1}, 64, v{vo0}
        v_add_u32 v{vo1}, 7168, v{vo1}
        s_lshl_b32 s{t0}, s{sTA}, 15
        s_lshl_b32 s{t3}, s{sNA}, 14
        s_add_u32 s{t0}, s{t0}, s{t3}
        s_mov_b32 s{t1}, s{sCB}
        s_lshl_b32 s{t6}, s{sW}, 11
        s_lshl_b32 s6, s{sCB}, 7
        s_mul_i32 s7, s{sW}, 6144
        s_add_u32 s7, s7, {LW}
        """)
        for i in range(3):
            r = vWd + i
            g.e(f"""
            v_add_u32 v{vt2}, {64 * i}, v{vt0}
            v_mul_u32_u24 v{vt3}, 2731, v{vt2}
            v_lshrrev_b32 v{vt3}, 16, v{vt3}
            v_mul_u32_u24 v{r}, 24, v{vt3}
            v_sub_u32 v{vt2}, v{vt2}, v{r}
            v_mul_u32_u24 v{r}, 3072, v{vt3}
            v_and_b32 v{vt3}, 2, v{vt3}
            v_lshlrev_b32 v{vt3}, 1, v{vt3}
            v_xor_b32 v{vt2}, v{vt2}, v{vt3}
            v_lshrrev_b32 v{vt3}, 3, v{vt2}
            v_lshl_add_u32 v{r}, v{vt3}, 10, v{r}
            v_and_b32 v{vt2}, 7, v{vt2}
            v_lshl_add_u32 v{r}, v{vt2}, 4, v{r}
            """)
            if i:
                g.e(f"v_subrev_u32 v{r}, {1024 * i}, v{r}")
        g.e("s_waitcnt lgkmcnt(0)")
        g.srd(sXIN, pX, 2048 * 1024)
        g.srd(sWQ, pWQ, 512 * 3072)
        g.stamp("start")

        def grp_ops(c):
            ops = []
            for j in range(2):
                def op(j=j):
                    if j == 0:
                        g.e(f"s_add_u32 s{t2}, s{t1}, {c}\ns_and_b32 s{t2}, s{t2}, 7\ns_lshl_b32 s3, s{t2}, 7\ns_add_u32 s3, s3, s{t0}")
                        g.e(f"s_add_u32 s{t5}, s{t6}, {(c % 4) * 8192}\ns_mov_b32 m0, s{t5}\ns_nop 0")
                    g.dma((vo0, vo1)[j], sXIN, 3, 1024 * j, mods="", tag=("g", c))
                ops.append(op)
            for k in range(6):
                def op(k=k):
                    if k == 0:
                        g.e(f"s_add_u32 s{t2}, s{t1}, {c}\ns_and_b32 s{t2}, s{t2}, 7\ns_lshl_b32 s{t2}, s{t2}, 2")
                        g.e(f"s_add_u32 s{t2}, s{t2}, s{sW}\ns_mul_i32 s3, s{t2}, 49152\ns_add_u32 s3, s3, s6")
                    if k % 3 == 0:
                        g.e(f"s_add_u32 s{t5}, s7, {(c % 4) * 24576 + (k // 3) * 3072}\ns_mov_b32 m0, s{t5}")
                        g.e("s_add_u32 s3, s3, 24576" if k else "s_nop 0")
                    g.dma(vWd + k % 3, sWQ, 3, 1024 * (k % 3), mods="", tag=("g", c))
                ops.append(op)
            return ops
        g.e(f"""
        s_lshl_b32 s{t2}, s{sC}, 2
        s_add_u32 s{t2}, s{t2}, s{sW}
        s_mul_i32 s{t3}, s{t2}, 12288
        s_lshl_b32 s{t2}, s{t2}, 11
        s_lshl_b32 s{t4}, s{sX}, 18
        s_add_u32 s{t2}, s{t2}, s{t4}
        v_lshlrev_b32 v254, 3, v{vL16}
        v_and_b32 v253, 0x780, v254
        """)
        g.ld("v255", 253, sXIN, t2, 0, mods="", w=1)
        if cfg.warm == 5:
            g.e(f"v_lshrrev_b32 v252, 6, v{vL16}\nv_min_u32 v252, 11, v252\nv_lshlrev_b32 v252, 10, v252")
            g.ld("v255", 252, sWQ, t3, 384, mods="", w=1)
        g.e(f"s_lshl_b32 s{t3}, s2, 2\ns_add_u32 s{t3}, s{t3}, s{sW}\ns_mul_i32 s{t3}, s{t3}, 1536")
        g.ld("v255", 253, sWQ, t3, 0, mods="", w=1)
        for op in grp_ops(0):
            op()
        g.srd(sWS, pWS, WS_BYTES)
        g.srd(sDBG, pDBG, 256)
        g.zero_flags()
        g.prologue2()
        g.e(f"""
        v_and_b32 v{vt2}, 31, v{vt0}
        v_lshrrev_b32 v{vt3}, 5, v{vt0}
        v_bfe_u32 v{vt1}, v{vt0}, 1, 3
        v_xor_b32 v{vt1}, v{vt1}, v{vt3}
        v_lshlrev_b32 v{vt1}, 4, v{vt1}
        v_lshl_add_u32 v{vt1}, v{vt2}, 7, v{vt1}
        s_and_b32 s{t3}, s{sW}, 2
        s_lshl_b32 s{t2}, s{t3}, 11
        v_add_u32 v{vt1}, s{t2}, v{vt1}
        """)
        for i in range(4):
            g.e(f"s_add_u32 s{t2}, s{t3}, {i}\ns_and_b32 s{t2}, s{t2}, 3\ns_lshl_b32 s{t2}, s{t2}, 5\nv_xor_b32 v{vRd + i}, s{t2}, v{vt1}")
        g.e(f"""
        v_lshrrev_b32 v{vt2}, 5, v{vt0}
        v_lshlrev_b32 v{vt2}, 3, v{vt2}
        v_bfe_u32 v{vt3}, v{vt0}, 2, 2
        v_add_u32 v{vt2}, v{vt2}, v{vt3}
        v_mul_u32_u24 v{vt1}, 384, v{vt2}
        v_lshrrev_b32 v{vt3}, 1, v{vt3}
        v_xor_b32 v{vt3}, s{sNA}, v{vt3}
        v_lshl_add_u32 v{vt1}, v{vt3}, 6, v{vt1}
        v_bfe_u32 v{vt3}, v{vt0}, 4, 1
        v_lshl_add_u32 v{vt1}, v{vt3}, 5, v{vt1}
        v_and_b32 v{vt3}, 1, v{vt0}
        v_lshl_add_u32 v{vt1}, v{vt3}, 4, v{vt1}
        v_bfe_u32 v{vt3}, v{vt0}, 1, 1
        v_lshl_add_u32 v{vt1}, v{vt3}, 3, v{vt1}
        """)
        for i in range(4):
            g.e(f"s_add_u32 s{t2}, s{t3}, {i}\ns_and_b32 s{t2}, s{t2}, 3\ns_mul_i32 s{t2}, s{t2}, 6144\ns_add_u32 s{t2}, s{t2}, {LW}\nv_add_u32 v{vTr + i}, s{t2}, v{vt1}")
        g.e(f"v_mov_b32 v{vt1}, 0x3f803f80")
        for i in range(4):
            g.e(f"v_accvgpr_write_b32 a{ONE + i}, v{vt1}")
        g.stamp("A0_d1")
        g.a_addr(0)
        g.relayout_setup(0)
        g.relayout_setup(1)
        for c in range(1, cfg.a0_up):
            for op in grp_ops(c):
                op()
        g.stamp("A0_i")

        names = "kvq"
        seg = {"q": 0, "k": 1, "v": 2}
        side = deque()

        def wread(f):
            st, n = divmod(f, 3)
            c, i = divmod(st, 4)
            if n == 0 and i == 0:
                assert g.vmq.count(("g", c)) + g.waited.get(("g", c), 0) == 8
                g.vwait(("g", c))
                if 0 <= c - cfg.rl_c1 < 2:
                    assert g.vmq.count(("rl", c - cfg.rl_c1)) + g.waited.get(("rl", c - cfg.rl_c1), 0) == 4
                    g.vwait(("rl", c - cfg.rl_c1))
                g.e("s_barrier")
                for k in range(4):
                    g.ds(f"ds_read_b128 {vr(X + 4 * (4 * c + k), 4)}, v{vRd + k} offset:{(c % 4) * 8192}", ("x", c))
                if cfg.a0_up <= c + 2 < 8:
                    side.extendleft(reversed(grp_ops(c + 2)))
            if n == 0 and c in (2, 4, 6):
                g.e(f"v_add_u32 v{vTr + i}, 49152, v{vTr + i}" if c != 4 else f"v_subrev_u32 v{vTr + i}, 49152, v{vTr + i}")
            b = WB + 4 * (f % 8)
            off = (c % 2) * 24576 + seg[names[n]] * 128
            g.ds(f"ds_read_b64_tr_b16 {ar(b, 2)}, v{vTr + i} offset:{off}", ("w", f))
            g.ds(f"ds_read_b64_tr_b16 {ar(b + 2, 2)}, v{vTr + i} offset:{off + 1536}", ("w", f))

        def mf4(d, a, b, first):
            g.e(f"v_mfma_f32_4x4x4_16b_bf16 {d}, {a}, {b}, {'0' if first else d}")

        def stat_mf(st):
            for hh in range(2):
                x = vr(X + 4 * st + 2 * hh, 2)
                mf4(vr(S1 + 4 * hh, 4), ar(ONE, 2), x, st == 0)
                mf4(vr(S2 + 4 * hh, 4), x, x, st == 0)
            g.take(side, g.cfg.st_take)

        LEAD = 5
        for f in range(LEAD):
            wread(f)
        g.stamp("A0_x0")
        rld = g.relayout_dma_ops()
        rlo = g.relayout_out_ops(216, 52, ONE, (g.RL_V + 2, g.RL_V + 3), 231)
        XA = 0
        for c in range(8):
            if c == 1:
                side.append(g.handshake_send)
            if c == 3:
                side.append(g.handshake_load)
            if c == cfg.rl_c0:
                side.extend(rld[:4])
            if c == cfg.rl_c0 + 1:
                side.extend(rld[4:])
            u = c - cfg.rl_c1
            if 0 <= u < 2:
                oo = [o for o, _ in rlo[13 * u:13 * u + 13]]
                for k in range(4):
                    side.extend([oo[3 * k], None, None, oo[3 * k + 1], oo[3 * k + 2]])
                side.extend([None] * 4 + [oo[12]])
            if c == 5:
                side.append(g.handshake_check)
            if c == 6:
                side.extend([f"s_lshl_b32 s{t4}, s{sCB}, 1", f"s_add_u32 s{t4}, s{t4}, s{sNA}"] + g.a_saddr(0, t4, sTA))
            g.lwait(("x", c))
            if c == 7:
                for i in range(4):
                    stat_mf(28 + i)
                sel = [f"v_add_f32 v{S1}, v{S1}, v{S1 + 4}"] + [f"v_add_f32 v{S2 + r}, v{S2 + r}, v{S2 + 4 + r}" for r in range(4)]
                for m, stp in ((0xaaaaaaaa, 1), (0xcccccccc, 2)):
                    sel += [f"s_mov_b32 s{t2}, {m:#x}", f"s_mov_b32 s{t3}, {m:#x}"]
                    sel += [f"v_cndmask_b32 v{S2 + r}, v{S2 + r}, v{S2 + r + stp}, s[{t2}:{t3}]" for r in range(0, 4, 2 * stp)]
                sel += ["s_nop 1", f"v_permlane32_swap_b32 v{S1}, v{S2}", f"v_add_f32 v{S1}, v{S1}, v{S2}",
                        f"v_mov_b32 v{S2}, v{S1}", "s_nop 1", f"v_permlane32_swap_b32 v{S1}, v{S2}"]
                sel += g.stats_tail(S1, S2, g.A_RS, g.A_CD, g.A_BX)
                sel += [f"s_lshl_b32 s{t2}, s{sW}, 8", f"s_add_u32 s{t2}, s{t2}, 8192"] + g.a_rc_ops(t2)
            for i in range(4):
                st = 4 * c + i
                g.lwait(("w", 3 * st + 2))
                for n in range(3):
                    f = 3 * st + n
                    wb = ar(WB + 4 * (f % 8), 4)
                    g.a_mfma(names[n], wb, vr(X + 4 * st, 4), st == 0)
                    if f + LEAD < 96:
                        wread(f + LEAD)
                    g.take(side, g.cfg.a0_take if c < 7 else 5)
                    if i < 2:
                        for hh in range(2):
                            mf4(ar(CS + 8 * n + 4 * hh, 4), ar(ONE, 2), ar(WB + 4 * (f % 8) + 2 * hh, 2), st == 0)
                    if c == 7 and i == 0 and n == 1:
                        side.extend(sel)
                if c == 7 and i == 2:
                    g.e(f"""
                    s_mul_i32 s{t4}, s{sNA}, 3072
                    s_add_u32 s{t4}, s{t4}, {XA}
                    v_add_u32 v{vt3}, s{t4}, v{vL16}
                    s_and_b32 s{t4}, s{sW}, 2
                    s_lshl_b32 s{t4}, s{t4}, 2
                    v_add_u32 v253, s{t4}, v{vt3}
                    v_mov_b32 v255, 0
                    """)
                    for n in range(3):
                        g.e(f"""
                        v_accvgpr_read_b32 v{vt2}, a{CS + 8 * n}
                        v_accvgpr_read_b32 v254, a{CS + 8 * n + 4}
                        v_add_f32 v{vt2}, v{vt2}, v254
                        v_cvt_pk_bf16_f32 v254, v{vt2}, v{vt2}
                        v_lshlrev_b32 v254, 16, v254
                        v_sub_f32 v254, v{vt2}, v254
                        v_cvt_pk_bf16_f32 v254, v{vt2}, v254
                        """)
                        g.ds(f"ds_write_b64 v253, v[254:255] offset:{1024 * n}", "csw")
                if c < 7:
                    stat_mf(st)
            if c == 7:
                g.take(side, 999)
            g.stamp(f"A0_g{c}")
        g.lwait0()
        g.e("s_barrier")
        for n in range(3):
            g.ds(f"ds_read_b128 {vr(g.A_AX[names[n]], 4)}, v{vt3} offset:{1024 * n}", ("ax", n))
        for n in range(3):
            g.lwait(("ax", n))
            g.a_mfma(names[n], vr(g.A_AX[names[n]], 4), vr(g.A_BX, 4), False)
        side = deque(g.a_epi("k") + g.a_epi("v") + g.a_epi("q", "sc1"))
        g.take(side, 999)
        g.stamp("A0st")

    def phaseA1(self, layer):
        g = self
        cfg = g.cfg
        X, SB = g.A_X, 192
        g.A_BX = 236
        vA0, vA1 = 224, 225
        LW = 65536
        g.e(f"v_add_u32 v{vA0}, {LW}, v{vL16}\nv_add_u32 v{vA1}, {LW + 49152}, v{vL16}")
        g.a_addr(layer)
        g.e("\n".join(g.a_saddr(layer)))
        g.e(f"s_lshl_b32 s{t4}, s{sHP}, 10\ns_add_u32 s{t4}, s{t4}, {WXQ}\ns_lshl_b32 s{t6}, s{sW}, 8\ns_add_u32 s{t6}, s{t6}, {48 * 1024}")
        g.e(f"v_and_b32 v{vt0}, 60, v{vL4}\ns_lshl_b32 s{t2}, s{sT}, 7\ns_add_u32 s{t2}, s{t2}, {FE}")
        pre, xrest, stl = g.load_x_stats(layer - 1, 1, aX(layer - 1, 1), X, SB, cfg.up_a)
        seg = {"q": 0, "k": 1, "v": 2}
        LAG = cfg.lag_a
        seq = []
        for ks in range(32):
            if cfg.lag_end:
                seq += [("k", ks), ("v", ks)] + ([("q", ks)] if ks < 32 - LAG else [])
            else:
                seq += [("k", ks), ("v", ks)] + ([("q", ks - LAG)] if ks >= LAG else [])
        nmain = len(seq)
        seq += [("q", ks) for ks in range(32 - LAG, 32)]

        def wread(f):
            n, ks = seq[f]
            off = ((ks % 16) * 3 + seg[n]) * 1024
            g.ds(f"ds_read_b128 {ar(WB + 4 * (f % 8), 4)}, v{vA0 if ks < 16 else vA1} offset:{off}", ("w", f))
        LEAD = 7
        for f in range(LEAD):
            wread(f)
        g.poll(vt0, t2, layer, True)
        g.stamp(f"A{layer}go")
        pre()

        def axld(n):
            g.ld(vr(g.A_AX[n], 4), vL16, sWS, t4, 0, tag="ax")
            g.e(f"s_add_u32 s{t4}, s{t4}, 16384")
        xrest = deque(xrest)
        mem = deque(stl + [lambda n=n: axld(n) for n in "qkv"])
        if "A" in cfg.touch:
            xrest.extend([lambda: g.e(f"v_and_b32 v254, 0x3c0, v{vL16}\nv_lshlrev_b32 v254, 1, v254")] + g.touch_ops([], t9, 1, 254, 255))
        side = deque()
        for f, (n, ks) in enumerate(seq):
            if f == nmain:
                g.stamp(f"Z{layer}:Amain")
                g.take(side, 999)
                g.vwait("ax")
                for m in "kv":
                    g.a_mfma(m, vr(g.A_AX[m], 4), vr(g.A_BX, 4), False)
                side.extend([None] * 8 + g.a_epi("k") + g.a_epi("v"))
            if n == "k":
                g.vwait(("x", ks))
                if ks == 0:
                    g.stamp(f"Z{layer}:Afirst")
            if f % 4 == 0:
                g.lwait(("w", min(f + 3, 95)))
            g.a_mfma(n, ar(WB + 4 * (f % 8), 4), vr(X + 4 * ks, 4), ks == 0)
            if f + LEAD < 96:
                wread(f + LEAD)
            if (n == "k" or (n == "q" and ks < cfg.x2_a)) and xrest:
                xrest.popleft()()
            elif n == "v" and ks >= cfg.st_a and mem:
                mem.popleft()()
                if not mem:
                    side.extend([None] * 30 + g.stats_ops(SB, g.A_RS, g.A_CD, g.A_BX) + g.a_rc_ops(t6))
            g.take(side, 3 if f < nmain else 7)
            if n == "k" and ks % 8 == 7:
                g.stamp(f"A{layer}_{ks}")
        g.a_mfma("q", vr(g.A_AX["q"], 4), vr(g.A_BX, 4), False)
        g.e("s_barrier")
        g.stamp(f"A{layer}_m")
        side.extend(g.a_epi("q"))
        g.take(side, 999)
        g.stamp(f"A{layer}st")

    RL_SRD = ((28, 32), (80, 16))
    RL_DO = (64, 70)
    RL_XO = (62, 63)
    RL_V = 244
    RL_LDS = 131072

    def relayout_setup(self, ui):
        g = self
        passes = g.cfg.passes
        RA, RB = g.RL_SRD[ui]
        sDO, sDS = g.RL_DO[ui], g.RL_DO[ui] + 1
        sXO = g.RL_XO[ui]
        u, sRS, sSO, sMH, sWO = t7, t9, t10, t8, t11
        a0, a1, a2, a3 = t2, t3, t4, t5
        vS, vT = g.RL_V + ui, g.RL_V + 2 + ui
        L = [g.label("rl") for _ in range(5)]
        if ui == 0:
            g.e(f"s_mov_b32 s{u}, s2\ns_cmp_ge_u32 s{u}, 224\ns_cbranch_scc1 {L[0]}")
            g.srd(RA, pW1, 512 * 3584)
            g.srd(RB, pW3, 512 * 3584)
            g.e(f"""
            s_mov_b32 s{sRS}, 3584
            s_lshr_b32 s{a0}, s{u}, 3
            s_and_b32 s{a1}, s{u}, 7
            s_lshl_b32 s{a2}, s{a1}, 2
            s_add_u32 s{a2}, s{a2}, s{sW}
            s_mul_i32 s{sSO}, s{a2}, {16 * 3584}
            s_lshl_b32 s{a2}, s{a0}, 7
            s_add_u32 s{sSO}, s{sSO}, s{a2}
            s_lshl_b32 s{a0}, s{a0}, 2
            s_add_u32 s{a0}, s{a0}, s{sW}
            s_lshl_b32 s{sXO}, s{a0}, 10
            s_add_u32 s{sXO}, s{sXO}, {WX13}
            s_mul_i32 s{a2}, s{a0}, 9363
            s_lshr_b32 s{a2}, s{a2}, 16
            s_mul_i32 s{a3}, s{a2}, 7
            s_sub_u32 s{a3}, s{a0}, s{a3}
            s_mul_i32 s{sDO}, s{a2}, 229376
            s_add_u32 s{sDO}, s{sDO}, {W13}
            s_mov_b32 s{a2}, {passes[0][0]}
            s_mov_b32 s{sDS}, {(passes[0][1] - passes[0][0]) * 1024}
            """)
            for a, b in passes[1:]:
                g.e(f"s_cmp_ge_u32 s{a3}, {a}\ns_cselect_b32 s{a2}, {a}, s{a2}\ns_cselect_b32 s{sDS}, {(b - a) * 1024}, s{sDS}")
            g.e(f"""
            s_mul_i32 s{a0}, s{a2}, 31
            s_add_u32 s{a0}, s{a0}, s{a3}
            s_lshl_b32 s{a0}, s{a0}, 10
            s_add_u32 s{sDO}, s{sDO}, s{a0}
            s_mov_b32 s{sMH}, 8192
            s_lshl_b32 s{sWO}, s{sW}, 5
            """)
            other, nks, wdst, first, ptr = "wo", 32, WO, 224, pWO
        else:
            if g.cfg.spare:
                g.e(f"s_mov_b32 s{a0}, s{sC}")
                for v in g.cfg.spare:
                    g.e(f"s_cmp_gt_u32 s{sC}, {v}\ns_subb_u32 s{a0}, s{a0}, 0")
                g.e(f"s_lshl_b32 s{u}, s{a0}, 3\ns_add_u32 s{u}, s{u}, s{sX}\ns_min_u32 s{u}, s{u}, 207\ns_cmp_lt_u32 s{u}, 112\ns_cbranch_scc1 {L[0]}")
            else:
                g.e(f"s_sub_u32 s{a0}, s2, 208\ns_cmp_ge_u32 s2, 208\ns_cselect_b32 s{u}, s{a0}, s2\ns_cmp_lt_u32 s{u}, 112\ns_cbranch_scc1 {L[0]}")
            g.srd(RA, pWQ, 512 * 3072)
            g.srd(RB, pWQ, 512 * 3072 - 128)
            g.e(f"""
            s_add_u32 s{RB}, s{RB}, 128
            s_addc_u32 s{RB + 1}, s{RB + 1}, 0
            s_mov_b32 s{sRS}, 3072
            s_sub_u32 s{a0}, s{u}, 112
            s_and_b32 s{a1}, s{a0}, 7
            s_lshr_b32 s{a0}, s{a0}, 3
            s_lshl_b32 s{a2}, s{a1}, 2
            s_add_u32 s{a2}, s{a2}, s{sW}
            s_mul_i32 s{sSO}, s{a2}, {16 * 3072}
            s_lshl_b32 s{a2}, s{a0}, 8
            s_add_u32 s{sSO}, s{sSO}, s{a2}
            s_lshl_b32 s{a0}, s{a0}, 2
            s_add_u32 s{a0}, s{a0}, s{sW}
            s_lshl_b32 s{sXO}, s{a0}, 10
            s_add_u32 s{sXO}, s{sXO}, {WXQ}
            s_and_b32 s{a2}, s{a0}, 15
            s_mul_i32 s{sDO}, s{a2}, {32 * 3072}
            s_lshr_b32 s{a2}, s{a0}, 4
            s_lshl_b32 s{a2}, s{a2}, 10
            s_add_u32 s{sDO}, s{sDO}, s{a2}
            s_add_u32 s{sDO}, s{sDO}, {WQ}
            s_mov_b32 s{sDS}, 3072
            s_mov_b32 s{sMH}, 32
            s_lshr_b32 s{sWO}, s{sW}, 1
            s_lshl_b32 s{sWO}, s{sWO}, 13
            s_and_b32 s{a2}, s{sW}, 1
            s_lshl_b32 s{a2}, s{a2}, 6
            s_add_u32 s{sWO}, s{sWO}, s{a2}
            """)
            other, nks, wdst, first, ptr = "w2", 112, W2, 0, pW2
        g.e(f"""
        s_lshl_b32 s{a0}, s{sDS}, 2
        s_mul_i32 s{a0}, s{a0}, s{a1}
        s_add_u32 s{sDO}, s{sDO}, s{a0}
        s_and_b32 s{a0}, s{a1}, 4
        s_lshl_b32 s{a0}, s{a0}, 7
        s_add_u32 s{sXO}, s{sXO}, s{a0}
        s_and_b32 s{a0}, s{a1}, 3
        s_lshl_b32 s{a0}, s{a0}, 2
        s_add_u32 s{sXO}, s{sXO}, s{a0}
        s_mov_b32 s{a0}, 0
        s_mov_b32 s{a1}, 0
        s_branch {L[1]}
        {L[0]}:
        """)
        g.srd(RA, ptr, nks * 16 * 1024)
        g.srd(RB, ptr, nks * 16 * 1024 - 512)
        g.e(f"""
        s_add_u32 s{RB}, s{RB}, 512
        s_addc_u32 s{RB + 1}, s{RB + 1}, 0
        s_mov_b32 s{sRS}, 1024
        s_sub_u32 s{a0}, s{u}, {first}
        s_lshl_b32 s{sSO}, s{a0}, 14
        s_lshr_b32 s{a1}, s{sW}, 1
        s_lshl_b32 s{sWO}, s{a1}, 13
        s_mul_i32 s{a1}, s{a1}, {4 * nks}
        s_add_u32 s{a1}, s{a1}, s{a0}
        s_lshl_b32 s{sDO}, s{a1}, 11
        s_and_b32 s{a1}, s{sW}, 1
        s_lshl_b32 s{a2}, s{a1}, 10
        s_add_u32 s{sDO}, s{sDO}, s{a2}
        s_add_u32 s{sDO}, s{sDO}, {wdst}
        s_mov_b32 s{sDS}, {nks * 2048}
        s_lshl_b32 s{a2}, s{a1}, 6
        s_add_u32 s{sWO}, s{sWO}, s{a2}
        s_mov_b32 s{sMH}, 32
        s_lshl_b32 s{sXO}, s{u}, 2
        s_add_u32 s{sXO}, s{sXO}, s{sW}
        s_and_b32 s{sXO}, s{sXO}, 63
        s_lshl_b32 s{sXO}, s{sXO}, 10
        s_add_u32 s{sXO}, s{sXO}, {WXD}
        s_mov_b32 s{a0}, 3
        s_mov_b32 s{a1}, s{sW}
        {L[1]}:
        v_lshrrev_b32 v{vS}, 7, v{vL16}
        v_and_b32 v{vt2}, s{a0}, v{vS}
        v_xor_b32 v{vt2}, s{a1}, v{vt2}
        v_mul_lo_u32 v{vS}, v{vS}, s{sRS}
        v_lshl_add_u32 v{vS}, v{vt2}, 7, v{vS}
        v_and_b32 v{vT}, 0x70, v{vL16}
        v_add3_u32 v{vS}, v{vS}, v{vT}, s{sSO}
        s_lshl_b32 s{4 + ui}, s{sRS}, 3
        s_add_u32 s{sWO}, s{sWO}, {g.RL_LDS + ui * 16384}
        v_bfe_u32 v{vT}, v{vL16}, 8, 1
        v_mul_lo_u32 v{vT}, v{vT}, s{sMH}
        v_add_u32 v{vT}, s{sWO}, v{vT}
        v_lshrrev_b32 v{vt2}, 9, v{vL16}
        v_lshl_add_u32 v{vT}, v{vt2}, 10, v{vT}
        v_bfe_u32 v{vt2}, v{vL16}, 6, 2
        v_lshl_add_u32 v{vT}, v{vt2}, 7, v{vT}
        v_and_b32 v{vt2}, s{a0}, v{vt2}
        v_lshl_add_u32 v{vT}, v{vt2}, 11, v{vT}
        v_and_b32 v{vt2}, 16, v{vL16}
        v_add_u32 v{vT}, v{vt2}, v{vT}
        v_bfe_u32 v{vt2}, v{vL16}, 5, 1
        v_lshl_add_u32 v{vT}, v{vt2}, 3, v{vT}
        v_add_u32 v{g.RL_V + 4 + ui}, s{4 + ui}, v{vS}
        """)
        if ui == 1 and g.cfg.spare:
            mask = sum(1 << v for v in g.cfg.spare)
            g.e(f"""
            s_lshr_b32 s{a0}, {mask:#x}, s{sC}
            s_and_b32 s{a0}, s{a0}, 1
            s_cselect_b32 s{RA + 2}, 0, s{RA + 2}
            s_cselect_b32 s{RB + 2}, 0, s{RB + 2}
            s_cselect_b32 s{sDO}, {WS_BYTES:#x}, s{sDO}
            s_cselect_b32 s{sXO}, {WS_BYTES:#x}, s{sXO}
            """)

    def relayout_dma_ops(self, regs=None):
        g = self
        ops = []
        for ui in range(2):
            for i in range(4):
                def op(ui=ui, i=i):
                    g.e(f"s_lshl_b32 s{t5}, s{sW}, 11\ns_add_u32 s{t5}, s{t5}, {g.RL_LDS + ui * 16384 + (i // 2) * 8192 + (i % 2) * 1024}")
                    g.e(f"s_mov_b32 m0, s{t5}\ns_nop 0")
                    g.m0_owner = None
                    g.dma(regs[i % 2] if regs else g.RL_V + ui + 4 * (i % 2), g.RL_SRD[ui][i // 2], None, 0, mods="", tag=("rl", ui))
                ops.append(op)
        return ops

    def relayout_out_ops(self, d=244, CS=224, ONE=240, vS=(vt2, vt3), ta=vt0):
        g = self
        ops = []
        for ui in range(2):
            sDO, sDS = g.RL_DO[ui], g.RL_DO[ui] + 1
            for i in range(4):
                def rd(ui=ui, i=i):
                    if i:
                        g.e(f"v_xor_b32 v{vS[ui]}, {(i ^ (i - 1)) << 11}, v{vS[ui]}")
                    g.ds(f"ds_read_b64_tr_b16 {vr(d, 2)}, v{vS[ui]}", ("rl", i))
                    g.ds(f"ds_read_b64_tr_b16 {vr(d + 2, 2)}, v{vS[ui]} offset:512", ("rl", i))

                def wr(i=i, sDO=sDO, sDS=sDS):
                    g.lwait(("rl", i))
                    g.st(vr(d, 4), vL16, sWS, sDO, 0, "sc1", tag="rlst")
                    g.e(f"s_add_u32 s{sDO}, s{sDO}, s{sDS}")

                def cs(i=i):
                    g.e(f"v_mfma_f32_32x32x16_bf16 {ar(CS, 16)}, {ar(ONE, 4)}, {vr(d, 4)}, {ar(CS, 16) if i else '0'}")
                ops += [(rd, "A"), (wr, "C"), (cs, "D")]

            def xo(ui=ui):
                g.e(f"""
                v_accvgpr_read_b32 v254, a{CS}
                v_and_b32 v{ta}, 0x1f0, v{vL16}
                v_cvt_pk_bf16_f32 v255, v254, v254
                v_lshlrev_b32 v255, 16, v255
                v_sub_f32 v255, v254, v255
                v_cvt_pk_bf16_f32 v255, v254, v255
                """)
                g.st(vr(255), ta, sWS, g.RL_XO[ui], 0, "sc1", tag="rlst", w=1)
            ops.append((xo, "X"))
        return ops

    def ew_ops(self, lo, hi, ts):
        g = self
        a, b = ts
        ops = []

        def setup():
            g.e(f"s_mul_i32 s{a}, s{sCB}, {112 * 2048}\ns_mul_i32 s{b}, s{sW}, {28 * 2048}")
        def setup2():
            g.e(f"s_add_u32 s{a}, s{a}, s{b}\ns_add_u32 s{a}, s{a}, {W2 + (lo // 4) * 4096}")
        def setup3():
            g.e(f"s_lshl_b32 s{b}, s{sNA}, 10\ns_add_u32 s{a}, s{a}, s{b}")
        def setup4():
            g.e(f"s_xor_b32 s{b}, s{a}, 1024")
        ops += [setup, setup2, setup3, setup4]
        assert lo % 4 == 0
        for idx in range(lo, hi):
            def op(idx=idx):
                i, n = divmod(idx, 2)
                if idx > lo and idx % 4 == 0:
                    g.e(f"s_add_u32 s{a}, s{a}, 4096\ns_add_u32 s{b}, s{b}, 4096")
                g.ld(ar(4 * idx, 4), vL16, sWS, (a, b)[n], (i % 2) * 2048, mods=g.cfg.wmods, tag="ew")
            ops.append(op)
        return ops

    def phaseB(self, layer):
        g = self
        cfg = g.cfg
        O, Q, S, KV = 16, 144, 176, 208
        vV = 252
        CW = [R("a", 224 + 4 * i) for i in range(8)] + [R("v", 220 + 4 * i) for i in range(8)]
        if cfg.b_tail:
            CW[11:] = [R("v", b) for b in (244, 248, 144, 148, 152)]
        SBo, SBl = 104 * 1024, 152 * 1024
        sKV, sG = 6, 7
        g.e(f"v_mov_b32 v{vt0}, 0x3f803f80\ns_mov_b32 s{t0}, {0x00010000 if cfg.one_row else 0x00110000:#x}\ns_mov_b32 s{t1}, {0x00010000 if cfg.one_row else 0x00110000:#x}")
        if layer == 0 and not cfg.rl_in_a:
            for i in range(4):
                g.e(f"v_accvgpr_write_b32 a{240 + i}, v{vt0}")
            g.e(f"v_mov_b32 v{vt2}, v{g.RL_V + 2}\nv_mov_b32 v{vt3}, v{g.RL_V + 3}")
        g.e(f"v_cndmask_b32 v{vIdx}, 0, v{vt0}, s[{t0}:{t1}]")
        for r in range(4, 12):
            g.e(f"v_mov_b32 v{KV + r}, v{vIdx}")

        def late_setup():
            for e in range(1, 3):
                for r in range(4, 12):
                    g.e(f"v_mov_b32 v{KV + 12 * e + r}, v{vIdx}")
            g.e(f"v_mov_b32 v{vIdx}, 0xdddddddd")
            for j in range(8):
                if cfg.zero16:
                    for r in range(0, 16, 2):
                        g.e(f"v_pk_mov_b32 {vr(O + 16 * j + r, 2)}, 0, 0")
                else:
                    for r in range(9):
                        g.e(f"v_mov_b32 v{O + 16 * j + r}, 0")
            g.e(f"""
            v_bfe_u32 v{vt0}, v{vL16}, 5, 3
            v_add_u32 v{vt0}, s{sX}, v{vt0}
            v_and_b32 v{vt0}, 7, v{vt0}
            v_lshlrev_b32 v253, 7, v{vt0}
            v_bfe_u32 v{vt0}, v{vL16}, 4, 1
            v_lshl_add_u32 v253, v{vt0}, 2, v253
            """)
            if layer == 0 and cfg.rl_split:
                g.e(f"v_mov_b32 v{vt0}, 0x3f803f80")
                for i in range(4):
                    g.e(f"v_accvgpr_write_b32 a{240 + i}, v{vt0}")
                g.e(f"v_mov_b32 v{vt0}, v{g.RL_V + 3}\nv_mov_b32 v{vt2}, v{g.RL_V + 1}\nv_mov_b32 v{vt3}, v{g.RL_V + 5}")
        g.e(f"""
        v_lshrrev_b32 v{vt0}, 9, v{vL16}
        v_lshlrev_b32 v{vV}, 8, v{vt0}
        v_and_b32 v{vt0}, 0xf0, v{vL16}
        v_add_u32 v{vV}, v{vV}, v{vt0}
        v_and_b32 v{vt0}, 28, v{vL4}
        s_lshl_b32 s{t0}, s{sX}, 4
        s_lshr_b32 s{t1}, s{sC}, 1
        s_add_u32 s{t0}, s{t0}, s{t1}
        s_lshl_b32 s{t0}, s{t0}, 7
        s_add_u32 s{t0}, s{t0}, {FA_L}
        s_lshl_b32 s{sG}, s{t1}, 10
        s_lshl_b32 s{t2}, s{sW}, 3
        s_add_u32 s{sG}, s{sG}, s{t2}
        s_add_u32 s{sG}, s{sG}, {FA_G}
        s_lshl_b32 s{t2}, s{sW}, 1
        s_lshl_b32 s{sKV}, s{sC}, 6
        s_add_u32 s{sKV}, s{sKV}, s{t2}
        s_lshl_b32 s{sKV}, s{sKV}, 11
        s_add_u32 s{sKV}, s{sKV}, {aKV(layer)}
        s_lshl_b32 s{t3}, s{sX}, 8
        s_add_u32 s{t3}, s{t3}, s{sC}
        s_lshl_b32 s{t3}, s{t3}, 10
        s_add_u32 s{t3}, s{t3}, {aQ(layer)}
        """)
        for j in range(8):
            g.e(f"s_add_u32 s{t4 + j}, s{t2}, {2 + j}\ns_and_b32 s{t4 + j}, s{t4 + j}, 7\ns_lshl_b32 s{t4 + j}, s{t4 + j}, 15\ns_add_u32 s{t4 + j}, s{t4 + j}, s{t3}")
        g.e(f"s_lshl_b32 s3, s{sX}, 14\ns_add_u32 s3, s3, s{sKV}")
        g.vwait0()
        g.stamp(f"B{layer}:ack")
        if layer == 0 and cfg.b0_g:
            g.e(f"s_and_b32 s{t0}, s{sG}, 0xfffffc00\ns_lshl_b32 s4, s{sX}, 7\ns_add_u32 s{t0}, s{t0}, s4")
        else:
            g.signal(0, layer + 1, layer > 0 or cfg.xcc_early)
        if cfg.b_opt == 2 and layer > 0:
            g.poll(vt0, t0, layer + 1, True)
        else:
            l3, l0 = g.label("b3"), g.label("b0")
            g.e(f"s_barrier\ns_cmp_eq_u32 s{sW}, 3\ns_cbranch_scc0 {l3}")
            if layer == 0 and cfg.a0b:
                assert cfg.b0_g
                g.e(f"""
                s_lshl_b32 s{t1}, s{sCB}, 4
                s_add_u32 s{t1}, s{t1}, s{sX}
                s_lshl_b32 s{t1}, s{t1}, 7
                s_and_b32 s4, s{sTA}, 6
                s_lshl_b32 s4, s4, 2
                s_add_u32 s{t1}, s{t1}, s4
                s_add_u32 s{t1}, s{t1}, {FA_G}
                v_and_b32 v254, 4, v{vL4}
                v_lshlrev_b32 v254, 8, v254
                v_bfe_u32 v{vt1}, v{vL4}, 3, 1
                v_lshl_add_u32 v254, v{vt1}, 2, v254
                v_mov_b32 v{vt1}, 1
                s_mov_b64 exec, 15
                buffer_store_dword v{vt1}, v254, {sr(sWS, 4)}, s{t1} offen sc1
                s_mov_b64 exec, -1
                {l3}:
                """)
            else:
                g.e(f"v_readlane_b32 s{t1}, v{vFl}, 1\nv_mov_b32 v{vt1}, {layer + 1}\ns_mov_b64 exec, 15\ns_sub_u32 s{t1}, s{t1}, 12\ns_nop 1")
                g.e(f"buffer_store_dword v{vt1}, v{vL4}, {sr(sWS, 4)}, s{t1} offen sc1\ns_mov_b64 exec, -1\n{l3}:")
            if layer == 0 and cfg.rl_in_a:
                l2 = g.label("b2")
                g.e(f"s_cmp_eq_u32 s{sW}, 2\ns_cbranch_scc0 {l2}\nv_mov_b32 v{vt1}, 1\ns_mov_b64 exec, 64")
                g.e(f"buffer_store_dword v{vt1}, v{vFl}, {sr(sWS, 4)}, 0 offen sc1\ns_mov_b64 exec, -1\n{l2}:")
            if cfg.kv_touch:
                lt = g.label("bt")
                g.e(f"""
                s_sub_u32 s4, s{sW}, 1
                s_cmp_lt_u32 s4, 2
                s_cbranch_scc0 {lt}
                s_lshl_b32 s5, s{sHP}, 1
                s_add_u32 s4, s4, s5
                s_lshl_b32 s4, s4, 6
                s_and_b32 s5, s{sT}, 0xfc
                s_add_u32 s4, s4, s5
                s_lshl_b32 s4, s4, 11
                s_add_u32 s4, s4, {aKV(layer)}
                v_lshlrev_b32 v254, 3, v{vL16}
                buffer_load_dword v255, v254, {sr(sWS, 4)}, s4 offen sc1
                {lt}:
                """)
            g.e(f"s_cmp_eq_u32 s{sW}, 0\ns_cbranch_scc0 {l0}")
            keep = list(g.vmq)
            p2, cfg.poll2 = cfg.poll2, 0
            g.poll(vt0, t0, layer + 1, False, sleep=0 if layer or cfg.xcc_early else cfg.b0_sleep)
            cfg.poll2 = p2
            g.vmq = keep
            g.e(f"{l0}:\ns_barrier")
            if layer > 0:
                g.dual("", "buffer_inv sc1\ns_waitcnt vmcnt(0)", 0)
        g.stamp(f"B{layer}go")

        def kv_addr1(kt):
            g.e(f"s_add_u32 s3, s{sX}, {kt // 2}\ns_and_b32 s3, s3, 7")

        def kv_addr2(kt):
            g.e(f"s_lshl_b32 s3, s3, 14\ns_add_u32 s3, s3, s{sKV}")

        def ldK(kt):
            g.ld(vr(KV + 12 * (kt % 3), 4), vL16, sWS, 3, (kt % 2) * 2048, mods=cfg.kvmods, tag=("K", kt))

        def ldV(kt, halves=(0, 1)):
            e = KV + 12 * (kt % 3)
            g.e(f"s_mov_b64 exec, s[{sVM}:{sVM + 1}]")
            for h in halves:
                g.ld(vr(e + 4 + 4 * h, 4), vV, sWS, 3, (kt % 2) * 2048 + 1024 + 512 * h, mods=cfg.kvmods, tag=("V", kt))
            g.e("s_mov_b64 exec, -1")

        def ldQ(j):
            g.ld(vr(Q + 4 * j, 4), vL16, sWS, t4 + j, 0, tag=("Q", j))
        ldK(0)
        ldQ(0)
        ldQ(1)
        ldV(0)
        for j in range(2, cfg.q_up):
            ldQ(j)
        if cfg.b_opt == 2 and layer > 0:
            for j in range(cfg.q_up, 8):
                ldQ(j)
            ldK(1)
        late_setup()
        if cfg.b_opt == 2 and layer > 0:
            ldV(1)
            g.signal(1, layer + 1, False)

        gaps = {}

        def at(n, gap, fn):
            gaps.setdefault((n, gap), []).append(fn)

        def place(ops, n0, gap0="A", allowed="AC", step=0):
            pos = 3 * n0 + "ABC".index(gap0)
            for op in ops:
                while "ABC"[pos % 3] not in allowed or (pos // 3, "ABC"[pos % 3]) in gaps:
                    pos += 1
                at(pos // 3, "ABC"[pos % 3], op)
                pos += 1 + step
            return pos // 3 + 1

        def spread(ops, n0, per_tile=3, gapset="ABC"):
            return place(ops, n0, gapset[0], gapset, 0 if per_tile > 1 else 2)

        for j in range(1, 8):
            at(j - 1, "a", lambda j=j: g.vwait(("Q", j)))
        at(0, "B", lambda: g.vwait(("V", 0)))
        for kt in range(1, 16):
            at(112 if kt == 15 and cfg.b_tail else 8 * kt - 1, "A", lambda kt=kt: g.vwait(("V", kt)))
        if not (cfg.b_opt == 2 and layer > 0):
            place([lambda j=j: ldQ(j) for j in range(cfg.q_up, 8)] + [lambda: ldK(1), lambda: ldV(1)], 0, "A", "AC")

        def red_addr(d):
            g.e(f"s_add_u32 s{t0}, s{sW}, {1 + d}\ns_and_b32 s{t0}, s{t0}, 3")
        def red_addr2(d):
            g.e(f"s_mul_i32 s{t0}, s{t0}, 6\ns_add_u32 s{t0}, s{t0}, {2 * d}")
        def red_addr3(d):
            g.e(f"s_lshl_b32 s{t1}, s{t0}, 11\ns_add_u32 s{t1}, s{t1}, {SBo}\nv_add_u32 v{(vt0, vt1)[d % 2]}, s{t1}, v{vL16}")
        def red_addr4(d):
            g.e(f"s_lshl_b32 s{t1}, s{t0}, 8\ns_add_u32 s{t1}, s{t1}, {SBl}\nv_add_u32 v{(vt2, vt3)[d % 2]}, s{t1}, v{vL4}")

        def red_wr(j, part):
            b = O + 16 * j
            s_ = j % 2
            va, vb = (vt0, vt1)[(j // 2) % 2], (vt2, vt3)[(j // 2) % 2]
            if part == 0:
                g.ds(f"ds_write_b128 v{va}, {vr(b, 4)} offset:{s_ * 2048}")
            elif part == 1:
                g.ds(f"ds_write_b128 v{va}, {vr(b + 4, 4)} offset:{s_ * 2048 + 1024}")
            else:
                g.ds(f"ds_write_b32 v{vb}, v{b + 8} offset:{s_ * 256}")
        order = [divmod(n, 8) for n in range(128)]
        if cfg.b_tail:
            order[112:] = [(14 + k, j) for j in range(6) for k in range(2)] + [(14, 6), (14, 7), (15, 6), (15, 7)]
            for j in range(6):
                for part in range(3):
                    at(115 + 2 * j, "ABC"[part], lambda j=j, part=part: red_wr(j, (0, 2, 1)[part]))
            for d, n in enumerate((112, 116, 120)):
                at(n, "B", lambda d=d: red_addr(d))
                at(n, "C", lambda d=d: red_addr2(d))
                at(n + 2, "A", lambda d=d: red_addr3(d))
                at(n + 2, "C", lambda d=d: red_addr4(d))
        else:
            for j in range(6):
                at(121 + j, "D", lambda j=j: red_wr(j, 2))
                at(121 + j, "D", lambda j=j: red_wr(j, 0))
                at(122 + j, "A", lambda j=j: red_wr(j, 1))
            for d, n in enumerate((117, 119, 124)):
                at(n, "B", lambda d=d: red_addr(d))
                at(n, "C", lambda d=d: red_addr2(d))
                at(n + 1, "B", lambda d=d: red_addr3(d))
                at(n + 1, "C", lambda d=d: red_addr4(d))
        PB = 16

        def own_addr():
            g.e(f"""
            s_mul_i32 s{t0}, s{sW}, 6
            s_lshl_b32 s{t1}, s{t0}, 11
            s_add_u32 s{t1}, s{t1}, {SBo}
            v_add_u32 v{vt1}, s{t1}, v{vL16}
            s_lshl_b32 s{t1}, s{t0}, 8
            s_add_u32 s{t1}, s{t1}, {SBl}
            v_add_u32 v{vt3}, s{t1}, v{vL4}
            """)

        def own_bar():
            g.vwait("w13a")
            g.lwait0()
            g.e("s_barrier")

        def own_rd(s_, ds_=(0, 1, 2)):
            for d in ds_:
                b = PB + 10 * (3 * s_ + d)
                g.ds(f"ds_read_b128 {vr(b, 4)}, v{vt1} offset:{(2 * d + s_) * 2048}", ("p", s_))
                g.ds(f"ds_read_b128 {vr(b + 4, 4)}, v{vt1} offset:{(2 * d + s_) * 2048 + 1024}", ("p", s_))
                g.ds(f"ds_read_b32 v{b + 8}, v{vt3} offset:{(2 * d + s_) * 256}", ("p", s_))

        def o_addr():
            g.e(f"""
            s_lshl_b32 s{t0}, s{sX}, 3
            s_lshl_b32 s{t1}, s{sW}, 1
            s_add_u32 s{t0}, s{t0}, s{t1}
            s_lshl_b32 s{t0}, s{t0}, 5
            s_add_u32 s{t0}, s{t0}, s{sC}
            s_lshl_b32 s{t0}, s{t0}, 10
            s_add_u32 s{t0}, s{t0}, {aO(layer)}
            s_add_u32 s{t1}, s{t0}, 32768
            """)
        if cfg.b_tail:
            at(124, "A", own_addr)
            at(124, "C", o_addr)
            at(126, "A", own_bar)
            at(126, "B", lambda: own_rd(0, (0,)))
            at(126, "C", lambda: own_rd(0, (1, 2)))
            at(127, "A", lambda: own_rd(1, (0, 1)))
            at(127, "B", lambda: own_rd(1, (2,)))
        else:
            at(126, "C", own_addr)
            at(127, "B", own_bar)
            at(127, "C", lambda: own_rd(0))
            at(127, "D", lambda: own_rd(1))

        vG, vGd = 253, 249

        def gpoll_ld():
            g.ld(vr(vGd), vG, sWS, sG, 0, tag="gf", w=1)

        def gpoll_snap():
            g.vwait("gf")
            g.e(f"v_cmp_gt_u32 s[{sSN2}:{sSN2 + 1}], {layer + 1}, v{vGd}")

        def gcheck(kt):
            ls, lj, lp = g.label("gslow"), g.label("gjoin"), g.label("gp")
            m = 3 << kt
            g.e(f"s_and_b32 s{sTO}, s{sSN2}, {m}\ns_cbranch_scc1 {ls}\n{lj}:")
            g.tail.append(f"""{ls}:
            s_mov_b32 s{sTO}, {TIMEOUT}
            {lp}:
            buffer_load_dword v{vGd}, v{vG}, {sr(sWS, 4)}, s{sG} offen sc1
            s_sub_u32 s{sTO}, s{sTO}, 1
            s_cbranch_scc1 L_exit
            s_waitcnt vmcnt(0)
            v_cmp_gt_u32 s[{sSN2}:{sSN2 + 1}], {layer + 1}, v{vGd}
            s_nop 1
            s_and_b32 s4, s{sSN2}, {m}
            s_cbranch_scc0 {lj}
            s_sleep {cfg.g_sleep}
            s_branch {lp}""")
        gp = cfg.gp[layer]
        place([gpoll_ld], gp, "C")
        n = place([gpoll_snap, lambda: gcheck(2), lambda: kv_addr1(2), lambda: kv_addr2(2), lambda: ldK(2), lambda: ldV(2)], gp + 3, "B", "ABC")
        for kt in range(3, 16):
            n = max(8 * (kt - 2), n)
            if kt % 2 == 0:
                place([lambda kt=kt: gcheck(kt), lambda kt=kt: kv_addr1(kt), lambda kt=kt: kv_addr2(kt)], n - 2, "A", "AC")
            if cfg.v_split:
                n = place([lambda kt=kt: ldK(kt), lambda kt=kt: ldV(kt, (0,)), lambda kt=kt: ldV(kt, (1,))], n, "A", "AC")
            else:
                n = place([lambda kt=kt: ldK(kt), lambda kt=kt: ldV(kt)], n, "A", "AC")

        def w13base():
            g.e(f"s_mul_i32 s{t11 - 1}, s{sHP}, 229376\ns_add_u32 s{t11 - 1}, s{t11 - 1}, {W13}")
        if layer == 0:
            n = cfg.rl0
            if cfg.rl_in_b:
                def rl_bar():
                    g.vwait(("rl", 1))
                    g.e("s_barrier")
                n = spread(g.relayout_dma_ops(), cfg.rl0, 3, "ABC") + cfg.rl_lat
                at(n - 1, "C", rl_bar)
            if cfg.cold_touch:
                ct = [lambda: g.e(f"v_and_b32 v250, 0x3c0, v{vL16}\nv_lshlrev_b32 v250, 1, v250")]
                xa, sa = g.x_addr(layer, 0, t4, t5)
                groups = [g.touch_ops(xa, t4, 1, 250, 251) + g.touch_ops(sa, t4, 1, 250, 251)]
                if cfg.cold_touch > 1:
                    hh = g.touch_ops(g.h_addr(layer, t4, t5), t4, 4, 250, 251)
                    groups += [hh[:3], hh[3:4], hh[4:5], hh[5:]] if cfg.cold_touch == 3 else [hh[:4], hh[4:]]
                at(cfg.ct0, "A", ct[0])
                for gi, grp in enumerate(groups):
                    spread(grp, cfg.ct0 + 1 + 8 * gi, 3, "ABC")
            place([lambda: g.e(f"v_bfe_u32 v250, v{vL16}, 4, 5\nv_lshlrev_b32 v250, 10, v250"),
                   lambda: g.e(f"v_lshrrev_b32 v251, 9, v{vL16}\nv_lshl_add_u32 v250, v251, 4, v250"),
                   lambda: g.e(f"s_lshl_b32 s{t0}, s{sCB}, 1\ns_add_u32 s{t0}, s{t0}, s{sNA}"),
                   lambda: g.e(f"s_lshl_b32 s{t0}, s{t0}, 6\ns_lshl_b32 s{t1}, s{sTA}, 15"),
                   lambda: g.e(f"s_add_u32 s{t0}, s{t0}, s{t1}"),
                   lambda: g.ld(vr(vRes, 4), 250, sXIN, t0, 0, mods="", tag="res"),
                   lambda: g.ld(vr(vRes + 4, 4), 250, sXIN, t0, 32, mods="", tag="res")], 9, "A", "AC")
            if not cfg.xcc_early:
                at(8, "A", g.xcc_send)
                at(100, "B", g.xcc_load)
                at(105, "B", g.xcc_check)
            if not cfg.rl_in_a:
                for op, gap in g.relayout_out_ops():
                    if gap == "X":
                        at(n, "C", op)
                        n += 1
                    else:
                        at(n, gap, op)
                        n += gap == "D"

                def rl_sig():
                    g.vwait("rlst")
                    g.e("s_barrier")
                    L = g.label("rls")
                    g.e(f"v_mov_b32 v{vt1}, 1\ns_cmp_eq_u32 s{sW}, 0\ns_cbranch_scc0 {L}\ns_mov_b64 exec, 64")
                    g.e(f"buffer_store_dword v{vt1}, v{vFl}, {sr(sWS, 4)}, 0 offen sc1\ns_mov_b64 exec, -1\n{L}:")
                    g.stamp("R_sig")
                n += cfg.rl_ack
                at(n, "A", rl_sig)

            def rl_ld():
                g.e(f"s_mov_b32 s{t10}, {FR}\nv_lshlrev_b32 v248, 3, v{vL16}")
                g.ld(vr(244, 4), 248, sWS, t10, 0, tag="rf")

            def rl_check():
                g.stamp("R_pre")
                g.late_check("rf", f"buffer_load_dwordx4 v[244:247], v248, {sr(sWS, 4)}, s{t10} offen sc1",
                             "v_min_u32 v244, v244, v245\nv_min3_u32 v244, v244, v246, v247\nv_cmp_gt_u32 vcc, 1, v244", cfg.rl_sleep)
                g.stamp("R_chk")
            n = cfg.rl_ld if cfg.rl_in_a else n + cfg.rl_gap
            at(n, "A", rl_ld)
            n += 5
            at(n, "A", rl_check)
            n0 = n + 1
            if cfg.rl_split:
                place(g.relayout_dma_ops((vt2, vt3))[4:], cfg.rs_dma, "A", "AC")

                def rl_bar():
                    g.vwait(("rl", 1))
                    g.e("s_barrier")
                n = max(cfg.rs_out, n0)
                at(n - 1, "C", rl_bar)
                for op, gap in g.relayout_out_ops(244, 224, 240, (vt0, vt0), 250)[13:]:
                    if gap == "X":
                        at(n, "C", op)
                        n += 1
                    else:
                        at(n, gap, op)
                        n += gap == "D"

                def rl_sig2():
                    g.vwait("rlst")
                    g.e("s_barrier")
                    L = g.label("rls")
                    g.e(f"v_mov_b32 v{vt1}, 2\ns_cmp_eq_u32 s{sW}, 0\ns_cbranch_scc0 {L}\ns_mov_b64 exec, 64")
                    g.e(f"buffer_store_dword v{vt1}, v{vFl}, {sr(sWS, 4)}, 0 offen sc1\ns_mov_b64 exec, -1\n{L}:")
                at(n + cfg.rl_ack, "A", rl_sig2)

                def rl_ld2():
                    g.e(f"s_mov_b32 s{t7}, {FR}")
                    g.ld(vr(244, 4), 248, sWS, t7, 0, tag="rf2")

                def rl_check2():
                    g.late_check("rf2", f"buffer_load_dwordx4 v[244:247], v248, {sr(sWS, 4)}, s{t7} offen sc1",
                                 "v_min_u32 v244, v244, v245\nv_min3_u32 v244, v244, v246, v247\nv_cmp_gt_u32 vcc, 2, v244", cfg.rl_sleep)
        else:
            n0 = 10
        at(n0, "A", w13base)

        def costed(ops, nsetup, c):
            return [(op, 0.0) for op in ops[:nsetup]] + [(op, 0.0 if isinstance(op, SOp) else c) for op in ops[nsetup:]]
        pops = costed(g.dma_ops(0, 26, t11 - 1, 0, "w13a", (t8, t9)), 2, 0.5)
        if layer == 0 and cfg.rl_split:
            pops += [(rl_ld2, 2.0), (rl_check2, 0.0)]
        if layer == 0 and cfg.ew_in_b:
            pops += costed(g.ew_ops(0, cfg.ew_in_b, (t8, t9)), 4, 0.25)
        p16 = lambda: g.e(f"v_and_b32 v254, 0x3c0, v{vL16}\nv_lshlrev_b32 v254, 1, v254")
        pops.append((p16, 0.0))
        npf = cfg.pf_w13[layer]
        if npf:
            pa = [f"s_lshr_b32 s{t4}, s{sC}, 4\ns_lshl_b32 s{t4}, s{t4}, 2", f"s_add_u32 s{t4}, s{t4}, s{sW}\ns_mul_i32 s{t4}, s{t4}, {npf * 2048}",
                  f"s_add_u32 s{t4}, s{t4}, s{t11 - 1}\ns_add_u32 s{t4}, s{t4}, {104 * 1024}"]
            pops += costed(g.touch_ops(pa, t4, npf, 254, 255), 3, 2.0)
        pa = [f"s_mul_i32 s{t4}, s{sHP}, 7168\ns_lshl_b32 s{t5}, s{sW}, 11", f"s_add_u32 s{t4}, s{t4}, s{t5}\ns_add_u32 s{t4}, s{t4}, {WX13}"]
        pops += costed(g.touch_ops(pa, t4, 1, 254, 255), 2, 1.0)
        if "B" in cfg.touch:
            xa, sa = g.x_addr(layer, 0, t4, t5)
            oa = [f"s_lshl_b32 s{t4}, s{sX}, 2\ns_add_u32 s{t4}, s{t4}, s{sW}", f"s_lshl_b32 s{t4}, s{t4}, 6\ns_add_u32 s{t4}, s{t4}, s{sC}",
                  f"s_lshl_b32 s{t4}, s{t4}, 10\ns_add_u32 s{t4}, s{t4}, {aO(layer)}"]
            if "H" in cfg.touch and cfg.h_in_b[layer]:
                pops += costed(g.touch_ops(g.h_addr(layer, t4, t5), t4, 4, 254, 255), 2, 1.75)
            pops += costed(g.touch_ops(xa, t4, 1, 254, 255), 3, 2.0) + costed(g.touch_ops(sa, t4, 1, 254, 255), 3, 0.3)
            pops += costed(g.touch_ops(oa, t4, 1, 254, 255), 3, 1.0)
            pops += costed(g.touch_ops([f"s_add_u32 s{t4}, s{t4}, 32768"], t4, 1, 254, 255), 1, 1.0)

        cws = [f"s_lshl_b32 s{t8}, s{sCB}, 16\ns_lshl_b32 s{t9}, s{sW}, 14", f"s_add_u32 s{t8}, s{t8}, s{t9}\ns_lshl_b32 s{t9}, s{sNA}, 10",
               f"s_add_u32 s{t8}, s{t8}, s{t9}\ns_add_u32 s{t8}, s{t8}, {WO}", f"s_xor_b32 s{t9}, s{t8}, 1024"]
        cw = []
        for idx in range(16):
            def op(idx=idx):
                i, n_ = divmod(idx, 2)
                if idx and idx % 4 == 0:
                    g.e(f"s_add_u32 s{t8}, s{t8}, 4096\ns_add_u32 s{t9}, s{t9}, 4096")
                g.ld(CW[idx](0, 4), vL16, sWS, (t8, t9)[n_], (i % 2) * 2048, mods=g.cfg.wmods, tag="cw")
            cw.append(op)
        pops += costed([lambda t=t: g.e(t) for t in cws] + cw[:8], 4, 0.25)
        if "n" in cfg.dbg and layer == 1:
            pops = [(op, c) for op, c in pops if c == 0.0]
        if cfg.keep is not None and layer == 1:
            pops = [(op if c == 0.0 or c in cfg.keep else (lambda: None), c) for op, c in pops]
        tot = sum(c + 0.05 for _, c in pops)
        span = cfg.bg_end - (n0 + 1)
        acc, nxt = 0.0, 0
        for op, c in pops:
            pos = max(3 * (n0 + 1) + int(3 * acc / tot * span), nxt)
            allowed = "AC" if cfg.bg_ac and layer else "ABC"
            while "ABC"[pos % 3] not in allowed or (pos // 3, "ABC"[pos % 3]) in gaps:
                pos += 1
            at(pos // 3, "ABC"[pos % 3], op)
            nxt = pos + 1
            acc += c + 0.05
        assert nxt // 3 < (113 if cfg.b_tail else 116), (n0, nxt)
        if cfg.b_tail:
            n = place(cw[8:13], 113, "A", "ABC")
            place(cw[13:], max(n, 118), "A", "ABC")
        else:
            place(cw[8:11], 116, "A", "AC")
            place(cw[11:], 121, "B", "BC")

        if cfg.tlb_out and layer == 1:
            def tlbo():
                g.srd(sOUT, pOUT, 2048 * 1024)
                g.e(f"v_lshlrev_b32 v{vt2}, {cfg.tlb_out - 4}, v{vL16}")
                g.ld("v255", vt2, sOUT, None, 0, mods="", w=1)
            place([tlbo], 20, "A", "AC")
        for n_, skip, nblk in cfg.ct_b:
            place([lambda skip=skip, nblk=nblk: g.code_touch(skip, nblk, vt2, 255)], n_, "A", "AC")

        def run(n, gap):
            for fn in gaps.pop((n, gap), []):
                if "k" in cfg.dbg and layer == 1 and 16 <= n < 112:
                    continue
                fn()

        def qk(n):
            kt, j = order[n]
            g.e(f"v_mfma_f32_32x32x16_bf16 {vr(S + 16 * (n % 2), 16)}, {vr(KV + 12 * (kt % 3), 4)}, {vr(Q + 4 * j, 4)}, 0")

        def pv(n, half):
            kt, j = order[n]
            g.e(f"v_smfmac_f32_32x32x32_bf16 {vr(O + 16 * j, 16)}, {vr(KV + 12 * (kt % 3) + 4 + 4 * half, 4)}, {vr(S + 16 * (n % 2) + 8 * half, 8)}, v{vIdx}")

        g.stamp(f"B{layer}:ld")
        g.vwait(("Q", 0))
        g.stamp(f"B{layer}:q0")
        qk(0)
        for n in range(128):
            if cfg.b_align and n % cfg.b_align == 0:
                g.e(".p2align 3, , 4" if False else "")
            sb = S + 16 * (n % 2)
            ex = [f"v_exp_f32 v{sb + i}, v{sb + i}" for i in range(16)]
            g.e("\n".join(ex[0:2]))
            if n:
                pv(n - 1, 1)
            run(n, "A")
            run(n, "a")
            g.e("\n".join(ex[2:5]))
            if n < 127:
                qk(n + 1)
            run(n, "B")
            g.e("\n".join(ex[5:10]))
            pv(n, 0)
            run(n, "C")
            g.e("\n".join(ex[10:16]))
            run(n, "D")
            if n % 8 == 7:
                g.stamp(f"B{layer}_{n // 8}")
            if n in (0, 2, 5, 7, 15, 119, 123, 127):
                g.stamp(f"B{layer}:t{n}")
        assert not gaps, gaps.keys()
        pv(127, 1)
        if not cfg.b_tail:
            o_addr()
        def norm_text(s_):
            ob = O + 16 * (6 + s_)
            t = [f"v_rcp_f32 v{ob + 10}, v{ob + 8}", "s_nop 0"]
            t += [f"v_pk_mul_f32 {vr(ob + i, 2)}, {vr(ob + i, 2)}, {vr(ob + 10, 2)} op_sel_hi:[1,0]" for i in range(0, 8, 2)]
            t += [f"v_cvt_pk_bf16_f32 v{ob + 12 + i}, v{ob + 2 * i}, v{ob + 2 * i + 1}" for i in range(4)]
            return t + [g.st_text(vr(ob + 12, 4), vL16, sWS, (t0, t1)[s_], 0)]

        def norm(s_):
            t = norm_text(s_)
            g.e("\n".join(t[:-1]))
            g.vm(t[-1], "ost")
        for s_ in range(2):
            ob = O + 16 * (6 + s_)
            g.lwait(("p", s_))
            b0 = PB + 30 * s_
            if s_ == 1:
                for d in (1, 2):
                    g.e(f"v_add_f32 v{b0 + 8}, v{b0 + 8}, v{b0 + 10 * d + 8}")
                    for i in range(0, 8, 2):
                        g.e(f"v_pk_add_f32 {vr(b0 + i, 2)}, {vr(b0 + i, 2)}, {vr(b0 + 10 * d + i, 2)}")
            for d in range(3 if s_ == 0 else 1):
                b = b0 + 10 * d
                g.e(f"v_add_f32 v{ob + 8}, v{ob + 8}, v{b + 8}")
                for i in range(0, 8, 2):
                    g.e(f"v_pk_add_f32 {vr(ob + i, 2)}, {vr(ob + i, 2)}, {vr(b + i, 2)}")
            if cfg.guard_late:
                norm(s_)
        g.stamp(f"B{layer}:sum")
        if cfg.guard_late:
            assert not cfg.one_row
            g.softmax_guard(layer, O + 96, O + 112, norm_text(0) + norm_text(1))
        else:
            if cfg.one_row:
                g.e(g.bcast_l(O + 96, O + 112))
            g.softmax_guard(layer, O + 96, O + 112)
            for s_ in range(2):
                norm(s_)
        g.stamp(f"B{layer}st")
        self.CW = CW

    def bcast_l(self, o0, o1):
        return (f"v_mov_b32 v{o0 + 9}, v{o0 + 8}\nv_mov_b32 v{o1 + 9}, v{o1 + 8}\ns_nop 0\n"
                f"v_permlane32_swap_b32 v{o0 + 8}, v{o0 + 9}\nv_permlane32_swap_b32 v{o1 + 8}, v{o1 + 9}")

    def softmax_guard(self, layer, o0, o1, after=()):
        g = self
        Q, S, KV, vV = 144, 176, 208, 252
        M, T = 16, 18
        ls, lj, l1, l2 = g.label("fb"), g.label("fbj"), g.label("fb1"), g.label("fb2")
        g.lines.append("; softmax guard: row sums must lie in [2^-64, 2^120] and the outputs must be finite, otherwise")
        g.lines.append("; the tiles are recomputed with the true row maximum subtracted (out-of-line block)")
        for k, o in enumerate((o0, o1)):
            g.e(f"v_maximum3_f32 v{T + k}, abs(v{o}), abs(v{o + 1}), abs(v{o + 2})")
            g.e(f"v_maximum3_f32 v{T + k}, abs(v{o + 3}), abs(v{o + 4}), v{T + k}")
            g.e(f"v_maximum3_f32 v{T + k}, abs(v{o + 5}), abs(v{o + 6}), v{T + k}")
        g.e(f"""
        v_maximum3_f32 v{T}, abs(v{o0 + 7}), abs(v{o1 + 7}), v{T}
        v_minimum3_f32 v{M}, v{o0 + 8}, v{o1 + 8}, v{o1 + 8}
        v_maximum3_f32 v{M + 1}, v{o0 + 8}, v{o1 + 8}, v{o1 + 8}
        v_maximum3_f32 v{T}, v{T}, v{T + 1}, v{T + 1}
        s_mov_b32 s{t2}, {f2u(2.0 ** -64):#x}
        s_mov_b32 s{t3}, {f2u(2.0 ** 120):#x}
        s_mov_b32 s{t4}, 0x7f7fffff
        v_cmp_nle_f32 vcc, s{t2}, v{M}
        v_cmp_nge_f32 s[{t6}:{t7}], s{t3}, v{M + 1}
        v_cmp_nge_f32 s[{t10}:{t11}], s{t4}, v{T}
        s_nop 0
        s_or_b64 vcc, vcc, s[{t6}:{t7}]
        s_or_b64 vcc, vcc, s[{t10}:{t11}]
        s_cbranch_{'scc0' if g.cfg.force_fallback else 'scc1'} {ls}
        {lj}:
        """)
        fb = ["; softmax fall-back: pass 1 finds the true row maximum, pass 2 accumulates exp2(s - max)",
              f"{ls}:", f"s_lshl_b32 s{t2}, s{sC}, 17", f"s_add_u32 s{t2}, s{t2}, {aKV(layer)}", f"s_mov_b32 s{t3}, s{t2}",
              f"s_add_u32 s{t4}, s{t2}, 0x20000", f"v_mov_b32 v{M}, 0xff800000", f"v_mov_b32 v{M + 1}, 0xff800000", f"{l1}:",
              f"buffer_load_dwordx4 {vr(KV, 4)}, v{vL16}, {sr(sWS, 4)}, s{t3} offen sc1", "s_waitcnt vmcnt(0)"]
        for k in range(2):
            fb.append(f"v_mfma_f32_32x32x16_bf16 {vr(S + 16 * k, 16)}, {vr(KV, 4)}, {vr(Q + 24 + 4 * k, 4)}, 0")
        fb.append("s_nop 15")
        for k in range(2):
            for i in range(0, 16, 2):
                fb.append(f"v_max3_f32 v{M + k}, v{S + 16 * k + i}, v{S + 16 * k + i + 1}, v{M + k}")
        fb += [f"s_add_u32 s{t3}, s{t3}, 2048", f"s_cmp_lt_u32 s{t3}, s{t4}", f"s_cbranch_scc1 {l1}"]
        for k in range(2):
            fb += [f"v_mov_b32 v{T}, v{M + k}", "s_nop 1", f"v_permlane32_swap_b32 v{M + k}, v{T}", f"v_max_f32 v{M + k}, v{M + k}, v{T}"]
        for o in (o0, o1):
            fb += [f"v_mov_b32 v{o + r}, 0" for r in range(16)]
        fb += [f"s_mov_b32 s{t3}, s{t2}", f"{l2}:",
               f"buffer_load_dwordx4 {vr(KV, 4)}, v{vL16}, {sr(sWS, 4)}, s{t3} offen sc1",
               f"s_mov_b64 exec, s[{sVM}:{sVM + 1}]",
               f"buffer_load_dwordx4 {vr(KV + 4, 4)}, v{vV}, {sr(sWS, 4)}, s{t3} offen offset:1024 sc1",
               f"buffer_load_dwordx4 {vr(KV + 8, 4)}, v{vV}, {sr(sWS, 4)}, s{t3} offen offset:1536 sc1",
               "s_mov_b64 exec, -1", "s_waitcnt vmcnt(0)"]
        for k in range(2):
            fb.append(f"v_mfma_f32_32x32x16_bf16 {vr(S + 16 * k, 16)}, {vr(KV, 4)}, {vr(Q + 24 + 4 * k, 4)}, 0")
        fb.append("s_nop 15")
        for k in range(2):
            fb += [f"v_sub_f32 v{S + 16 * k + i}, v{S + 16 * k + i}, v{M + k}" for i in range(16)]
            fb += [f"v_exp_f32 v{S + 16 * k + i}, v{S + 16 * k + i}" for i in range(16)]
        fb.append("s_nop 1")
        for k, o in enumerate((o0, o1)):
            for h in range(2):
                fb.append(f"v_smfmac_f32_32x32x32_bf16 {vr(o, 16)}, {vr(KV + 4 + 4 * h, 4)}, {vr(S + 16 * k + 8 * h, 8)}, v{vIdx}")
        fb += [f"s_add_u32 s{t3}, s{t3}, 2048", f"s_cmp_lt_u32 s{t3}, s{t4}", "s_nop 7", f"s_cbranch_scc1 {l2}", "s_nop 15"]
        if g.cfg.one_row:
            fb += g.bcast_l(o0, o1).split("\n") + ["s_nop 1"]
        fb += list(after)
        fb.append(f"s_branch {lj}")
        g.tail.append("\n".join(fb))

    def reduce_write(self, acc, d, base):
        g = self
        ops = []

        def addr():
            g.e(f"s_xor_b32 s{t6}, s{sW}, {d}\ns_mul_i32 s{t6}, s{t6}, 12288")
        def addr2():
            g.e(f"s_add_u32 s{t6}, s{t6}, {base + (d - 1) * 4096}\nv_add_u32 v{vt0}, s{t6}, v{vL16}")
        ops += [addr, addr2]
        for q in range(4):
            ops.append(lambda q=q: g.ds(f"ds_write_b128 v{vt0}, {vr(acc + 4 * q, 4)} offset:{q * 1024}"))
        return ops

    def reduce_pre_ops(self, layer, which, base, Z, final):
        g = self
        ops = [f"s_mul_i32 s{t6}, s{sW}, 12288\ns_add_u32 s{t6}, s{t6}, {base}", f"v_add_u32 v{vt2}, s{t6}, v{vL16}"]
        for i in range(8):
            ops += [f"v_lshlrev_b32 v{Z + 2 * i}, 16, v{vRes + i}", f"v_and_b32 v{Z + 2 * i + 1}, s{sMask}, v{vRes + i}"]
        ops.append(f"s_lshl_b32 s{t0}, s{sCB}, 1\ns_add_u32 s{t0}, s{t0}, s{sNA}")
        if final:
            ops.append(lambda: g.srd(sOUT, pOUT, 2048 * 1024))
            ops += [f"v_bfe_u32 v{vt3}, v{vL16}, 4, 5", f"v_lshlrev_b32 v{vt3}, 10, v{vt3}", f"v_lshrrev_b32 v{vIdx}, 9, v{vL16}",
                    f"v_lshl_add_u32 v{vt3}, v{vIdx}, 4, v{vt3}",
                    f"s_lshl_b32 s{t7}, s{sTA}, 15\ns_lshl_b32 s{t8}, s{t0}, 6", f"s_add_u32 s{t7}, s{t7}, s{t8}"]
        else:
            ops += [f"v_mov_b32 v{vt3}, 0x3f803f80",
                    f"s_lshl_b32 s{t7}, s{sTA}, 15\ns_lshl_b32 s{t8}, s{t0}, 11",
                    f"s_add_u32 s{t7}, s{t7}, s{t8}\ns_add_u32 s{t7}, s{t7}, {aX(layer, which)}",
                    f"s_lshl_b32 s{t8}, s{sTA}, 12\ns_lshr_b32 s{t9}, s{t0}, 2",
                    f"s_lshl_b32 s{t9}, s{t9}, 10\ns_add_u32 s{t8}, s{t8}, s{t9}",
                    f"s_and_b32 s{t9}, s{t0}, 3\ns_lshl_b32 s{t9}, s{t9}, 2",
                    f"s_add_u32 s{t8}, s{t8}, s{t9}\ns_add_u32 s{t8}, s{t8}, {aST(layer, which)}"]
        return ops

    def reduce_pre(self, layer, which, base, Z, final):
        self.take(deque(self.reduce_pre_ops(layer, which, base, Z, final)), 999)

    def reduce_read_ops(self, ds_, PB, Z, pk=False):
        g = self
        ops = []

        def bar():
            g.lwait0()
            g.e("s_barrier")
        ops.append(bar)
        for k, d in enumerate(ds_):
            for q in range(4):
                ops.append(lambda k=k, d=d, q=q: g.ds(
                    f"ds_read_b128 {vr(PB + 16 * k + 4 * q, 4)}, v{vt2} offset:{(d - 1) * 4096 + q * 1024}", ("p", d, q)))
        for k, d in enumerate(ds_):
            for q in range(4):
                def add(k=k, d=d, q=q):
                    g.lwait(("p", d, q))
                    if pk:
                        for i in range(4 * q, 4 * q + 4, 2):
                            g.e(f"v_pk_add_f32 {vr(Z + i, 2)}, {vr(Z + i, 2)}, {vr(PB + 16 * k + i, 2)}")
                        return
                    for i in range(4 * q, 4 * q + 4):
                        g.e(f"v_add_f32 v{Z + i}, v{Z + i}, v{PB + 16 * k + i}")
                ops.append(add)
        return ops

    def reduce_finish(self, layer, which, acc, Z, final):
        g = self
        g.stamp(f"{'CE'[which]}{layer}_r0")
        for h in range(2):
            for i in range(8 * h, 8 * h + 8, 2):
                g.e(f"v_pk_add_f32 {vr(acc + i, 2)}, {vr(acc + i, 2)}, {vr(Z + i, 2)}")
            for i in range(4 * h, 4 * h + 4):
                g.e(f"v_cvt_pk_bf16_f32 v{vRes + i}, v{acc + 2 * i}, v{acc + 2 * i + 1}")
            if final:
                g.st(vr(vRes + 4 * h, 4), vt3, sOUT, t7, 32 * h, g.cfg.out_mods)
            else:
                g.st(vr(vRes + 4 * h, 4), vL16, sWS, t7, 1024 * h)
        if final:
            return
        for i in range(4):
            g.e(f"v_mov_b32 v{Z + i}, 0")
        for i in range(8):
            g.e(f"v_dot2c_f32_bf16 v{Z + i % 2}, v{vRes + i}, v{vt3}")
            g.e(f"v_dot2c_f32_bf16 v{Z + 2 + i % 2}, v{vRes + i}, v{vRes + i}")
        g.e(f"s_nop 1\nv_add_f32 v{Z}, v{Z}, v{Z + 1}\nv_add_f32 v{Z + 2}, v{Z + 2}, v{Z + 3}\ns_nop 1")
        g.e(f"v_permlane32_swap_b32 v{Z}, v{Z + 2}\nv_add_f32 v{Z}, v{Z}, v{Z + 2}")
        g.dual(g.st_text(vr(Z), vL16, sWS, t8, 0, "", 1), g.st_text(vr(Z), vL16, sWS, t8, 0, "sc1", 1), 1)
        g.vmq[-1] = "stst"

    def splitk_body(self, nks, wreg, hreg, ldh, nup, AC, PB, Z, SC, SK, name, extra=(), after=()):
        g = self
        nxt = [nup]
        after = deque(after)
        for m in range(nup):
            ldh(m)

        def more():
            if nxt[0] < 2 * nks and nxt[0] - self.ring < self.consumed:
                ldh(nxt[0])
                nxt[0] += 1
            elif nxt[0] == 2 * nks and after:
                after.popleft()()

        def mf(tk, n, i):
            m = i if tk else nks + i
            acc = AC[2 * tk + n]
            c = vr(acc, 16) if i else "0"
            g.e(f"v_mfma_f32_32x32x16_bf16 {vr(acc, 16)}, {wreg(2 * i + n)}, {hreg(m)}, {c}")
        side = deque()

        def pop(k=1):
            for _ in range(k):
                if side:
                    o = side.popleft()
                    if o:
                        o()
        self.consumed = 0
        for i in range(nks):
            g.vwait(("h", i))
            if i == 0:
                g.stamp(f"Z{name[1]}:Cfirst")
            mf(1, 1, i)
            mf(1, 0, i)
            self.consumed = i + 1
            more()
            if i % 8 == 7:
                g.stamp(f"{name}_{i}")
        w3 = g.reduce_write(AC[3], 3, SC)
        w2 = g.reduce_write(AC[2], 2, SC)
        w1 = g.reduce_write(AC[1], 1, SC)
        side.extend(w3[:2] + [None] * 2 + w3[2:] + w2)
        early = nks >= 16 or g.cfg.early_c
        if early:
            side.extend([None] * 2 + g.reduce_read_ops((3, 2), PB, Z))
        side.extend(extra)
        per = 1 if nks >= 16 else (4 if early else 2)
        for i in range(nks + SK):
            if i < nks:
                g.vwait(("h", nks + i))
                mf(0, 1, i)
                more()
                pop(per)
            if i == nks:
                g.stamp(f"Z{name[1]}:CAB")
                pop(len(side))
                side.extend(w1[:2] + [None] * 3 + w1[2:])
                rr = g.reduce_read_ops((1,) if early else (3, 2, 1), PB, Z, pk=g.cfg.c_pk)
                side.extend(rr)
                per = -(-(len(side) - (len(rr) // 2 if g.cfg.c_pk else 0)) // SK)
            if i >= SK:
                mf(0, 0, i - SK)
                pop(per)
            if i % 8 == 7:
                g.stamp(f"{name}_a{i}")
        pop(len(side))
        while after:
            after.popleft()()

    def phaseC(self, layer):
        g = self
        CW = g.CW
        OF = 144
        AC = [16, 32, 48, 64]
        PB, Z = 80, 128
        SC = 104 * 1024
        g.e(f"""
        v_and_b32 v{vt0}, 28, v{vL4}
        s_lshl_b32 s{t2}, s{sX}, 2
        s_lshr_b32 s{t3}, s{sC}, 3
        s_add_u32 s{t2}, s{t2}, s{t3}
        s_lshl_b32 s{t2}, s{t2}, 2
        s_add_u32 s{t2}, s{t2}, s{sW}
        s_lshl_b32 s{t2}, s{t2}, 7
        s_add_u32 s{t2}, s{t2}, {FB}
        s_lshl_b32 s{t3}, s{sTB}, 15
        s_lshl_b32 s{t4}, s{sW}, 13
        s_add_u32 s{t3}, s{t3}, s{t4}
        s_add_u32 s{t3}, s{t3}, {aO(layer)}
        s_xor_b32 s{t4}, s{t3}, 32768
        """)
        g.vwait("ost")
        g.stamp(f"Z{layer}:Back")
        g.signal(2, layer + 1, True)
        g.e("s_barrier")
        g.reduce_pre(layer, 0, SC, Z, False)
        g.poll(vt0, t2, layer + 1, True)
        g.stamp(f"C{layer}go")

        def ofr(m):
            return 208 + 4 * m if m < 3 and g.cfg.b_tail else OF + 4 * m

        def ldo(m):
            tk, i = (1, m) if m < 8 else (0, m - 8)
            so = t3 if tk else t4
            if i == 4:
                g.e(f"s_add_u32 s{so}, s{so}, 4096")
            g.ld(vr(ofr(m), 4), vL16, sWS, so, (i % 4) * 1024, tag=("h", m))
        self.ring = 16
        after = []
        if "C" in g.cfg.touch:
            after = [lambda: g.e(f"v_and_b32 v{vt1}, 0x3c0, v{vL16}\nv_lshlrev_b32 v{vt1}, 1, v{vt1}")]
            after += g.touch_ops(g.h_addr(layer, t9, t10), t9, 4, vt1, vIdx)
        if g.cfg.c_pre:
            after += [lambda: g.e(f"s_mul_i32 s{t9}, s{sHP}, 7168\ns_add_u32 s{t9}, s{t9}, {WX13}\ns_add_u32 s{t10}, s{t9}, 4096")]
            after += [lambda n=n: g.ld(vr(g.D_AX[n], 4), vL16, sWS, (t9, t10)[n // 4], (n % 4) * 1024, tag=("ax", n)) for n in g.D_AXPRE]
            after += [lambda: g.e(f"s_mul_i32 s{t11}, s{sHP}, 229376\ns_add_u32 s{t11}, s{t11}, {W13}")]
            after += g.dma_ops(152, 2, t11, 152 * 1024, "w13e", (t9, t10))
        g.splitk_body(8, lambda i: CW[i](0, 4), lambda m: vr(ofr(m), 4), ldo, g.cfg.up_c, AC, PB, Z, SC, 8, f"C{layer}", after=after)
        g.reduce_finish(layer, 0, AC[0], Z, False)
        g.stamp(f"C{layer}st")

    def phaseD(self, layer):
        g = self
        cfg = g.cfg
        p421 = cfg.passes == [(0, 4), (4, 6), (6, 7)]
        assert p421 or cfg.passes[:2] in ([(0, 3), (3, 5)], [(0, 2), (2, 4)])
        X = 16
        ACC = [144 + 16 * i for i in range(6)] + [144] if p421 else [144, 160, 176, 192, 208, 144, 160]
        vB = [vL16, 240, 241]
        kexp, cden = 242, 243
        ET = 244
        BX = 248
        AX = g.D_AX
        SB = 224
        g.e(f"v_and_b32 v{vt0}, 60, v{vL4}\ns_lshl_b32 s{t2}, s{sT}, 7\ns_add_u32 s{t2}, s{t2}, {FC}")
        g.e(f"v_add_u32 v{vB[1]}, 0x10000, v{vL16}\nv_add_u32 v{vB[2]}, 0x20000, v{vL16}")
        g.e(f"s_mul_i32 s{t11}, s{sHP}, 229376\ns_add_u32 s{t11}, s{t11}, {W13}")
        g.e(f"s_mul_i32 s{t3}, s{sHP}, 7168\ns_mul_i32 s6, s{sT}, {112 * 1024}\ns_add_u32 s6, s6, s{t3}\ns_add_u32 s6, s6, {aH(layer)}\ns_add_u32 s7, s6, 4096")
        g.e(f"s_add_u32 s{t3}, s{t3}, {WX13}\ns_add_u32 s3, s{t3}, 4096")
        g.vwait("stst")
        g.stamp(f"Z{layer}:Cack")
        g.signal(3, layer + 1, True)
        g.e("s_barrier")

        def wread(f):
            slot = f % 160
            g.ds(f"ds_read_b128 {ar(WB + 4 * (f % 8), 4)}, v{vB[slot // 64]} offset:{(slot % 64) * 1024}", ("w", f))
        LEAD = 7
        for f in range(LEAD):
            wread(f)
        pre, xrest, stl = g.load_x_stats(layer, 0, aX(layer, 0), X, SB, cfg.up_d)
        xrest = deque(xrest)
        g.poll(vt0, t2, layer + 1, True)
        g.stamp(f"D{layer}go")
        pre()
        side = deque()
        mem = deque()

        def epi_ops(n):
            a = ACC[n]
            ops = []
            for half in range(2):
                r0 = a + 4 * half
                for i in range(4):
                    ops.append(f"v_mul_f32 v{ET + i}, v{kexp}, v{r0 + i}")
                for i in range(4):
                    ops.append(f"v_exp_f32 v{ET + i}, v{ET + i}")
                for i in range(4):
                    ops.append(f"v_mul_f32 v{r0 + i}, v{r0 + i}, v{r0 + 8 + i}")
                for i in range(4):
                    ops.append(f"v_fma_f32 v{ET + i}, v{ET + i}, v{cden}, v{cden}")
                for i in range(4):
                    ops.append(f"v_rcp_f32 v{ET + i}, v{ET + i}")
                for i in range(4):
                    ops.append(f"v_mul_f32 v{r0 + i}, v{r0 + i}, v{ET + i}")
            for i in range(4):
                ops.append(f"v_cvt_pk_bf16_f32 v{a + 8 + i}, v{a + 2 * i}, v{a + 2 * i + 1}")
            if "h" in cfg.dbg and n < 3:
                ops.append(lambda: g.vmq.append(("hst", n)) or g.e("s_nop 0") or g.vmq.pop())
            else:
                ops.append(lambda: g.st(vr(a + 8, 4), vL16, sWS, (6, 7)[n // 4], (n % 4) * 1024, cfg.hmods[layer], tag="hst" if n == 6 else ("hst", n)))
            return ops

        def xmf(n, first):
            acc = vr(ACC[n], 16)
            assert g.vmq.count(("ax", n)) + g.waited.get(("ax", n), 0) == layer + 1, n
            g.vwait(("ax", n))
            g.e(f"v_mfma_f32_32x32x16_bf16 {acc}, {vr(AX[n], 4)}, {vr(BX, 4)}, {'0' if first else acc}")

        def stats_go():
            side.extend([None] * cfg.st_pad + g.stats_ops(SB, kexp, cden, BX) + ["s_nop 0", f"v_mul_f32 v{kexp}, {f2u(-LOG2E):#x}, v{kexp}",
                                                                                           lambda: state.update(done=True)])
        def axld(n):
            assert not 224 <= AX[n] < 240 or state.get("done")
            g.ld(vr(AX[n], 4), vL16, sWS, (t3, 3)[n // 4], (n % 4) * 1024, tag=("ax", n))
        state = {"stats": False}

        def stats_mark():
            state["stats"] = True
            stats_go()
        xr = list(xrest)
        k = cfg.st_d
        mem.extend(xr[:k] + stl + [SOp(stats_mark)] + xr[k:])
        nb2 = (152 - 132) // 4 if cfg.c_pre else 7
        axs = [lambda n=n: axld(n) for n in range(7) if not (cfg.c_pre and n in g.D_AXPRE)]
        mem.extend(axs[:cfg.ax_first])
        mem.extend(g.dma_ops(104, 7, t11, 104 * 1024, "w13b", (t8, t9)))
        mem.extend(axs[cfg.ax_first:])
        mem.extend(g.dma_ops(132, nb2, t11, 132 * 1024, "w13b2", (t8, t9)))
        batches = {104: ("w13b", 7), 132: ("w13b2", nb2), 160: ("w13c", 8), 192: ("w13d", 8)}
        g.e_plan(layer)
        esetup = g.e_setup(layer)
        f = 0
        for pi, (a, b) in enumerate(cfg.passes):
            wdt = b - a
            nm = 32 * wdt
            tot = sum(0 if isinstance(o, tuple) else (2 if isinstance(o, str) and o.startswith(("v_exp", "v_rcp")) else 1) for o in side)
            done = 0
            for ks in range(32):
                for n in range(a, b):
                    if pi == 0 and n == a:
                        assert ("x", ks) in g.vmq or ("x", ks) in g.waited
                        g.vwait(("x", ks))
                        if ks == 0:
                            g.stamp(f"Z{layer}:Dfirst")
                    if f % 4 == 0:
                        g.lwait(("w", min(f + 3, 223)))
                    c = vr(ACC[n], 16) if ks or pi else "0"
                    g.e(f"v_mfma_f32_32x32x16_bf16 {vr(ACC[n], 16)}, {ar(WB + 4 * (f % 8), 4)}, {vr(X + 4 * ks, 4)}, {c}")
                    fn = f + LEAD
                    if fn in batches:
                        tag, cnt = batches[fn]
                        assert g.vmq.count(tag) + self.waited.get(tag, 0) == cnt * (layer + 1), (fn, tag)
                        g.vwait(tag)
                        if fn == 160 and layer == 0:
                            g.lwait0()
                        g.e("s_barrier")
                    if fn == cfg.bar_c:
                        if fn not in batches:
                            g.e("s_barrier")
                        if "c" in cfg.dbg:
                            batches[160] = batches[192] = ("none", 0)
                        elif "l" in cfg.dbg:
                            mem.extend(g.dma_ops(0, 8, t11, 0, "w13c", (t8, t9)))
                            mem.extend(g.dma_ops(0, 8, t11, 32 * 1024, "w13d", (t8, t9)))
                        else:
                            mem.extend(g.dma_ops(160, 8, t11, 0, "w13c", (t8, t9)))
                            mem.extend(g.dma_ops(192, 8, t11, 32 * 1024, "w13d", (t8, t9)))
                        if layer == 0 and cfg.ew_in_b < 56:
                            mem.extend(g.ew_ops(cfg.ew_in_b, 56, (t4, t5)))
                    if cfg.ct_d and f == cfg.ct_d[0] and layer in cfg.ct_d[3]:
                        mem.append(lambda: g.code_touch(cfg.ct_d[1], cfg.ct_d[2], vt2, vt3))
                    if f == cfg.d_touch[layer]:
                        if cfg.d_t1:
                            tt = [SOp(lambda: g.e(f"v_lshlrev_b32 v{vt2}, 3, v{vL16}\nv_min_u32 v{vt2}, {55 * 128}, v{vt2}")),
                                  lambda: g.ld(vr(vt3), vt2, sWS, 6, 0, tag="pf", w=1)]
                            if cfg.d_t1 == 2:
                                mem.extendleft(reversed(tt))
                            else:
                                mem.extend(tt)
                        else:
                            mem.append(SOp(lambda: g.e(f"v_and_b32 v{vt2}, 0x3c0, v{vL16}\nv_lshlrev_b32 v{vt2}, 1, v{vt2}\ns_mov_b32 s{t10}, s6")))
                            mem.extend(g.touch_ops([], t10, 4, vt2, vt3))
                    if fn == 160 and layer == 0:
                        mem.append(SOp(lambda: g.e(f"s_mul_i32 s64, s{sHP}, {96 * 1024}\ns_add_u32 s64, s64, {WQ}")))
                        wq = g.dma_ops(0, 24, 64, 65536, "wq", (62, 63))
                        cut = [i for i, o in enumerate(wq) if not isinstance(o, SOp)][cfg.wq_d - 1] + 1 if cfg.wq_d else 2
                        mem.extend(wq[:cut])
                        g.wq_rest = wq[cut:]
                    if fn < 224:
                        wread(fn)
                    m = ks * wdt + (n - a) + 1
                    if pi == 0:
                        g.take(side, cfg.st_cap)
                    else:
                        if cfg.d_cap:
                            g.take(side, 0 if m <= 2 else cfg.d_cap - (f % 4 == 3), exact=True)
                        else:
                            want = 0 if m <= 2 else min(-(-tot * m // nm) - done, 6)
                            g.take(side, want)
                            done += want
                    if mem and isinstance(mem[0], SOp):
                        mem.popleft()()
                    elif mem and f % 2 == 0:
                        mem.popleft()()
                    if f == cfg.d_sig:
                        assert g.vmq.count(("hst", cfg.ne - 1)) + g.waited.get(("hst", cfg.ne - 1), 0) == layer + 1
                        g.vwait(("hst", cfg.ne - 1))
                        g.signal(4, g.e_nst * layer + 1, True)
                    if cfg.d_sig < f <= cfg.d_sig + len(esetup):
                        g.e(esetup[f - cfg.d_sig - 1])
                    if f == cfg.d_pl:
                        g.flag_load("fd1")
                    if f == cfg.d_ck:
                        g.flag_check("fd1", g.e_nst * layer + 1)
                        g.stamp(f"D{layer}_chk")
                    if f >= cfg.d_ck:
                        for _ in range(cfg.d_nl):
                            if g.e_next < cfg.e_pre and g.e_next < f - 192 and (f - cfg.d_ck) % cfg.d_step == 0:
                                g.e_load()
                    f += 1
                    if f % 32 == 0:
                        g.stamp(f"D{layer}_{f}")
                    g.stamp(f"Dx{layer}:{f}.")
            g.take(side, 9999)
            if pi == 0:
                assert state["stats"]
                for n in range(a, b):
                    xmf(n, False)
            if pi + 1 < len(cfg.passes):
                for n in range(*cfg.passes[pi + 1]):
                    xmf(n, True)
            for n in range(a, b):
                side.extend(epi_ops(n))
        g.e("s_barrier")
        while mem:
            mem.popleft()()
        g.stamp(f"D{layer}st")
        return side

    E_HR, E_NR = 16, 32

    def e_plan(self, layer):
        NE = self.cfg.ne
        if self.cfg.e3:
            st = [[7 * f + n for f in range(4) for n in rng] for rng in (range(NE), range(NE, 6), range(6, 7))]
            order = [(1, 0), (0, 0), (1, 1), (1, 2), (0, 1), (0, 2)]
        else:
            st = [[7 * f + n for f in range(4) for n in rng] for rng in (range(NE), range(NE, 7))]
            order = [(1, 0), (0, 0), (1, 1), (0, 1)]
        self.e_seq = [(tk, i) for tk, s_ in order for i in st[s_]]
        self.e_stage = [s_ for tk, s_ in order for i in st[s_]]
        self.e_nst = len(st)
        self.e_next = 0
        self.e_base = None

    def e_setup(self, layer):
        return [f"v_and_b32 v{vt0}, 28, v{vL4}",
                f"s_lshr_b32 s{t2}, s{sTA}, 1\ns_lshl_b32 s{t2}, s{t2}, 2", f"s_add_u32 s{t2}, s{t2}, s{sW}\ns_lshl_b32 s{t2}, s{t2}, 7",
                f"s_add_u32 s{t2}, s{t2}, {FD}\ns_mul_i32 s{t5}, s{sW}, {28 * 1024}", f"s_add_u32 s{t5}, s{t5}, {aH(layer)}\ns_mul_i32 s{t3}, s{sTB}, {112 * 1024}",
                f"s_add_u32 s{t3}, s{t3}, s{t5}\ns_mul_i32 s{t4}, s{sTA}, {112 * 1024}", f"s_add_u32 s{t4}, s{t4}, s{t5}"]

    def e_load(self):
        g = self
        m = g.e_next
        tk, i = g.e_seq[m]
        key = (tk, i // 7, (i % 7) // 4)
        if g.e_base != key:
            g.e(f"s_add_u32 s{t5}, s{(t4, t3)[tk]}, {(i // 7) * 7168 + ((i % 7) // 4) * 4096}")
            g.e_base = key
        g.ld(vr(g.E_HR + 4 * (m % g.E_NR), 4), vL16, sWS, t5, ((i % 7) % 4) * 1024, mods=g.cfg.hlmods, tag=("h", m))
        g.e_next += 1

    def flag_load(self, tag):
        self.ld(vr(vt1), vt0, sWS, t2, 0, tag=tag, w=1)

    def flag_check(self, tag, val):
        g = self
        g.late_check(tag, f"buffer_load_dword v{vt1}, v{vt0}, {sr(sWS, 4)}, s{t2} offen sc1", f"v_cmp_gt_u32 vcc, {val}, v{vt1}", 0)
        g.dual("", "buffer_inv sc1\ns_waitcnt vmcnt(0)", 0)

    def phaseE(self, layer, final, side):
        g = self
        cfg = g.cfg
        HR, NR = g.E_HR, g.E_NR
        PB, Z = 144, 176
        AC = [240, 224, 208, 192]
        SC = 0
        seq, stage, nst = g.e_seq, g.e_stage, g.e_nst
        N = len(seq)
        seen = set()
        consumed = [0]

        def more(k=1):
            for _ in range(k):
                if g.e_next < N and g.e_next - NR < consumed[0] and stage[g.e_next] <= state["ok"]:
                    g.e_load()

        def mf(m, n):
            tk, i = seq[m]
            acc = vr(AC[2 * tk + n], 16)
            g.e(f"v_mfma_f32_32x32x16_bf16 {acc}, {ar(4 * (2 * i + n), 4)}, {vr(HR + 4 * (m % NR), 4)}, {acc if (tk, n) in seen else '0'}")
            seen.add((tk, n))
        state = {"ok": 0, "st": None}
        nB = max(m for m in range(N) if seq[m][0] == 1) + 1
        w3 = g.reduce_write(AC[3], 3, SC)
        w2 = g.reduce_write(AC[2], 2, SC)
        w1 = g.reduce_write(AC[1], 1, SC)
        for m in range(nB):
            assert g.e_next > m, m
            g.vwait(("h", m))
            for n in (1, 0):
                mf(m, n)
                g.take(side, 5 if state["st"] is None else 2, exact=True)
            consumed[0] = m + 1
            g.stamp(f"Ex{layer}:{m}.")
            if nst == 3:
                if m == cfg.e2_sig:
                    g.vwait(("hst", 5))
                    g.signal(4, 3 * layer + 2, True)
                if m == cfg.e2_pl:
                    g.flag_load("fd2")
                if m == cfg.e2_ck:
                    g.flag_check("fd2", 3 * layer + 2)
                    state["ok"] = 1
            if state["st"] is None:
                if not side:
                    state["st"] = m
                else:
                    more(2 if g.e_next - m < cfg.e_pre else 1)
            if state["st"] is not None:
                d = m - state["st"]
                if d == cfg.e_sig:
                    assert nst == 2 or m > cfg.e2_ck
                    g.vwait("hst")
                    g.signal(4, nst * layer + nst, True)
                    g.stamp(f"E{layer}_sig")
                if d == 0:
                    side.extend(g.reduce_pre_ops(layer, 1, SC, Z, final))
                if d == cfg.e_sig + cfg.e_pl:
                    g.flag_load("fd3")
                if d == cfg.e_sig + cfg.e_pl + cfg.e_ck:
                    g.flag_check("fd3", nst * layer + nst)
                    g.stamp(f"E{layer}_chk")
                    state["ok"] = nst - 1
                more(2 if g.e_next - m < cfg.up_e else 1)
        assert state["ok"] == nst - 1
        if cfg.e_single:
            PB = 128
            assert all(not 28 <= m % NR for m in range(nB, N))
            side.extend(w3[:2] + [None] * 2 + w3[2:] + w2)
        else:
            side.extend(w3[:2] + [None] * 2 + w3[2:] + w2 + [None] + g.reduce_read_ops((3, 2), PB, Z))
        tailq = deque(g.wq_rest if layer == 0 else [])
        if "E" in cfg.touch and not final:
            tq = [SOp(lambda: g.e(f"v_and_b32 v{vt1}, 0x3c0, v{vL16}\nv_lshlrev_b32 v{vt1}, 1, v{vt1}\ns_and_b32 s{t9}, s{t8}, 0xfffffc00"))]
            tailq.extendleft(reversed(tq + g.touch_ops([], t7, 1, vt1, vIdx) + g.touch_ops([], t9, 1, vt1, vIdx)))
        if final and cfg.wb:
            def wb():
                L = g.label("wb")
                g.e(f"s_lshl_b32 s{t5}, s{sC}, 2\ns_add_u32 s{t5}, s{t5}, s{sW}\ns_cmp_lt_u32 s{t5}, {cfg.wb}\ns_cbranch_scc0 {L}\nbuffer_wbl2 sc1\n{L}:")
            tailq.append(wb)
        nA, SK = N - nB, cfg.sk_e
        per = -(-len(side) // (nA + max(nA - SK, 0)))
        for i in range(nA + SK):
            if i < nA:
                g.vwait(("h", nB + i))
                mf(nB + i, 1)
                more()
                g.take(side, per)
            if g.e_next == N and tailq:
                while isinstance(tailq[0], SOp):
                    tailq.popleft()()
                tailq.popleft()()
            if i == nA:
                g.stamp(f"Ex{layer}:AB.")
                g.take(side, 999)
                rr = g.reduce_read_ops((3, 2, 1) if cfg.e_single else (1,), PB, Z, pk=cfg.e_pk)
                side.extend(w1[:2] + [None] * 3 + w1[2:] + rr)
                per = -(-(len(side) - (len(rr) // 2 if cfg.e_pk else 0)) // SK)
            if i >= SK:
                mf(nB + i - SK, 0)
                g.take(side, per)
        g.take(side, 999)
        while tailq:
            tailq.popleft()()
        g.reduce_finish(layer, 1, AC[0], Z, final)
        g.stamp(f"E{layer}st")
        if not final:
            g.vwait0()
            g.stamp(f"Z{layer}:Eack")
            g.signal(5, layer + 1, True)
            g.e("s_barrier")

    def build(self):
        g = self
        cfg = g.cfg
        g.prologue()
        done = False
        for layer in range(2):
            for ph in "ABCDE":
                mark = len(g.lines)
                g.lines.append(f"; ======== layer {layer}, phase {ph}: " + {
                    "A": "LayerNorm + QKV projection (LN applied as mean/rstd correction of the raw product)",
                    "B": "attention, one head x 256 queries per workgroup, keys split over the four waves",
                    "C": "output projection + residual, 64x64 tile, K split over the waves",
                    "D": "LayerNorm + W1/W3 + SwiGLU, 128 tokens x 112 features",
                    "E": "W2 + residual, 64x64 tile, K split over the waves"}[ph])
                if ph == "A":
                    g.phaseA1(layer) if layer else (g.phaseA0b() if cfg.a0b else g.phaseA0())
                elif ph == "B":
                    g.phaseB(layer)
                elif ph == "C":
                    g.phaseC(layer)
                elif ph == "D":
                    rest = g.phaseD(layer)
                else:
                    g.phaseE(layer, layer == 1, rest)
                if ph in cfg.hack16 and layer == 1:
                    import re
                    out, k, pend, cnt = [], 0, None, 0
                    for ln in g.lines[mark:]:
                        m = re.match(r"v_mfma_f32_32x32x16_bf16 v\[(\d+):\d+\], (\S+), (\S+), (\S+)$", ln)
                        brk = m or ln.endswith(":") or ln.startswith(("s_cbranch", "s_barrier", "s_waitcnt vm", "ds_write", "buffer_store"))
                        if pend and (brk or cnt >= cfg.hack_gap):
                            out.append(pend)
                            pend = None
                        if m:
                            b = int(m.group(1))
                            two = []
                            for h in range(2):
                                o = b + 4 * ((2 * k + h) % 4)
                                c = "0" if m.group(4) == "0" else f"v[{o}:{o + 3}]"
                                two.append(f"v_mfma_f32_16x16x32_bf16 v[{o}:{o + 3}], {m.group(2)}, {m.group(3)}, {c}")
                            out.append(two[0])
                            pend, cnt = two[1], 0
                            k += 1
                        else:
                            out.append(ln)
                            cnt += 1
                    if pend:
                        out.append(pend)
                    g.lines[mark:] = out
                if cfg.stop == f"{ph}{layer}":
                    done = True
                    break
            if done:
                break
        if cfg.ts:
            g.vwait0()
            g.stamp("end") if g.nts < 16 else None
            g.e(f"s_lshl_b32 s{t0}, s2, 2\ns_add_u32 s{t0}, s{t0}, s{sW}\ns_lshl_b32 s{t0}, s{t0}, 7\ns_add_u32 s{t0}, s{t0}, {TS}")
            g.e(f"v_mov_b32 v{vt0}, 0")
            for i in range(g.nts):
                g.e(f"v_writelane_b32 v{vt0}, s{sTS + i}, {i}")
            g.e(f"v_writelane_b32 v{vt0}, s{sMode}, 31")
            g.e("s_mov_b32 exec_hi, 0")
            g.st(vr(vt0), vL4, sWS, t0, 0, w=1)
            if cfg.ts_dbg is not None:
                g.e(f"s_cmp_eq_u32 s2, {cfg.ts_dbg}\ns_cbranch_scc0 L_exit\ns_cmp_eq_u32 s{sW}, 0\ns_cbranch_scc0 L_exit")
                g.e(f"v_subrev_u32 v{vt0}, s{sTS}, v{vt0}")
                g.st(vr(vt0), vL4, sDBG, None, 0, w=1)
        g.e("L_exit:\ns_endpgm")
        for t in g.tail:
            g.e(t)
        g.e("L_end:")
        lines, rep = fix_hazards(g.lines)
        return lines, rep


HEADER = """; Fused two-layer transformer block (LN+QKV, attention, WO, LN+W1/W3+SwiGLU, W2) as one persistent launch.
; Written with a hand-made generator script.  256 workgroups (one per CU) x 4 waves x 512 registers.
; Workgroups with equal id%8 own 256 token rows; phases hand data over through d_ws with per-wave flags that are
; cleared at the start of every launch (d_debug tells when).  Hand-offs inside a row group go through the shared L2
; @launch grid=(256,1,1) block=(256,1,1) lds=163840
.amdgcn_target "amdgcn-amd-amdhsa--gfx950"
.text
.globl {name}_kernel
.p2align 8
.type {name}_kernel,@function
{name}_kernel:
"""
FOOTER = """
.section .rodata,"a"
.p2align 6
.amdhsa_kernel {name}_kernel
  .amdhsa_next_free_vgpr 512
  .amdhsa_next_free_sgpr 102
  .amdhsa_accum_offset 256
  .amdhsa_group_segment_fixed_size 0
  .amdhsa_kernarg_size 80
  .amdhsa_user_sgpr_count 2
  .amdhsa_user_sgpr_kernarg_segment_ptr 1
  .amdhsa_system_sgpr_workgroup_id_x 1
  .amdhsa_float_denorm_mode_32 3
.end_amdhsa_kernel
"""


def generate(path, **kw):
    cfg = Cfg()
    for k, v in kw.items():
        setattr(cfg, k, v)
    set_alias(cfg.alias)
    g = Gen(cfg)
    lines, rep = g.build()
    txt = HEADER.format(name=NAME) + "\n".join(("" if l.endswith(":") else "  ") + l for l in lines) + FOOTER.format(name=NAME)
    open(path, "w").write(txt)
    return g, rep


if __name__ == "__main__":
    import argparse
    ap = argparse.ArgumentParser()
    ap.add_argument("-o", default=f"cdna_kernels/{NAME}.s")
    ap.add_argument("--stop")
    ap.add_argument("--ts", action="store_true")
    ap.add_argument("--slow", action="store_true")
    ap.add_argument("-v", action="store_true")
    a = ap.parse_args()
    g, rep = generate(a.o, stop=a.stop, ts=a.ts, force_slow=a.slow)
    print("lines", len(g.lines), "nops inserted", len(rep), "stamps", g.tsnames)
    if a.v:
        for r in rep:
            print(r)
```

```python
import os
import sys
from collections import deque

sys.path.insert(0, os.path.dirname(os.path.abspath(__file__)))
from asmlib import Asm, R, ar, fix_hazards, sr, vr

NAME = "interleave_layers__mha_block__glu_gated_swiglu__prompt"

FA_L, FB, FD, FC, FE, FA_G, FR, FX = 0x0000, 0x4000, 0x8000, 0xC000, 0xE000, 0x10000, 0x14000, 0x16000
TS = 0x80000
ST = 0x100000
WQ, WO, W13, W2 = 0x200000, 0x380000, 0x400000, 0x780000
WX13, WXQ, WXD = 0x940000, 0x960000, 0x970000
LB0, LBS = 0xA00000, 0x1400000
oQ, oKV, oO, oX1, oX2, oH = 0x0, 0x200000, 0x600000, 0x800000, 0xA00000, 0xC00000
WS_BYTES = 0x10000000
ALIAS = True


def set_alias(v):
    global ALIAS
    ALIAS = v


def aQ(l):
    return 0xA00000 if ALIAS else LB0 + l * LBS + oQ


def aO(l):
    return 0xA00000 if ALIAS else LB0 + l * LBS + oO


def aX(l, which):
    return 0xC00000 if ALIAS else LB0 + l * LBS + (oX1, oX2)[which]


def aH(l):
    return 0xE00000 if ALIAS else LB0 + l * LBS + oH


def aKV(l):
    return 0x1600000 + l * 0x400000 if ALIAS else LB0 + l * LBS + oKV


def aST(l, which):
    return ST if ALIAS else ST + (2 * l + which) * 0x40000

sWS, sXIN, sOUT, sDBG, sWQ, sRA, sRB = 8, 12, 16, 20, 24, 28, 32
sX, sC, sW, sT, sHP, sTA, sTB, sNA, sCB, sMode, sTO, sMask = range(36, 48)
t0, t1, t2, t3, t4, t5, t6, t7, t8, t9, t10, t11 = range(48, 60)
sVM = 60
pX, pWQ, pWO, pBX, pW1, pW3, pW2, pOUT, pDBG, pWS = range(64, 84, 2)
sTS = 84
sSN2 = 100
vL16, vL4, vIdx, vFl = 0, 1, 2, 3
vt0, vt1, vt2, vt3 = 4, 5, 6, 7
vRes = 8
WB = 224

LOG2E = 1.4426950408889634
TIMEOUT = 0x200000


def f2u(x):
    import struct
    return struct.unpack("<I", struct.pack("<f", x))[0]


class SOp:
    def __init__(self, fn):
        self.fn = fn

    def __call__(self):
        self.fn()


class Cfg:
    passes = [(0, 4), (4, 6), (6, 7)]
    stop = None
    ts = False
    ts_skip = ('start', 'C1st', 'E1st', 'A1st', 'C0st')
    ts_only = None
    force_slow = False
    force_fallback = False
    pf_w13 = (0, 0)
    bg_end = 108
    b_tail = True
    gp = (4, 4)
    a0b = False
    a0_up = 3
    ax_e = 0
    tlb = None
    tlb_out = 0
    mf4_late = True
    a0_take = 2
    st_take = 0
    guard_late = True
    zero16 = True
    one_row = False
    ct_b = ((10, 1024, 8), (110, 512, 8))
    ct_d = (78, 4096, 4, (0, 1))
    hmods = ('', '')
    hlmods = 'sc1'
    poll2 = 0
    hack16 = ''
    hack_gap = 2
    b_opt = 3
    wb = 0
    keep = None
    b_align = 0
    q_up = 4
    v_split = False
    bg_ac = True
    ne = 4
    e3 = False
    e2_sig = 2
    e2_pl = 7
    e2_ck = 11
    d_step = 1
    d_sig = 196
    d_pl = 206
    d_ck = 214
    d_nl = 1
    e_pre = 10
    e_sig = 6
    e_pl = 5
    e_ck = 5
    spin = None
    ws_off = 0
    kvpf = (None, None)
    warm_w = 9
    rl_in_b = False
    rl_in_a = True
    rl_ack = 7
    g_sleep = 2
    rl_split = False
    rs_dma = 14
    rs_out = 28
    spare = (0, 6, 7, 16, 22, 23)
    b0_sleep = 0
    b0_g = True
    kv_touch = False
    g2_late = False
    xcc_early = False
    rl_c0 = 1
    rl_c1 = 4
    setup_first = True
    rl_ld = 16
    cold_touch = 0
    ct0 = 24
    x2_d = True
    bar_c = 76
    d_cap = 5
    alias = True
    touch = 'BHEA'
    d_touch = (None, 80)
    h_in_b = (True, False)
    d_t1 = 1
    tb0 = 97
    kvmods = 'sc1'
    ts_dbg = None
    hpx = 0
    wmods = 'sc1'
    early_c = False
    warm = 5
    dbg = ''
    rot = 's_lshr_b32 s{t1}, s{sHP}, 1'
    rl_sleep = 16
    lag_a = 12
    lag_end = True
    x2_a = 8
    st_a = 12
    st_d = 6
    c_pre = True
    c_pk = True
    e_single = False
    e_pk = True
    ax_first = 0
    st_cap = 2
    st_pad = 16
    wq_d = 12
    cpf = 2
    cpf_lg = 13
    ct_lg = 11
    defer = None
    sk_e = 8
    out_mods = ''
    rl0 = 9
    rl_lat = 7
    rl_gap = 20
    up_a = 8
    up_d = 6
    up_e = 10
    up_c = 10
    ew_in_b = 56


class Gen(Asm):
    def __init__(self, cfg):
        super().__init__()
        self.cfg = cfg
        self.nts = 0
        self.m0_owner = None
        self.tsnames = []

    def srd(self, s, ptr, size):
        self.e(f"s_mov_b32 s{s}, s{ptr}\ns_mov_b32 s{s + 1}, s{ptr + 1}\ns_mov_b32 s{s + 2}, {size}\ns_mov_b32 s{s + 3}, 0x20000")

    def ld(self, dst, voff, srd, soff, imm=0, mods="sc1", tag=None, w=4):
        op = {1: "dword", 2: "dwordx2", 4: "dwordx4"}[w]
        so = f"s{soff}" if soff is not None else "0"
        o = f" offset:{imm}" if imm else ""
        self.vm(f"buffer_load_{op} {dst}, v{voff}, {sr(srd, 4)}, {so} offen{o} {mods}".rstrip(), tag)

    def st_text(self, src, voff, srd, soff, imm=0, mods="", w=4):
        op = {1: "dword", 2: "dwordx2", 4: "dwordx4"}[w]
        so = f"s{soff}" if soff is not None else "0"
        o = f" offset:{imm}" if imm else ""
        return f"buffer_store_{op} {src}, v{voff}, {sr(srd, 4)}, {so} offen{o} {mods}".rstrip()

    def st(self, src, voff, srd, soff, imm=0, mods="", tag=None, w=4):
        self.vm(self.st_text(src, voff, srd, soff, imm, mods, w), tag)

    def dma(self, voff, srd, soff, imm=0, mods="sc1", tag=None):
        so = f"s{soff}" if soff is not None else "0"
        o = f" offset:{imm}" if imm else ""
        m = (mods + " lds").strip()
        self.vm(f"buffer_load_dwordx4 v{voff}, {sr(srd, 4)}, {so} offen{o} {m}", tag)

    def stamp(self, name):
        if self.cfg.spin:
            if name == "entry":
                self.e("s_memrealtime s[98:99]\ns_waitcnt lgkmcnt(0)")
            if name == self.cfg.spin[0]:
                L = self.label("spin")
                if len(self.cfg.spin) > 2:
                    self.e(self.cfg.spin[2])
                self.e(f"{L}:\ns_memrealtime s[4:5]\ns_waitcnt lgkmcnt(0)\ns_sub_u32 s4, s4, s98\ns_cmp_lt_u32 s4, {self.cfg.spin[1]}\ns_cbranch_scc1 {L}")
                self.lq = []
        if not self.cfg.ts:
            return
        if self.cfg.ts_only:
            if not name.startswith(self.cfg.ts_only):
                return
        elif name in self.cfg.ts_skip or "_" in name or ":" in name:
            return
        if self.nts >= 16:
            return
        self.e(f"{'s_memtime' if self.cfg.ts == 'cyc' else 's_memrealtime'} s[4:5]\ns_waitcnt lgkmcnt(0)\ns_mov_b32 s{sTS + self.nts}, s4")
        self.lq = []
        self.tsnames.append(name)
        self.nts += 1

    def dual(self, fast, slow, nvm):
        ls, lj = self.label("slow"), self.label("join")
        self.e(f"s_cmp_lg_u32 s{sMode}, 0\ns_cbranch_scc1 {ls}")
        self.e(fast)
        self.e(f"{lj}:")
        self.tail.append(f"{ls}:\n{slow}\ns_branch {lj}")
        self.vmq += [None] * nvm

    def signal(self, ftype, val, local):
        if "q" in self.cfg.dbg and ftype in (2, 3, 5):
            return
        self.e(f"v_mov_b32 v{vt1}, {val}")
        st = f"s_mov_b64 exec, {1 << ftype}\nbuffer_store_dword v{vt1}, v{vFl}, {sr(sWS, 4)}, 0 offen%s\ns_mov_b64 exec, -1"
        if local:
            self.dual(st % "", "buffer_wbl2 sc1\ns_waitcnt vmcnt(0)\n" + st % " sc1", 1)
        else:
            self.e(st % " sc1")
            self.vmq.append(None)

    def poll(self, voff, soff, val, local, sleep=0):
        if "p" in self.cfg.dbg and local:
            return
        L = self.label("poll")
        ld = f"buffer_load_dword v%d, v{voff}, {sr(sWS, 4)}, s{soff} offen sc1"
        if self.cfg.poll2 and not sleep:
            Ld = self.label("polld")
            self.e(f"s_mov_b32 s{sTO}, {TIMEOUT}")
            self.e(ld % vt1)
            self.e(f"s_nop {self.cfg.poll2}\n{L}:")
            self.e(ld % vIdx)
            self.e(f"s_sub_u32 s{sTO}, s{sTO}, 1\ns_cbranch_scc1 L_exit\ns_waitcnt vmcnt(1)")
            self.e(f"v_cmp_gt_u32 vcc, {val}, v{vt1}\ns_nop 0\ns_cbranch_vccz {Ld}")
            self.e(ld % vt1)
            self.e("s_waitcnt vmcnt(1)")
            self.e(f"v_cmp_gt_u32 vcc, {val}, v{vIdx}\ns_nop 0\ns_cbranch_vccnz {L}\n{Ld}:")
            for t in self.vmq:
                self.waited[t] = self.waited.get(t, 0) + 1
            self.vmq = [None]
        else:
            self.e(f"s_mov_b32 s{sTO}, {TIMEOUT}\n{L}:")
            self.e(ld % vt1)
            self.e(f"s_sub_u32 s{sTO}, s{sTO}, 1\ns_cbranch_scc1 L_exit")
            if sleep:
                self.e(f"s_sleep {sleep}")
            self.vwait0()
            self.e(f"v_cmp_gt_u32 vcc, {val}, v{vt1}\ns_nop 0\ns_cbranch_vccnz {L}")
        if local:
            self.dual("", "buffer_inv sc1\ns_waitcnt vmcnt(0)", 0)

    def salu(self, text):
        self.e(text)

    def prologue(self):
        g = self
        g.e("s_cmp_ge_u32 s2, 256\ns_cbranch_scc1 L_exit")
        g.stamp("entry")
        g.e("s_load_dwordx16 s[64:79], s[0:1], 0\ns_load_dwordx4 s[80:83], s[0:1], 64")
        g.e(f"v_lshrrev_b32 v{vt0}, 6, v0\nv_and_b32 v{vt1}, 63, v0")
        g.e(f"v_readfirstlane_b32 s{sW}, v{vt0}")
        g.e(f"v_lshlrev_b32 v{vL4}, 2, v{vt1}\nv_lshlrev_b32 v{vL16}, 4, v{vt1}")
        g.e(f"""
        s_and_b32 s{sX}, s2, 7
        s_lshr_b32 s{sC}, s2, 3
        s_and_b32 s{sHP}, s{sC}, 15
        s_xor_b32 s{sHP}, s{sHP}, {g.cfg.hpx}
        s_lshr_b32 s{t0}, s{sC}, 4
        s_lshl_b32 s{t0}, s{t0}, 2
        s_add_u32 s{t0}, s{t0}, s{sW}
        s_lshl_b32 s{t1}, s{sX}, 3
        s_add_u32 s{sT}, s{t1}, s{t0}
        """)
        if g.cfg.cpf == 2:
            g.code_prefetch()

    def prologue2(self):
        g = self
        g.e(f"""
        s_and_b32 s{sCB}, s{sC}, 7
        s_lshr_b32 s{t2}, s{sC}, 3
        s_lshl_b32 s{t2}, s{t2}, 1
        s_lshl_b32 s{t3}, s{sX}, 3
        s_add_u32 s{t2}, s{t2}, s{t3}
        s_lshr_b32 s{t3}, s{sW}, 1
        s_add_u32 s{sTA}, s{t2}, s{t3}
        s_xor_b32 s{sTB}, s{sTA}, 1
        s_and_b32 s{sNA}, s{sW}, 1
        s_mov_b32 s{sMask}, 0xffff0000
        s_mov_b32 s{sVM}, 0x0000ffff
        s_mov_b32 s{sVM + 1}, 0x0000ffff
        s_mov_b32 s{sMode}, 1
        s_and_b32 s{t2}, s{sT}, 7
        """)
        g.e(f"v_mov_b32 v{vFl}, 0")
        g.e(f"""
        s_lshl_b32 s{t4}, s{sX}, 4
        s_add_u32 s{t4}, s{t4}, s{sHP}
        s_lshl_b32 s{t4}, s{t4}, 7
        s_lshl_b32 s{t5}, s{t2}, 2
        s_add_u32 s{t4}, s{t4}, s{t5}
        s_add_u32 s{t4}, s{t4}, {FA_L}
        v_writelane_b32 v{vFl}, s{t4}, 0
        s_lshl_b32 s{t4}, s{sHP}, 3
        s_add_u32 s{t4}, s{t4}, s{sX}
        s_lshl_b32 s{t4}, s{t4}, 7
        s_add_u32 s{t4}, s{t4}, s{t5}
        s_add_u32 s{t4}, s{t4}, {FA_G}
        v_writelane_b32 v{vFl}, s{t4}, 1
        s_lshl_b32 s{t4}, s{sX}, 2
        s_add_u32 s{t4}, s{t4}, s{sW}
        s_lshl_b32 s{t4}, s{t4}, 2
        s_lshr_b32 s{t5}, s{sC}, 3
        s_add_u32 s{t4}, s{t4}, s{t5}
        s_lshl_b32 s{t4}, s{t4}, 7
        s_lshl_b32 s{t5}, s{sCB}, 2
        s_add_u32 s{t4}, s{t4}, s{t5}
        s_add_u32 s{t4}, s{t4}, {FB}
        v_writelane_b32 v{vFl}, s{t4}, 2
        s_lshl_b32 s{t4}, s{sTA}, 7
        s_lshl_b32 s{t5}, s{sCB}, 1
        s_add_u32 s{t5}, s{t5}, s{sNA}
        s_lshl_b32 s{t5}, s{t5}, 2
        s_add_u32 s{t4}, s{t4}, s{t5}
        s_add_u32 s{t5}, s{t4}, {FC}
        v_writelane_b32 v{vFl}, s{t5}, 3
        s_add_u32 s{t5}, s{t4}, {FE}
        v_writelane_b32 v{vFl}, s{t5}, 5
        s_lshr_b32 s{t4}, s{sT}, 1
        s_lshl_b32 s{t4}, s{t4}, 2
        s_lshr_b32 s{t5}, s{sHP}, 2
        s_add_u32 s{t4}, s{t4}, s{t5}
        s_lshl_b32 s{t4}, s{t4}, 7
        s_and_b32 s{t5}, s{sT}, 1
        s_lshl_b32 s{t5}, s{t5}, 2
        s_and_b32 s{t7}, s{sHP}, 3
        s_add_u32 s{t5}, s{t5}, s{t7}
        s_lshl_b32 s{t5}, s{t5}, 2
        s_add_u32 s{t4}, s{t4}, s{t5}
        s_add_u32 s{t4}, s{t4}, {FD}
        v_writelane_b32 v{vFl}, s{t4}, 4
        s_lshr_b32 s{t4}, s2, 2
        s_lshl_b32 s{t4}, s{t4}, 7
        s_and_b32 s{t5}, s2, 3
        s_lshl_b32 s{t5}, s{t5}, 2
        s_add_u32 s{t4}, s{t4}, s{t5}
        s_add_u32 s{t4}, s{t4}, {FR}
        v_writelane_b32 v{vFl}, s{t4}, 6
        s_lshl_b32 s{t4}, s{sX}, 5
        s_add_u32 s{t4}, s{t4}, s{sC}
        s_lshl_b32 s{t4}, s{t4}, 2
        s_add_u32 s{t4}, s{t4}, {FX}
        v_writelane_b32 v{vFl}, s{t4}, 7
        """)

    def zero_flags(self):
        g = self
        L = g.label("zf")
        g.e(f"s_cmp_lt_u32 s2, 8\ns_cbranch_scc0 {L}")
        g.e("v_mov_b32 v248, 0\nv_mov_b32 v249, 0\nv_mov_b32 v250, 0\nv_mov_b32 v251, 0")
        g.e(f"s_lshl_b32 s{t2}, s2, 2\ns_add_u32 s{t2}, s{t2}, s{sW}\ns_mul_i32 s{t2}, s{t2}, 3072")
        for i in range(3):
            g.e(g.st_text(vr(248, 4), vL16, sWS, t2, 1024 * i, "sc1"))
        g.e(f"{L}:")

    def code_prefetch(self):
        g = self
        k = g.cfg.cpf_lg
        g.e(f"""
        s_getpc_b64 s[4:5]
        L_pc:
        s_lshl_b32 s{t8}, s{sC}, 2
        s_add_u32 s{t8}, s{t8}, s{sW}
        s_and_b32 s{t8}, s{t8}, {(1 << (17 - k)) - 1}
        s_lshl_b32 s{t8}, s{t8}, {k}
        v_lshrrev_b32 v{vt2}, {17 - k}, v{vL16}
        v_lshl_add_u32 v{vt2}, v{vt2}, 7, s{t8}
        v_min_u32 v{vt2}, L_end-L_pc-4, v{vt2}
        """)
        g.vm(f"global_load_dword v255, v{vt2}, s[4:5]", "cpf")

    def code_touch(self, skip, nblk, va, vd):
        g = self
        L = g.label("pc")
        k = g.cfg.ct_lg
        g.e(f"""
        s_getpc_b64 s[4:5]
        {L}:
        s_lshl_b32 s{sTO}, s{sC}, 2
        s_add_u32 s{sTO}, s{sTO}, s{sW}
        s_and_b32 s{sTO}, s{sTO}, {(nblk << (11 - k)) - 1}
        s_lshl_b32 s{sTO}, s{sTO}, {k}
        s_add_u32 s{sTO}, s{sTO}, {skip}
        v_lshrrev_b32 v{va}, {17 - k}, v{vL16}
        v_lshl_add_u32 v{va}, v{va}, 7, s{sTO}
        v_min_u32 v{va}, L_end-{L}-4, v{va}
        """)
        g.vm(f"global_load_dword v{vd}, v{va}, s[4:5]", "pf")

    def handshake_send(self):
        g = self
        L = g.label("hs")
        g.e(f"s_cmp_lt_u32 s2, 8\ns_cbranch_scc0 {L}")
        g.e(f"s_lshl_b32 s{t9}, s2, 2\ns_add_u32 s{t9}, s{t9}, s{sW}\ns_lshl_b32 s{t9}, s{t9}, 2")
        g.e(f"v_mov_b32 v{vt1}, 1\nv_mov_b32 v{vt2}, s{t9}\ns_mov_b64 exec, 1")
        g.e(f"buffer_store_dword v{vt1}, v{vt2}, {sr(sDBG, 4)}, 0 offen sc1\ns_mov_b64 exec, -1\n{L}:")

    def late_check(self, tag, ld_text, chk, sleep):
        g = self
        ls, lj, lp = g.label("lslow"), g.label("ljoin"), g.label("lp")
        g.vwait(tag)
        g.e(chk + f"\ns_nop 0\ns_cbranch_vccnz {ls}\n{lj}:")
        g.tail.append(f"""{ls}:
        s_mov_b32 s{sTO}, {TIMEOUT}
        {lp}:
        {"s_sleep " + str(sleep) if sleep else ""}
        {ld_text}
        s_sub_u32 s{sTO}, s{sTO}, 1
        s_cbranch_scc1 L_exit
        s_waitcnt vmcnt(0)
        {chk}
        s_nop 0
        s_cbranch_vccnz {lp}
        s_branch {lj}""")

    def handshake_load(self):
        self.e(f"v_and_b32 v254, 0x7c, v{vL4}")
        self.ld(vr(vt1), 254, sDBG, None, 0, tag="hs", w=1)

    def handshake_check(self):
        self.late_check("hs", f"v_and_b32 v254, 0x7c, v{vL4}\nbuffer_load_dword v{vt1}, v254, {sr(sDBG, 4)}, 0 offen sc1",
                        f"v_cmp_eq_u32 vcc, 0, v{vt1}", 8)

    def xcc_send(self):
        g = self
        L = g.label("xs")
        g.e(f"s_cmp_eq_u32 s{sW}, 0\ns_cbranch_scc0 {L}")
        g.e(f"s_getreg_b32 s{t11}, hwreg(HW_REG_XCC_ID, 0, 4)\ns_or_b32 s{t11}, s{t11}, 0x80\nv_mov_b32 v{vt1}, s{t11}")
        g.e(f"s_mov_b64 exec, 0x80\nbuffer_store_dword v{vt1}, v{vFl}, {sr(sWS, 4)}, 0 offen sc1\ns_mov_b64 exec, -1\n{L}:")

    def xcc_load(self, vd=vt2, va=vt3, st=t7):
        g = self
        g.e(f"v_and_b32 v{va}, 0x7c, v{vL4}\ns_lshl_b32 s{st}, s{sX}, 7\ns_add_u32 s{st}, s{st}, {FX}")
        g.ld(vr(vd), va, sWS, st, 0, tag="xcc", w=1)

    def xcc_check(self, vd=vt2, va=vt3, st=t7):
        g = self
        g.late_check("xcc", f"s_lshl_b32 s{st}, s{sX}, 7\ns_add_u32 s{st}, s{st}, {FX}\nbuffer_load_dword v{vd}, v{va}, {sr(sWS, 4)}, s{st} offen sc1",
                     f"v_cmp_eq_u32 vcc, 0, v{vd}", 8)
        g.e(f"""
        v_readfirstlane_b32 s{st}, v{vd}
        s_nop 1
        v_cmp_ne_u32 vcc, s{st}, v{vd}
        s_nop 1
        s_cmp_lg_u64 vcc, 0
        s_cselect_b32 s{sMode}, 1, 0
        """)
        if g.cfg.force_slow:
            g.e(f"s_mov_b32 s{sMode}, 1")

    def stats_tail(self, s1, s2, rs, cden, BX):
        def rnd(r):
            return [f"v_cvt_pk_bf16_f32 v{r}, v{r}, v{r}", f"v_lshlrev_b32 v{r}, 16, v{r}"]
        return [
            f"v_mul_f32 v{s1}, {f2u(-1 / 512):#x}, v{s1}",
            f"v_mul_f32 v{s2}, {f2u(1 / 512):#x}, v{s2}",
            f"v_fma_f32 v{s2}, -v{s1}, v{s1}, v{s2}",
            f"v_max_f32 v{s2}, 0, v{s2}"] + rnd(s2) + [
            f"v_add_f32 v{s2}, {f2u(1e-5):#x}, v{s2}"] + rnd(s2) + [
            f"v_sqrt_f32 v{s2}, v{s2}",
            f"v_cvt_pk_bf16_f32 v{BX}, v{s1}, v{s1}"] + rnd(s2) + [
            f"v_rcp_f32 v{rs}, v{s2}",
            f"v_mul_f32 v{cden}, v{s2}, v{s2}",
            f"v_mov_b32 v{BX + 1}, v{BX}",
            f"v_mov_b32 v{BX + 2}, v{BX}",
            f"v_mov_b32 v{BX + 3}, v{BX}",
        ]

    def stats_ops(self, SB, rs, cden, BX):
        ops = [("v", "stat")]
        n = 16
        while n > 1:
            n //= 2
            for i in range(n):
                ops.append(f"v_add_f32 v{SB + i}, v{SB + i}, v{SB + n + i}")
        ops += [f"v_mov_b32 v{SB + 1}, v{SB}", "s_nop 1", f"v_permlane32_swap_b32 v{SB}, v{SB + 1}"]
        return ops + self.stats_tail(SB, SB + 1, rs, cden, BX)

    def take(self, side, n, exact=False):
        while n > 0 and side:
            o = side.popleft()
            if o is None:
                n -= 1
            elif isinstance(o, tuple):
                (self.vwait if o[0] == "v" else self.lwait)(o[1])
            elif callable(o):
                o()
                n -= 1
            else:
                c = 2 if o.startswith(("v_exp", "v_rcp", "v_rsq", "v_sqrt")) else 1
                if exact and c > n:
                    side.appendleft(o)
                    break
                self.e(o)
                n -= c

    def load_x_stats(self, layer, which, xoff, X, SB, up):
        g = self
        g.e(f"s_lshl_b32 s{t0}, s{sT}, 12\ns_add_u32 s{t0}, s{t0}, {aST(layer, which)}")
        g.e(f"s_lshl_b32 s{t1}, s{sT}, 15\ns_add_u32 s{t1}, s{t1}, {xoff}")

        def pre():
            for ks in range(up):
                ldx(ks)

        def ldx(ks):
            if ks and ks % 4 == 0:
                g.e(f"s_add_u32 s{t1}, s{t1}, 4096")
            g.ld(vr(X + 4 * ks, 4), vL16, sWS, t1, (ks % 4) * 1024, tag=("x", ks))
        return (pre, [lambda ks=ks: ldx(ks) for ks in range(up, 32)],
                [lambda q=q: g.ld(vr(SB + 4 * q, 4), vL16, sWS, t0, q * 1024, tag="stat") for q in range(4)])

    def l2_prefetch(self, sbase, nbytes, vtmp):
        g = self
        ops = [lambda: g.e(f"v_and_b32 v{vtmp}, 0x3c0, v{vL16}\nv_lshlrev_b32 v{vtmp}, 1, v{vtmp}")]
        assert nbytes % 2048 == 0
        for i in range(nbytes // 2048):
            def op(i=i):
                if i and i % 2 == 0:
                    g.e(f"s_add_u32 s{sbase}, s{sbase}, 4096")
                g.ld(vr(vtmp + 1), vtmp, sWS, sbase, (i % 2) * 2048, mods="sc1", tag="pf", w=1)
            ops.append(op)
        return ops

    def touch_ops(self, salu, sreg, n, vadr, vdst):
        g = self
        ops = [lambda t=t: g.e(t) for t in salu]
        for i in range(n):
            def op(i=i):
                if i and i % 2 == 0:
                    g.e(f"s_add_u32 s{sreg}, s{sreg}, 4096")
                g.ld(vr(vdst), vadr, sWS, sreg, (i % 2) * 2048, mods="sc1", tag="pf", w=1)
            ops.append(op)
        return ops

    def h_addr(self, layer, a, b):
        return [f"s_mul_i32 s{a}, s{sT}, {112 * 1024}\ns_mul_i32 s{b}, s{sHP}, 7168", f"s_add_u32 s{a}, s{a}, s{b}\ns_add_u32 s{a}, s{a}, {aH(layer)}"]

    def x_addr(self, layer, which, a, b):
        x = [f"s_lshl_b32 s{a}, s{sTA}, 4\ns_lshl_b32 s{b}, s{sCB}, 1", f"s_add_u32 s{a}, s{a}, s{b}\ns_add_u32 s{a}, s{a}, s{sNA}",
             f"s_lshl_b32 s{a}, s{a}, 11\ns_add_u32 s{a}, s{a}, {aX(layer, which)}"]
        st = [f"s_lshl_b32 s{a}, s{sTA}, 2\ns_lshr_b32 s{b}, s{sCB}, 1", f"s_add_u32 s{a}, s{a}, s{b}\ns_lshl_b32 s{a}, s{a}, 10",
              f"s_add_u32 s{a}, s{a}, {aST(layer, which)}"]
        return x, st

    def dma_ops(self, first, count, gsoff_expr, lds_base, tag, ts):
        g = self
        a, b = ts
        ops = []
        uid = g.label("dma")

        def setup():
            g.e(f"s_mul_i32 s{a}, s{sW}, {count * 1024}")
            g.e(f"s_add_u32 s{b}, s{a}, s{gsoff_expr}")
        ops.append(SOp(setup))

        def setup2():
            g.e(f"s_add_u32 s{b}, s{b}, {first * 1024}\ns_add_u32 s{a}, s{a}, {lds_base}")
        ops.append(SOp(setup2))
        for i in range(count):
            if i % 4 == 0 and i:
                ops.append(SOp(lambda: g.e(f"s_add_u32 s{a}, s{a}, 4096\ns_add_u32 s{b}, s{b}, 4096")))

            def op(i=i):
                if g.m0_owner != (uid, i // 4):
                    g.e(f"s_mov_b32 m0, s{a}\ns_nop 0")
                    g.m0_owner = (uid, i // 4)
                g.dma(vL16, sWS, b, (i % 4) * 1024, mods=g.cfg.wmods, tag=tag)
            ops.append(op)
        return ops

    @property
    def D_AX(self):
        return [208, 212, 216, 220, 224, 244, 252] if self.cfg.passes[0] == (0, 4) else [208, 212, 216, 224, 228, 232, 236]

    @property
    def D_AXPRE(self):
        return (0, 1, 2, 6) if self.cfg.passes[0] == (0, 4) else (0, 1, 2)

    A_X, A_ACC = 16, {"q": 144, "k": 160, "v": 176}
    A_P, A_AX = 208, {"k": 208, "v": 212, "q": 232}
    A_RS, A_CD, A_KA, A_VA, A_BX, A_QM, A_RC = 240, 241, 242, 243, 220, 252, 192

    def a_addr(self, layer):
        g = self
        vK, vV = g.A_KA, g.A_VA
        g.e(f"""
        v_lshrrev_b32 v{vt0}, 4, v{vL16}
        v_and_b32 v{vt2}, 0x33, v{vt0}
        v_bfe_u32 v{vt3}, v{vt0}, 2, 1
        v_lshl_add_u32 v{vt2}, v{vt3}, 3, v{vt2}
        v_bfe_u32 v{vt3}, v{vt0}, 3, 1
        v_lshl_add_u32 v{vt2}, v{vt3}, 2, v{vt2}
        v_lshlrev_b32 v{vK}, 4, v{vt2}
        v_bfe_u32 v{vt2}, v{vt0}, 4, 1
        v_lshlrev_b32 v{vV}, 17, v{vt2}
        v_lshrrev_b32 v{vt2}, 5, v{vt0}
        v_lshl_add_u32 v{vV}, v{vt2}, 8, v{vV}
        v_and_b32 v{vt2}, 15, v{vt0}
        v_lshl_add_u32 v{vV}, v{vt2}, 4, v{vV}
        """)

    def a_saddr(self, layer, hp=sHP, tt=sT):
        return [
            f"s_lshl_b32 s{t11}, s{hp}, 7", f"s_add_u32 s{t11}, s{t11}, s{tt}",
            f"s_lshl_b32 s{t7}, s{t11}, 11", f"s_add_u32 s{t7}, s{t7}, {aKV(layer)}", f"s_add_u32 s{t8}, s{t7}, 0x20000",
            f"s_lshl_b32 s{t9}, s{tt}, 4", f"s_add_u32 s{t9}, s{t9}, s{hp}", f"s_lshl_b32 s{t9}, s{t9}, 11",
            f"s_add_u32 s{t9}, s{t9}, {aQ(layer)}"]

    def a_rc_ops(self, sarea):
        g = self
        RC = g.A_RC
        ops = [f"v_and_b32 v{vt0}, 0x7c, v{vL4}", f"v_add_u32 v{vt0}, s{sarea}, v{vt0}",
               lambda: g.ds(f"ds_write_b32 v{vt0}, v{g.A_RS}", "rcw"),
               f"v_lshrrev_b32 v{vt0}, 9, v{vL16}", f"v_lshlrev_b32 v{vt0}, 4, v{vt0}", f"v_add_u32 v{vt0}, s{sarea}, v{vt0}",
               f"v_mul_f32 v{g.A_QM}, {f2u(0.25 * LOG2E):#x}, v{g.A_RS}"]
        for j in range(4):
            ops.append(lambda j=j: g.ds(f"ds_read_b128 {vr(RC + 4 * j, 4)}, v{vt0} offset:{32 * j}", "rc"))
        return ops

    def a_epi(self, n, qmods=''):
        g = self
        A = g.A_ACC[n]
        P = g.A_P + {"k": 0, "v": 8, "q": 16}[n]
        ops = [("l", "rc")] if n == "v" else []
        for h in range(2):
            for i in range(8 * h, 8 * h + 8):
                m = {"k": g.A_RS, "q": g.A_QM, "v": g.A_RC + i}[n]
                ops.append(f"v_mul_f32 v{A + i}, v{m}, v{A + i}")
            for i in range(4 * h, 4 * h + 4):
                ops.append(f"v_cvt_pk_bf16_f32 v{P + i}, v{A + 2 * i}, v{A + 2 * i + 1}")
            if n == "k":
                ops.append(lambda h=h: g.st(vr(P + 4 * h, 4), g.A_KA, sWS, (t7, t8)[h], 0, "sc1"))
            elif n == "v":
                ops.append(lambda h=h: g.st(vr(P + 4 * h, 4), g.A_VA, sWS, t7, 1024 + 512 * h, "sc1"))
            else:
                ops.append(lambda h=h: g.st(vr(P + 4 * h, 4), vL16, sWS, t9, 1024 * h, qmods))
        return ops

    def a_mfma(self, n, w, x, first):
        acc = vr(self.A_ACC[n], 16)
        a_, b_ = (x, w) if n == "v" else (w, x)
        self.e(f"v_mfma_f32_32x32x16_bf16 {acc}, {a_}, {b_}, {'0' if first else acc}")

    def phaseA0(self):
        g = self
        X, S1, S2 = g.A_X, 192, 208
        vo0, vo1, vRd, vRs, vWd, vTr = 224, 225, 226, 230, 232, 236
        CS, ONE = 0, 48
        LW = 65536
        g.e(f"""
        v_lshrrev_b32 v{vt0}, 4, v{vL16}
        v_lshrrev_b32 v{vt2}, 3, v{vt0}
        v_lshlrev_b32 v{vo0}, 10, v{vt2}
        v_lshrrev_b32 v{vt2}, 1, v{vt2}
        v_and_b32 v{vt3}, 7, v{vt0}
        v_xor_b32 v{vt2}, v{vt2}, v{vt3}
        v_lshl_add_u32 v{vo0}, v{vt2}, 4, v{vo0}
        v_xor_b32 v{vo1}, 64, v{vo0}
        s_lshl_b32 s{t0}, s{sT}, 15
        {g.cfg.rot.format(t1=t1, sHP=sHP, sC=sC, sX=sX)}
        s_lshl_b32 s{t6}, s{sW}, 14
        s_lshl_b32 s6, s{sHP}, 6
        s_mul_i32 s7, s{sW}, 3072
        s_add_u32 s7, s7, {LW}
        """)
        for i in range(3):
            r = vWd + i
            g.e(f"""
            v_add_u32 v{vt2}, {64 * i}, v{vt0}
            v_mul_u32_u24 v{vt3}, 0x1556, v{vt2}
            v_lshrrev_b32 v{vt3}, 16, v{vt3}
            v_mul_u32_u24 v{r}, 12, v{vt3}
            v_sub_u32 v{vt2}, v{vt2}, v{r}
            v_mul_u32_u24 v{r}, 3072, v{vt3}
            v_lshrrev_b32 v{vt3}, 2, v{vt2}
            v_lshl_add_u32 v{r}, v{vt3}, 10, v{r}
            v_and_b32 v{vt2}, 3, v{vt2}
            v_lshl_add_u32 v{r}, v{vt2}, 4, v{r}
            """)
        g.e("s_waitcnt lgkmcnt(0)")
        g.srd(sXIN, pX, 2048 * 1024)
        g.srd(sWQ, pWQ, 512 * 3072)
        g.stamp("start")

        def grp_ops(c):
            ops = []
            for j in range(4):
                def op(j=j):
                    if j == 0:
                        g.e(f"s_add_u32 s{t2}, s{t1}, {c}\ns_and_b32 s{t2}, s{t2}, 7\ns_lshl_b32 s3, s{t2}, 7\ns_add_u32 s3, s3, s{t0}")
                    g.e(f"s_add_u32 s{t5}, s{t6}, {(c % 4) * 4096 + j * 1024}\ns_mov_b32 m0, s{t5}")
                    g.e("s_add_u32 s3, s3, 8192" if j else "s_nop 0")
                    g.dma((vo0, vo1)[j % 2], sXIN, 3, 0, mods="", tag=("xc", c))
                ops.append(op)
            for i in range(3):
                def op(i=i):
                    if i == 0:
                        g.e(f"s_add_u32 s{t2}, s{t1}, {c}\ns_and_b32 s{t2}, s{t2}, 7\ns_lshl_b32 s{t2}, s{t2}, 2")
                        g.e(f"s_add_u32 s{t2}, s{t2}, s{sW}\ns_mul_i32 s3, s{t2}, 49152\ns_add_u32 s3, s3, s6")
                    g.e(f"s_add_u32 s{t5}, s7, {(c % 5) * 4 * 3072 + i * 1024}\ns_mov_b32 m0, s{t5}\ns_nop 0")
                    g.dma(vWd + i, sWQ, 3, 0, mods="", tag=("w", c))
                ops.append(op)
            return ops
        if g.cfg.warm:
            g.e(f"""
            s_lshl_b32 s{t2}, s{sC}, 2
            s_add_u32 s{t2}, s{t2}, s{sW}
            s_mul_i32 s{t3}, s{t2}, 12288
            s_lshl_b32 s{t2}, s{t2}, 11
            s_lshl_b32 s{t4}, s{sX}, 18
            s_add_u32 s{t2}, s{t2}, s{t4}
            v_lshlrev_b32 v254, 3, v{vL16}
            v_and_b32 v253, 0x780, v254
            """)
            if g.cfg.warm == 2:
                for op in grp_ops(0):
                    op()
            g.ld("v255", 253, sXIN, t2, 0, mods="", w=1)
            if g.cfg.warm == 5:
                g.e(f"v_lshrrev_b32 v252, 6, v{vL16}\nv_min_u32 v252, 11, v252\nv_lshlrev_b32 v252, 10, v252")
                g.ld("v255", 252, sWQ, t3, 384, mods="", w=1)
            if g.cfg.warm >= 3:
                g.e(f"s_lshl_b32 s{t3}, s2, 2\ns_add_u32 s{t3}, s{t3}, s{sW}\ns_mul_i32 s{t3}, s{t3}, 1536")
                g.ld("v255", 253, sWQ, t3, 0, mods="", w=1)
            else:
                g.ld("v255", 254, sWQ, t3, 0, mods="", w=1)
                g.e(f"v_and_b32 v254, 0xf80, v254\ns_add_u32 s{t3}, s{t3}, 8192")
                g.ld("v255", 254, sWQ, t3, 0, mods="", w=1)
        if g.cfg.warm != 2:
            for op in grp_ops(0):
                op()
        g.srd(sWS, pWS, WS_BYTES - g.cfg.ws_off)
        if g.cfg.ws_off:
            g.e(f"s_add_u32 s{sWS}, s{sWS}, {g.cfg.ws_off}\ns_addc_u32 s{sWS + 1}, s{sWS + 1}, 0")
        g.srd(sDBG, pDBG, 256)
        g.zero_flags()
        if not g.cfg.defer:
            g.prologue2()
        g.e(f"""
        v_and_b32 v{vt2}, 31, v{vt0}
        v_lshrrev_b32 v{vt3}, 5, v{vt0}
        v_bfe_u32 v{vt1}, v{vt0}, 1, 3
        v_xor_b32 v{vt1}, v{vt1}, v{vt3}
        v_lshlrev_b32 v{vt1}, 4, v{vt1}
        v_lshl_add_u32 v{vt1}, v{vt2}, 7, v{vt1}
        v_add_u32 v{vt1}, s{t6}, v{vt1}
        """)
        for i in range(4):
            g.e(f"s_add_u32 s{t2}, s{sW}, {i}\ns_and_b32 s{t2}, s{t2}, 3\ns_lshl_b32 s{t2}, s{t2}, 5\nv_xor_b32 v{vRd + i}, s{t2}, v{vt1}")
        g.e(f"""
        v_lshrrev_b32 v{vt2}, 5, v{vt0}
        v_lshlrev_b32 v{vt2}, 3, v{vt2}
        v_bfe_u32 v{vt3}, v{vt0}, 2, 2
        v_add_u32 v{vt2}, v{vt2}, v{vt3}
        v_mul_u32_u24 v{vt1}, 192, v{vt2}
        v_bfe_u32 v{vt3}, v{vt0}, 4, 1
        v_lshl_add_u32 v{vt1}, v{vt3}, 5, v{vt1}
        v_and_b32 v{vt3}, 1, v{vt0}
        v_lshl_add_u32 v{vt1}, v{vt3}, 4, v{vt1}
        v_bfe_u32 v{vt3}, v{vt0}, 1, 1
        v_lshl_add_u32 v{vt1}, v{vt3}, 3, v{vt1}
        """)
        for i in range(4):
            g.e(f"s_add_u32 s{t2}, s{sW}, {i}\ns_and_b32 s{t2}, s{t2}, 3\ns_mul_i32 s{t2}, s{t2}, 3072\ns_add_u32 s{t2}, s{t2}, {LW}\nv_add_u32 v{vTr + i}, s{t2}, v{vt1}")
        g.e(f"v_mov_b32 v{vt1}, 0x3f803f80")
        for i in range(4):
            g.e(f"v_accvgpr_write_b32 a{ONE + i}, v{vt1}")
        if not g.cfg.setup_first:
            for op in grp_ops(1):
                op()
        g.stamp("A0_d1")
        if not g.cfg.defer:
            g.a_addr(0)
            g.relayout_setup(0)
            g.relayout_setup(1)
        if g.cfg.setup_first:
            for op in grp_ops(1):
                op()
        if g.cfg.cpf == 1:
            g.code_prefetch()
        g.stamp("A0_i")
        if not g.cfg.g2_late:
            for op in grp_ops(2):
                op()
        if g.cfg.warm == 4:
            g.e(f"s_lshl_b32 s{t3}, s{sC}, 2\ns_add_u32 s{t3}, s{t3}, s{sW}\ns_mul_i32 s{t3}, s{t3}, 12288\nv_lshlrev_b32 v254, 3, v{vL16}")
            g.ld("v255", 254, sWQ, t3, 0, mods="", w=1)
            g.e(f"v_and_b32 v254, 0xf80, v254\ns_add_u32 s{t3}, s{t3}, 8192")
            g.ld("v255", 254, sWQ, t3, 0, mods="", w=1)

        def xread(c):
            return [("v", ("xc", c))] + [
                lambda i=i: g.ds(f"ds_read_b128 {vr(X + 4 * (4 * c + i), 4)}, v{vRd + i} offset:{(c % 4) * 4096}", ("x", c)) for i in range(4)]

        names = "kvq"
        seg = {"q": 0, "k": 1, "v": 2}

        def wread(f):
            st, n = divmod(f, 3)
            c, i = divmod(st, 4)
            if n == 0 and i == 0:
                g.vwait(("w", c))
                if g.cfg.rl_in_a and 0 <= c - g.cfg.rl_c1 < (1 if g.cfg.rl_split else 2):
                    assert ("rl", c - g.cfg.rl_c1) in g.vmq or ("rl", c - g.cfg.rl_c1) in g.waited
                    g.vwait(("rl", c - g.cfg.rl_c1))
                g.e("s_barrier")
            b = WB + 4 * (f % 8)
            off = (c % 5) * 12288 + seg[names[n]] * 64
            g.ds(f"ds_read_b64_tr_b16 {ar(b, 2)}, v{vTr + i} offset:{off}", ("w", f))
            g.ds(f"ds_read_b64_tr_b16 {ar(b + 2, 2)}, v{vTr + i} offset:{off + 768}", ("w", f))

        def mf4(d, a, b, first):
            g.e(f"v_mfma_f32_4x4x4_16b_bf16 {d}, {a}, {b}, {'0' if first else d}")

        def stat_mf(st):
            for hh in range(2):
                x = vr(X + 4 * st + 2 * hh, 2)
                mf4(vr(S1 + 4 * hh, 4), ar(ONE, 2), x, st == 0)
                mf4(vr(S2 + 4 * hh, 4), x, x, st == 0)
            g.take(side, g.cfg.st_take)

        side = deque(xread(0))
        g.take(side, 99)
        g.stamp("A0_x0")
        LEAD = 5
        for f in range(LEAD):
            wread(f)
        rld = g.relayout_dma_ops()
        rlo = g.relayout_out_ops(216, 52, ONE, (g.RL_V + 2, g.RL_V + 3), 231)
        wwarm = [lambda: g.e(f"v_and_b32 v253, 0x3c0, v{vL16}\nv_lshlrev_b32 v253, 1, v253\ns_lshl_b32 s{t7}, s2, 2\ns_add_u32 s{t7}, s{t7}, s{sW}")]
        for ptr, share in ((pW1, 1792), (pW3, 1792), (pW2, 1792), (pWO, 512)):
            def op(ptr=ptr, share=share):
                g.srd(sWQ, ptr, share * 1024)
                g.e(f"s_mul_i32 s{t8}, s{t7}, {share}")
                if share < 1792:
                    g.e("v_and_b32 v253, 0x180, v253")
                g.ld("v255", 253, sWQ, t8, 0, mods="", w=1)
            wwarm.append(op)
        XA = 8192
        for c in range(8):
            if c == 0 and g.cfg.g2_late:
                side.extend(grp_ops(2))
            if c + 3 < 8:
                side.extend(grp_ops(c + 3))
            if c == 0 and g.cfg.g2_late:
                side.extend(xread(1) + [g.handshake_send])
            elif c == 0:
                side.extendleft(reversed(xread(1) + [g.handshake_send]))
            elif c + 1 < 8:
                side.extend(xread(c + 1))
            if g.cfg.defer:
                for cc, fn in zip(g.cfg.defer, (lambda: g.relayout_setup(0), lambda: g.relayout_setup(1), g.prologue2, lambda: g.a_addr(0))):
                    if cc == c:
                        side.appendleft(fn)
            if c == 3:
                side.appendleft(g.handshake_load)
            if g.cfg.rl_in_a:
                if c == g.cfg.rl_c0:
                    side.extend(rld[:4])
                if c == g.cfg.rl_c0 + 1 and not g.cfg.rl_split:
                    side.extend(rld[4:])
                u = c - g.cfg.rl_c1
                if 0 <= u < (1 if g.cfg.rl_split else 2):
                    oo = [o for o, _ in rlo[13 * u:13 * u + 13]]
                    for k in range(4):
                        side.extend([oo[3 * k], None, None, oo[3 * k + 1], oo[3 * k + 2]])
                    side.extend([None] * 4 + [oo[12]])
            if c == 6 and g.cfg.xcc_early:
                side.append(lambda: g.xcc_load(250, 251, t4))
            if c == 4:
                side.append(g.handshake_check)
                if g.cfg.xcc_early:
                    side.append(g.xcc_send)
                if not g.cfg.rl_in_b and not g.cfg.rl_in_a:
                    side.extend(rld)
            if g.cfg.tlb and c == g.cfg.tlb[0]:
                def tlb():
                    g.e(f"v_lshlrev_b32 v253, {g.cfg.tlb[1] - 4}, v{vL16}\nv_min_u32 v253, 0x1dfff80, v253")
                    g.ld("v250", 253, sWS, None, 0, mods="", w=1)
                side.append(tlb)
            if c == g.cfg.warm_w:
                side.extend(wwarm)
            if c == 6:
                side.extend(g.a_saddr(0))
            g.lwait(("x", c))
            if c == 7:
                for i in range(4):
                    stat_mf(28 + i)
                sel = [f"v_add_f32 v{S1}, v{S1}, v{S1 + 4}"] + [f"v_add_f32 v{S2 + r}, v{S2 + r}, v{S2 + 4 + r}" for r in range(4)]
                for m, stp in ((0xaaaaaaaa, 1), (0xcccccccc, 2)):
                    sel += [f"s_mov_b32 s{t2}, {m:#x}", f"s_mov_b32 s{t3}, {m:#x}"]
                    sel += [f"v_cndmask_b32 v{S2 + r}, v{S2 + r}, v{S2 + r + stp}, s[{t2}:{t3}]" for r in range(0, 4, 2 * stp)]
                sel += ["s_nop 1", f"v_permlane32_swap_b32 v{S1}, v{S2}", f"v_add_f32 v{S1}, v{S1}, v{S2}",
                        f"v_mov_b32 v{S2}, v{S1}", "s_nop 1", f"v_permlane32_swap_b32 v{S1}, v{S2}"]
                sel += g.stats_tail(S1, S2, g.A_RS, g.A_CD, g.A_BX)
                sel += [f"s_add_u32 s{t2}, s{t6}, 12288"] + g.a_rc_ops(t2)
            for i in range(4):
                st = 4 * c + i
                g.lwait(("w", 3 * st + 2))
                for n in range(3):
                    f = 3 * st + n
                    wb = ar(WB + 4 * (f % 8), 4)
                    g.a_mfma(names[n], wb, vr(X + 4 * st, 4), st == 0)
                    if i == 0 and not g.cfg.mf4_late:
                        for hh in range(2):
                            mf4(ar(CS + 8 * n + 4 * hh, 4), ar(ONE, 2), ar(WB + 4 * (f % 8) + 2 * hh, 2), c == 0)
                    if f + LEAD < 96:
                        wread(f + LEAD)
                    g.take(side, g.cfg.a0_take if c < 7 else 5)
                    if i == 0 and g.cfg.mf4_late:
                        for hh in range(2):
                            mf4(ar(CS + 8 * n + 4 * hh, 4), ar(ONE, 2), ar(WB + 4 * (f % 8) + 2 * hh, 2), c == 0)
                    if c == 7 and i == 0 and n == 1:
                        side.extend(sel)
                if c == 7 and i == 1:
                    g.e(f"s_lshl_b32 s{t4}, s{sW}, 2\ns_add_u32 s{t4}, s{t4}, {XA}\nv_add_u32 v253, s{t4}, v{vL16}")
                    for n in range(3):
                        g.e(f"""
                        v_accvgpr_read_b32 v{vt2}, a{CS + 8 * n}
                        v_accvgpr_read_b32 v254, a{CS + 8 * n + 4}
                        v_add_f32 v{vt2}, v{vt2}, v254
                        v_cvt_pk_bf16_f32 v254, v{vt2}, v{vt2}
                        v_lshlrev_b32 v254, 16, v254
                        v_sub_f32 v254, v{vt2}, v254
                        v_cvt_pk_bf16_f32 v254, v{vt2}, v254
                        """)
                        g.ds(f"ds_write_b32 v253, v254 offset:{1024 * n}", "csw")
                if c < 7:
                    stat_mf(st)
            g.take(side, 99)
            g.stamp(f"A0_g{c}")
        g.lwait0()
        g.e("s_barrier")
        for n in range(3):
            g.ds(f"ds_read_b128 {vr(g.A_AX[names[n]], 4)}, v{vL16} offset:{XA + 1024 * n}", ("ax", n))
        for n in range(3):
            g.lwait(("ax", n))
            g.a_mfma(names[n], vr(g.A_AX[names[n]], 4), vr(g.A_BX, 4), False)
        side = deque(g.a_epi("k") + g.a_epi("v") + g.a_epi("q", "sc1"))
        g.take(side, 999)
        if g.cfg.xcc_early:
            g.xcc_check(250, 251, 4)
        g.stamp("A0st")

    def phaseA0b(self):
        g = self
        cfg = g.cfg
        X, S1, S2 = g.A_X, 192, 208
        vo0, vo1, vRd, vWd, vTr = 224, 225, 226, 232, 236
        CS, ONE = 0, 48
        LW = 32768
        g.e(f"""
        s_and_b32 s{sCB}, s{sC}, 7
        s_lshr_b32 s{t2}, s{sC}, 3
        s_lshl_b32 s{t2}, s{t2}, 1
        s_lshl_b32 s{t3}, s{sX}, 3
        s_add_u32 s{t2}, s{t2}, s{t3}
        s_lshr_b32 s{t3}, s{sW}, 1
        s_add_u32 s{sTA}, s{t2}, s{t3}
        s_and_b32 s{sNA}, s{sW}, 1
        v_lshrrev_b32 v{vt0}, 4, v{vL16}
        v_lshrrev_b32 v{vt2}, 3, v{vt0}
        v_lshlrev_b32 v{vo0}, 10, v{vt2}
        v_lshrrev_b32 v{vt2}, 1, v{vt2}
        v_and_b32 v{vt3}, 7, v{vt0}
        v_xor_b32 v{vt2}, v{vt2}, v{vt3}
        v_lshl_add_u32 v{vo0}, v{vt2}, 4, v{vo0}
        v_xor_b32 v{vo1}, 64, v{vo0}
        v_add_u32 v{vo1}, 7168, v{vo1}
        s_lshl_b32 s{t0}, s{sTA}, 15
        s_lshl_b32 s{t3}, s{sNA}, 14
        s_add_u32 s{t0}, s{t0}, s{t3}
        s_mov_b32 s{t1}, s{sCB}
        s_lshl_b32 s{t6}, s{sW}, 11
        s_lshl_b32 s6, s{sCB}, 7
        s_mul_i32 s7, s{sW}, 6144
        s_add_u32 s7, s7, {LW}
        """)
        for i in range(3):
            r = vWd + i
            g.e(f"""
            v_add_u32 v{vt2}, {64 * i}, v{vt0}
            v_mul_u32_u24 v{vt3}, 2731, v{vt2}
            v_lshrrev_b32 v{vt3}, 16, v{vt3}
            v_mul_u32_u24 v{r}, 24, v{vt3}
            v_sub_u32 v{vt2}, v{vt2}, v{r}
            v_mul_u32_u24 v{r}, 3072, v{vt3}
            v_and_b32 v{vt3}, 2, v{vt3}
            v_lshlrev_b32 v{vt3}, 1, v{vt3}
            v_xor_b32 v{vt2}, v{vt2}, v{vt3}
            v_lshrrev_b32 v{vt3}, 3, v{vt2}
            v_lshl_add_u32 v{r}, v{vt3}, 10, v{r}
            v_and_b32 v{vt2}, 7, v{vt2}
            v_lshl_add_u32 v{r}, v{vt2}, 4, v{r}
            """)
            if i:
                g.e(f"v_subrev_u32 v{r}, {1024 * i}, v{r}")
        g.e("s_waitcnt lgkmcnt(0)")
        g.srd(sXIN, pX, 2048 * 1024)
        g.srd(sWQ, pWQ, 512 * 3072)
        g.stamp("start")

        def grp_ops(c):
            ops = []
            for j in range(2):
                def op(j=j):
                    if j == 0:
                        g.e(f"s_add_u32 s{t2}, s{t1}, {c}\ns_and_b32 s{t2}, s{t2}, 7\ns_lshl_b32 s3, s{t2}, 7\ns_add_u32 s3, s3, s{t0}")
                        g.e(f"s_add_u32 s{t5}, s{t6}, {(c % 4) * 8192}\ns_mov_b32 m0, s{t5}\ns_nop 0")
                    g.dma((vo0, vo1)[j], sXIN, 3, 1024 * j, mods="", tag=("g", c))
                ops.append(op)
            for k in range(6):
                def op(k=k):
                    if k == 0:
                        g.e(f"s_add_u32 s{t2}, s{t1}, {c}\ns_and_b32 s{t2}, s{t2}, 7\ns_lshl_b32 s{t2}, s{t2}, 2")
                        g.e(f"s_add_u32 s{t2}, s{t2}, s{sW}\ns_mul_i32 s3, s{t2}, 49152\ns_add_u32 s3, s3, s6")
                    if k % 3 == 0:
                        g.e(f"s_add_u32 s{t5}, s7, {(c % 4) * 24576 + (k // 3) * 3072}\ns_mov_b32 m0, s{t5}")
                        g.e("s_add_u32 s3, s3, 24576" if k else "s_nop 0")
                    g.dma(vWd + k % 3, sWQ, 3, 1024 * (k % 3), mods="", tag=("g", c))
                ops.append(op)
            return ops
        g.e(f"""
        s_lshl_b32 s{t2}, s{sC}, 2
        s_add_u32 s{t2}, s{t2}, s{sW}
        s_mul_i32 s{t3}, s{t2}, 12288
        s_lshl_b32 s{t2}, s{t2}, 11
        s_lshl_b32 s{t4}, s{sX}, 18
        s_add_u32 s{t2}, s{t2}, s{t4}
        v_lshlrev_b32 v254, 3, v{vL16}
        v_and_b32 v253, 0x780, v254
        """)
        g.ld("v255", 253, sXIN, t2, 0, mods="", w=1)
        if cfg.warm == 5:
            g.e(f"v_lshrrev_b32 v252, 6, v{vL16}\nv_min_u32 v252, 11, v252\nv_lshlrev_b32 v252, 10, v252")
            g.ld("v255", 252, sWQ, t3, 384, mods="", w=1)
        g.e(f"s_lshl_b32 s{t3}, s2, 2\ns_add_u32 s{t3}, s{t3}, s{sW}\ns_mul_i32 s{t3}, s{t3}, 1536")
        g.ld("v255", 253, sWQ, t3, 0, mods="", w=1)
        for op in grp_ops(0):
            op()
        g.srd(sWS, pWS, WS_BYTES)
        g.srd(sDBG, pDBG, 256)
        g.zero_flags()
        g.prologue2()
        g.e(f"""
        v_and_b32 v{vt2}, 31, v{vt0}
        v_lshrrev_b32 v{vt3}, 5, v{vt0}
        v_bfe_u32 v{vt1}, v{vt0}, 1, 3
        v_xor_b32 v{vt1}, v{vt1}, v{vt3}
        v_lshlrev_b32 v{vt1}, 4, v{vt1}
        v_lshl_add_u32 v{vt1}, v{vt2}, 7, v{vt1}
        s_and_b32 s{t3}, s{sW}, 2
        s_lshl_b32 s{t2}, s{t3}, 11
        v_add_u32 v{vt1}, s{t2}, v{vt1}
        """)
        for i in range(4):
            g.e(f"s_add_u32 s{t2}, s{t3}, {i}\ns_and_b32 s{t2}, s{t2}, 3\ns_lshl_b32 s{t2}, s{t2}, 5\nv_xor_b32 v{vRd + i}, s{t2}, v{vt1}")
        g.e(f"""
        v_lshrrev_b32 v{vt2}, 5, v{vt0}
        v_lshlrev_b32 v{vt2}, 3, v{vt2}
        v_bfe_u32 v{vt3}, v{vt0}, 2, 2
        v_add_u32 v{vt2}, v{vt2}, v{vt3}
        v_mul_u32_u24 v{vt1}, 384, v{vt2}
        v_lshrrev_b32 v{vt3}, 1, v{vt3}
        v_xor_b32 v{vt3}, s{sNA}, v{vt3}
        v_lshl_add_u32 v{vt1}, v{vt3}, 6, v{vt1}
        v_bfe_u32 v{vt3}, v{vt0}, 4, 1
        v_lshl_add_u32 v{vt1}, v{vt3}, 5, v{vt1}
        v_and_b32 v{vt3}, 1, v{vt0}
        v_lshl_add_u32 v{vt1}, v{vt3}, 4, v{vt1}
        v_bfe_u32 v{vt3}, v{vt0}, 1, 1
        v_lshl_add_u32 v{vt1}, v{vt3}, 3, v{vt1}
        """)
        for i in range(4):
            g.e(f"s_add_u32 s{t2}, s{t3}, {i}\ns_and_b32 s{t2}, s{t2}, 3\ns_mul_i32 s{t2}, s{t2}, 6144\ns_add_u32 s{t2}, s{t2}, {LW}\nv_add_u32 v{vTr + i}, s{t2}, v{vt1}")
        g.e(f"v_mov_b32 v{vt1}, 0x3f803f80")
        for i in range(4):
            g.e(f"v_accvgpr_write_b32 a{ONE + i}, v{vt1}")
        g.stamp("A0_d1")
        g.a_addr(0)
        g.relayout_setup(0)
        g.relayout_setup(1)
        for c in range(1, cfg.a0_up):
            for op in grp_ops(c):
                op()
        g.stamp("A0_i")

        names = "kvq"
        seg = {"q": 0, "k": 1, "v": 2}
        side = deque()

        def wread(f):
            st, n = divmod(f, 3)
            c, i = divmod(st, 4)
            if n == 0 and i == 0:
                assert g.vmq.count(("g", c)) + g.waited.get(("g", c), 0) == 8
                g.vwait(("g", c))
                if 0 <= c - cfg.rl_c1 < 2:
                    assert g.vmq.count(("rl", c - cfg.rl_c1)) + g.waited.get(("rl", c - cfg.rl_c1), 0) == 4
                    g.vwait(("rl", c - cfg.rl_c1))
                g.e("s_barrier")
                for k in range(4):
                    g.ds(f"ds_read_b128 {vr(X + 4 * (4 * c + k), 4)}, v{vRd + k} offset:{(c % 4) * 8192}", ("x", c))
                if cfg.a0_up <= c + 2 < 8:
                    side.extendleft(reversed(grp_ops(c + 2)))
            if n == 0 and c in (2, 4, 6):
                g.e(f"v_add_u32 v{vTr + i}, 49152, v{vTr + i}" if c != 4 else f"v_subrev_u32 v{vTr + i}, 49152, v{vTr + i}")
            b = WB + 4 * (f % 8)
            off = (c % 2) * 24576 + seg[names[n]] * 128
            g.ds(f"ds_read_b64_tr_b16 {ar(b, 2)}, v{vTr + i} offset:{off}", ("w", f))
            g.ds(f"ds_read_b64_tr_b16 {ar(b + 2, 2)}, v{vTr + i} offset:{off + 1536}", ("w", f))

        def mf4(d, a, b, first):
            g.e(f"v_mfma_f32_4x4x4_16b_bf16 {d}, {a}, {b}, {'0' if first else d}")

        def stat_mf(st):
            for hh in range(2):
                x = vr(X + 4 * st + 2 * hh, 2)
                mf4(vr(S1 + 4 * hh, 4), ar(ONE, 2), x, st == 0)
                mf4(vr(S2 + 4 * hh, 4), x, x, st == 0)
            g.take(side, g.cfg.st_take)

        LEAD = 5
        for f in range(LEAD):
            wread(f)
        g.stamp("A0_x0")
        rld = g.relayout_dma_ops()
        rlo = g.relayout_out_ops(216, 52, ONE, (g.RL_V + 2, g.RL_V + 3), 231)
        XA = 0
        for c in range(8):
            if c == 1:
                side.append(g.handshake_send)
            if c == 3:
                side.append(g.handshake_load)
            if c == cfg.rl_c0:
                side.extend(rld[:4])
            if c == cfg.rl_c0 + 1:
                side.extend(rld[4:])
            u = c - cfg.rl_c1
            if 0 <= u < 2:
                oo = [o for o, _ in rlo[13 * u:13 * u + 13]]
                for k in range(4):
                    side.extend([oo[3 * k], None, None, oo[3 * k + 1], oo[3 * k + 2]])
                side.extend([None] * 4 + [oo[12]])
            if c == 5:
                side.append(g.handshake_check)
            if c == 6:
                side.extend([f"s_lshl_b32 s{t4}, s{sCB}, 1", f"s_add_u32 s{t4}, s{t4}, s{sNA}"] + g.a_saddr(0, t4, sTA))
            g.lwait(("x", c))
            if c == 7:
                for i in range(4):
                    stat_mf(28 + i)
                sel = [f"v_add_f32 v{S1}, v{S1}, v{S1 + 4}"] + [f"v_add_f32 v{S2 + r}, v{S2 + r}, v{S2 + 4 + r}" for r in range(4)]
                for m, stp in ((0xaaaaaaaa, 1), (0xcccccccc, 2)):
                    sel += [f"s_mov_b32 s{t2}, {m:#x}", f"s_mov_b32 s{t3}, {m:#x}"]
                    sel += [f"v_cndmask_b32 v{S2 + r}, v{S2 + r}, v{S2 + r + stp}, s[{t2}:{t3}]" for r in range(0, 4, 2 * stp)]
                sel += ["s_nop 1", f"v_permlane32_swap_b32 v{S1}, v{S2}", f"v_add_f32 v{S1}, v{S1}, v{S2}",
                        f"v_mov_b32 v{S2}, v{S1}", "s_nop 1", f"v_permlane32_swap_b32 v{S1}, v{S2}"]
                sel += g.stats_tail(S1, S2, g.A_RS, g.A_CD, g.A_BX)
                sel += [f"s_lshl_b32 s{t2}, s{sW}, 8", f"s_add_u32 s{t2}, s{t2}, 8192"] + g.a_rc_ops(t2)
            for i in range(4):
                st = 4 * c + i
                g.lwait(("w", 3 * st + 2))
                for n in range(3):
                    f = 3 * st + n
                    wb = ar(WB + 4 * (f % 8), 4)
                    g.a_mfma(names[n], wb, vr(X + 4 * st, 4), st == 0)
                    if f + LEAD < 96:
                        wread(f + LEAD)
                    g.take(side, g.cfg.a0_take if c < 7 else 5)
                    if i < 2:
                        for hh in range(2):
                            mf4(ar(CS + 8 * n + 4 * hh, 4), ar(ONE, 2), ar(WB + 4 * (f % 8) + 2 * hh, 2), st == 0)
                    if c == 7 and i == 0 and n == 1:
                        side.extend(sel)
                if c == 7 and i == 2:
                    g.e(f"""
                    s_mul_i32 s{t4}, s{sNA}, 3072
                    s_add_u32 s{t4}, s{t4}, {XA}
                    v_add_u32 v{vt3}, s{t4}, v{vL16}
                    s_and_b32 s{t4}, s{sW}, 2
                    s_lshl_b32 s{t4}, s{t4}, 2
                    v_add_u32 v253, s{t4}, v{vt3}
                    v_mov_b32 v255, 0
                    """)
                    for n in range(3):
                        g.e(f"""
                        v_accvgpr_read_b32 v{vt2}, a{CS + 8 * n}
                        v_accvgpr_read_b32 v254, a{CS + 8 * n + 4}
                        v_add_f32 v{vt2}, v{vt2}, v254
                        v_cvt_pk_bf16_f32 v254, v{vt2}, v{vt2}
                        v_lshlrev_b32 v254, 16, v254
                        v_sub_f32 v254, v{vt2}, v254
                        v_cvt_pk_bf16_f32 v254, v{vt2}, v254
                        """)
                        g.ds(f"ds_write_b64 v253, v[254:255] offset:{1024 * n}", "csw")
                if c < 7:
                    stat_mf(st)
            if c == 7:
                g.take(side, 999)
            g.stamp(f"A0_g{c}")
        g.lwait0()
        g.e("s_barrier")
        for n in range(3):
            g.ds(f"ds_read_b128 {vr(g.A_AX[names[n]], 4)}, v{vt3} offset:{1024 * n}", ("ax", n))
        for n in range(3):
            g.lwait(("ax", n))
            g.a_mfma(names[n], vr(g.A_AX[names[n]], 4), vr(g.A_BX, 4), False)
        side = deque(g.a_epi("k") + g.a_epi("v") + g.a_epi("q", "sc1"))
        g.take(side, 999)
        g.stamp("A0st")

    def phaseA1(self, layer):
        g = self
        cfg = g.cfg
        X, SB = g.A_X, 192
        g.A_BX = 236
        vA0, vA1 = 224, 225
        LW = 65536
        g.e(f"v_add_u32 v{vA0}, {LW}, v{vL16}\nv_add_u32 v{vA1}, {LW + 49152}, v{vL16}")
        g.a_addr(layer)
        g.e("\n".join(g.a_saddr(layer)))
        g.e(f"s_lshl_b32 s{t4}, s{sHP}, 10\ns_add_u32 s{t4}, s{t4}, {WXQ}\ns_lshl_b32 s{t6}, s{sW}, 8\ns_add_u32 s{t6}, s{t6}, {48 * 1024}")
        g.e(f"v_and_b32 v{vt0}, 60, v{vL4}\ns_lshl_b32 s{t2}, s{sT}, 7\ns_add_u32 s{t2}, s{t2}, {FE}")
        pre, xrest, stl = g.load_x_stats(layer - 1, 1, aX(layer - 1, 1), X, SB, cfg.up_a)
        seg = {"q": 0, "k": 1, "v": 2}
        LAG = cfg.lag_a
        seq = []
        for ks in range(32):
            if cfg.lag_end:
                seq += [("k", ks), ("v", ks)] + ([("q", ks)] if ks < 32 - LAG else [])
            else:
                seq += [("k", ks), ("v", ks)] + ([("q", ks - LAG)] if ks >= LAG else [])
        nmain = len(seq)
        seq += [("q", ks) for ks in range(32 - LAG, 32)]

        def wread(f):
            n, ks = seq[f]
            off = ((ks % 16) * 3 + seg[n]) * 1024
            g.ds(f"ds_read_b128 {ar(WB + 4 * (f % 8), 4)}, v{vA0 if ks < 16 else vA1} offset:{off}", ("w", f))
        LEAD = 7
        for f in range(LEAD):
            wread(f)
        g.poll(vt0, t2, layer, True)
        g.stamp(f"A{layer}go")
        pre()

        def axld(n):
            g.ld(vr(g.A_AX[n], 4), vL16, sWS, t4, 0, tag="ax")
            g.e(f"s_add_u32 s{t4}, s{t4}, 16384")
        xrest = deque(xrest)
        mem = deque(stl + ([] if cfg.ax_e else [lambda n=n: axld(n) for n in "qkv"]))
        if "A" in cfg.touch:
            xrest.extend([lambda: g.e(f"v_and_b32 v254, 0x3c0, v{vL16}\nv_lshlrev_b32 v254, 1, v254")] + g.touch_ops([], t9, 1, 254, 255))
        side = deque()
        for f, (n, ks) in enumerate(seq):
            if f == nmain:
                g.stamp(f"Z{layer}:Amain")
                g.take(side, 999)
                g.vwait("ax")
                for m in "kv":
                    g.a_mfma(m, vr(g.A_AX[m], 4), vr(g.A_BX, 4), False)
                side.extend([None] * 8 + g.a_epi("k") + g.a_epi("v"))
            if n == "k":
                g.vwait(("x", ks))
                if ks == 0:
                    g.stamp(f"Z{layer}:Afirst")
            if f % 4 == 0:
                g.lwait(("w", min(f + 3, 95)))
            g.a_mfma(n, ar(WB + 4 * (f % 8), 4), vr(X + 4 * ks, 4), ks == 0)
            if f + LEAD < 96:
                wread(f + LEAD)
            if (n == "k" or (n == "q" and ks < cfg.x2_a)) and xrest:
                xrest.popleft()()
            elif n == "v" and ks >= cfg.st_a and mem:
                mem.popleft()()
                if not mem:
                    side.extend([None] * 30 + g.stats_ops(SB, g.A_RS, g.A_CD, g.A_BX) + g.a_rc_ops(t6))
            g.take(side, 3 if f < nmain else 7)
            if n == "k" and ks % 8 == 7:
                g.stamp(f"A{layer}_{ks}")
        g.a_mfma("q", vr(g.A_AX["q"], 4), vr(g.A_BX, 4), False)
        g.e("s_barrier")
        g.stamp(f"A{layer}_m")
        side.extend(g.a_epi("q"))
        g.take(side, 999)
        g.stamp(f"A{layer}st")

    RL_SRD = ((28, 32), (80, 16))
    RL_DO = (64, 70)
    RL_XO = (62, 63)
    RL_V = 244
    RL_LDS = 131072

    def relayout_setup(self, ui):
        g = self
        passes = g.cfg.passes
        RA, RB = g.RL_SRD[ui]
        sDO, sDS = g.RL_DO[ui], g.RL_DO[ui] + 1
        sXO = g.RL_XO[ui]
        u, sRS, sSO, sMH, sWO = t7, t9, t10, t8, t11
        a0, a1, a2, a3 = t2, t3, t4, t5
        vS, vT = g.RL_V + ui, g.RL_V + 2 + ui
        L = [g.label("rl") for _ in range(5)]
        if ui == 0:
            g.e(f"s_mov_b32 s{u}, s2\ns_cmp_ge_u32 s{u}, 224\ns_cbranch_scc1 {L[0]}")
            g.srd(RA, pW1, 512 * 3584)
            g.srd(RB, pW3, 512 * 3584)
            g.e(f"""
            s_mov_b32 s{sRS}, 3584
            s_lshr_b32 s{a0}, s{u}, 3
            s_and_b32 s{a1}, s{u}, 7
            s_lshl_b32 s{a2}, s{a1}, 2
            s_add_u32 s{a2}, s{a2}, s{sW}
            s_mul_i32 s{sSO}, s{a2}, {16 * 3584}
            s_lshl_b32 s{a2}, s{a0}, 7
            s_add_u32 s{sSO}, s{sSO}, s{a2}
            s_lshl_b32 s{a0}, s{a0}, 2
            s_add_u32 s{a0}, s{a0}, s{sW}
            s_lshl_b32 s{sXO}, s{a0}, 10
            s_add_u32 s{sXO}, s{sXO}, {WX13}
            s_mul_i32 s{a2}, s{a0}, 9363
            s_lshr_b32 s{a2}, s{a2}, 16
            s_mul_i32 s{a3}, s{a2}, 7
            s_sub_u32 s{a3}, s{a0}, s{a3}
            s_mul_i32 s{sDO}, s{a2}, 229376
            s_add_u32 s{sDO}, s{sDO}, {W13}
            s_mov_b32 s{a2}, {passes[0][0]}
            s_mov_b32 s{sDS}, {(passes[0][1] - passes[0][0]) * 1024}
            """)
            for a, b in passes[1:]:
                g.e(f"s_cmp_ge_u32 s{a3}, {a}\ns_cselect_b32 s{a2}, {a}, s{a2}\ns_cselect_b32 s{sDS}, {(b - a) * 1024}, s{sDS}")
            g.e(f"""
            s_mul_i32 s{a0}, s{a2}, 31
            s_add_u32 s{a0}, s{a0}, s{a3}
            s_lshl_b32 s{a0}, s{a0}, 10
            s_add_u32 s{sDO}, s{sDO}, s{a0}
            s_mov_b32 s{sMH}, 8192
            s_lshl_b32 s{sWO}, s{sW}, 5
            """)
            other, nks, wdst, first, ptr = "wo", 32, WO, 224, pWO
        else:
            if g.cfg.spare:
                g.e(f"s_mov_b32 s{a0}, s{sC}")
                for v in g.cfg.spare:
                    g.e(f"s_cmp_gt_u32 s{sC}, {v}\ns_subb_u32 s{a0}, s{a0}, 0")
                g.e(f"s_lshl_b32 s{u}, s{a0}, 3\ns_add_u32 s{u}, s{u}, s{sX}\ns_min_u32 s{u}, s{u}, 207\ns_cmp_lt_u32 s{u}, 112\ns_cbranch_scc1 {L[0]}")
            else:
                g.e(f"s_sub_u32 s{a0}, s2, 208\ns_cmp_ge_u32 s2, 208\ns_cselect_b32 s{u}, s{a0}, s2\ns_cmp_lt_u32 s{u}, 112\ns_cbranch_scc1 {L[0]}")
            g.srd(RA, pWQ, 512 * 3072)
            g.srd(RB, pWQ, 512 * 3072 - 128)
            g.e(f"""
            s_add_u32 s{RB}, s{RB}, 128
            s_addc_u32 s{RB + 1}, s{RB + 1}, 0
            s_mov_b32 s{sRS}, 3072
            s_sub_u32 s{a0}, s{u}, 112
            s_and_b32 s{a1}, s{a0}, 7
            s_lshr_b32 s{a0}, s{a0}, 3
            s_lshl_b32 s{a2}, s{a1}, 2
            s_add_u32 s{a2}, s{a2}, s{sW}
            s_mul_i32 s{sSO}, s{a2}, {16 * 3072}
            s_lshl_b32 s{a2}, s{a0}, 8
            s_add_u32 s{sSO}, s{sSO}, s{a2}
            s_lshl_b32 s{a0}, s{a0}, 2
            s_add_u32 s{a0}, s{a0}, s{sW}
            s_lshl_b32 s{sXO}, s{a0}, 10
            s_add_u32 s{sXO}, s{sXO}, {WXQ}
            s_and_b32 s{a2}, s{a0}, 15
            s_mul_i32 s{sDO}, s{a2}, {32 * 3072}
            s_lshr_b32 s{a2}, s{a0}, 4
            s_lshl_b32 s{a2}, s{a2}, 10
            s_add_u32 s{sDO}, s{sDO}, s{a2}
            s_add_u32 s{sDO}, s{sDO}, {WQ}
            s_mov_b32 s{sDS}, 3072
            s_mov_b32 s{sMH}, 32
            s_lshr_b32 s{sWO}, s{sW}, 1
            s_lshl_b32 s{sWO}, s{sWO}, 13
            s_and_b32 s{a2}, s{sW}, 1
            s_lshl_b32 s{a2}, s{a2}, 6
            s_add_u32 s{sWO}, s{sWO}, s{a2}
            """)
            other, nks, wdst, first, ptr = "w2", 112, W2, 0, pW2
        g.e(f"""
        s_lshl_b32 s{a0}, s{sDS}, 2
        s_mul_i32 s{a0}, s{a0}, s{a1}
        s_add_u32 s{sDO}, s{sDO}, s{a0}
        s_and_b32 s{a0}, s{a1}, 4
        s_lshl_b32 s{a0}, s{a0}, 7
        s_add_u32 s{sXO}, s{sXO}, s{a0}
        s_and_b32 s{a0}, s{a1}, 3
        s_lshl_b32 s{a0}, s{a0}, 2
        s_add_u32 s{sXO}, s{sXO}, s{a0}
        s_mov_b32 s{a0}, 0
        s_mov_b32 s{a1}, 0
        s_branch {L[1]}
        {L[0]}:
        """)
        g.srd(RA, ptr, nks * 16 * 1024)
        g.srd(RB, ptr, nks * 16 * 1024 - 512)
        g.e(f"""
        s_add_u32 s{RB}, s{RB}, 512
        s_addc_u32 s{RB + 1}, s{RB + 1}, 0
        s_mov_b32 s{sRS}, 1024
        s_sub_u32 s{a0}, s{u}, {first}
        s_lshl_b32 s{sSO}, s{a0}, 14
        s_lshr_b32 s{a1}, s{sW}, 1
        s_lshl_b32 s{sWO}, s{a1}, 13
        s_mul_i32 s{a1}, s{a1}, {4 * nks}
        s_add_u32 s{a1}, s{a1}, s{a0}
        s_lshl_b32 s{sDO}, s{a1}, 11
        s_and_b32 s{a1}, s{sW}, 1
        s_lshl_b32 s{a2}, s{a1}, 10
        s_add_u32 s{sDO}, s{sDO}, s{a2}
        s_add_u32 s{sDO}, s{sDO}, {wdst}
        s_mov_b32 s{sDS}, {nks * 2048}
        s_lshl_b32 s{a2}, s{a1}, 6
        s_add_u32 s{sWO}, s{sWO}, s{a2}
        s_mov_b32 s{sMH}, 32
        s_lshl_b32 s{sXO}, s{u}, 2
        s_add_u32 s{sXO}, s{sXO}, s{sW}
        s_and_b32 s{sXO}, s{sXO}, 63
        s_lshl_b32 s{sXO}, s{sXO}, 10
        s_add_u32 s{sXO}, s{sXO}, {WXD}
        s_mov_b32 s{a0}, 3
        s_mov_b32 s{a1}, s{sW}
        {L[1]}:
        v_lshrrev_b32 v{vS}, 7, v{vL16}
        v_and_b32 v{vt2}, s{a0}, v{vS}
        v_xor_b32 v{vt2}, s{a1}, v{vt2}
        v_mul_lo_u32 v{vS}, v{vS}, s{sRS}
        v_lshl_add_u32 v{vS}, v{vt2}, 7, v{vS}
        v_and_b32 v{vT}, 0x70, v{vL16}
        v_add3_u32 v{vS}, v{vS}, v{vT}, s{sSO}
        s_lshl_b32 s{4 + ui}, s{sRS}, 3
        s_add_u32 s{sWO}, s{sWO}, {g.RL_LDS + ui * 16384}
        v_bfe_u32 v{vT}, v{vL16}, 8, 1
        v_mul_lo_u32 v{vT}, v{vT}, s{sMH}
        v_add_u32 v{vT}, s{sWO}, v{vT}
        v_lshrrev_b32 v{vt2}, 9, v{vL16}
        v_lshl_add_u32 v{vT}, v{vt2}, 10, v{vT}
        v_bfe_u32 v{vt2}, v{vL16}, 6, 2
        v_lshl_add_u32 v{vT}, v{vt2}, 7, v{vT}
        v_and_b32 v{vt2}, s{a0}, v{vt2}
        v_lshl_add_u32 v{vT}, v{vt2}, 11, v{vT}
        v_and_b32 v{vt2}, 16, v{vL16}
        v_add_u32 v{vT}, v{vt2}, v{vT}
        v_bfe_u32 v{vt2}, v{vL16}, 5, 1
        v_lshl_add_u32 v{vT}, v{vt2}, 3, v{vT}
        v_add_u32 v{g.RL_V + 4 + ui}, s{4 + ui}, v{vS}
        """)
        if ui == 1 and g.cfg.spare:
            mask = sum(1 << v for v in g.cfg.spare)
            g.e(f"""
            s_lshr_b32 s{a0}, {mask:#x}, s{sC}
            s_and_b32 s{a0}, s{a0}, 1
            s_cselect_b32 s{RA + 2}, 0, s{RA + 2}
            s_cselect_b32 s{RB + 2}, 0, s{RB + 2}
            s_cselect_b32 s{sDO}, {WS_BYTES:#x}, s{sDO}
            s_cselect_b32 s{sXO}, {WS_BYTES:#x}, s{sXO}
            """)

    def relayout_dma_ops(self, regs=None):
        g = self
        ops = []
        for ui in range(2):
            for i in range(4):
                def op(ui=ui, i=i):
                    g.e(f"s_lshl_b32 s{t5}, s{sW}, 11\ns_add_u32 s{t5}, s{t5}, {g.RL_LDS + ui * 16384 + (i // 2) * 8192 + (i % 2) * 1024}")
                    g.e(f"s_mov_b32 m0, s{t5}\ns_nop 0")
                    g.m0_owner = None
                    g.dma(regs[i % 2] if regs else g.RL_V + ui + 4 * (i % 2), g.RL_SRD[ui][i // 2], None, 0, mods="", tag=("rl", ui))
                ops.append(op)
        return ops

    def relayout_out_ops(self, d=244, CS=224, ONE=240, vS=(vt2, vt3), ta=vt0):
        g = self
        ops = []
        for ui in range(2):
            sDO, sDS = g.RL_DO[ui], g.RL_DO[ui] + 1
            for i in range(4):
                def rd(ui=ui, i=i):
                    if i:
                        g.e(f"v_xor_b32 v{vS[ui]}, {(i ^ (i - 1)) << 11}, v{vS[ui]}")
                    g.ds(f"ds_read_b64_tr_b16 {vr(d, 2)}, v{vS[ui]}", ("rl", i))
                    g.ds(f"ds_read_b64_tr_b16 {vr(d + 2, 2)}, v{vS[ui]} offset:512", ("rl", i))

                def wr(i=i, sDO=sDO, sDS=sDS):
                    g.lwait(("rl", i))
                    g.st(vr(d, 4), vL16, sWS, sDO, 0, "sc1", tag="rlst")
                    g.e(f"s_add_u32 s{sDO}, s{sDO}, s{sDS}")

                def cs(i=i):
                    g.e(f"v_mfma_f32_32x32x16_bf16 {ar(CS, 16)}, {ar(ONE, 4)}, {vr(d, 4)}, {ar(CS, 16) if i else '0'}")
                ops += [(rd, "A"), (wr, "C"), (cs, "D")]

            def xo(ui=ui):
                g.e(f"""
                v_accvgpr_read_b32 v254, a{CS}
                v_and_b32 v{ta}, 0x1f0, v{vL16}
                v_cvt_pk_bf16_f32 v255, v254, v254
                v_lshlrev_b32 v255, 16, v255
                v_sub_f32 v255, v254, v255
                v_cvt_pk_bf16_f32 v255, v254, v255
                """)
                g.st(vr(255), ta, sWS, g.RL_XO[ui], 0, "sc1", tag="rlst", w=1)
            ops.append((xo, "X"))
        return ops

    def ew_ops(self, lo, hi, ts):
        g = self
        a, b = ts
        ops = []

        def setup():
            g.e(f"s_mul_i32 s{a}, s{sCB}, {112 * 2048}\ns_mul_i32 s{b}, s{sW}, {28 * 2048}")
        def setup2():
            g.e(f"s_add_u32 s{a}, s{a}, s{b}\ns_add_u32 s{a}, s{a}, {W2 + (lo // 4) * 4096}")
        def setup3():
            g.e(f"s_lshl_b32 s{b}, s{sNA}, 10\ns_add_u32 s{a}, s{a}, s{b}")
        def setup4():
            g.e(f"s_xor_b32 s{b}, s{a}, 1024")
        ops += [setup, setup2, setup3, setup4]
        assert lo % 4 == 0
        for idx in range(lo, hi):
            def op(idx=idx):
                i, n = divmod(idx, 2)
                if idx > lo and idx % 4 == 0:
                    g.e(f"s_add_u32 s{a}, s{a}, 4096\ns_add_u32 s{b}, s{b}, 4096")
                g.ld(ar(4 * idx, 4), vL16, sWS, (a, b)[n], (i % 2) * 2048, mods=g.cfg.wmods, tag="ew")
            ops.append(op)
        return ops

    def phaseB(self, layer):
        g = self
        cfg = g.cfg
        O, Q, S, KV = 16, 144, 176, 208
        vV = 252
        CW = [R("a", 224 + 4 * i) for i in range(8)] + [R("v", 220 + 4 * i) for i in range(8)]
        if cfg.b_tail:
            CW[11:] = [R("v", b) for b in (244, 248, 144, 148, 152)]
        SBo, SBl = 104 * 1024, 152 * 1024
        sKV, sG = 6, 7
        g.e(f"v_mov_b32 v{vt0}, 0x3f803f80\ns_mov_b32 s{t0}, {0x00010000 if cfg.one_row else 0x00110000:#x}\ns_mov_b32 s{t1}, {0x00010000 if cfg.one_row else 0x00110000:#x}")
        if layer == 0 and not cfg.rl_in_a:
            for i in range(4):
                g.e(f"v_accvgpr_write_b32 a{240 + i}, v{vt0}")
            g.e(f"v_mov_b32 v{vt2}, v{g.RL_V + 2}\nv_mov_b32 v{vt3}, v{g.RL_V + 3}")
        g.e(f"v_cndmask_b32 v{vIdx}, 0, v{vt0}, s[{t0}:{t1}]")
        for r in range(4, 12):
            g.e(f"v_mov_b32 v{KV + r}, v{vIdx}")

        def late_setup():
            for e in range(1, 3):
                for r in range(4, 12):
                    g.e(f"v_mov_b32 v{KV + 12 * e + r}, v{vIdx}")
            g.e(f"v_mov_b32 v{vIdx}, 0xdddddddd")
            for j in range(8):
                if cfg.zero16:
                    for r in range(0, 16, 2):
                        g.e(f"v_pk_mov_b32 {vr(O + 16 * j + r, 2)}, 0, 0")
                else:
                    for r in range(9):
                        g.e(f"v_mov_b32 v{O + 16 * j + r}, 0")
            g.e(f"""
            v_bfe_u32 v{vt0}, v{vL16}, 5, 3
            v_add_u32 v{vt0}, s{sX}, v{vt0}
            v_and_b32 v{vt0}, 7, v{vt0}
            v_lshlrev_b32 v253, 7, v{vt0}
            v_bfe_u32 v{vt0}, v{vL16}, 4, 1
            v_lshl_add_u32 v253, v{vt0}, 2, v253
            """)
            if layer == 0 and cfg.rl_split:
                g.e(f"v_mov_b32 v{vt0}, 0x3f803f80")
                for i in range(4):
                    g.e(f"v_accvgpr_write_b32 a{240 + i}, v{vt0}")
                g.e(f"v_mov_b32 v{vt0}, v{g.RL_V + 3}\nv_mov_b32 v{vt2}, v{g.RL_V + 1}\nv_mov_b32 v{vt3}, v{g.RL_V + 5}")
        g.e(f"""
        v_lshrrev_b32 v{vt0}, 9, v{vL16}
        v_lshlrev_b32 v{vV}, 8, v{vt0}
        v_and_b32 v{vt0}, 0xf0, v{vL16}
        v_add_u32 v{vV}, v{vV}, v{vt0}
        v_and_b32 v{vt0}, 28, v{vL4}
        s_lshl_b32 s{t0}, s{sX}, 4
        s_lshr_b32 s{t1}, s{sC}, 1
        s_add_u32 s{t0}, s{t0}, s{t1}
        s_lshl_b32 s{t0}, s{t0}, 7
        s_add_u32 s{t0}, s{t0}, {FA_L}
        s_lshl_b32 s{sG}, s{t1}, 10
        s_lshl_b32 s{t2}, s{sW}, 3
        s_add_u32 s{sG}, s{sG}, s{t2}
        s_add_u32 s{sG}, s{sG}, {FA_G}
        s_lshl_b32 s{t2}, s{sW}, 1
        s_lshl_b32 s{sKV}, s{sC}, 6
        s_add_u32 s{sKV}, s{sKV}, s{t2}
        s_lshl_b32 s{sKV}, s{sKV}, 11
        s_add_u32 s{sKV}, s{sKV}, {aKV(layer)}
        s_lshl_b32 s{t3}, s{sX}, 8
        s_add_u32 s{t3}, s{t3}, s{sC}
        s_lshl_b32 s{t3}, s{t3}, 10
        s_add_u32 s{t3}, s{t3}, {aQ(layer)}
        """)
        for j in range(8):
            g.e(f"s_add_u32 s{t4 + j}, s{t2}, {2 + j}\ns_and_b32 s{t4 + j}, s{t4 + j}, 7\ns_lshl_b32 s{t4 + j}, s{t4 + j}, 15\ns_add_u32 s{t4 + j}, s{t4 + j}, s{t3}")
        g.e(f"s_lshl_b32 s3, s{sX}, 14\ns_add_u32 s3, s3, s{sKV}")
        g.vwait0()
        g.stamp(f"B{layer}:ack")
        if layer == 0 and cfg.b0_g:
            g.e(f"s_and_b32 s{t0}, s{sG}, 0xfffffc00\ns_lshl_b32 s4, s{sX}, 7\ns_add_u32 s{t0}, s{t0}, s4")
        else:
            g.signal(0, layer + 1, layer > 0 or cfg.xcc_early)
        if cfg.b_opt == 2 and layer > 0:
            g.poll(vt0, t0, layer + 1, True)
        else:
            l3, l0 = g.label("b3"), g.label("b0")
            g.e(f"s_barrier\ns_cmp_eq_u32 s{sW}, 3\ns_cbranch_scc0 {l3}")
            if layer == 0 and cfg.a0b:
                assert cfg.b0_g
                g.e(f"""
                s_lshl_b32 s{t1}, s{sCB}, 4
                s_add_u32 s{t1}, s{t1}, s{sX}
                s_lshl_b32 s{t1}, s{t1}, 7
                s_and_b32 s4, s{sTA}, 6
                s_lshl_b32 s4, s4, 2
                s_add_u32 s{t1}, s{t1}, s4
                s_add_u32 s{t1}, s{t1}, {FA_G}
                v_and_b32 v254, 4, v{vL4}
                v_lshlrev_b32 v254, 8, v254
                v_bfe_u32 v{vt1}, v{vL4}, 3, 1
                v_lshl_add_u32 v254, v{vt1}, 2, v254
                v_mov_b32 v{vt1}, 1
                s_mov_b64 exec, 15
                buffer_store_dword v{vt1}, v254, {sr(sWS, 4)}, s{t1} offen sc1
                s_mov_b64 exec, -1
                {l3}:
                """)
            else:
                g.e(f"v_readlane_b32 s{t1}, v{vFl}, 1\nv_mov_b32 v{vt1}, {layer + 1}\ns_mov_b64 exec, 15\ns_sub_u32 s{t1}, s{t1}, 12\ns_nop 1")
                g.e(f"buffer_store_dword v{vt1}, v{vL4}, {sr(sWS, 4)}, s{t1} offen sc1\ns_mov_b64 exec, -1\n{l3}:")
            if layer == 0 and cfg.rl_in_a:
                l2 = g.label("b2")
                g.e(f"s_cmp_eq_u32 s{sW}, 2\ns_cbranch_scc0 {l2}\nv_mov_b32 v{vt1}, 1\ns_mov_b64 exec, 64")
                g.e(f"buffer_store_dword v{vt1}, v{vFl}, {sr(sWS, 4)}, 0 offen sc1\ns_mov_b64 exec, -1\n{l2}:")
            if cfg.kv_touch:
                lt = g.label("bt")
                g.e(f"""
                s_sub_u32 s4, s{sW}, 1
                s_cmp_lt_u32 s4, 2
                s_cbranch_scc0 {lt}
                s_lshl_b32 s5, s{sHP}, 1
                s_add_u32 s4, s4, s5
                s_lshl_b32 s4, s4, 6
                s_and_b32 s5, s{sT}, 0xfc
                s_add_u32 s4, s4, s5
                s_lshl_b32 s4, s4, 11
                s_add_u32 s4, s4, {aKV(layer)}
                v_lshlrev_b32 v254, 3, v{vL16}
                buffer_load_dword v255, v254, {sr(sWS, 4)}, s4 offen sc1
                {lt}:
                """)
            g.e(f"s_cmp_eq_u32 s{sW}, 0\ns_cbranch_scc0 {l0}")
            keep = list(g.vmq)
            p2, cfg.poll2 = cfg.poll2, 0
            g.poll(vt0, t0, layer + 1, False, sleep=0 if layer or cfg.xcc_early else cfg.b0_sleep)
            cfg.poll2 = p2
            g.vmq = keep
            g.e(f"{l0}:\ns_barrier")
            if layer > 0:
                g.dual("", "buffer_inv sc1\ns_waitcnt vmcnt(0)", 0)
        g.stamp(f"B{layer}go")

        def kv_addr1(kt):
            g.e(f"s_add_u32 s3, s{sX}, {kt // 2}\ns_and_b32 s3, s3, 7")

        def kv_addr2(kt):
            g.e(f"s_lshl_b32 s3, s3, 14\ns_add_u32 s3, s3, s{sKV}")

        def ldK(kt):
            g.ld(vr(KV + 12 * (kt % 3), 4), vL16, sWS, 3, (kt % 2) * 2048, mods=cfg.kvmods, tag=("K", kt))

        def ldV(kt, halves=(0, 1)):
            e = KV + 12 * (kt % 3)
            g.e(f"s_mov_b64 exec, s[{sVM}:{sVM + 1}]")
            for h in halves:
                g.ld(vr(e + 4 + 4 * h, 4), vV, sWS, 3, (kt % 2) * 2048 + 1024 + 512 * h, mods=cfg.kvmods, tag=("V", kt))
            g.e("s_mov_b64 exec, -1")

        def ldQ(j):
            g.ld(vr(Q + 4 * j, 4), vL16, sWS, t4 + j, 0, tag=("Q", j))
        ldK(0)
        ldQ(0)
        ldQ(1)
        ldV(0)
        for j in range(2, cfg.q_up):
            ldQ(j)
        if cfg.b_opt == 2 and layer > 0:
            for j in range(cfg.q_up, 8):
                ldQ(j)
            ldK(1)
        late_setup()
        if cfg.b_opt == 2 and layer > 0:
            ldV(1)
            g.signal(1, layer + 1, False)

        gaps = {}

        def at(n, gap, fn):
            gaps.setdefault((n, gap), []).append(fn)

        def place(ops, n0, gap0="A", allowed="AC", step=0):
            pos = 3 * n0 + "ABC".index(gap0)
            for op in ops:
                while "ABC"[pos % 3] not in allowed or (pos // 3, "ABC"[pos % 3]) in gaps:
                    pos += 1
                at(pos // 3, "ABC"[pos % 3], op)
                pos += 1 + step
            return pos // 3 + 1

        def spread(ops, n0, per_tile=3, gapset="ABC"):
            return place(ops, n0, gapset[0], gapset, 0 if per_tile > 1 else 2)

        for j in range(1, 8):
            at(j - 1, "a", lambda j=j: g.vwait(("Q", j)))
        at(0, "B", lambda: g.vwait(("V", 0)))
        for kt in range(1, 16):
            at(112 if kt == 15 and cfg.b_tail else 8 * kt - 1, "A", lambda kt=kt: g.vwait(("V", kt)))
        if not (cfg.b_opt == 2 and layer > 0):
            place([lambda j=j: ldQ(j) for j in range(cfg.q_up, 8)] + [lambda: ldK(1), lambda: ldV(1)], 0, "A", "AC")

        def red_addr(d):
            g.e(f"s_add_u32 s{t0}, s{sW}, {1 + d}\ns_and_b32 s{t0}, s{t0}, 3")
        def red_addr2(d):
            g.e(f"s_mul_i32 s{t0}, s{t0}, 6\ns_add_u32 s{t0}, s{t0}, {2 * d}")
        def red_addr3(d):
            g.e(f"s_lshl_b32 s{t1}, s{t0}, 11\ns_add_u32 s{t1}, s{t1}, {SBo}\nv_add_u32 v{(vt0, vt1)[d % 2]}, s{t1}, v{vL16}")
        def red_addr4(d):
            g.e(f"s_lshl_b32 s{t1}, s{t0}, 8\ns_add_u32 s{t1}, s{t1}, {SBl}\nv_add_u32 v{(vt2, vt3)[d % 2]}, s{t1}, v{vL4}")

        def red_wr(j, part):
            b = O + 16 * j
            s_ = j % 2
            va, vb = (vt0, vt1)[(j // 2) % 2], (vt2, vt3)[(j // 2) % 2]
            if part == 0:
                g.ds(f"ds_write_b128 v{va}, {vr(b, 4)} offset:{s_ * 2048}")
            elif part == 1:
                g.ds(f"ds_write_b128 v{va}, {vr(b + 4, 4)} offset:{s_ * 2048 + 1024}")
            else:
                g.ds(f"ds_write_b32 v{vb}, v{b + 8} offset:{s_ * 256}")
        order = [divmod(n, 8) for n in range(128)]
        if cfg.b_tail:
            order[112:] = [(14 + k, j) for j in range(6) for k in range(2)] + [(14, 6), (14, 7), (15, 6), (15, 7)]
            for j in range(6):
                for part in range(3):
                    at(115 + 2 * j, "ABC"[part], lambda j=j, part=part: red_wr(j, (0, 2, 1)[part]))
            for d, n in enumerate((112, 116, 120)):
                at(n, "B", lambda d=d: red_addr(d))
                at(n, "C", lambda d=d: red_addr2(d))
                at(n + 2, "A", lambda d=d: red_addr3(d))
                at(n + 2, "C", lambda d=d: red_addr4(d))
        else:
            for j in range(6):
                at(121 + j, "D", lambda j=j: red_wr(j, 2))
                at(121 + j, "D", lambda j=j: red_wr(j, 0))
                at(122 + j, "A", lambda j=j: red_wr(j, 1))
            for d, n in enumerate((117, 119, 124)):
                at(n, "B", lambda d=d: red_addr(d))
                at(n, "C", lambda d=d: red_addr2(d))
                at(n + 1, "B", lambda d=d: red_addr3(d))
                at(n + 1, "C", lambda d=d: red_addr4(d))
        PB = 16

        def own_addr():
            g.e(f"""
            s_mul_i32 s{t0}, s{sW}, 6
            s_lshl_b32 s{t1}, s{t0}, 11
            s_add_u32 s{t1}, s{t1}, {SBo}
            v_add_u32 v{vt1}, s{t1}, v{vL16}
            s_lshl_b32 s{t1}, s{t0}, 8
            s_add_u32 s{t1}, s{t1}, {SBl}
            v_add_u32 v{vt3}, s{t1}, v{vL4}
            """)

        def own_bar():
            g.vwait("w13a")
            g.lwait0()
            g.e("s_barrier")

        def own_rd(s_, ds_=(0, 1, 2)):
            for d in ds_:
                b = PB + 10 * (3 * s_ + d)
                g.ds(f"ds_read_b128 {vr(b, 4)}, v{vt1} offset:{(2 * d + s_) * 2048}", ("p", s_))
                g.ds(f"ds_read_b128 {vr(b + 4, 4)}, v{vt1} offset:{(2 * d + s_) * 2048 + 1024}", ("p", s_))
                g.ds(f"ds_read_b32 v{b + 8}, v{vt3} offset:{(2 * d + s_) * 256}", ("p", s_))

        def o_addr():
            g.e(f"""
            s_lshl_b32 s{t0}, s{sX}, 3
            s_lshl_b32 s{t1}, s{sW}, 1
            s_add_u32 s{t0}, s{t0}, s{t1}
            s_lshl_b32 s{t0}, s{t0}, 5
            s_add_u32 s{t0}, s{t0}, s{sC}
            s_lshl_b32 s{t0}, s{t0}, 10
            s_add_u32 s{t0}, s{t0}, {aO(layer)}
            s_add_u32 s{t1}, s{t0}, 32768
            """)
        if cfg.b_tail:
            at(124, "A", own_addr)
            at(124, "C", o_addr)
            at(126, "A", own_bar)
            at(126, "B", lambda: own_rd(0, (0,)))
            at(126, "C", lambda: own_rd(0, (1, 2)))
            at(127, "A", lambda: own_rd(1, (0, 1)))
            at(127, "B", lambda: own_rd(1, (2,)))
        else:
            at(126, "C", own_addr)
            at(127, "B", own_bar)
            at(127, "C", lambda: own_rd(0))
            at(127, "D", lambda: own_rd(1))

        vG, vGd = 253, 249

        def gpoll_ld():
            g.ld(vr(vGd), vG, sWS, sG, 0, tag="gf", w=1)

        def gpoll_snap():
            g.vwait("gf")
            g.e(f"v_cmp_gt_u32 s[{sSN2}:{sSN2 + 1}], {layer + 1}, v{vGd}")

        def gcheck(kt):
            ls, lj, lp = g.label("gslow"), g.label("gjoin"), g.label("gp")
            m = 3 << kt
            g.e(f"s_and_b32 s{sTO}, s{sSN2}, {m}\ns_cbranch_scc1 {ls}\n{lj}:")
            g.tail.append(f"""{ls}:
            s_mov_b32 s{sTO}, {TIMEOUT}
            {lp}:
            buffer_load_dword v{vGd}, v{vG}, {sr(sWS, 4)}, s{sG} offen sc1
            s_sub_u32 s{sTO}, s{sTO}, 1
            s_cbranch_scc1 L_exit
            s_waitcnt vmcnt(0)
            v_cmp_gt_u32 s[{sSN2}:{sSN2 + 1}], {layer + 1}, v{vGd}
            s_nop 1
            s_and_b32 s4, s{sSN2}, {m}
            s_cbranch_scc0 {lj}
            s_sleep {cfg.g_sleep}
            s_branch {lp}""")
        gp = cfg.gp[layer]
        place([gpoll_ld], gp, "C")
        n = place([gpoll_snap, lambda: gcheck(2), lambda: kv_addr1(2), lambda: kv_addr2(2), lambda: ldK(2), lambda: ldV(2)], gp + 3, "B", "ABC")
        for kt in range(3, 16):
            n = max(8 * (kt - 2), n)
            if kt % 2 == 0:
                place([lambda kt=kt: gcheck(kt), lambda kt=kt: kv_addr1(kt), lambda kt=kt: kv_addr2(kt)], n - 2, "A", "AC")
            if cfg.v_split:
                n = place([lambda kt=kt: ldK(kt), lambda kt=kt: ldV(kt, (0,)), lambda kt=kt: ldV(kt, (1,))], n, "A", "AC")
            else:
                n = place([lambda kt=kt: ldK(kt), lambda kt=kt: ldV(kt)], n, "A", "AC")

        def w13base():
            g.e(f"s_mul_i32 s{t11 - 1}, s{sHP}, 229376\ns_add_u32 s{t11 - 1}, s{t11 - 1}, {W13}")
        if layer == 0:
            n = cfg.rl0
            if cfg.rl_in_b:
                def rl_bar():
                    g.vwait(("rl", 1))
                    g.e("s_barrier")
                n = spread(g.relayout_dma_ops(), cfg.rl0, 3, "ABC") + cfg.rl_lat
                at(n - 1, "C", rl_bar)
            if cfg.cold_touch:
                ct = [lambda: g.e(f"v_and_b32 v250, 0x3c0, v{vL16}\nv_lshlrev_b32 v250, 1, v250")]
                xa, sa = g.x_addr(layer, 0, t4, t5)
                groups = [g.touch_ops(xa, t4, 1, 250, 251) + g.touch_ops(sa, t4, 1, 250, 251)]
                if cfg.cold_touch > 1:
                    hh = g.touch_ops(g.h_addr(layer, t4, t5), t4, 4, 250, 251)
                    groups += [hh[:3], hh[3:4], hh[4:5], hh[5:]] if cfg.cold_touch == 3 else [hh[:4], hh[4:]]
                at(cfg.ct0, "A", ct[0])
                for gi, grp in enumerate(groups):
                    spread(grp, cfg.ct0 + 1 + 8 * gi, 3, "ABC")
            place([lambda: g.e(f"v_bfe_u32 v250, v{vL16}, 4, 5\nv_lshlrev_b32 v250, 10, v250"),
                   lambda: g.e(f"v_lshrrev_b32 v251, 9, v{vL16}\nv_lshl_add_u32 v250, v251, 4, v250"),
                   lambda: g.e(f"s_lshl_b32 s{t0}, s{sCB}, 1\ns_add_u32 s{t0}, s{t0}, s{sNA}"),
                   lambda: g.e(f"s_lshl_b32 s{t0}, s{t0}, 6\ns_lshl_b32 s{t1}, s{sTA}, 15"),
                   lambda: g.e(f"s_add_u32 s{t0}, s{t0}, s{t1}"),
                   lambda: g.ld(vr(vRes, 4), 250, sXIN, t0, 0, mods="", tag="res"),
                   lambda: g.ld(vr(vRes + 4, 4), 250, sXIN, t0, 32, mods="", tag="res")], 9, "A", "AC")
            if not cfg.xcc_early:
                at(8, "A", g.xcc_send)
                at(100, "B", g.xcc_load)
                at(105, "B", g.xcc_check)
            if not cfg.rl_in_a:
                for op, gap in g.relayout_out_ops():
                    if gap == "X":
                        at(n, "C", op)
                        n += 1
                    else:
                        at(n, gap, op)
                        n += gap == "D"

                def rl_sig():
                    g.vwait("rlst")
                    g.e("s_barrier")
                    L = g.label("rls")
                    g.e(f"v_mov_b32 v{vt1}, 1\ns_cmp_eq_u32 s{sW}, 0\ns_cbranch_scc0 {L}\ns_mov_b64 exec, 64")
                    g.e(f"buffer_store_dword v{vt1}, v{vFl}, {sr(sWS, 4)}, 0 offen sc1\ns_mov_b64 exec, -1\n{L}:")
                    g.stamp("R_sig")
                n += cfg.rl_ack
                at(n, "A", rl_sig)

            def rl_ld():
                g.e(f"s_mov_b32 s{t10}, {FR}\nv_lshlrev_b32 v248, 3, v{vL16}")
                g.ld(vr(244, 4), 248, sWS, t10, 0, tag="rf")

            def rl_check():
                g.stamp("R_pre")
                g.late_check("rf", f"buffer_load_dwordx4 v[244:247], v248, {sr(sWS, 4)}, s{t10} offen sc1",
                             "v_min_u32 v244, v244, v245\nv_min3_u32 v244, v244, v246, v247\nv_cmp_gt_u32 vcc, 1, v244", cfg.rl_sleep)
                g.stamp("R_chk")
            n = cfg.rl_ld if cfg.rl_in_a else n + cfg.rl_gap
            at(n, "A", rl_ld)
            n += 5
            at(n, "A", rl_check)
            n0 = n + 1
            if cfg.rl_split:
                place(g.relayout_dma_ops((vt2, vt3))[4:], cfg.rs_dma, "A", "AC")

                def rl_bar():
                    g.vwait(("rl", 1))
                    g.e("s_barrier")
                n = max(cfg.rs_out, n0)
                at(n - 1, "C", rl_bar)
                for op, gap in g.relayout_out_ops(244, 224, 240, (vt0, vt0), 250)[13:]:
                    if gap == "X":
                        at(n, "C", op)
                        n += 1
                    else:
                        at(n, gap, op)
                        n += gap == "D"

                def rl_sig2():
                    g.vwait("rlst")
                    g.e("s_barrier")
                    L = g.label("rls")
                    g.e(f"v_mov_b32 v{vt1}, 2\ns_cmp_eq_u32 s{sW}, 0\ns_cbranch_scc0 {L}\ns_mov_b64 exec, 64")
                    g.e(f"buffer_store_dword v{vt1}, v{vFl}, {sr(sWS, 4)}, 0 offen sc1\ns_mov_b64 exec, -1\n{L}:")
                at(n + cfg.rl_ack, "A", rl_sig2)

                def rl_ld2():
                    g.e(f"s_mov_b32 s{t7}, {FR}")
                    g.ld(vr(244, 4), 248, sWS, t7, 0, tag="rf2")

                def rl_check2():
                    g.late_check("rf2", f"buffer_load_dwordx4 v[244:247], v248, {sr(sWS, 4)}, s{t7} offen sc1",
                                 "v_min_u32 v244, v244, v245\nv_min3_u32 v244, v244, v246, v247\nv_cmp_gt_u32 vcc, 2, v244", cfg.rl_sleep)
        else:
            n0 = 10
        at(n0, "A", w13base)

        def costed(ops, nsetup, c):
            return [(op, 0.0) for op in ops[:nsetup]] + [(op, 0.0 if isinstance(op, SOp) else c) for op in ops[nsetup:]]
        pops = costed(g.dma_ops(0, 26, t11 - 1, 0, "w13a", (t8, t9)), 2, 0.5)
        if layer == 0 and cfg.rl_split:
            pops += [(rl_ld2, 2.0), (rl_check2, 0.0)]
        if layer == 0 and cfg.ew_in_b:
            pops += costed(g.ew_ops(0, cfg.ew_in_b, (t8, t9)), 4, 0.25)
        p16 = lambda: g.e(f"v_and_b32 v254, 0x3c0, v{vL16}\nv_lshlrev_b32 v254, 1, v254")
        pops.append((p16, 0.0))
        npf = cfg.pf_w13[layer]
        if npf:
            pa = [f"s_lshr_b32 s{t4}, s{sC}, 4\ns_lshl_b32 s{t4}, s{t4}, 2", f"s_add_u32 s{t4}, s{t4}, s{sW}\ns_mul_i32 s{t4}, s{t4}, {npf * 2048}",
                  f"s_add_u32 s{t4}, s{t4}, s{t11 - 1}\ns_add_u32 s{t4}, s{t4}, {104 * 1024}"]
            pops += costed(g.touch_ops(pa, t4, npf, 254, 255), 3, 2.0)
        pa = [f"s_mul_i32 s{t4}, s{sHP}, 7168\ns_lshl_b32 s{t5}, s{sW}, 11", f"s_add_u32 s{t4}, s{t4}, s{t5}\ns_add_u32 s{t4}, s{t4}, {WX13}"]
        pops += costed(g.touch_ops(pa, t4, 1, 254, 255), 2, 1.0)
        if "B" in cfg.touch:
            xa, sa = g.x_addr(layer, 0, t4, t5)
            oa = [f"s_lshl_b32 s{t4}, s{sX}, 2\ns_add_u32 s{t4}, s{t4}, s{sW}", f"s_lshl_b32 s{t4}, s{t4}, 6\ns_add_u32 s{t4}, s{t4}, s{sC}",
                  f"s_lshl_b32 s{t4}, s{t4}, 10\ns_add_u32 s{t4}, s{t4}, {aO(layer)}"]
            if "H" in cfg.touch and cfg.h_in_b[layer]:
                pops += costed(g.touch_ops(g.h_addr(layer, t4, t5), t4, 4, 254, 255), 2, 1.75)
            pops += costed(g.touch_ops(xa, t4, 1, 254, 255), 3, 2.0) + costed(g.touch_ops(sa, t4, 1, 254, 255), 3, 0.3)
            pops += costed(g.touch_ops(oa, t4, 1, 254, 255), 3, 1.0)
            pops += costed(g.touch_ops([f"s_add_u32 s{t4}, s{t4}, 32768"], t4, 1, 254, 255), 1, 1.0)

        cws = [f"s_lshl_b32 s{t8}, s{sCB}, 16\ns_lshl_b32 s{t9}, s{sW}, 14", f"s_add_u32 s{t8}, s{t8}, s{t9}\ns_lshl_b32 s{t9}, s{sNA}, 10",
               f"s_add_u32 s{t8}, s{t8}, s{t9}\ns_add_u32 s{t8}, s{t8}, {WO}", f"s_xor_b32 s{t9}, s{t8}, 1024"]
        cw = []
        for idx in range(16):
            def op(idx=idx):
                i, n_ = divmod(idx, 2)
                if idx and idx % 4 == 0:
                    g.e(f"s_add_u32 s{t8}, s{t8}, 4096\ns_add_u32 s{t9}, s{t9}, 4096")
                g.ld(CW[idx](0, 4), vL16, sWS, (t8, t9)[n_], (i % 2) * 2048, mods=g.cfg.wmods, tag="cw")
            cw.append(op)
        pops += costed([lambda t=t: g.e(t) for t in cws] + cw[:8], 4, 0.25)
        if "n" in cfg.dbg and layer == 1:
            pops = [(op, c) for op, c in pops if c == 0.0]
        if cfg.keep is not None and layer == 1:
            pops = [(op if c == 0.0 or c in cfg.keep else (lambda: None), c) for op, c in pops]
        tot = sum(c + 0.05 for _, c in pops)
        span = cfg.bg_end - (n0 + 1)
        acc, nxt = 0.0, 0
        for op, c in pops:
            pos = max(3 * (n0 + 1) + int(3 * acc / tot * span), nxt)
            allowed = "AC" if cfg.bg_ac and layer else "ABC"
            while "ABC"[pos % 3] not in allowed or (pos // 3, "ABC"[pos % 3]) in gaps:
                pos += 1
            at(pos // 3, "ABC"[pos % 3], op)
            nxt = pos + 1
            acc += c + 0.05
        assert nxt // 3 < (113 if cfg.b_tail else 116), (n0, nxt)
        if cfg.b_tail:
            n = place(cw[8:13], 113, "A", "ABC")
            place(cw[13:], max(n, 118), "A", "ABC")
        else:
            place(cw[8:11], 116, "A", "AC")
            place(cw[11:], 121, "B", "BC")

        if cfg.tlb_out and layer == 1:
            def tlbo():
                g.srd(sOUT, pOUT, 2048 * 1024)
                g.e(f"v_lshlrev_b32 v{vt2}, {cfg.tlb_out - 4}, v{vL16}")
                g.ld("v255", vt2, sOUT, None, 0, mods="", w=1)
            place([tlbo], 20, "A", "AC")
        for n_, skip, nblk in cfg.ct_b:
            place([lambda skip=skip, nblk=nblk: g.code_touch(skip, nblk, vt2, 255)], n_, "A", "AC")

        def run(n, gap):
            for fn in gaps.pop((n, gap), []):
                if "k" in cfg.dbg and layer == 1 and 16 <= n < 112:
                    continue
                fn()

        def qk(n):
            kt, j = order[n]
            g.e(f"v_mfma_f32_32x32x16_bf16 {vr(S + 16 * (n % 2), 16)}, {vr(KV + 12 * (kt % 3), 4)}, {vr(Q + 4 * j, 4)}, 0")

        def pv(n, half):
            kt, j = order[n]
            g.e(f"v_smfmac_f32_32x32x32_bf16 {vr(O + 16 * j, 16)}, {vr(KV + 12 * (kt % 3) + 4 + 4 * half, 4)}, {vr(S + 16 * (n % 2) + 8 * half, 8)}, v{vIdx}")

        g.stamp(f"B{layer}:ld")
        g.vwait(("Q", 0))
        g.stamp(f"B{layer}:q0")
        qk(0)
        for n in range(128):
            if cfg.b_align and n % cfg.b_align == 0:
                g.e(".p2align 3, , 4" if False else "")
            sb = S + 16 * (n % 2)
            ex = [f"v_exp_f32 v{sb + i}, v{sb + i}" for i in range(16)]
            g.e("\n".join(ex[0:2]))
            if n:
                pv(n - 1, 1)
            run(n, "A")
            run(n, "a")
            g.e("\n".join(ex[2:5]))
            if n < 127:
                qk(n + 1)
            run(n, "B")
            g.e("\n".join(ex[5:10]))
            pv(n, 0)
            run(n, "C")
            g.e("\n".join(ex[10:16]))
            run(n, "D")
            if n % 8 == 7:
                g.stamp(f"B{layer}_{n // 8}")
            if n in (0, 2, 5, 7, 15, 119, 123, 127):
                g.stamp(f"B{layer}:t{n}")
        assert not gaps, gaps.keys()
        pv(127, 1)
        if not cfg.b_tail:
            o_addr()
        def norm_text(s_):
            ob = O + 16 * (6 + s_)
            t = [f"v_rcp_f32 v{ob + 10}, v{ob + 8}", "s_nop 0"]
            t += [f"v_pk_mul_f32 {vr(ob + i, 2)}, {vr(ob + i, 2)}, {vr(ob + 10, 2)} op_sel_hi:[1,0]" for i in range(0, 8, 2)]
            t += [f"v_cvt_pk_bf16_f32 v{ob + 12 + i}, v{ob + 2 * i}, v{ob + 2 * i + 1}" for i in range(4)]
            return t + [g.st_text(vr(ob + 12, 4), vL16, sWS, (t0, t1)[s_], 0)]

        def norm(s_):
            t = norm_text(s_)
            g.e("\n".join(t[:-1]))
            g.vm(t[-1], "ost")
        for s_ in range(2):
            ob = O + 16 * (6 + s_)
            g.lwait(("p", s_))
            b0 = PB + 30 * s_
            if s_ == 1:
                for d in (1, 2):
                    g.e(f"v_add_f32 v{b0 + 8}, v{b0 + 8}, v{b0 + 10 * d + 8}")
                    for i in range(0, 8, 2):
                        g.e(f"v_pk_add_f32 {vr(b0 + i, 2)}, {vr(b0 + i, 2)}, {vr(b0 + 10 * d + i, 2)}")
            for d in range(3 if s_ == 0 else 1):
                b = b0 + 10 * d
                g.e(f"v_add_f32 v{ob + 8}, v{ob + 8}, v{b + 8}")
                for i in range(0, 8, 2):
                    g.e(f"v_pk_add_f32 {vr(ob + i, 2)}, {vr(ob + i, 2)}, {vr(b + i, 2)}")
            if cfg.guard_late:
                norm(s_)
        g.stamp(f"B{layer}:sum")
        if cfg.guard_late:
            assert not cfg.one_row
            g.softmax_guard(layer, O + 96, O + 112, norm_text(0) + norm_text(1))
        else:
            if cfg.one_row:
                g.e(g.bcast_l(O + 96, O + 112))
            g.softmax_guard(layer, O + 96, O + 112)
            for s_ in range(2):
                norm(s_)
        g.stamp(f"B{layer}st")
        self.CW = CW

    def bcast_l(self, o0, o1):
        return (f"v_mov_b32 v{o0 + 9}, v{o0 + 8}\nv_mov_b32 v{o1 + 9}, v{o1 + 8}\ns_nop 0\n"
                f"v_permlane32_swap_b32 v{o0 + 8}, v{o0 + 9}\nv_permlane32_swap_b32 v{o1 + 8}, v{o1 + 9}")

    def softmax_guard(self, layer, o0, o1, after=()):
        g = self
        Q, S, KV, vV = 144, 176, 208, 252
        M, T = 16, 18
        ls, lj, l1, l2 = g.label("fb"), g.label("fbj"), g.label("fb1"), g.label("fb2")
        g.lines.append("; softmax guard: row sums must lie in [2^-64, 2^120] and the outputs must be finite, otherwise")
        g.lines.append("; the tiles are recomputed with the true row maximum subtracted (out-of-line block)")
        for k, o in enumerate((o0, o1)):
            g.e(f"v_maximum3_f32 v{T + k}, abs(v{o}), abs(v{o + 1}), abs(v{o + 2})")
            g.e(f"v_maximum3_f32 v{T + k}, abs(v{o + 3}), abs(v{o + 4}), v{T + k}")
            g.e(f"v_maximum3_f32 v{T + k}, abs(v{o + 5}), abs(v{o + 6}), v{T + k}")
        g.e(f"""
        v_maximum3_f32 v{T}, abs(v{o0 + 7}), abs(v{o1 + 7}), v{T}
        v_minimum3_f32 v{M}, v{o0 + 8}, v{o1 + 8}, v{o1 + 8}
        v_maximum3_f32 v{M + 1}, v{o0 + 8}, v{o1 + 8}, v{o1 + 8}
        v_maximum3_f32 v{T}, v{T}, v{T + 1}, v{T + 1}
        s_mov_b32 s{t2}, {f2u(2.0 ** -64):#x}
        s_mov_b32 s{t3}, {f2u(2.0 ** 120):#x}
        s_mov_b32 s{t4}, 0x7f7fffff
        v_cmp_nle_f32 vcc, s{t2}, v{M}
        v_cmp_nge_f32 s[{t6}:{t7}], s{t3}, v{M + 1}
        v_cmp_nge_f32 s[{t10}:{t11}], s{t4}, v{T}
        s_nop 0
        s_or_b64 vcc, vcc, s[{t6}:{t7}]
        s_or_b64 vcc, vcc, s[{t10}:{t11}]
        s_cbranch_{'scc0' if g.cfg.force_fallback else 'scc1'} {ls}
        {lj}:
        """)
        fb = ["; softmax fall-back: pass 1 finds the true row maximum, pass 2 accumulates exp2(s - max)",
              f"{ls}:", f"s_lshl_b32 s{t2}, s{sC}, 17", f"s_add_u32 s{t2}, s{t2}, {aKV(layer)}", f"s_mov_b32 s{t3}, s{t2}",
              f"s_add_u32 s{t4}, s{t2}, 0x20000", f"v_mov_b32 v{M}, 0xff800000", f"v_mov_b32 v{M + 1}, 0xff800000", f"{l1}:",
              f"buffer_load_dwordx4 {vr(KV, 4)}, v{vL16}, {sr(sWS, 4)}, s{t3} offen sc1", "s_waitcnt vmcnt(0)"]
        for k in range(2):
            fb.append(f"v_mfma_f32_32x32x16_bf16 {vr(S + 16 * k, 16)}, {vr(KV, 4)}, {vr(Q + 24 + 4 * k, 4)}, 0")
        fb.append("s_nop 15")
        for k in range(2):
            for i in range(0, 16, 2):
                fb.append(f"v_max3_f32 v{M + k}, v{S + 16 * k + i}, v{S + 16 * k + i + 1}, v{M + k}")
        fb += [f"s_add_u32 s{t3}, s{t3}, 2048", f"s_cmp_lt_u32 s{t3}, s{t4}", f"s_cbranch_scc1 {l1}"]
        for k in range(2):
            fb += [f"v_mov_b32 v{T}, v{M + k}", "s_nop 1", f"v_permlane32_swap_b32 v{M + k}, v{T}", f"v_max_f32 v{M + k}, v{M + k}, v{T}"]
        for o in (o0, o1):
            fb += [f"v_mov_b32 v{o + r}, 0" for r in range(16)]
        fb += [f"s_mov_b32 s{t3}, s{t2}", f"{l2}:",
               f"buffer_load_dwordx4 {vr(KV, 4)}, v{vL16}, {sr(sWS, 4)}, s{t3} offen sc1",
               f"s_mov_b64 exec, s[{sVM}:{sVM + 1}]",
               f"buffer_load_dwordx4 {vr(KV + 4, 4)}, v{vV}, {sr(sWS, 4)}, s{t3} offen offset:1024 sc1",
               f"buffer_load_dwordx4 {vr(KV + 8, 4)}, v{vV}, {sr(sWS, 4)}, s{t3} offen offset:1536 sc1",
               "s_mov_b64 exec, -1", "s_waitcnt vmcnt(0)"]
        for k in range(2):
            fb.append(f"v_mfma_f32_32x32x16_bf16 {vr(S + 16 * k, 16)}, {vr(KV, 4)}, {vr(Q + 24 + 4 * k, 4)}, 0")
        fb.append("s_nop 15")
        for k in range(2):
            fb += [f"v_sub_f32 v{S + 16 * k + i}, v{S + 16 * k + i}, v{M + k}" for i in range(16)]
            fb += [f"v_exp_f32 v{S + 16 * k + i}, v{S + 16 * k + i}" for i in range(16)]
        fb.append("s_nop 1")
        for k, o in enumerate((o0, o1)):
            for h in range(2):
                fb.append(f"v_smfmac_f32_32x32x32_bf16 {vr(o, 16)}, {vr(KV + 4 + 4 * h, 4)}, {vr(S + 16 * k + 8 * h, 8)}, v{vIdx}")
        fb += [f"s_add_u32 s{t3}, s{t3}, 2048", f"s_cmp_lt_u32 s{t3}, s{t4}", "s_nop 7", f"s_cbranch_scc1 {l2}", "s_nop 15"]
        if g.cfg.one_row:
            fb += g.bcast_l(o0, o1).split("\n") + ["s_nop 1"]
        fb += list(after)
        fb.append(f"s_branch {lj}")
        g.tail.append("\n".join(fb))

    def reduce_write(self, acc, d, base):
        g = self
        ops = []

        def addr():
            g.e(f"s_xor_b32 s{t6}, s{sW}, {d}\ns_mul_i32 s{t6}, s{t6}, 12288")
        def addr2():
            g.e(f"s_add_u32 s{t6}, s{t6}, {base + (d - 1) * 4096}\nv_add_u32 v{vt0}, s{t6}, v{vL16}")
        ops += [addr, addr2]
        for q in range(4):
            ops.append(lambda q=q: g.ds(f"ds_write_b128 v{vt0}, {vr(acc + 4 * q, 4)} offset:{q * 1024}"))
        return ops

    def reduce_pre_ops(self, layer, which, base, Z, final):
        g = self
        ops = [f"s_mul_i32 s{t6}, s{sW}, 12288\ns_add_u32 s{t6}, s{t6}, {base}", f"v_add_u32 v{vt2}, s{t6}, v{vL16}"]
        for i in range(8):
            ops += [f"v_lshlrev_b32 v{Z + 2 * i}, 16, v{vRes + i}", f"v_and_b32 v{Z + 2 * i + 1}, s{sMask}, v{vRes + i}"]
        ops.append(f"s_lshl_b32 s{t0}, s{sCB}, 1\ns_add_u32 s{t0}, s{t0}, s{sNA}")
        if final:
            ops.append(lambda: g.srd(sOUT, pOUT, 2048 * 1024))
            ops += [f"v_bfe_u32 v{vt3}, v{vL16}, 4, 5", f"v_lshlrev_b32 v{vt3}, 10, v{vt3}", f"v_lshrrev_b32 v{vIdx}, 9, v{vL16}",
                    f"v_lshl_add_u32 v{vt3}, v{vIdx}, 4, v{vt3}",
                    f"s_lshl_b32 s{t7}, s{sTA}, 15\ns_lshl_b32 s{t8}, s{t0}, 6", f"s_add_u32 s{t7}, s{t7}, s{t8}"]
        else:
            ops += [f"v_mov_b32 v{vt3}, 0x3f803f80",
                    f"s_lshl_b32 s{t7}, s{sTA}, 15\ns_lshl_b32 s{t8}, s{t0}, 11",
                    f"s_add_u32 s{t7}, s{t7}, s{t8}\ns_add_u32 s{t7}, s{t7}, {aX(layer, which)}",
                    f"s_lshl_b32 s{t8}, s{sTA}, 12\ns_lshr_b32 s{t9}, s{t0}, 2",
                    f"s_lshl_b32 s{t9}, s{t9}, 10\ns_add_u32 s{t8}, s{t8}, s{t9}",
                    f"s_and_b32 s{t9}, s{t0}, 3\ns_lshl_b32 s{t9}, s{t9}, 2",
                    f"s_add_u32 s{t8}, s{t8}, s{t9}\ns_add_u32 s{t8}, s{t8}, {aST(layer, which)}"]
        return ops

    def reduce_pre(self, layer, which, base, Z, final):
        self.take(deque(self.reduce_pre_ops(layer, which, base, Z, final)), 999)

    def reduce_read_ops(self, ds_, PB, Z, pk=False):
        g = self
        ops = []

        def bar():
            g.lwait0()
            g.e("s_barrier")
        ops.append(bar)
        for k, d in enumerate(ds_):
            for q in range(4):
                ops.append(lambda k=k, d=d, q=q: g.ds(
                    f"ds_read_b128 {vr(PB + 16 * k + 4 * q, 4)}, v{vt2} offset:{(d - 1) * 4096 + q * 1024}", ("p", d, q)))
        for k, d in enumerate(ds_):
            for q in range(4):
                def add(k=k, d=d, q=q):
                    g.lwait(("p", d, q))
                    if pk:
                        for i in range(4 * q, 4 * q + 4, 2):
                            g.e(f"v_pk_add_f32 {vr(Z + i, 2)}, {vr(Z + i, 2)}, {vr(PB + 16 * k + i, 2)}")
                        return
                    for i in range(4 * q, 4 * q + 4):
                        g.e(f"v_add_f32 v{Z + i}, v{Z + i}, v{PB + 16 * k + i}")
                ops.append(add)
        return ops

    def reduce_finish(self, layer, which, acc, Z, final):
        g = self
        g.stamp(f"{'CE'[which]}{layer}_r0")
        for h in range(2):
            for i in range(8 * h, 8 * h + 8, 2):
                g.e(f"v_pk_add_f32 {vr(acc + i, 2)}, {vr(acc + i, 2)}, {vr(Z + i, 2)}")
            for i in range(4 * h, 4 * h + 4):
                g.e(f"v_cvt_pk_bf16_f32 v{vRes + i}, v{acc + 2 * i}, v{acc + 2 * i + 1}")
            if final:
                g.st(vr(vRes + 4 * h, 4), vt3, sOUT, t7, 32 * h, g.cfg.out_mods)
            else:
                g.st(vr(vRes + 4 * h, 4), vL16, sWS, t7, 1024 * h)
        if final:
            return
        for i in range(4):
            g.e(f"v_mov_b32 v{Z + i}, 0")
        for i in range(8):
            g.e(f"v_dot2c_f32_bf16 v{Z + i % 2}, v{vRes + i}, v{vt3}")
            g.e(f"v_dot2c_f32_bf16 v{Z + 2 + i % 2}, v{vRes + i}, v{vRes + i}")
        g.e(f"s_nop 1\nv_add_f32 v{Z}, v{Z}, v{Z + 1}\nv_add_f32 v{Z + 2}, v{Z + 2}, v{Z + 3}\ns_nop 1")
        g.e(f"v_permlane32_swap_b32 v{Z}, v{Z + 2}\nv_add_f32 v{Z}, v{Z}, v{Z + 2}")
        g.dual(g.st_text(vr(Z), vL16, sWS, t8, 0, "", 1), g.st_text(vr(Z), vL16, sWS, t8, 0, "sc1", 1), 1)
        g.vmq[-1] = "stst"

    def splitk_body(self, nks, wreg, hreg, ldh, nup, AC, PB, Z, SC, SK, name, extra=(), after=()):
        g = self
        nxt = [nup]
        after = deque(after)
        for m in range(nup):
            ldh(m)

        def more():
            if nxt[0] < 2 * nks and nxt[0] - self.ring < self.consumed:
                ldh(nxt[0])
                nxt[0] += 1
            elif nxt[0] == 2 * nks and after:
                after.popleft()()

        def mf(tk, n, i):
            m = i if tk else nks + i
            acc = AC[2 * tk + n]
            c = vr(acc, 16) if i else "0"
            g.e(f"v_mfma_f32_32x32x16_bf16 {vr(acc, 16)}, {wreg(2 * i + n)}, {hreg(m)}, {c}")
        side = deque()

        def pop(k=1):
            for _ in range(k):
                if side:
                    o = side.popleft()
                    if o:
                        o()
        self.consumed = 0
        for i in range(nks):
            g.vwait(("h", i))
            if i == 0:
                g.stamp(f"Z{name[1]}:Cfirst")
            mf(1, 1, i)
            mf(1, 0, i)
            self.consumed = i + 1
            more()
            if i % 8 == 7:
                g.stamp(f"{name}_{i}")
        w3 = g.reduce_write(AC[3], 3, SC)
        w2 = g.reduce_write(AC[2], 2, SC)
        w1 = g.reduce_write(AC[1], 1, SC)
        side.extend(w3[:2] + [None] * 2 + w3[2:] + w2)
        early = nks >= 16 or g.cfg.early_c
        if early:
            side.extend([None] * 2 + g.reduce_read_ops((3, 2), PB, Z))
        side.extend(extra)
        per = 1 if nks >= 16 else (4 if early else 2)
        for i in range(nks + SK):
            if i < nks:
                g.vwait(("h", nks + i))
                mf(0, 1, i)
                more()
                pop(per)
            if i == nks:
                g.stamp(f"Z{name[1]}:CAB")
                pop(len(side))
                side.extend(w1[:2] + [None] * 3 + w1[2:])
                rr = g.reduce_read_ops((1,) if early else (3, 2, 1), PB, Z, pk=g.cfg.c_pk)
                side.extend(rr)
                per = -(-(len(side) - (len(rr) // 2 if g.cfg.c_pk else 0)) // SK)
            if i >= SK:
                mf(0, 0, i - SK)
                pop(per)
            if i % 8 == 7:
                g.stamp(f"{name}_a{i}")
        pop(len(side))
        while after:
            after.popleft()()

    def phaseC(self, layer):
        g = self
        CW = g.CW
        OF = 144
        AC = [16, 32, 48, 64]
        PB, Z = 80, 128
        SC = 104 * 1024
        g.e(f"""
        v_and_b32 v{vt0}, 28, v{vL4}
        s_lshl_b32 s{t2}, s{sX}, 2
        s_lshr_b32 s{t3}, s{sC}, 3
        s_add_u32 s{t2}, s{t2}, s{t3}
        s_lshl_b32 s{t2}, s{t2}, 2
        s_add_u32 s{t2}, s{t2}, s{sW}
        s_lshl_b32 s{t2}, s{t2}, 7
        s_add_u32 s{t2}, s{t2}, {FB}
        s_lshl_b32 s{t3}, s{sTB}, 15
        s_lshl_b32 s{t4}, s{sW}, 13
        s_add_u32 s{t3}, s{t3}, s{t4}
        s_add_u32 s{t3}, s{t3}, {aO(layer)}
        s_xor_b32 s{t4}, s{t3}, 32768
        """)
        if "q" not in g.cfg.dbg:
            g.vwait("ost")
        g.stamp(f"Z{layer}:Back")
        g.signal(2, layer + 1, True)
        g.e("s_barrier")
        g.reduce_pre(layer, 0, SC, Z, False)
        g.poll(vt0, t2, layer + 1, True)
        g.stamp(f"C{layer}go")

        def ofr(m):
            return 208 + 4 * m if m < 3 and g.cfg.b_tail else OF + 4 * m

        def ldo(m):
            tk, i = (1, m) if m < 8 else (0, m - 8)
            so = t3 if tk else t4
            if i == 4:
                g.e(f"s_add_u32 s{so}, s{so}, 4096")
            g.ld(vr(ofr(m), 4), vL16, sWS, so, (i % 4) * 1024, tag=("h", m))
        self.ring = 16
        after = []
        if "C" in g.cfg.touch:
            after = [lambda: g.e(f"v_and_b32 v{vt1}, 0x3c0, v{vL16}\nv_lshlrev_b32 v{vt1}, 1, v{vt1}")]
            after += g.touch_ops(g.h_addr(layer, t9, t10), t9, 4, vt1, vIdx)
        if g.cfg.c_pre:
            after += [lambda: g.e(f"s_mul_i32 s{t9}, s{sHP}, 7168\ns_add_u32 s{t9}, s{t9}, {WX13}\ns_add_u32 s{t10}, s{t9}, 4096")]
            after += [lambda n=n: g.ld(vr(g.D_AX[n], 4), vL16, sWS, (t9, t10)[n // 4], (n % 4) * 1024, tag=("ax", n)) for n in g.D_AXPRE]
            after += [lambda: g.e(f"s_mul_i32 s{t11}, s{sHP}, 229376\ns_add_u32 s{t11}, s{t11}, {W13}")]
            after += g.dma_ops(152, 2, t11, 152 * 1024, "w13e", (t9, t10))
        g.splitk_body(8, lambda i: CW[i](0, 4), lambda m: vr(ofr(m), 4), ldo, g.cfg.up_c, AC, PB, Z, SC, 8, f"C{layer}", after=after)
        g.reduce_finish(layer, 0, AC[0], Z, False)
        g.stamp(f"C{layer}st")

    def phaseD(self, layer):
        g = self
        cfg = g.cfg
        p421 = cfg.passes == [(0, 4), (4, 6), (6, 7)]
        assert p421 or cfg.passes[:2] in ([(0, 3), (3, 5)], [(0, 2), (2, 4)])
        X = 16
        ACC = [144 + 16 * i for i in range(6)] + [144] if p421 else [144, 160, 176, 192, 208, 144, 160]
        vB = [vL16, 240, 241]
        kexp, cden = 242, 243
        ET = 244
        BX = 248
        AX = g.D_AX
        SB = 224
        g.e(f"v_and_b32 v{vt0}, 60, v{vL4}\ns_lshl_b32 s{t2}, s{sT}, 7\ns_add_u32 s{t2}, s{t2}, {FC}")
        g.e(f"v_add_u32 v{vB[1]}, 0x10000, v{vL16}\nv_add_u32 v{vB[2]}, 0x20000, v{vL16}")
        g.e(f"s_mul_i32 s{t11}, s{sHP}, 229376\ns_add_u32 s{t11}, s{t11}, {W13}")
        g.e(f"s_mul_i32 s{t3}, s{sHP}, 7168\ns_mul_i32 s6, s{sT}, {112 * 1024}\ns_add_u32 s6, s6, s{t3}\ns_add_u32 s6, s6, {aH(layer)}\ns_add_u32 s7, s6, 4096")
        g.e(f"s_add_u32 s{t3}, s{t3}, {WX13}\ns_add_u32 s3, s{t3}, 4096")
        if "q" not in g.cfg.dbg:
            g.vwait("stst")
        g.stamp(f"Z{layer}:Cack")
        g.signal(3, layer + 1, True)
        g.e("s_barrier")

        def wread(f):
            slot = f % 160
            g.ds(f"ds_read_b128 {ar(WB + 4 * (f % 8), 4)}, v{vB[slot // 64]} offset:{(slot % 64) * 1024}", ("w", f))
        LEAD = 7
        for f in range(LEAD):
            wread(f)
        pre, xrest, stl = g.load_x_stats(layer, 0, aX(layer, 0), X, SB, cfg.up_d)
        xrest = deque(xrest)
        g.poll(vt0, t2, layer + 1, True)
        g.stamp(f"D{layer}go")
        pre()
        side = deque()
        mem = deque()

        def epi_ops(n):
            a = ACC[n]
            ops = []
            for half in range(2):
                r0 = a + 4 * half
                for i in range(4):
                    ops.append(f"v_mul_f32 v{ET + i}, v{kexp}, v{r0 + i}")
                for i in range(4):
                    ops.append(f"v_exp_f32 v{ET + i}, v{ET + i}")
                for i in range(4):
                    ops.append(f"v_mul_f32 v{r0 + i}, v{r0 + i}, v{r0 + 8 + i}")
                for i in range(4):
                    ops.append(f"v_fma_f32 v{ET + i}, v{ET + i}, v{cden}, v{cden}")
                for i in range(4):
                    ops.append(f"v_rcp_f32 v{ET + i}, v{ET + i}")
                for i in range(4):
                    ops.append(f"v_mul_f32 v{r0 + i}, v{r0 + i}, v{ET + i}")
            for i in range(4):
                ops.append(f"v_cvt_pk_bf16_f32 v{a + 8 + i}, v{a + 2 * i}, v{a + 2 * i + 1}")
            if "h" in cfg.dbg and n < 3:
                ops.append(lambda: g.vmq.append(("hst", n)) or g.e("s_nop 0") or g.vmq.pop())
            else:
                ops.append(lambda: g.st(vr(a + 8, 4), vL16, sWS, (6, 7)[n // 4], (n % 4) * 1024, cfg.hmods[layer], tag="hst" if n == 6 else ("hst", n)))
            return ops

        def xmf(n, first):
            acc = vr(ACC[n], 16)
            assert g.vmq.count(("ax", n)) + g.waited.get(("ax", n), 0) == layer + 1, n
            g.vwait(("ax", n))
            g.e(f"v_mfma_f32_32x32x16_bf16 {acc}, {vr(AX[n], 4)}, {vr(BX, 4)}, {'0' if first else acc}")

        def stats_go():
            side.extend([None] * cfg.st_pad + g.stats_ops(SB, kexp, cden, BX) + ["s_nop 0", f"v_mul_f32 v{kexp}, {f2u(-LOG2E):#x}, v{kexp}",
                                                                                           lambda: state.update(done=True)])
        def axld(n):
            assert not 224 <= AX[n] < 240 or state.get("done")
            g.ld(vr(AX[n], 4), vL16, sWS, (t3, 3)[n // 4], (n % 4) * 1024, tag=("ax", n))
        state = {"stats": False}

        def stats_mark():
            state["stats"] = True
            stats_go()
        xr = list(xrest)
        k = cfg.st_d
        mem.extend(xr[:k] + stl + [SOp(stats_mark)] + xr[k:])
        nb2 = (152 - 132) // 4 if cfg.c_pre else 7
        axs = [lambda n=n: axld(n) for n in range(7) if not (cfg.c_pre and n in g.D_AXPRE)]
        mem.extend(axs[:cfg.ax_first])
        mem.extend(g.dma_ops(104, 7, t11, 104 * 1024, "w13b", (t8, t9)))
        mem.extend(axs[cfg.ax_first:])
        mem.extend(g.dma_ops(132, nb2, t11, 132 * 1024, "w13b2", (t8, t9)))
        batches = {104: ("w13b", 7), 132: ("w13b2", nb2), 160: ("w13c", 8), 192: ("w13d", 8)}
        g.e_plan(layer)
        esetup = g.e_setup(layer)
        f = 0
        for pi, (a, b) in enumerate(cfg.passes):
            wdt = b - a
            nm = 32 * wdt
            tot = sum(0 if isinstance(o, tuple) else (2 if isinstance(o, str) and o.startswith(("v_exp", "v_rcp")) else 1) for o in side)
            done = 0
            for ks in range(32):
                for n in range(a, b):
                    if pi == 0 and n == a:
                        assert ("x", ks) in g.vmq or ("x", ks) in g.waited
                        g.vwait(("x", ks))
                        if ks == 0:
                            g.stamp(f"Z{layer}:Dfirst")
                    if f % 4 == 0:
                        g.lwait(("w", min(f + 3, 223)))
                    c = vr(ACC[n], 16) if ks or pi else "0"
                    g.e(f"v_mfma_f32_32x32x16_bf16 {vr(ACC[n], 16)}, {ar(WB + 4 * (f % 8), 4)}, {vr(X + 4 * ks, 4)}, {c}")
                    fn = f + LEAD
                    if fn in batches:
                        tag, cnt = batches[fn]
                        assert g.vmq.count(tag) + self.waited.get(tag, 0) == cnt * (layer + 1), (fn, tag)
                        g.vwait(tag)
                        if fn == 160 and layer == 0:
                            g.lwait0()
                        g.e("s_barrier")
                    if fn == cfg.bar_c:
                        if fn not in batches:
                            g.e("s_barrier")
                        if "c" in cfg.dbg:
                            batches[160] = batches[192] = ("none", 0)
                        elif "l" in cfg.dbg:
                            mem.extend(g.dma_ops(0, 8, t11, 0, "w13c", (t8, t9)))
                            mem.extend(g.dma_ops(0, 8, t11, 32 * 1024, "w13d", (t8, t9)))
                        else:
                            mem.extend(g.dma_ops(160, 8, t11, 0, "w13c", (t8, t9)))
                            mem.extend(g.dma_ops(192, 8, t11, 32 * 1024, "w13d", (t8, t9)))
                        if layer == 0 and cfg.ew_in_b < 56:
                            mem.extend(g.ew_ops(cfg.ew_in_b, 56, (t4, t5)))
                    if cfg.ct_d and f == cfg.ct_d[0] and layer in cfg.ct_d[3]:
                        mem.append(lambda: g.code_touch(cfg.ct_d[1], cfg.ct_d[2], vt2, vt3))
                    if f == cfg.d_touch[layer]:
                        if cfg.d_t1:
                            tt = [SOp(lambda: g.e(f"v_lshlrev_b32 v{vt2}, 3, v{vL16}\nv_min_u32 v{vt2}, {55 * 128}, v{vt2}")),
                                  lambda: g.ld(vr(vt3), vt2, sWS, 6, 0, tag="pf", w=1)]
                            if cfg.d_t1 == 2:
                                mem.extendleft(reversed(tt))
                            else:
                                mem.extend(tt)
                        else:
                            mem.append(SOp(lambda: g.e(f"v_and_b32 v{vt2}, 0x3c0, v{vL16}\nv_lshlrev_b32 v{vt2}, 1, v{vt2}\ns_mov_b32 s{t10}, s6")))
                            mem.extend(g.touch_ops([], t10, 4, vt2, vt3))
                    if fn == 160 and layer == 0:
                        mem.append(SOp(lambda: g.e(f"s_mul_i32 s64, s{sHP}, {96 * 1024}\ns_add_u32 s64, s64, {WQ}")))
                        wq = g.dma_ops(0, 24, 64, 65536, "wq", (62, 63))
                        cut = [i for i, o in enumerate(wq) if not isinstance(o, SOp)][cfg.wq_d - 1] + 1 if cfg.wq_d else 2
                        mem.extend(wq[:cut])
                        g.wq_rest = wq[cut:]
                    if fn < 224:
                        wread(fn)
                    m = ks * wdt + (n - a) + 1
                    if pi == 0:
                        g.take(side, cfg.st_cap)
                    else:
                        if cfg.d_cap:
                            g.take(side, 0 if m <= 2 else cfg.d_cap - (f % 4 == 3), exact=True)
                        else:
                            want = 0 if m <= 2 else min(-(-tot * m // nm) - done, 6)
                            g.take(side, want)
                            done += want
                    if mem and isinstance(mem[0], SOp):
                        mem.popleft()()
                    elif mem and f % 2 == 0:
                        mem.popleft()()
                    if f == cfg.d_sig:
                        assert g.vmq.count(("hst", cfg.ne - 1)) + g.waited.get(("hst", cfg.ne - 1), 0) == layer + 1
                        g.vwait(("hst", cfg.ne - 1))
                        g.signal(4, g.e_nst * layer + 1, True)
                    if cfg.d_sig < f <= cfg.d_sig + len(esetup):
                        g.e(esetup[f - cfg.d_sig - 1])
                    if f == cfg.d_pl:
                        g.flag_load("fd1")
                    if f == cfg.d_ck:
                        g.flag_check("fd1", g.e_nst * layer + 1)
                        g.stamp(f"D{layer}_chk")
                    if f >= cfg.d_ck:
                        for _ in range(cfg.d_nl):
                            if g.e_next < cfg.e_pre and g.e_next < f - 192 and (f - cfg.d_ck) % cfg.d_step == 0:
                                g.e_load()
                    f += 1
                    if f % 32 == 0:
                        g.stamp(f"D{layer}_{f}")
                    g.stamp(f"Dx{layer}:{f}.")
            g.take(side, 9999)
            if pi == 0:
                assert state["stats"]
                for n in range(a, b):
                    xmf(n, False)
            if pi + 1 < len(cfg.passes):
                for n in range(*cfg.passes[pi + 1]):
                    xmf(n, True)
            for n in range(a, b):
                side.extend(epi_ops(n))
        g.e("s_barrier")
        while mem:
            mem.popleft()()
        g.stamp(f"D{layer}st")
        return side

    E_HR, E_NR = 16, 32

    def e_plan(self, layer):
        NE = self.cfg.ne
        if self.cfg.e3:
            st = [[7 * f + n for f in range(4) for n in rng] for rng in (range(NE), range(NE, 6), range(6, 7))]
            order = [(1, 0), (0, 0), (1, 1), (1, 2), (0, 1), (0, 2)]
        else:
            st = [[7 * f + n for f in range(4) for n in rng] for rng in (range(NE), range(NE, 7))]
            order = [(1, 0), (0, 0), (1, 1), (0, 1)]
        self.e_seq = [(tk, i) for tk, s_ in order for i in st[s_]]
        self.e_stage = [s_ for tk, s_ in order for i in st[s_]]
        self.e_nst = len(st)
        self.e_next = 0
        self.e_base = None

    def e_setup(self, layer):
        return [f"v_and_b32 v{vt0}, 28, v{vL4}",
                f"s_lshr_b32 s{t2}, s{sTA}, 1\ns_lshl_b32 s{t2}, s{t2}, 2", f"s_add_u32 s{t2}, s{t2}, s{sW}\ns_lshl_b32 s{t2}, s{t2}, 7",
                f"s_add_u32 s{t2}, s{t2}, {FD}\ns_mul_i32 s{t5}, s{sW}, {28 * 1024}", f"s_add_u32 s{t5}, s{t5}, {aH(layer)}\ns_mul_i32 s{t3}, s{sTB}, {112 * 1024}",
                f"s_add_u32 s{t3}, s{t3}, s{t5}\ns_mul_i32 s{t4}, s{sTA}, {112 * 1024}", f"s_add_u32 s{t4}, s{t4}, s{t5}"]

    def e_load(self):
        g = self
        m = g.e_next
        tk, i = g.e_seq[m]
        key = (tk, i // 7, (i % 7) // 4)
        if g.e_base != key:
            g.e(f"s_add_u32 s{t5}, s{(t4, t3)[tk]}, {(i // 7) * 7168 + ((i % 7) // 4) * 4096}")
            g.e_base = key
        g.ld(vr(g.E_HR + 4 * (m % g.E_NR), 4), vL16, sWS, t5, ((i % 7) % 4) * 1024, mods=g.cfg.hlmods, tag=("h", m))
        g.e_next += 1

    def flag_load(self, tag):
        self.ld(vr(vt1), vt0, sWS, t2, 0, tag=tag, w=1)

    def flag_check(self, tag, val):
        g = self
        g.late_check(tag, f"buffer_load_dword v{vt1}, v{vt0}, {sr(sWS, 4)}, s{t2} offen sc1", f"v_cmp_gt_u32 vcc, {val}, v{vt1}", 0)
        g.dual("", "buffer_inv sc1\ns_waitcnt vmcnt(0)", 0)

    def phaseE(self, layer, final, side):
        g = self
        cfg = g.cfg
        HR, NR = g.E_HR, g.E_NR
        PB, Z = 144, 176
        AC = [240, 224, 208, 192]
        SC = 0
        seq, stage, nst = g.e_seq, g.e_stage, g.e_nst
        N = len(seq)
        seen = set()
        consumed = [0]

        def more(k=1):
            for _ in range(k):
                if g.e_next < N and g.e_next - NR < consumed[0] and stage[g.e_next] <= state["ok"]:
                    g.e_load()

        def mf(m, n):
            tk, i = seq[m]
            acc = vr(AC[2 * tk + n], 16)
            g.e(f"v_mfma_f32_32x32x16_bf16 {acc}, {ar(4 * (2 * i + n), 4)}, {vr(HR + 4 * (m % NR), 4)}, {acc if (tk, n) in seen else '0'}")
            seen.add((tk, n))
        state = {"ok": 0, "st": None}
        nB = max(m for m in range(N) if seq[m][0] == 1) + 1
        w3 = g.reduce_write(AC[3], 3, SC)
        w2 = g.reduce_write(AC[2], 2, SC)
        w1 = g.reduce_write(AC[1], 1, SC)
        for m in range(nB):
            assert g.e_next > m, m
            g.vwait(("h", m))
            for n in (1, 0):
                mf(m, n)
                g.take(side, 5 if state["st"] is None else 2, exact=True)
            consumed[0] = m + 1
            g.stamp(f"Ex{layer}:{m}.")
            if nst == 3:
                if m == cfg.e2_sig:
                    g.vwait(("hst", 5))
                    g.signal(4, 3 * layer + 2, True)
                if m == cfg.e2_pl:
                    g.flag_load("fd2")
                if m == cfg.e2_ck:
                    g.flag_check("fd2", 3 * layer + 2)
                    state["ok"] = 1
            if state["st"] is None:
                if not side:
                    state["st"] = m
                else:
                    more(2 if g.e_next - m < cfg.e_pre else 1)
            if state["st"] is not None:
                d = m - state["st"]
                if d == cfg.e_sig:
                    assert nst == 2 or m > cfg.e2_ck
                    g.vwait("hst")
                    g.signal(4, nst * layer + nst, True)
                    g.stamp(f"E{layer}_sig")
                if d == 0:
                    side.extend(g.reduce_pre_ops(layer, 1, SC, Z, final))
                if d == cfg.e_sig + cfg.e_pl:
                    g.flag_load("fd3")
                if d == cfg.e_sig + cfg.e_pl + cfg.e_ck:
                    g.flag_check("fd3", nst * layer + nst)
                    g.stamp(f"E{layer}_chk")
                    state["ok"] = nst - 1
                more(2 if g.e_next - m < cfg.up_e else 1)
        assert state["ok"] == nst - 1
        if cfg.e_single:
            PB = 128
            assert all(not 28 <= m % NR for m in range(nB, N))
            side.extend(w3[:2] + [None] * 2 + w3[2:] + w2)
        else:
            side.extend(w3[:2] + [None] * 2 + w3[2:] + w2 + [None] + g.reduce_read_ops((3, 2), PB, Z))
        tailq = deque(g.wq_rest if layer == 0 else [])
        if "E" in cfg.touch and not final:
            tq = [SOp(lambda: g.e(f"v_and_b32 v{vt1}, 0x3c0, v{vL16}\nv_lshlrev_b32 v{vt1}, 1, v{vt1}\ns_and_b32 s{t9}, s{t8}, 0xfffffc00"))]
            tq += g.touch_ops([], t7, 1, vt1, vIdx) + g.touch_ops([], t9, 1, vt1, vIdx)
            if cfg.ax_e == 2:
                tq += [SOp(lambda: g.e(f"s_min_u32 s{t9}, s{sW}, 2\ns_lshl_b32 s{t9}, s{t9}, 4\ns_add_u32 s{t9}, s{t9}, s{sHP}\ns_lshl_b32 s{t9}, s{t9}, 10\ns_add_u32 s{t9}, s{t9}, {WXQ}"))]
                tq += g.touch_ops([], t9, 1, vt1, vIdx)
            tailq.extendleft(reversed(tq))
        if final and cfg.wb:
            def wb():
                L = g.label("wb")
                g.e(f"s_lshl_b32 s{t5}, s{sC}, 2\ns_add_u32 s{t5}, s{t5}, s{sW}\ns_cmp_lt_u32 s{t5}, {cfg.wb}\ns_cbranch_scc0 {L}\nbuffer_wbl2 sc1\n{L}:")
            tailq.append(wb)
        nA, SK = N - nB, cfg.sk_e
        per = -(-len(side) // (nA + max(nA - SK, 0)))
        for i in range(nA + SK):
            if i < nA:
                g.vwait(("h", nB + i))
                mf(nB + i, 1)
                more()
                g.take(side, per)
            if g.e_next == N and tailq:
                while isinstance(tailq[0], SOp):
                    tailq.popleft()()
                tailq.popleft()()
            if i == nA:
                g.stamp(f"Ex{layer}:AB.")
                g.take(side, 999)
                rr = g.reduce_read_ops((3, 2, 1) if cfg.e_single else (1,), PB, Z, pk=cfg.e_pk)
                side.extend(w1[:2] + [None] * 3 + w1[2:] + rr)
                per = -(-(len(side) - (len(rr) // 2 if cfg.e_pk else 0)) // SK)
            if i >= SK:
                mf(nB + i - SK, 0)
                g.take(side, per)
        g.take(side, 999)
        while tailq:
            tailq.popleft()()
        g.reduce_finish(layer, 1, AC[0], Z, final)
        g.stamp(f"E{layer}st")
        if not final:
            if cfg.ax_e:
                g.e(f"s_lshl_b32 s{t4}, s{sHP}, 10\ns_add_u32 s{t4}, s{t4}, {WXQ}")
                for n in "qkv":
                    g.ld(vr(g.A_AX[n], 4), vL16, sWS, t4, 0, tag="ax")
                    g.e(f"s_add_u32 s{t4}, s{t4}, 16384")
                g.vwait("stst")
            else:
                g.vwait0()
            g.stamp(f"Z{layer}:Eack")
            g.signal(5, layer + 1, True)
            g.e("s_barrier")

    def build(self):
        g = self
        cfg = g.cfg
        g.prologue()
        done = False
        for layer in range(2):
            for ph in "ABCDE":
                mark = len(g.lines)
                g.lines.append(f"; ======== layer {layer}, phase {ph}: " + {
                    "A": "LayerNorm + QKV projection (LN applied as mean/rstd correction of the raw product)",
                    "B": "attention, one head x 256 queries per workgroup, keys split over the four waves",
                    "C": "output projection + residual, 64x64 tile, K split over the waves",
                    "D": "LayerNorm + W1/W3 + SwiGLU, 128 tokens x 112 features",
                    "E": "W2 + residual, 64x64 tile, K split over the waves"}[ph])
                if ph == "A":
                    g.phaseA1(layer) if layer else (g.phaseA0b() if cfg.a0b else g.phaseA0())
                elif ph == "B":
                    g.phaseB(layer)
                elif ph == "C":
                    g.phaseC(layer)
                elif ph == "D":
                    rest = g.phaseD(layer)
                else:
                    g.phaseE(layer, layer == 1, rest)
                if ph in cfg.hack16 and layer == 1:
                    import re
                    out, k, pend, cnt = [], 0, None, 0
                    for ln in g.lines[mark:]:
                        m = re.match(r"v_mfma_f32_32x32x16_bf16 v\[(\d+):\d+\], (\S+), (\S+), (\S+)$", ln)
                        brk = m or ln.endswith(":") or ln.startswith(("s_cbranch", "s_barrier", "s_waitcnt vm", "ds_write", "buffer_store"))
                        if pend and (brk or cnt >= cfg.hack_gap):
                            out.append(pend)
                            pend = None
                        if m:
                            b = int(m.group(1))
                            two = []
                            for h in range(2):
                                o = b + 4 * ((2 * k + h) % 4)
                                c = "0" if m.group(4) == "0" else f"v[{o}:{o + 3}]"
                                two.append(f"v_mfma_f32_16x16x32_bf16 v[{o}:{o + 3}], {m.group(2)}, {m.group(3)}, {c}")
                            out.append(two[0])
                            pend, cnt = two[1], 0
                            k += 1
                        else:
                            out.append(ln)
                            cnt += 1
                    if pend:
                        out.append(pend)
                    g.lines[mark:] = out
                if cfg.stop == f"{ph}{layer}":
                    done = True
                    break
            if done:
                break
        if cfg.ts:
            g.vwait0()
            g.stamp("end") if g.nts < 16 else None
            g.e(f"s_lshl_b32 s{t0}, s2, 2\ns_add_u32 s{t0}, s{t0}, s{sW}\ns_lshl_b32 s{t0}, s{t0}, 7\ns_add_u32 s{t0}, s{t0}, {TS}")
            g.e(f"v_mov_b32 v{vt0}, 0")
            for i in range(g.nts):
                g.e(f"v_writelane_b32 v{vt0}, s{sTS + i}, {i}")
            g.e(f"v_writelane_b32 v{vt0}, s{sMode}, 31")
            g.e("s_mov_b32 exec_hi, 0")
            g.st(vr(vt0), vL4, sWS, t0, 0, w=1)
            if cfg.ts_dbg is not None:
                g.e(f"s_cmp_eq_u32 s2, {cfg.ts_dbg}\ns_cbranch_scc0 L_exit\ns_cmp_eq_u32 s{sW}, 0\ns_cbranch_scc0 L_exit")
                g.e(f"v_subrev_u32 v{vt0}, s{sTS}, v{vt0}")
                g.st(vr(vt0), vL4, sDBG, None, 0, w=1)
        g.e("L_exit:\ns_endpgm")
        g.lines.append("; device-scope variants of the hand-offs, softmax fall-back")
        for t in g.tail:
            g.e(t)
        g.e("L_end:")
        lines, rep = fix_hazards(g.lines)
        return lines, rep


HEADER = """; Fused two-layer transformer block (LN+QKV, attention, WO, LN+W1/W3+SwiGLU, W2) as one persistent launch.
; Written with a hand-made generator script.  256 workgroups (one per CU) x 4 waves x 512 registers.
; Workgroups with equal id%8 own 256 token rows; phases hand data over through d_ws with per-wave flags that are
; cleared at the start of every launch (d_debug tells when).  Hand-offs inside a row group go through the shared L2
; @launch grid=(256,1,1) block=(256,1,1) lds=163840
.amdgcn_target "amdgcn-amd-amdhsa--gfx950"
.text
.globl {name}_kernel
.p2align 8
.type {name}_kernel,@function
{name}_kernel:
"""
FOOTER = """
.section .rodata,"a"
.p2align 6
.amdhsa_kernel {name}_kernel
  .amdhsa_next_free_vgpr 512
  .amdhsa_next_free_sgpr 102
  .amdhsa_accum_offset 256
  .amdhsa_group_segment_fixed_size 0
  .amdhsa_kernarg_size 80
  .amdhsa_user_sgpr_count 2
  .amdhsa_user_sgpr_kernarg_segment_ptr 1
  .amdhsa_system_sgpr_workgroup_id_x 1
  .amdhsa_float_denorm_mode_32 3
.end_amdhsa_kernel
"""


def generate(path, **kw):
    cfg = Cfg()
    for k, v in kw.items():
        setattr(cfg, k, v)
    set_alias(cfg.alias)
    g = Gen(cfg)
    lines, rep = g.build()
    txt = HEADER.format(name=NAME) + "\n".join(("" if l.endswith(":") else "  ") + l for l in lines) + FOOTER.format(name=NAME)
    open(path, "w").write(txt)
    return g, rep


if __name__ == "__main__":
    import argparse
    ap = argparse.ArgumentParser()
    ap.add_argument("-o", default=f"cdna_kernels/{NAME}.s")
    ap.add_argument("--stop")
    ap.add_argument("--ts", action="store_true")
    ap.add_argument("--slow", action="store_true")
    ap.add_argument("-v", action="store_true")
    a = ap.parse_args()
    g, rep = generate(a.o, stop=a.stop, ts=a.ts, force_slow=a.slow)
    print("lines", len(g.lines), "nops inserted", len(rep), "stamps", g.tsnames)
    if a.v:
        for r in rep:
            print(r)
```
